```python
import torch

def _softmax(x, axis=-1):
    return torch.softmax(x, dim=axis)

def _gelu(x):
    return torch.nn.functional.gelu(x, approximate='tanh')

def _silu(x):
    return torch.nn.functional.silu(x)

def _sigmoid(x):
    return torch.sigmoid(x)

def _layernorm(x, axis=-1, eps=1e-05):
    m = x.mean(dim=axis, keepdim=True)
    v = x.var(dim=axis, keepdim=True, unbiased=False)
    return (x - m) / torch.sqrt(v + eps)

def _scatter_add(tgt, idx, src, axis=0):
    return tgt.clone().index_add_(axis, idx, src)

def _segment_sum(src, seg, n):
    out = torch.zeros((n,) + src.shape[1:], dtype=src.dtype)
    return out.index_add_(0, seg, src)

def _pad(x, pw):
    flat = tuple((v for pair in reversed(pw) for v in pair))
    return torch.nn.functional.pad(x, flat)
kernel_name = 'gated_mix__memory_aug_recurrent_mem_tr__swiglu_ffn__prompt'

def setup_inputs():

    _w = lambda a: (lambda t: t.to(torch.bfloat16) if t.is_floating_point() else t)(torch.as_tensor(a))

    def _A_setup():
        B, S, Dm = (1, 2048, 512)
        H, Dh = (32, 128)
        M, seg = (8, 32)
        seg = min(seg, S)
        S = S // seg * seg
        return {'x': _w((lambda *s: torch.randn(*s, dtype=torch.bfloat16) * 0.05)(B, S, Dm)), 'mem0': _w((lambda *s: torch.randn(*s, dtype=torch.bfloat16) * 0.4)(B, M, Dm)), 'Wq': _w((lambda *s: torch.randn(*s, dtype=torch.bfloat16) * 6.4)(Dm, H, Dh) * Dm ** (-0.5)), 'Wk': _w((lambda *s: torch.randn(*s, dtype=torch.bfloat16) * 6.4)(Dm, H, Dh) * Dm ** (-0.5)), 'Wv': _w((lambda *s: torch.randn(*s, dtype=torch.bfloat16) * 0.4)(Dm, H, Dh) * Dm ** (-0.5)), 'Wo': _w((lambda *s: torch.randn(*s, dtype=torch.bfloat16) * 0.4)(H, Dh, Dm) * (H * Dh) ** (-0.5)), 'seg_len': seg}
    _A_in = _A_setup()

    def _B_setup():
        B, S, D, F = (1, 2048, 512, 1376)
        return {'x': _w((lambda *s: torch.randn(*s, dtype=torch.bfloat16) * 0.05)(B, S, D)), 'w_gate': _w((lambda *s: torch.randn(*s, dtype=torch.bfloat16) * 0.05)(D, F)), 'w_up': _w((lambda *s: torch.randn(*s, dtype=torch.bfloat16) * 0.05)(D, F)), 'w_down': _w((lambda *s: torch.randn(*s, dtype=torch.bfloat16) * 0.05)(F, D))}
    _B_in = _B_setup()
    return {'A_x': _A_in['x'], 'A_mem0': _A_in['mem0'], 'A_Wq': _A_in['Wq'], 'A_Wk': _A_in['Wk'], 'A_Wv': _A_in['Wv'], 'A_Wo': _A_in['Wo'], 'A_seg_len': _A_in['seg_len'], 'B_x': _B_in['x'], 'B_w_gate': _B_in['w_gate'], 'B_w_up': _B_in['w_up'], 'B_w_down': _B_in['w_down'], 'gate_w': _w((lambda *s: torch.randn(*s, dtype=torch.bfloat16) * 0.05)(512) * 16.0)}

def reference(A_x, A_mem0, A_Wq, A_Wk, A_Wv, A_Wo, A_seg_len, B_x, B_w_gate, B_w_up, B_w_down, gate_w):

    def _A_ref(x, mem0, Wq, Wk, Wv, Wo, seg_len):
        B, S, Dm = x.shape
        H, Dh = (Wq.shape[1], Wq.shape[2])
        M = mem0.shape[1]
        scale = Dh ** (-0.5)
        n_seg = S // seg_len
        L = M + seg_len
        idx = torch.arange(L)
        mask = (idx[:, None] < M) | (idx[:, None] >= idx[None, :])
        mem = mem0
        outs = []
        for s in range(n_seg):
            xs = x[:, s * seg_len:(s + 1) * seg_len, :].clone()
            h = torch.concatenate([mem, xs], axis=1)
            q = torch.einsum('btd,dhe->bhte', h, Wq)
            k = torch.einsum('btd,dhe->bhte', h, Wk)
            v = torch.einsum('btd,dhe->bhte', h, Wv)
            scores = torch.einsum('bhqe,bhke->bhqk', q, k) * scale
            scores = torch.where(mask[None, None], scores, -1000000000.0)
            p = _softmax(scores, axis=-1)
            o = torch.einsum('bhqk,bhke->bhqe', p, v)
            o = torch.einsum('bhte,hed->btd', o, Wo)
            mem = o[:, :M, :].clone()
            outs.append(o[:, M:, :])
        return torch.concatenate(outs, axis=1)

    def _B_ref(x, w_gate, w_up, w_down):
        g = _silu(x @ w_gate)
        u = x @ w_up
        return g * u @ w_down
    x = A_x
    g = _sigmoid((x * gate_w).sum(-1, keepdims=True))
    a = _A_ref(x, A_mem0, A_Wq, A_Wk, A_Wv, A_Wo, A_seg_len)
    b = _B_ref(x, B_w_gate, B_w_up, B_w_down)
    return g * a + (1 - g) * b
```

```python
import re

_REG = re.compile(r'^(-|abs\(|\|)?([vas])(?:\[(\d+):(\d+)\]|(\d+))\)?\|?$')

def regs_of(tok):
    tok = tok.strip()
    if tok in ('vcc',): return {('s', 'vcc')}
    if tok in ('vcc_lo', 'vcc_hi'): return {('s', 'vcc')}
    if tok in ('exec', 'exec_lo', 'exec_hi'): return {('s', 'exec')}
    if tok == 'm0': return {('s', 'm0')}
    m = _REG.match(tok)
    if not m: return set()
    k = m.group(2)
    if m.group(5) is not None: return {(k, int(m.group(5)))}
    return {(k, i) for i in range(int(m.group(3)), int(m.group(4)) + 1)}

TRANS = ('v_exp_f32', 'v_log_f32', 'v_rcp_f32', 'v_rsq_f32', 'v_sqrt_f32', 'v_sin_f32', 'v_cos_f32', 'v_rcp_iflag_f32')

class Ins:
    __slots__ = ('text', 'op', 'kind', 'wr', 'rd', 'srcC', 'AB', 'passes', 'states', 'dpp', 'trans', 'stdata', 'label', 'target', 'dtuple', 'ctuple')
    def __init__(self, text):
        self.text = text
        t = text.split(';')[0].strip()
        self.label = None; self.target = None
        self.wr = set(); self.rd = set(); self.srcC = set(); self.AB = set(); self.passes = 0
        self.states = 1; self.dpp = False; self.trans = False; self.stdata = set(); self.dtuple = None; self.ctuple = None
        if t.endswith(':'):
            self.label = t[:-1]; self.kind = 'label'; self.op = ''; self.states = 0; return
        if not t or t.startswith('.'):
            self.kind = 'dir'; self.op = ''; self.states = 0; return
        parts = t.split(None, 1)
        op = parts[0]; self.op = op
        rest = parts[1] if len(parts) > 1 else ''
        ops = [o.strip() for o in rest.split(',')] if rest else []
        mods = ''
        if ops:
            last = ops[-1].split(None, 1)
            ops[-1] = last[0] if last else ''
            mods = last[1] if len(last) > 1 else ''
        R = [regs_of(o) for o in ops]
        U = lambda l: set().union(*l) if l else set()
        if op == 's_nop':
            self.kind = 'salu'; self.states = int(ops[0], 0) + 1
        elif op.startswith('s_cbranch') or op == 's_branch':
            self.kind = 'branch'; self.target = ops[0]
        elif op.startswith('s_'):
            self.kind = 'salu'
            if op.startswith('s_cmp') or op.startswith('s_bitcmp') or op in ('s_waitcnt', 's_barrier', 's_endpgm', 's_sleep', 's_setprio'):
                self.rd = U(R)
            else:
                self.wr = R[0] if R else set(); self.rd = U(R[1:])
                if 'saveexec' in op: self.wr = self.wr | {('s', 'exec')}
        elif op.startswith('v_mfma') or op.startswith('v_smfmac'):
            self.kind = 'mfma'
            self.passes = 8 if '32x32' in op else 4
            self.wr = R[0]; self.dtuple = ops[0]
            if op.startswith('v_smfmac'):
                self.AB = R[1] | R[2] | R[3]; self.srcC = R[0]; self.ctuple = ops[0]
            else:
                self.AB = R[1] | R[2]; self.srcC = R[3]; self.ctuple = ops[3]
            self.rd = self.AB | self.srcC
        elif op.startswith('v_'):
            self.kind = 'valu'
            self.dpp = ('_dpp' in op) or ('row_' in mods) or ('quad_perm' in mods)
            base = op.replace('_e32', '').replace('_e64', '').replace('_dpp', '')
            self.trans = base in TRANS
            if base.startswith('v_permlane') and 'swap' in base:
                self.wr = R[0] | R[1]; self.rd = R[0] | R[1]
            elif base.startswith('v_add_co') or base.startswith('v_sub_co') or base.startswith('v_addc_co') or base.startswith('v_subb_co'):
                self.wr = R[0] | R[1]; self.rd = U(R[2:])
            else:
                self.wr = R[0]; self.rd = U(R[1:])
                if base.startswith('v_fmac') or base.startswith('v_dot2c') or self.dpp or base.startswith('v_writelane'):
                    self.rd = self.rd | R[0]
                if base.startswith('v_cmpx'): self.wr = self.wr | {('s', 'exec')}
        elif op.startswith('ds_'):
            self.kind = 'ds'
            if op.startswith('ds_read') or 'permute' in op or 'swizzle' in op:
                self.wr = R[0]; self.rd = U(R[1:])
            else:
                self.rd = U(R)
        elif op.startswith('global_') or op.startswith('buffer_'):
            self.kind = 'vmem'
            islds = ('_lds_' in op) or re.search(r'\blds\b', mods) is not None
            if islds:
                self.rd = U(R) | {('s', 'm0')}; self.kind = 'dma'
            elif '_load' in op:
                self.wr = R[0]; self.rd = U(R[1:])
                if 'd16' in op: self.rd = self.rd | R[0]
            elif '_atomic' in op:
                if op.startswith('global_') and 'sc0' in mods:
                    self.wr = R[0]; self.rd = U(R[1:])
                else:
                    self.rd = U(R)
                    if 'sc0' in mods: self.wr = R[0]
            elif '_store' in op:
                self.rd = U(R)
                if 'x3' in op or 'x4' in op:
                    self.stdata = R[0] if op.startswith('buffer_') else R[1]
            else:
                pass
        else:
            raise ValueError('unknown instruction: ' + text)

def isv(s): return {r for r in s if r[0] in 'va'}
def iss(s): return {r for r in s if r[0] == 's'}

def need(p, c):
    n = 0
    if p.kind == 'valu':
        w = isv(p.wr); sw = iss(p.wr)
        if c.kind == 'mfma' and (w & c.rd): n = max(n, 2)
        if c.kind == 'valu':
            if (c.op.startswith('v_permlane') or c.dpp) and (w & c.rd): n = max(n, 2)
            if (c.op.startswith('v_readlane') or c.op.startswith('v_readfirstlane')) and (w & c.rd): n = max(n, 1)
            if p.trans and not c.trans and (w & (c.rd | c.wr)): n = max(n, 1)
            crd = set(c.rd)
            if c.op.startswith('v_cndmask') and len(iss(c.rd)) == 0: crd.add(('s', 'vcc'))
            if sw & crd:
                n = max(n, 4 if (c.op.startswith('v_readlane') or c.op.startswith('v_writelane')) else 2)
            if ('s', 'exec') in sw: n = max(n, 5)
        if c.kind in ('vmem', 'dma') and (sw & c.rd): n = max(n, 5)
        if c.kind == 'mfma' and ('s', 'exec') in sw: n = max(n, 4)
        if c.kind in ('salu', 'branch') and (sw & c.rd): n = max(n, 1)
    if p.kind == 'mfma':
        big = 8 if p.passes == 4 else 12
        if c.kind == 'mfma':
            if p.wr & c.AB: n = max(n, big)
            if p.wr & c.srcC:
                if not (p.dtuple == c.ctuple and p.passes == c.passes): n = max(n, big - 2)
            elif p.wr & c.wr and not p.dtuple == c.dtuple: n = max(n, big - 2)
        elif c.kind in ('valu', 'ds', 'vmem', 'dma'):
            if p.wr & (c.rd | c.wr): n = max(n, big)
            if c.kind == 'valu' and (p.srcC & c.wr): n = max(n, 3 if p.passes == 4 else 7)
    if p.kind == 'vmem' and p.stdata:
        if p.stdata & c.wr: n = max(n, 2 if c.kind in ('valu', 'mfma') else 1)
    if p.kind == 'salu' and ('s', 'm0') in p.wr and c.kind == 'dma': n = max(n, 1)
    return n

class Asm:
    def __init__(self):
        self.lines = []
        self.uid = 0
    def __call__(self, text):
        for l in text.split('\n'):
            l = l.strip()
            if l: self.lines.append(l)
    def label(self, name): self.lines.append(name + ':')
    def newlabel(self, base='L'):
        self.uid += 1
        return f'{base}_{self.uid}'
    def nop(self, n):
        while n > 0:
            k = min(16, n); self.lines.append(f's_nop {k-1}'); n -= k

def pad(lines, verbose=False):
    ins = []
    W = 14
    added = 0
    for l in lines:
        if l.startswith(';'):
            continue
        c = Ins(l)
        if c.states or c.kind in ('label', 'dir'):
            if c.kind not in ('label', 'dir'):
                dist = 0; req = 0
                for p in reversed(ins):
                    if p.kind == 'branch' and p.op == 's_branch': break
                    if p.op == 's_endpgm': break
                    if p.states == 0: continue
                    n = need(p, c)
                    if n > dist: req = max(req, n - dist)
                    dist += p.states
                    if dist >= W: break
                if req:
                    ins.append(Ins(f's_nop {req-1}')); added += req
            ins.append(c)
    pos = {x.label: i for i, x in enumerate(ins) if x.label}
    for i, b in enumerate(ins):
        if b.kind != 'branch': continue
        if b.target not in pos: raise ValueError('unknown label ' + b.target)
        prods = []; dist = 0
        for p in reversed(ins[:i + 1]):
            if p is not b and p.kind == 'branch' and p.op == 's_branch': break
            if p.states == 0: continue
            prods.append((p, dist)); dist += p.states
            if dist >= W: break
        d2 = 0
        for c in ins[pos[b.target]:]:
            if c.states == 0: continue
            for p, d in prods:
                if p is b: continue
                n = need(p, c)
                if n > d + d2:
                    raise ValueError(f'hazard across branch {b.text}: {p.text} -> {c.text} need {n} have {d+d2}')
            d2 += c.states
            if d2 >= W or (c.kind == 'branch' and c.op == 's_branch') or c.op == 's_endpgm': break
    if verbose: print('nop states added', added)
    out = []
    for x in ins:
        out.append(x.text if x.kind in ('label', 'dir') else '    ' + x.text)
    return out

_LG = re.compile(r'lgkmcnt\((\d+)\)')
def auto_lgkm(lines):
    out = []
    q = []
    for l in lines:
        if l.startswith(';'):
            out.append(l); continue
        c = Ins(l)
        if c.kind == 'label' or c.kind == 'branch':
            pend = [x for x in q if x[0]]
            if pend and 'keep' not in l:
                raise ValueError('pending LDS/SMEM results at ' + l + ' : ' + str(sorted(pend[0][0]))[:80])
            out.append(l); continue
        if c.kind == 'dir':
            out.append(l); continue
        if c.op == 's_waitcnt':
            m = _LG.search(l)
            if m:
                n = int(m.group(1))
                if n == 0: q = []
                elif not any(x[1] for x in q): q = q[len(q) - n:] if n < len(q) else q
            out.append(l); continue
        touched = c.rd | c.wr
        idx = -1
        for i, x in enumerate(q):
            if x[0] & touched: idx = i
        if idx >= 0:
            n = len(q) - 1 - idx
            if any(x[1] for x in q): n = 0
            n = min(n, 15)
            out.append(f's_waitcnt lgkmcnt({n})')
            q = q[len(q) - n:] if n else []
        if c.kind == 'ds': q.append((set(c.wr), False))
        elif 'nowait' in l: pass
        elif c.op.startswith('s_load') or c.op.startswith('s_memtime') or c.op.startswith('s_memrealtime') or c.op.startswith('s_buffer_load'):
            q.append((set(c.wr), True))
        out.append(l)
    return out

def weave(a, mf, fill, start=0, per=2):
    fill = list(fill); k = 0
    for i, m in enumerate(mf):
        a(m)
        if i >= start:
            for _ in range(per):
                if k < len(fill): a(fill[k]); k += 1
    while k < len(fill): a(fill[k]); k += 1

def vr(b, n=1, f='v'):
    return f'{f}{b}' if n == 1 else f'{f}[{b}:{b+n-1}]'
```

```python
POISON = 0xFFBFFFBF
WS_PF   = 0x0
WS_PF2  = 0x400
WS_TF   = 0x1000
WS_GF   = 0x2000
WS_FLAG_BYTES = 0x4000
WS_G    = 0x10000
WS_SLOT = 0x20000
WS_DBG  = 0x40000
WS_INB  = 0x80000
WS_VM   = 0x400000
WS_KM   = 0x800000
WS_QF   = 0x1000000
WS_KF   = 0x2000000
WS_VF   = 0x3000000
WS_OF   = 0x4000000
WS_HF   = 0x5000000
WS_BYTES = 0x10000000
KA = dict(x=0, mem0=8, Wq=16, Wk=24, Wv=32, Wo=40, Wg=64, Wu=72, Wd=80, gw=88, out=96, dbg=104, ws=112)
SZ = dict(x=2048*512*2, mem0=8*512*2, Wq=512*4096*2, Wk=512*4096*2, Wv=512*4096*2, Wo=4096*512*2,
          Wg=512*1376*2, Wu=512*1376*2, Wd=1376*512*2, gw=1024, out=2048*512*2, dbg=256, ws=WS_BYTES)
DB_TEAMRDY = 4
DB_READY = 192
DB_ERR = 64
DB_OVF = 68
SPIN_MAX = 400000
sWS, sDBG, sA, sB, sC, sD = 8, 12, 16, 20, 24, 28
def srd(b): return f's[{b}:{b+3}]'
def load_srd(a, b, name):
    a(f's_load_dwordx2 s[{b}:{b+1}], s[0:1], {KA[name]}')
    a(f's_mov_b32 s{b+2}, {SZ[name]:#x}')
    a(f's_mov_b32 s{b+3}, 0x20000')
LDS_MISC = 163584
```

```python
import sys
from asmlib import *
from common import *
import team as TM
import worker as WK
NAME = 'gated_mix__memory_aug_recurrent_mem_tr__swiglu_ffn__prompt'

def spin_dbg(a, off, target, label, v=(60, 61), s=(60, 61)):
    a(f'v_mov_b32 v{v[0]}, {off}')
    a(f's_mov_b32 s{s[0]}, 0')
    a.label(label)
    a(f'buffer_load_dword v{v[1]}, v{v[0]}, {srd(sDBG)}, 0 offen sc1')
    a('s_waitcnt vmcnt(0)')
    a(f'v_readfirstlane_b32 s{s[1]}, v{v[1]}')
    a(f's_add_u32 s{s[0]}, s{s[0]}, 1')
    a(f's_cmp_ge_u32 s{s[0]}, {SPIN_MAX}')
    a('s_cbranch_scc1 L_fail')
    a(f's_cmp_lt_u32 s{s[1]}, {target}')
    a(f's_cbranch_scc1 {label}')

def wg_atomic_inc(a, off, tag, v=(60, 61)):
    a('s_waitcnt vmcnt(0)')
    a('s_barrier')
    a('s_cmp_lg_u32 s4, 0')
    a(f's_cbranch_scc1 {tag}')
    a(f'v_mov_b32 v{v[0]}, {off}'); a(f'v_mov_b32 v{v[1]}, 1')
    a('s_mov_b64 exec, 1')
    a(f'buffer_atomic_add v{v[1]}, v{v[0]}, {srd(sDBG)}, 0 offen')
    a('s_mov_b64 exec, -1')
    a.label(tag)

def build(opt):
    a = Asm()
    kn = opt.get('kname', NAME + '_kernel')
    a('s_cmp_ge_u32 s2, 256')
    a('s_cbranch_scc1 L_exit')
    if opt.get('timing') or opt.get('stamps'):
        a('s_memrealtime s[90:91]')
    load_srd(a, sWS, 'ws'); load_srd(a, sDBG, 'dbg')
    a('s_getreg_b32 s3, hwreg(HW_REG_XCC_ID, 0, 3)')
    a('v_lshrrev_b32 v1, 6, v0')
    a('v_readfirstlane_b32 s4, v1')
    if opt.get('fake_xcc'):
        a(f's_mul_hi_u32 s3, s2, {-(-(1 << 32)//31):#x}'); a('s_min_u32 s3, s3, 7')
    def cnt_off(a, d, x):
        a(f's_lshl_b32 s{d}, s{x}, 2'); a(f's_add_u32 s{d}, s{d}, 128'); a(f's_cmp_eq_u32 s{x}, 0'); a(f's_cselect_b32 s{d}, 0, s{d}')
    cnt_off(a, 6, 3)
    a(f'v_mov_b32 v2, s6'); a('v_mov_b32 v3, 1'); a(f'v_mov_b32 v4, {LDS_MISC}')
    a('v_mov_b64 v[8:9], 0'); a('v_mov_b64 v[10:11], 0'); a('v_lshlrev_b32 v5, 4, v0'); a('s_lshl_b32 s7, s2, 6')
    a(f'v_mov_b32 v6, {DB_READY}'); a('v_mov_b32 v7, 1')
    a('s_waitcnt lgkmcnt(0)')
    if opt.get('team_only'):
        a('s_cmp_lg_u32 s3, 0'); a('s_cbranch_scc1 L_exit')
    a('s_cmp_lg_u32 s4, 0')
    a('s_cbranch_scc1 L_tk')
    a('s_mov_b64 exec, 1')
    a(f'buffer_atomic_add v3, v2, {srd(sDBG)}, 0 offen sc0')
    if not opt.get('dev'):
        a('s_mov_b64 exec, 15')
        a(f'buffer_store_dwordx4 v[8:11], v5, {srd(sWS)}, s7 offen sc1')
        a('s_mov_b64 exec, 1')
    a('s_waitcnt vmcnt(0)')
    a('ds_write_b32 v4, v3')
    a(f'buffer_atomic_add v7, v6, {srd(sDBG)}, 0 offen')
    a('s_waitcnt lgkmcnt(0)')
    a('s_mov_b64 exec, -1')
    a.label('L_tk')
    a('s_barrier')
    a('ds_read_b32 v3, v4')
    a('v_readfirstlane_b32 s5, v3')
    a('s_cmp_ge_u32 s5, 32')
    a('s_cbranch_scc1 L_over')
    a.label('L_role')
    a('s_cmp_lg_u32 s3, 0')
    a('s_cbranch_scc1 L_worker')
    if opt.get('no_team'): a('s_endpgm')
    items, R0, RN, tmp = TM.team_setup(a, opt)
    def h0(a):
        TM.team_consts(a, tmp, opt.get('skew', 0)); TM.team_init1(a, tmp)
    def h2(a):
        a('s_barrier')
        a('s_cmp_lg_u32 s4, 0'); a('s_cbranch_scc1 L_tr')
        a(f'v_mov_b32 v98, {DB_TEAMRDY}'); a('v_mov_b32 v99, 1'); a('s_mov_b64 exec, 1')
        a(f'buffer_atomic_add v99, v98, {srd(sDBG)}, 0 offen'); a('s_mov_b64 exec, -1')
        a.label('L_tr')
    TM.stream(a, items, R0, RN, maxload=58, hooks={0: h0, 40: TM.team_init2, 80: h2})
    V2 = (TM.MEMF+24, TM.MEMF+25)
    spin_dbg(a, DB_TEAMRDY, 32, 'L_trw', v=V2)
    if not opt.get('dev'): spin_dbg(a, DB_READY, 256, 'L_rdw', v=V2)
    TM.team_first_kv(a)
    if opt.get('force_slow'):
        TM.team(a, 'sc1', 'S', opt)
    else:
        spin_dbg(a, 0, 0, 'L_tc', v=V2)
        a('s_cmp_lt_u32 s61, 32'); a('s_cbranch_scc1 L_tslow')
        TM.team(a, '', 'T', opt)
        a.label('L_tslow')
        TM.team(a, 'sc1', 'S', opt)
    a.label('L_over')
    a('s_barrier')
    a('s_cmp_lg_u32 s4, 0'); a('s_cbranch_scc1 L_ov1')
    a(f'v_mov_b32 v2, {DB_OVF}'); a('v_mov_b32 v3, 1'); a('s_mov_b64 exec, 1')
    a(f'buffer_atomic_add v3, v2, {srd(sDBG)}, 0 offen sc0'); a('s_waitcnt vmcnt(0)')
    a('ds_write_b32 v4, v3'); a('s_waitcnt lgkmcnt(0)'); a('s_mov_b64 exec, -1')
    a.label('L_ov1')
    a('s_barrier')
    a('ds_read_b32 v3, v4')
    a('v_readfirstlane_b32 s7, v3')
    spin_dbg(a, DB_READY, 256, 'L_ov2', v=(8, 9))
    a('s_mov_b32 s3, 0')
    a.label('L_ov3')
    cnt_off(a, 6, 3)
    a('v_mov_b32 v8, s6')
    a(f'buffer_load_dword v9, v8, {srd(sDBG)}, 0 offen sc1'); a('s_waitcnt vmcnt(0)')
    a('v_readfirstlane_b32 s5, v9')
    a('s_min_u32 s5, s5, 32'); a('s_add_u32 s5, s5, s7')
    a('s_cmp_lt_u32 s5, 32'); a('s_cbranch_scc1 L_role')
    a('s_sub_u32 s7, s5, 32')
    a('s_add_u32 s3, s3, 1'); a('s_cmp_lt_u32 s3, 8'); a('s_cbranch_scc1 L_ov3')
    a('s_branch L_fail')
    a.label('L_worker')
    a('s_sub_u32 s6, s3, 1'); a('s_lshl_b32 s6, s6, 5'); a('s_add_u32 s6, s6, s5')
    def ready_wait(a, tag):
        if not opt.get('dev'): spin_dbg(a, DB_READY, 256, tag, v=(8, 9))
    WK.WST[0] = bool(opt.get('timing') or opt.get('stamps'))
    if WK.WST[0]:
        a('s_lshl_b32 s60, s6, 7'); a(f's_add_u32 s60, s60, {WS_DBG + 0x8000:#x}')
        a('v_mov_b32 v8, s90')
        a(f'buffer_store_dword v8, off, {srd(sWS)}, s60')
    if not opt.get('no_p1'): WK.phase1(a, ready_wait)
    if not opt.get('no_p2'): WK.phase2(a, opt)
    WK.wstamp(a, 15)
    a('s_waitcnt vmcnt(0)')
    a('s_endpgm')
    a.label('L_fail')
    a('s_mov_b64 exec, 1')
    a(f'v_mov_b32 v1, {DB_ERR}'); a('v_mov_b32 v2, 1')
    a(f'buffer_atomic_add v2, v1, {srd(sDBG)}, 0 offen')
    a('s_waitcnt vmcnt(0)')
    a.label('L_exit')
    a('s_endpgm')
    body = pad(auto_lgkm(a.lines), verbose=opt.get('verbose', False))
    hdr = [f'; @launch grid=(256,1,1) block=(256,1,1) lds=163840',
           '.amdgcn_target "amdgcn-amd-amdhsa--gfx950"', '.text', f'.globl {kn}', '.p2align 8', f'.type {kn},@function', f'{kn}:']
    ftr = ['.section .rodata,"a"', '.p2align 6', f'.amdhsa_kernel {kn}', '  .amdhsa_next_free_vgpr 512', '  .amdhsa_next_free_sgpr 100',
           '  .amdhsa_accum_offset 256', '  .amdhsa_group_segment_fixed_size 0', '  .amdhsa_kernarg_size 120', '  .amdhsa_user_sgpr_count 2',
           '  .amdhsa_user_sgpr_kernarg_segment_ptr 1', '  .amdhsa_system_sgpr_workgroup_id_x 1', '  .amdhsa_float_denorm_mode_32 3', '.end_amdhsa_kernel']
    return '\n'.join(hdr + body + ftr) + '\n'

if __name__ == '__main__':
    opt = eval(sys.argv[2]) if len(sys.argv) > 2 else {}
    open(sys.argv[1], 'w').write(build(opt))
```

```python
from asmlib import *
from common import *
import math
L_WO, L_MEM, L_KX = 0, 131072, 139264
L_QX = L_KX + 8192 + 64
XS = 288; XSZ = 2304
L_V = L_QX + 3*XSZ
assert L_V + 8192 <= LDS_MISC and L_V % 16 == 0
L16, IDX, POI4 = 0, 1, 2
PST, PUB, XW, QR, KMR, OR_, MR, WOB, VMP = range(6, 15)
SELA, ONES, VB, MEMF, KX, ACQ, ACK, ACV = 16, 20, 24, 40, 72, 104, 112, 120
QF = KX
WV = 128
sHALF, sEVEN, sPOI, sPLO, sPHI, sSCL = 32, 34, 36, 37, 38, 39
sSTEP, sSLOT, sSLOTN, sSLOTP, sINB, sINBO, sKV, sKM, sMK, sSPIN, sT0, sT1, sT2, sKS, sTF, sM0, sINB2, sMV, sW2, sHO = range(40, 60)
sACC = 16
def db(b): return 32*(b >> 2) + 8*(b & 1) + 2*((b >> 1) & 1)
def smf(d, A, B, f='v'): return f'v_smfmac_f32_16x16x64_bf16 {vr(d,4)}, {vr(A,4)}, {vr(B,8,f)}, v{IDX}'
def mf(d, A, B, C='0'): return f'v_mfma_f32_16x16x32_bf16 {vr(d,4)}, {vr(A,4)}, {vr(B,4)}, {C}'
def z2(r): return f'v_mov_b64 {vr(r,2)}, 0'

def slots(a, mfl, plan):
    for i, m in enumerate(mfl):
        a(m)
        fl = plan.pop(i, [])
        for x in fl:
            if not x.startswith('v_'): a(x)
        for x in fl:
            if x.startswith('v_'): a(x)
    assert not plan, plan

def heat(a, n, r):
    for _ in range(n):
        a(f'v_mov_b32 v{r}, v{r}'); a('s_nop 2')

def kx_addr(t0, t1):
    return [f'v_and_b32 v{t0}, 0x310, v{L16}', f'v_and_b32 v{t1}, 0x60, v{L16}', f'v_lshl_add_u32 v{t0}, v{t1}, 1, v{t0}',
            f'v_bfe_u32 v{t1}, v{L16}, 7, 1', f'v_mul_u32_u24 v{t1}, {4096+32}, v{t1}', f'v_add3_u32 v{t0}, v{t0}, v{t1}, s{sT0}']
def kv_reads(t0):
    r = [f'ds_read_b128 {vr(KX+4*j,4)}, v{t0} offset:{(j&3)*1024 + (j>>2)*32}' for j in range(8)]
    r += [f'ds_read_b64 {vr(VB+8*t+4*u,2)}, v{MR} offset:{L_V - L_MEM + t*1024 + u*8}' for t in (0, 1) for u in (0, 1)]
    return r
def kv_dma():
    WS = srd(sWS)
    return [[f's_mov_b32 m0, s{sMK}', f's_add_u32 s{sT2}, s{sKV}, {WS_VF - WS_KF:#x}'],
            [f'buffer_load_dwordx4 v{L16}, {WS}, s{sKV} offen sc1 lds'],
            [f'buffer_load_dwordx4 v{L16}, {WS}, s{sKV} offen offset:1024 sc1 lds', f's_mov_b32 m0, s{sMV}'],
            [f'buffer_load_dwordx4 v{L16}, {WS}, s{sT2} offen sc1 lds'],
            [f'buffer_load_dwordx4 v{L16}, {WS}, s{sT2} offen offset:1024 sc1 lds', f's_add_u32 s{sKV}, s{sKV}, {32*8192:#x}']]
XA = (VB+3, VB+6, VB+7)
def xa_set(): return [f'v_xor_b32 v{XA[j]}, {(j+1)*2048:#x}, v{MR}' for j in range(3)]

def team(a, sf, tag, opt):
    stamps = opt.get('stamps', False)
    nstep = opt.get('nstep', 64)
    NST = 14
    def st(i): return [f'{"s_memrealtime" if opt.get("raw") else "s_memtime"} s[{60+2*i}:{61+2*i}] ; nowait'] if stamps else []
    def stamp(i):
        for x in st(i): a(x)
    HT = VB+14
    def stamp_acc():
        if stamps:
            a('s_waitcnt lgkmcnt(0)')
            for i in range(NST):
                prev = 98 if i == 0 else 60+2*(i-1)
                if opt.get('raw'):
                    a(f's_cmp_eq_u32 s{sSTEP}, {opt["raw"] + (1 if i < 2 else 0)}')
                    a(f's_cselect_b32 s{sACC+i}, s{60+2*i}, s{sACC+i}')
                else:
                    a(f's_sub_u32 s99, s{60+2*i}, s{prev}')
                    a(f's_add_u32 s{sACC+i}, s{sACC+i}, s99')
                if i % 2 == 0: a(f'v_mov_b32 v{HT}, v{HT}')
            a(f's_mov_b32 s98, s{60+2*(NST-1)}')
    T = lambda n: f'{tag}_{n}'
    WS = srd(sWS)
    IB = MEMF+8; RA = MEMF+16; IT = MEMF+20
    p2 = [f'buffer_load_dwordx4 {vr(MEMF,4)}, v{L16}, {WS}, s{sSLOT} offen sc1',
          f'buffer_load_dwordx4 {vr(MEMF+4,4)}, v{L16}, {WS}, s{sSLOT} offen offset:1024 sc1']
    p1 = [f'buffer_load_dwordx4 {vr(IB,4)}, v{L16}, {WS}, s{sINB2} offen sc1',
          f'buffer_load_dwordx4 {vr(IB+4,4)}, v{L16}, {WS}, s{sINB2} offen offset:1024 sc1']
    def check2():
        b, t = MEMF, VB+10
        a(f'v_max3_u32 v{t}, v{b}, v{b+1}, v{b+2}')
        a(f'v_max3_u32 v{t+1}, v{b+4}, v{b+5}, v{b+6}')
        a(f'v_max3_u32 v{t}, v{t}, v{b+3}, v{b+7}')
        a(f'v_max_u32 v{t}, v{t}, v{t+1}')
        a(f'v_cmp_eq_u32 vcc, s{sPOI}, v{t}')
    def check1():
        t = IT
        a(f'v_max3_u32 v{t}, v{IB}, v{IB+1}, v{IB+2}')
        a(f'v_max3_u32 v{t}, v{t}, v{IB+3}, v{IB+4}')
        a(mf(RA, SELA, IB))
        a(f'v_max3_u32 v{t}, v{t}, v{IB+5}, v{IB+6}')
        a(f'v_max_u32 v{t}, v{t}, v{IB+7}')
        a(mf(RA, SELA, IB+4, vr(RA,4)))
        a(f'v_cmp_eq_u32 vcc, s{sPOI}, v{t}')
    def poll(name, chk):
        chk()
        a(f's_cbranch_vccnz {T(name+"r")}')
        a.label(T(name + 'ok'))
    def poll_stub(name, loads, chk, nchk, cnt):
        a.label(T(name + 'r'))
        a('s_mov_b64 exec, vcc')
        for x in loads: a(x)
        a('s_mov_b64 exec, -1')
        if stamps: a(f's_add_u32 s{sACC+cnt}, s{sACC+cnt}, 1')
        a(f's_add_u32 s{sSPIN}, s{sSPIN}, 1')
        for c in range(nchk):
            chk()
            a(f's_cbranch_vccz {T(name+"ok")}')
        a(f's_cmp_lt_u32 s{sSPIN}, {SPIN_MAX}')
        a(f's_cbranch_scc1 {T(name+"r")}')
        a('s_branch L_fail')
    def rounds(loads, hs, r):
        for h in hs:
            for x in loads: a(x)
            heat(a, h, r)
        a(f's_waitcnt vmcnt({2*(len(hs)-1)})')
    if stamps or opt.get('timing', False):
        for i in range(16): a(f's_mov_b32 s{sACC+i}, 0')
        a('s_memtime s[92:93]'); a('s_memrealtime s[94:95]'); a('s_waitcnt lgkmcnt(0)'); a('s_mov_b32 s98, s92')
    a(f's_mov_b32 s{sSPIN}, 0')
    for x in p2: a(x)
    for x in xa_set(): a(x)
    a('s_waitcnt vmcnt(0)')
    a.label(T('loop'))
    n2, n1 = opt.get('n2', 2), opt.get('n1', 2)
    poll('p2', check2)
    stamp(0)
    Q = lambda k, t: smf(ACQ+4*t, MEMF+4*k, (k*2+t)*8, 'a')
    K = lambda k, t: smf(ACK+4*t, MEMF+4*k, 128+(k*2+t)*8, 'a')
    V = lambda k, t: smf(ACV+4*t, MEMF+4*k, WV+(k*2+t)*8)
    a(f'ds_write_b128 v{MR}, {vr(MEMF,4)}')
    a(f'ds_write_b128 v{MR}, {vr(MEMF+4,4)} offset:1024')
    own = [Q(0,0), Q(0,1), Q(1,0), Q(1,1), K(0,0), K(0,1), K(1,0), K(1,1), V(0,0), V(0,1), V(1,0), V(1,1)]
    qr_ = [Q(k, t) for k in range(2, 8) for t in (0, 1)]
    kr_ = [K(k, t) for k in range(2, 8) for t in (0, 1)]
    vr_ = [V(k, t) for k in range(2, 8) for t in (0, 1)]
    S0, S1, SM, P = ACQ, ACQ+4, ACK, ACK+4
    xs = []
    for j in range(4):
        xs.append(mf(S0, KX+4*j, MEMF+4*j, '0' if j == 0 else vr(S0,4)))
        xs.append(mf(S1, KX+16+4*j, MEMF+4*j, '0' if j == 0 else vr(S1,4)))
    ms = [mf(SM, MEMF+16+4*j, MEMF+4*j, '0' if j == 0 else vr(SM,4)) for j in range(4)]
    M = own + qr_ + kr_ + vr_ + xs + ms
    mrd = lambda k: f'ds_read_b128 {vr(MEMF+4*k,4)}, v{XA[(k>>1)-1]} offset:{(k&1)*1024}'
    def pk(ac): return [f'v_add_f32 v{ac}, v{ac}, v{ac+2}', f'v_add_f32 v{ac+4}, v{ac+4}, v{ac+6}',
                        f'v_add_f32 v{ac+1}, v{ac+1}, v{ac+3}', f'v_add_f32 v{ac+5}, v{ac+5}, v{ac+7}',
                        f'v_cvt_pk_bf16_f32 v{ac+2}, v{ac}, v{ac+4}', f'v_cvt_pk_bf16_f32 v{ac+3}, v{ac+1}, v{ac+5}']
    def xw(ac, off): return [f'ds_write_b32 v{XW}, v{ac+2} offset:{off}', f'ds_write_b32 v{XW}, v{ac+3} offset:{off+XS}']
    b1 = opt.get('b1', 2)
    plan = {}
    def put(i, *xs_): plan.setdefault(i, []).extend(xs_)
    put(b1, 's_waitcnt lgkmcnt(0)', 's_barrier', *st(1), mrd(2), mrd(3))
    put(b1+1, mrd(4), mrd(5)); put(b1+2, mrd(6), mrd(7))
    vm = []
    d0 = opt.get('dma', b1+3)
    dst = opt.get('dst', 2)
    for n, xs_ in enumerate(kv_dma()):
        put(d0+n*dst, *xs_)
        if n: vm.append(d0+n*dst)
    po = opt.get('po', (20, 26)); kp = opt.get('kp', 30); fp = opt.get('fp', 16)
    put(0, f's_xor_b32 s{sINBO}, s{sINB2}, 0x40000', f's_sub_u32 s{sT0}, s{sSTEP}, 1')
    put(1, f's_max_i32 s{sT0}, s{sT0}, 0', f'v_mov_b32 v{VB+2}, s{sT0}')
    put(po[0], f'buffer_store_dwordx4 {vr(POI4,4)}, v{L16}, {WS}, s{sINBO} offen {sf}')
    put(po[1], f'buffer_store_dwordx4 {vr(POI4,4)}, v{L16}, {WS}, s{sINBO} offen offset:1024 {sf}')
    put(fp, f'buffer_store_dword v{POI4}, v{PUB}, {WS}, s{sSLOTP} offen {sf}')
    put(kp+2, f'buffer_store_dword v{VB+2}, off, {WS}, s{sTF} sc1')
    vm += [po[0], po[1], fp, kp+2, kp]
    KV4 = MEMF
    kget = [f'ds_read_b32 v{KV4}, v{XW} offset:{XSZ}', f'ds_read_b32 v{KV4+1}, v{XW} offset:{XSZ+XS}', f'v_mov_b64 {vr(KV4+2,2)}, {vr(VMP,2)}']
    kput = f'buffer_store_dwordx4 {vr(KV4,4)}, v{L16}, {WS}, s{sKM} offen sc1'
    kg = kp - 6
    assert kg - 1 >= 11 and (kg-1) not in vm
    put(kg-1, f's_waitcnt vmcnt({sum(1 for x in vm if x < kg-1)})')
    put(kg, *kget); put(kp, kput)
    assert max(vm) < 36
    nafter_dma = len(vm) - 4
    for n, r in enumerate((VB+3, VB+7, VB+11, VB+15)): put(16+n, f'v_mov_b32 v{r}, 0')
    put(24, *st(2))
    q0 = opt.get('q0', 27)
    for n, x in enumerate(pk(ACQ)): put(q0+n, x)
    put(q0+6, *xw(ACQ, 0))
    put(35, *st(3))
    b2 = opt.get('b2', 39)
    put(b2, 's_waitcnt lgkmcnt(0)', 's_barrier')
    for j in range(4): put(b2+1+j, f'ds_read_b128 {vr(MEMF+4*j,4)}, v{QR} offset:{j*64}')
    k0 = opt.get('k0', 38)
    for n, x in enumerate(pk(ACK)): put(k0+n, x)
    put(k0+6, *xw(ACK, XSZ))
    put(47, *st(4))
    b3 = opt.get('b3', 49)
    put(b3, 's_waitcnt lgkmcnt(0)', 's_barrier')
    kmr = [f'ds_read_b128 {vr(MEMF+16+4*j,4)}, v{KMR} offset:{XSZ + j*64}' for j in range(4)]
    put(b3, kmr[0]); put(b3+1, kmr[1], kmr[2]); put(b3+2, kmr[3])
    ac = ACV
    fv = [f'v_add_f32 v{ac}, v{ac}, v{ac+2}', f'v_add_f32 v{ac+1}, v{ac+1}, v{ac+3}',
          f'v_add_f32 v{ac+4}, v{ac+4}, v{ac+6}', f'v_add_f32 v{ac+5}, v{ac+5}, v{ac+7}',
          f'v_cvt_pk_bf16_f32 v{VMP}, v{ac}, v{ac+1}', f'v_cvt_pk_bf16_f32 v{VMP+1}, v{ac+4}, v{ac+5}',
          f'v_cndmask_b32 v{VB+2}, 0, v{VMP}, s[{sEVEN}:{sEVEN+1}]', f'v_cndmask_b32 v{VB+6}, v{VMP}, 0, s[{sEVEN}:{sEVEN+1}]',
          f'v_cndmask_b32 v{VB+10}, 0, v{VMP+1}, s[{sEVEN}:{sEVEN+1}]', f'v_cndmask_b32 v{VB+14}, v{VMP+1}, 0, s[{sEVEN}:{sEVEN+1}]']
    for n in range(5): put(51+n, fv[2*n], fv[2*n+1])
    put(55, *st(5))
    order = [(Tt, ks2) for cq in (0, 1) for ks2 in (0, 1) for Tt in range(4*cq, 4*cq+4)]
    bufs = [ACQ, ACK] + [KX+8*b for b in range(4)] + [MEMF+8*b for b in range(4)] + [KX+8*b for b in range(4)] + [MEMF, MEMF+8]
    def word(n):
        o = (order[n][0]*2+order[n][1])*2048
        return [f'ds_read_b128 {vr(bufs[n],4)}, v{WOB} offset:{o}', f'ds_read_b128 {vr(bufs[n]+4,4)}, v{WOB} offset:{o+1024}']
    w2, w3, w4, w5 = word(2), word(3), word(4), word(5)
    put(52, w2[0]); put(53, w4[0]); put(54, w2[1]); put(55, w4[1]); put(56, w3[0]); put(57, w5[0]); put(58, w3[1]); put(59, w5[1])
    put(55, 's_waitcnt lgkmcnt(3)')
    put(56, z2(ACV), z2(ACV+2)); put(57, z2(ACV+4), z2(ACV+6))
    put(58, f'v_max3_f32 v{P}, v{S0}, v{S0+1}, v{S0+2}', f'v_max3_f32 v{P+1}, v{S1}, v{S1+1}, v{S1+2}')
    put(50, f's_cmp_eq_u32 s{sSTEP}, {nstep-1}')
    fin_at = 54
    drop = opt.get('drop', [])
    for i, m in enumerate(M):
        slots(a, [m], {0: [x for x in plan.pop(i, []) if not any(d in x for d in drop)]})
    assert not plan
    pre = word(6) + word(7) + word(8) + word(9)
    M0, M1 = SM+2, SM+3
    a(f's_cbranch_scc1 {T("fin")} ; keep')
    a(f'v_max3_f32 v{P}, v{P}, v{S0+3}, v{S1+3}')
    a(f'v_max_f32 v{P}, v{P}, v{P+1}')
    for r in range(4): a(f'v_cndmask_b32 v{S0+r}, v{S0+r}, v{S1+r}, s[{sHALF}:{sHALF+1}]')
    stamp(6)
    a(f'v_max3_f32 v{M0}, v{P}, v{SM}, v{SM+1}')
    a(f'v_max3_f32 v{M1}, v{P}, v{SM}, v{SM+1}')
    a(pre[0])
    a(f'v_permlane32_swap_b32 v{M0}, v{M1}')
    a(f'v_max_f32 v{P}, v{M0}, v{M1}')
    a(f'v_max_f32 v{P+1}, v{M0}, v{M1}')
    a(pre[1])
    a(f'v_permlane16_swap_b32 v{P}, v{P+1}')
    a(f'v_max_f32 v{M0}, v{P}, v{P+1}')
    a(f'v_mul_f32 v{M0}, s{sSCL}, v{M0}')
    ex = [S0, S0+1, S0+2, S0+3, SM, SM+1]
    for r in ex: a(f'v_fma_f32 v{r}, v{r}, s{sSCL}, -v{M0}')
    for r in ex: a(f'v_exp_f32 v{r}, v{r}')
    a(f'v_cvt_pk_bf16_f32 v{P}, v{S0}, v{S0+1}')
    a(f'v_cvt_pk_bf16_f32 v{P+2}, v{S0+2}, v{S0+3}')
    a(f'v_cvt_pk_bf16_f32 v{P+1}, v{SM}, v{SM+1}')
    a(f'v_cvt_pk_bf16_f32 v{P+3}, v{SM}, v{SM+1}')
    a(pre[2])
    LS, O = SM, ACV
    stamp(7)
    a(mf(LS, P, ONES))
    a(pre[3])
    a(smf(O, P, VB))
    a(pre[4]); a(pre[5])
    a(smf(O+4, P, VB+8))
    a(pre[6]); a(pre[7])
    a(f'v_add_f32 v{LS}, v{LS}, v{LS+2}')
    a(f'v_add_f32 v{LS+1}, v{LS+1}, v{LS+3}')
    a(f'v_rcp_f32 v{LS}, v{LS}')
    a(f'v_rcp_f32 v{LS+1}, v{LS+1}')
    a(f'v_pk_add_f32 {vr(O,2)}, {vr(O,2)}, {vr(O+2,2)}')
    a(f'v_pk_add_f32 {vr(O+4,2)}, {vr(O+4,2)}, {vr(O+6,2)}')
    a(f'v_pk_mul_f32 {vr(O,2)}, {vr(O,2)}, {vr(LS,2)}')
    a(f'v_pk_mul_f32 {vr(O+4,2)}, {vr(O+4,2)}, {vr(LS,2)}')
    a(f'v_cvt_pk_bf16_f32 v{O+2}, v{O}, v{O+4}')
    a(f'v_cvt_pk_bf16_f32 v{O+3}, v{O+1}, v{O+5}')
    for x in xw(O, 2*XSZ): a(x)
    stamp(8)
    for x in word(0): a(x)
    PA = [VB, ACQ]
    for z in range(8): a(z2(VB+2*z))
    heat(a, opt.get('h4a', 0), VB)
    a('s_waitcnt lgkmcnt(2)')
    a('s_barrier')
    OA = ACV
    a(f'ds_read_b128 {vr(OA,4)}, v{OR_} offset:{2*XSZ}')
    a(f'ds_read_b128 {vr(OA+4,4)}, v{OR_} offset:{2*XSZ+128}')
    for x in word(1): a(x)
    a(f's_add_u32 s{sT0}, s{sINB}, 0x8000')
    heat(a, opt.get('h4b', 3), VB)
    stamp(9)
    use = [2, 3, 0, 1] + list(range(4, 16))
    W = [smf(PA[n >> 3]+4*(order[n][0] & 3), OA+4*order[n][1], bufs[n]) for n in use]
    plan = {}
    rd = [x for n in range(10, 16) for x in word(n)]
    at = [0, 1, 2, 3, 4, 5, 5, 6, 7, 8, 8, 9] if opt.get('wrd', 0) == 0 else [0, 0, 1, 1, 4, 4, 5, 5, 6, 6, 7, 7]
    for x, i in zip(rd, at): put(i, x)
    zat = [3, 3, 4, 4, 5, 6, 6, 7]
    for z in range(8): put(zat[z], z2(ACQ+2*z))
    p = PA[0]
    adds = []
    for i in range(4): adds += [f'v_add_f32 v{p+4*i}, v{p+4*i}, v{p+4*i+2}', f'v_add_f32 v{p+4*i+1}, v{p+4*i+1}, v{p+4*i+3}']
    def cv(p): return [f'v_cvt_pk_bf16_f32 v{p+2}, v{p}, v{p+4}', f'v_cvt_pk_bf16_f32 v{p+3}, v{p+8}, v{p+12}',
                       f'v_cvt_pk_bf16_f32 v{p+4}, v{p+1}, v{p+5}', f'v_cvt_pk_bf16_f32 v{p+5}, v{p+9}, v{p+13}']
    st0 = f'buffer_store_dwordx4 {vr(p+2,4)}, v{PST}, {WS}, s{sINB} offen {sf}'
    per = opt.get('per', 3)
    seq = adds + cv(p)
    tail = []
    for n, x in enumerate(seq):
        i = 8 + n // per
        if i <= 15: put(i, x)
        else: tail.append(x)
    i = 8 + (len(seq) - 1) // per + 1
    if i <= 15: put(i, st0)
    else: tail.append(st0)
    slots(a, W, plan)
    for x in tail: a(x)
    p = PA[1]
    for i in range(4): a(f'v_pk_add_f32 {vr(p+4*i,2)}, {vr(p+4*i,2)}, {vr(p+4*i+2,2)}')
    for x in cv(p): a(x)
    a(f'buffer_store_dwordx4 {vr(p+2,4)}, v{PST}, {WS}, s{sT0} offen {sf}')
    stamp(10)
    a(f's_mov_b32 s{sT0}, {L_KX}')
    work = kx_addr(IT+1, IT+2) + [z2(ACQ+2*z) for z in range(12)]
    nb = opt.get('w1', 18)
    for x in work[:nb]: a(x)
    h1 = opt.get('h1', (6, 5, 5))
    heat(a, h1[0], IT)
    for n, h in enumerate(h1[1:]):
        for x in p1: a(x)
        if n == 0:
            for x in work[nb:]: a(x)
        heat(a, h, IT)
    a(f's_waitcnt vmcnt({2*(len(h1)-2)})')
    stamp(11)
    poll('p1', check1)
    for rot in (4, 8):
        for r in range(2): a(f'v_add_f32_dpp v{RA+r}, v{RA+r}, v{RA+r} row_ror:{rot} row_mask:0xf bank_mask:0xf')
    a(f'v_cvt_pk_bf16_f32 v{RA}, v{RA}, v{RA+1}')
    a(f'buffer_store_dword v{RA}, v{PUB}, {WS}, s{sSLOTN} offen {sf}')
    stamp(12)
    a(f's_add_u32 s{sT1}, s{sSTEP}, 2')
    a(f's_cmp_ge_u32 s{sT1}, s{sAV}')
    a(f's_cbranch_scc1 {T("kvw")}')
    a.label(T('kvr'))
    kvr = kv_reads(IT+1)
    for x in kvr[8:]: a(x)
    sc = [f's_add_u32 s{sSTEP}, s{sSTEP}, 1', f's_add_u32 s{sSLOT}, s{sSLOTN}, s{sM0}', f's_xor_b32 s{sT0}, s{sSLOTN}, 0x4000',
          f's_mov_b32 s{sSLOTN}, s{sSLOTP}', f's_mov_b32 s{sSLOTP}, s{sT0}', f's_xor_b32 s{sINB}, s{sINB}, 0x40000',
          f's_xor_b32 s{sINB2}, s{sINB2}, 0x40000', f's_add_u32 s{sKM}, s{sKM}, {32*4096:#x}', f's_mov_b32 s{sSPIN}, 0']
    xa = xa_set()
    for n in range(3):
        a(xa[n])
        for x in sc[3*n:3*n+3]: a(x)
    a('s_barrier')
    stamp(13)
    h2 = opt.get('h2', (0, 0, 5))
    kb = opt.get('kb', 4)
    def kr(lst):
        for x in lst: a(x); a(f'v_mov_b32 v{HT}, v{HT}'); a('s_nop 1')
    kr(kvr[:kb])
    heat(a, h2[0], HT)
    for n, h in enumerate(h2[1:]):
        for x in p2: a(x)
        if n == 0:
            kr(kvr[kb:8])
            stamp_acc()
        heat(a, h, HT)
    a(f's_waitcnt vmcnt({2*(len(h2)-2)}) lgkmcnt(0)')
    a(f's_branch {T("loop")}')
    a.label(T('kvw'))
    kv_wait(a, T('kvl'), sT1, MEMF+24)
    a(f's_branch {T("kvr")}')
    poll_stub('p1', p1, check1, n1, 14)
    poll_stub('p2', p2, check2, n2, 15)
    a.label(T('fin'))
    a('s_waitcnt lgkmcnt(0)')
    for x in kget: a(x)
    a(f's_add_u32 s{sKM}, s{sKM}, {32*4096:#x}')
    a(kput)
    a('s_waitcnt vmcnt(0)')
    a(f'v_mov_b32 v{VB}, {nstep}')
    a(f'buffer_store_dword v{VB}, off, {WS}, s{sTF} sc1')
    if stamps or opt.get('timing', False):
        a('s_memtime s[60:61]'); a('s_memrealtime s[96:97]'); a('s_waitcnt lgkmcnt(0)')
        a('s_sub_u32 s92, s60, s92'); a('s_sub_u32 s93, s96, s94')
        a(f's_lshl_b32 s{sT0}, s5, 2'); a(f's_add_u32 s{sT0}, s{sT0}, s4'); a(f's_lshl_b32 s{sT0}, s{sT0}, 7'); a(f's_add_u32 s{sT0}, s{sT0}, {WS_DBG:#x}')
        vals = [92, 93, 94, 96, 90] + [sACC+i for i in range(16)]
        for i, s in enumerate(vals):
            a(f'v_mov_b32 v{VB}, s{s}')
            a(f'buffer_store_dword v{VB}, off, {WS}, s{sT0} offset:{4*i}')
    a('s_waitcnt vmcnt(0)')
    a('s_endpgm')

def team_setup(a, opt):
    WS = srd(sWS)
    load_srd(a, sA, 'Wq'); load_srd(a, sB, 'Wk'); load_srd(a, sC, 'Wv'); load_srd(a, sD, 'Wo')
    lane, c, g, t0, t1, va, vb = 100, 101, 102, 103, 104, 105, 106
    a(f'v_and_b32 v{lane}, 63, v0')
    a(f'v_and_b32 v{c}, 15, v{lane}')
    a(f'v_lshrrev_b32 v{g}, 4, v{lane}')
    a(f'v_lshlrev_b32 v{L16}, 4, v{lane}')
    a(f's_mov_b32 s{sPLO}, 0x05040100'); a(f's_mov_b32 s{sPHI}, 0x07060302')
    a(f'v_lshrrev_b32 v{t0}, 1, v{g}'); a(f'v_lshlrev_b32 v{t0}, 4, v{t0}')
    a(f'v_and_b32 v{t1}, 1, v{g}'); a(f'v_lshl_add_u32 v{t0}, v{t1}, 2, v{t0}')
    a(f's_lshl_b32 s{sT0}, s5, 8'); a(f's_lshl_b32 s{sKS}, s4, 6'); a(f's_add_u32 s{sT0}, s{sT0}, s{sKS}')
    a(f'v_lshlrev_b32 v{va}, 13, v{t0}'); a(f'v_lshl_add_u32 v{va}, v{c}, 2, v{va}'); a(f'v_add_u32 v{va}, s{sT0}, v{va}')
    a(f'v_add_u32 v{vb}, 0x2000, v{va}')
    vo = 107
    a(f's_lshl_b32 s{sT0}, s4, 8')
    a(f'v_lshlrev_b32 v{vo}, 10, v{t0}'); a(f'v_lshl_add_u32 v{vo}, v{c}, 3, v{vo}'); a(f'v_add_u32 v{vo}, s{sT0}, v{vo}')
    a(f's_lshl_b32 s{sT0}, s4, 15'); a(f'v_add_u32 v{WOB}, s{sT0}, v{L16}')
    a('s_waitcnt lgkmcnt(0)')
    RING0, RN = 24, 64
    OUT = 108
    items = []
    a(f's_lshl_b32 s{sW2}, s4, 20')
    a(f's_lshl_b32 s{sHO}, s5, 17')
    def qkv_items(S, dstf):
        for k in range(8):
            for b in range(8):
                def iss(r, k=k, b=b):
                    return [f's_xor_b32 s{sT1}, s{sW2}, {(k << 19) + db(b)*8192:#x}',
                            f'buffer_load_dword v{r}, v{va}, {srd(S)}, s{sT1} offen',
                            f'buffer_load_dword v{r+1}, v{vb}, {srd(S)}, s{sT1} offen']
                def con(r, k=k, b=b):
                    o = []
                    for t, sel in ((0, sPLO), (1, sPHI)):
                        kind, d = dstf(k, t, b)
                        if kind == 'v': o.append(f'v_perm_b32 v{d}, v{r+1}, v{r}, s{sel}')
                        else: o += [f'v_perm_b32 v{124+t}, v{r+1}, v{r}, s{sel}', f'v_accvgpr_write_b32 a{d}, v{124+t}']
                    return o
                items.append((iss, 2, 2, con))
    def wo_items():
        for cq in range(2):
            for ks2 in range(2):
                for b in range(8):
                    def iss(r, cq=cq, ks2=ks2, b=b):
                        return [f's_add_u32 s{sT1}, s{sHO}, {(64*ks2 + db(b))*1024:#x}',
                                f'buffer_load_dwordx2 {vr(r,2)}, v{vo}, {srd(sD)}, s{sT1} offen offset:{cq*128}',
                                f'buffer_load_dwordx2 {vr(r+2,2)}, v{vo}, {srd(sD)}, s{sT1} offen offset:{cq*128+1024}']
                    def con(r, cq=cq, ks2=ks2, b=b):
                        o = []
                        for i in range(4):
                            o.append(f'v_perm_b32 v{OUT+4*i+(b&3)}, v{r+2+(i>>1)}, v{r+(i>>1)}, s{sPHI if i&1 else sPLO}')
                        if (b & 3) == 3:
                            for i in range(4):
                                Tt = 4*cq + i
                                o.append(f'ds_write_b128 v{WOB}, {vr(OUT+4*i,4)} offset:{((Tt*2+ks2)*2+(b>>2))*1024}')
                            o.append('s_waitcnt lgkmcnt(0)')
                        return o
                    items.append((iss, 2, 4, con))
    orderw = opt.get('worder', 'oqkv')
    for ch in orderw:
        if ch == 'q': qkv_items(sA, lambda k, t, b: ('a', (k*2+t)*8+b))
        if ch == 'k': qkv_items(sB, lambda k, t, b: ('a', 128+(k*2+t)*8+b))
        if ch == 'v': qkv_items(sC, lambda k, t, b: ('v', WV+(k*2+t)*8+b))
        if ch == 'o': wo_items()
    return items, RING0, RN, (lane, c, g, t0, t1)

def stream(a, items, RING0, RN, maxload=60, older=0, hooks={}):
    n = len(items)
    pos = []; head = 0
    issued = 0; consumed = 0
    used = 0; infl = 0
    alloc = {}
    while consumed < n:
        while issued < n:
            iss, nl, nr, con = items[issued]
            h = head
            waste = 0
            if h + nr > RN: waste = RN - h; h = 0
            if used + waste + nr > RN or infl + nl > (maxload - older if consumed == 0 else maxload): break
            alloc[issued] = (h, waste + nr)
            for x in iss(RING0 + h): a(x)
            head = h + nr; used += waste + nr; infl += nl; issued += 1
        if consumed in hooks: hooks[consumed](a)
        iss, nl, nr, con = items[consumed]
        infl -= nl
        a(f's_waitcnt vmcnt({infl})')
        for x in con(RING0 + alloc[consumed][0]): a(x)
        used -= alloc[consumed][1]
        consumed += 1

def team_consts(a, tmp, SKEW=2):
    lane, c, g, t0, t1 = tmp
    a(f's_mov_b32 s{sPOI}, {POISON:#x}')
    scl = (128 ** -0.5) * math.log2(math.e)
    import struct
    a(f's_mov_b32 s{sSCL}, {struct.unpack("<I", struct.pack("<f", scl))[0]:#x}')
    a(f's_mov_b32 s{sHALF}, 0xcccccccc'); a(f's_mov_b32 s{sHALF+1}, 0xcccccccc')
    a(f's_mov_b32 s{sEVEN}, 0x0000ffff'); a(f's_mov_b32 s{sEVEN+1}, 0x0000ffff')
    a(f'v_mov_b32 v{t0}, 0x4444'); a(f'v_mov_b32 v{t1}, 0xeeee')
    a(f'v_cndmask_b32 v{IDX}, v{t0}, v{t1}, s[{sHALF}:{sHALF+1}]')
    a(f's_lshl_b32 s{sM0}, s4, 11')
    a(f's_lshl_b32 s{sKS}, s4, 6')
    for r in range(4): a(f'v_mov_b32 v{POI4+r}, s{sPOI}')
    a(f's_lshl_b32 s{sT0}, s4, 16')
    a(f'v_lshrrev_b32 v{t1}, 2, v{lane}'); a(f'v_lshlrev_b32 v{t0}, 11, v{t1}')
    a(f'v_mul_u32_u24 v{t1}, {SKEW}, v{t1}'); a(f'v_add_u32 v{t1}, s5, v{t1}'); a(f'v_and_b32 v{t1}, 31, v{t1}'); a(f'v_lshl_add_u32 v{t0}, v{t1}, 6, v{t0}')
    a(f'v_and_b32 v{t1}, 3, v{c}'); a(f'v_lshl_add_u32 v{t0}, v{t1}, 4, v{t0}'); a(f'v_add_u32 v{PST}, s{sT0}, v{t0}')
    a(f's_lshr_b32 s{sT0}, s5, 2'); a(f's_lshl_b32 s{sT0}, s{sT0}, 10'); a(f's_lshl_b32 s{sT1}, s4, 8'); a(f's_add_u32 s{sT0}, s{sT0}, s{sT1}')
    a(f's_and_b32 s{sT1}, s5, 3'); a(f's_lshl_b32 s{sT1}, s{sT1}, 6'); a(f's_add_u32 s{sT0}, s{sT0}, s{sT1}')
    a(f'v_and_b32 v{t0}, 2, v{c}'); a(f'v_lshlrev_b32 v{t0}, 4, v{t0}')
    a(f'v_lshrrev_b32 v{t1}, 1, v{g}'); a(f'v_lshl_add_u32 v{t0}, v{t1}, 4, v{t0}')
    a(f'v_and_b32 v{t1}, 1, v{g}'); a(f'v_lshl_add_u32 v{t0}, v{t1}, 2, v{t0}')
    a(f'v_and_b32 v{t1}, 1, v{c}'); a(f'v_lshl_add_u32 v{t0}, v{t1}, 3, v{t0}'); a(f'v_add_u32 v{t0}, s{sT0}, v{t0}')
    a(f'v_mov_b32 v{PUB}, 0x7fffff00'); a(f'v_cmp_gt_u32 vcc, 4, v{c}'); a(f'v_cndmask_b32 v{PUB}, v{PUB}, v{t0}, vcc')
    a(f'v_mul_u32_u24 v{t0}, {2*XS}, v{g}'); a(f'v_lshl_add_u32 v{t0}, v{c}, 2, v{t0}'); a(f'v_add_u32 v{t0}, s{sKS}, v{t0}')
    a(f'v_add_u32 v{XW}, {L_QX}, v{t0}')
    mm = 108
    a(f'v_lshrrev_b32 v{mm}, 2, v{c}'); a(f'v_lshl_add_u32 v{mm}, v{mm}, 1, v{t1}')
    a(f'v_mul_u32_u24 v{t0}, {XS}, v{mm}'); a(f'v_add_u32 v{t0}, {L_QX}, v{t0}')
    a(f'v_lshl_add_u32 v{QR}, v{g}, 4, v{t0}')
    a(f'v_lshl_add_u32 v{OR_}, v{g}, 5, v{t0}'); a(f'v_and_b32 v{mm}, 2, v{c}'); a(f'v_lshl_add_u32 v{OR_}, v{mm}, 3, v{OR_}')
    a(f'v_and_b32 v{mm}, 4, v{c}'); a(f'v_add_u32 v{mm}, v{mm}, v{t1}')
    a(f'v_lshrrev_b32 v{t0}, 3, v{c}'); a(f'v_lshl_add_u32 v{mm}, v{t0}, 1, v{mm}')
    a(f'v_mul_u32_u24 v{mm}, {XS}, v{mm}'); a(f'v_lshl_add_u32 v{mm}, v{g}, 4, v{mm}'); a(f'v_add_u32 v{KMR}, {L_QX}, v{mm}')
    a(f'v_add_u32 v{MR}, s{sM0}, v{L16}'); a(f'v_add_u32 v{MR}, {L_MEM}, v{MR}')
    a(f'v_mov_b32 v{t0}, 0x3f80'); a(f'v_lshlrev_b32 v{mm}, 4, v{t1}'); a(f'v_lshlrev_b32 v{t0}, v{mm}, v{t0}')
    a(f'v_lshrrev_b32 v{mm}, 1, v{c}')
    for r in range(4):
        a(f'v_cmp_eq_u32 vcc, {2*r}, v{mm}'); a(f'v_cndmask_b32 v{SELA+r}, 0, v{t0}, vcc')
    a(f'v_mov_b32 v{ONES}, 0x3f803f80'); a(f'v_mov_b32 v{ONES+1}, 0x3e803e80'); a(f'v_mov_b32 v{ONES+2}, 0x3f803f80'); a(f'v_mov_b32 v{ONES+3}, 0x3e803e80')
    a(f's_mov_b32 s{sSTEP}, 0')
    a(f's_add_u32 s{sSLOT}, s{sM0}, {WS_SLOT:#x}'); a(f's_mov_b32 s{sSLOTN}, {WS_SLOT+0x2000:#x}'); a(f's_mov_b32 s{sSLOTP}, {WS_SLOT+0x4000:#x}')
    a(f's_mov_b32 s{sINB}, {WS_INB:#x}')
    a(f's_lshl_b32 s{sINB2}, s5, 13'); a(f's_add_u32 s{sINB2}, s{sINB2}, s{sM0}'); a(f's_add_u32 s{sINB2}, s{sINB2}, {WS_INB:#x}')
    a(f's_lshl_b32 s{sKV}, s5, 13'); a(f's_add_u32 s{sKV}, s{sKV}, {WS_KF:#x}')
    a(f's_lshl_b32 s{sKM}, s5, 12'); a(f's_lshl_b32 s{sT0}, s4, 10'); a(f's_add_u32 s{sKM}, s{sKM}, s{sT0}'); a(f's_add_u32 s{sKM}, s{sKM}, {WS_KM - 32*4096:#x}')
    a(f's_add_u32 s{sKV}, s{sKV}, s{sM0}')
    a(f's_lshr_b32 s{sT0}, s4, 1'); a(f's_lshl_b32 s{sT0}, s{sT0}, 5'); a(f's_add_u32 s{sMK}, s{sM0}, s{sT0}'); a(f's_add_u32 s{sMK}, s{sMK}, {L_KX}')
    a(f's_add_u32 s{sMV}, s{sM0}, {L_V}')
    a(f's_lshl_b32 s{sTF}, s5, 7'); a(f's_lshl_b32 s{sT0}, s4, 2'); a(f's_add_u32 s{sTF}, s{sTF}, s{sT0}'); a(f's_add_u32 s{sTF}, s{sTF}, {WS_TF:#x}')

def team_init1(a, tmp):
    lane, c, g, t0, t1 = tmp
    WS = srd(sWS)
    load_srd(a, 64, 'mem0')
    for o in (0, 1024):
        a(f'buffer_store_dwordx4 {vr(POI4,4)}, v{L16}, {WS}, s{sINB2} offen offset:{o} sc1')
    a(f's_and_b32 s{sT0}, s5, 3'); a(f's_lshl_b32 s{sT0}, s{sT0}, 11'); a(f's_lshr_b32 s{sT1}, s5, 2'); a(f's_lshl_b32 s{sT1}, s{sT1}, 7')
    a(f's_add_u32 s{sT0}, s{sT0}, s{sT1}'); a(f's_lshl_b32 s{sT1}, s4, 5'); a(f's_add_u32 s{sT0}, s{sT0}, s{sT1}')
    a(f'v_lshrrev_b32 v{t0}, 1, v{g}'); a(f'v_lshlrev_b32 v{t0}, 10, v{t0}'); a(f'v_and_b32 v{t1}, 3, v{c}'); a(f'v_lshl_add_u32 v{t0}, v{t1}, 3, v{t0}')
    a(f'v_and_b32 v{t1}, 1, v{g}'); a(f'v_lshl_add_u32 v{t0}, v{t1}, 2, v{t0}')
    a('s_waitcnt lgkmcnt(0)')
    a(f'buffer_load_dword v99, v{t0}, {srd(64)}, s{sT0} offen')
    a(f'buffer_store_dword v{POI4}, v{PUB}, {WS}, s{sSLOTN} offen sc1')
def team_init2(a):
    a(f's_mov_b32 s{sT0}, {WS_SLOT:#x}')
    a(f'buffer_store_dword v99, v{PUB}, {srd(sWS)}, s{sT0} offen sc1')

sAV = 7
def kv_wait(a, tag, need_s, t):
    WS = srd(sWS)
    a(f'v_bfe_u32 v{t}, v{L16}, 4, 4'); a(f'v_min_u32 v{t}, 13, v{t}')
    a(f'v_cmp_lt_u32 vcc, 6, v{t}'); a(f'v_add_u32 v{t+1}, {16*7-7}, v{t}'); a(f'v_cndmask_b32 v{t}, v{t}, v{t+1}, vcc'); a(f'v_lshlrev_b32 v{t}, 2, v{t}')
    a(f's_lshr_b32 s{sT2}, s5, 1'); a(f's_mul_i32 s{sT2}, s{sT2}, 28')
    a(f's_mov_b32 s{sSPIN}, 0')
    a.label(tag)
    a(f'buffer_load_dword v{t+1}, v{t}, {WS}, s{sT2} offen offset:{WS_PF} sc1')
    a('s_waitcnt vmcnt(0)')
    for rot in (8, 4, 2, 1): a(f'v_min_i32_dpp v{t+1}, v{t+1}, v{t+1} row_ror:{rot} row_mask:0xf bank_mask:0xf')
    a(f'v_readfirstlane_b32 s{sAV}, v{t+1}')
    a(f's_max_i32 s{sAV}, s{sAV}, 0'); a(f's_mul_i32 s{sAV}, s{sAV}, 7')
    a(f's_add_u32 s{sSPIN}, s{sSPIN}, 1'); a(f's_cmp_ge_u32 s{sSPIN}, {SPIN_MAX}'); a('s_cbranch_scc1 L_fail')
    a(f's_cmp_ge_u32 s{need_s}, s{sAV}')
    a(f's_cbranch_scc1 {tag}')
    a(f's_mov_b32 s{sSPIN}, 0')

def team_first_kv(a):
    a(f's_mov_b32 s{sT1}, 1')
    kv_wait(a, 'T_kv0', sT1, MEMF+24)
    a(f's_add_u32 s{sT1}, s{sSLOTN}, s{sM0}')
    for so in (sINB2, sT1):
        for o in (0, 1024): a(f'buffer_load_dwordx4 {vr(MEMF+8,4)}, v{L16}, {srd(sWS)}, s{so} offen offset:{o} sc1')
    for g in kv_dma():
        for x in g: a(x)
    a(f's_mov_b32 s{sT0}, {L_KX}')
    for x in kx_addr(MEMF+21, MEMF+22): a(x)
    for z in range(12): a(z2(ACQ+2*z))
    a('s_waitcnt vmcnt(0)')
    a('s_barrier')
    for x in kv_reads(MEMF+21): a(x)
    a('s_waitcnt lgkmcnt(0)')
```

```python
from asmlib import *
from common import *
from team import stream
import math, struct
def fbits(x): return struct.unpack("<I", struct.pack("<f", x))[0]
L16 = 0
sIDX = 6
sPLO, sPHI = 37, 38
XST = 1056; XT = 32*XST
def mfm(d, A, B, C, fa='v', fb='v'): return f'v_mfma_f32_16x16x32_bf16 {vr(d,4)}, {vr(A,4,fa)}, {vr(B,4,fb)}, {C}'

def wload_items(S0, S1, va0, va1, stride, nk, dst, kbase_s, sT, imm1=0):
    items = []
    for kk in range(nk):
        for j in range(4):
            def iss(r, kk=kk, j=j):
                off = (32*kk + 2*j)*stride
                o = [f's_add_u32 s{sT}, s{kbase_s}, {off:#x}',
                     f'buffer_load_dword v{r}, v{va0}, {srd(S0)}, s{sT} offen',
                     f'buffer_load_dword v{r+1}, v{va0+1}, {srd(S0)}, s{sT} offen']
                if S1 is not None:
                    o += [f'buffer_load_dword v{r+2}, v{va1}, {srd(S1)}, s{sT} offen offset:{imm1}',
                          f'buffer_load_dword v{r+3}, v{va1+1}, {srd(S1)}, s{sT} offen offset:{imm1}']
                return o
            def con(r, kk=kk, j=j):
                o = []
                for T in range(4 if S1 is not None else 2):
                    b = r + 2*(T >> 1); sel = sPHI if T & 1 else sPLO
                    f, d = dst(kk, T, j)
                    if f == 'v': o.append(f'v_perm_b32 v{d}, v{b+1}, v{b}, s{sel}')
                    else: o += [f'v_perm_b32 v{8+(T&1)}, v{b+1}, v{b}, s{sel}', f'v_accvgpr_write_b32 a{d}, v{8+(T&1)}']
                return o
            n = 4 if S1 is not None else 2
            items.append((iss, n, n, con))
    return items

vC, vG, vA0, vA1, vRD = 1, 2, 4, 6, 3
ACC = 16
FR = 48
EP = 72
RING, RN = 104, 128
sTILE, sSTR, sBUF, sDST, sT0, sT1, sT2, sKB, sCNT, sW8, sNB, sDM = range(40, 52)
sCOL = 55

WST = [False]
def wstamp(a, i):
    if WST[0]:
        a('s_memrealtime s[92:93]'); a('s_memtime s[94:95]'); a('s_waitcnt lgkmcnt(0)')
        a('s_lshl_b32 s60, s6, 7'); a(f's_add_u32 s60, s60, {WS_DBG + 0x8000:#x}')
        if i < 0:
            a('s_mul_i32 s61, s54, 12'); a('s_add_u32 s60, s60, s61'); i = -i - 1
        a('v_mov_b32 v20, s92'); a('v_mov_b32 v21, s94')
        a(f'buffer_store_dword v20, off, {srd(sWS)}, s60 offset:{4*i}')
        a(f'buffer_store_dword v21, off, {srd(sWS)}, s60 offset:{64+4*i}')
        a('s_waitcnt vmcnt(0)')

def touch(a, srds, stride, col_s, blk_s, t=10):
    a(f'v_lshrrev_b32 v{t}, 4, v{L16}'); a(f'v_mul_u32_u24 v{t}, {stride}, v{t}'); a(f'v_add_u32 v{t}, s{col_s}, v{t}')
    a(f's_mul_i32 s{sT2}, s{blk_s}, {64*stride:#x}')
    a(f's_mov_b32 s{sT1}, {7*64*stride:#x}')
    for S in srds:
        a(f'buffer_load_dword v{t+1}, v{t}, {srd(S)}, s{sT2} offen')
        a(f'buffer_load_dword v{t+1}, v{t}, {srd(S)}, s{sT1} offen')

def x_dma(a, tile_s, buf_s):
    a(f's_lshl_b32 s{sT0}, s{tile_s}, 15')
    a(f's_lshl_b32 s{sT1}, s4, 13'); a(f's_add_u32 s{sT0}, s{sT0}, s{sT1}')
    a(f's_add_u32 s{sT1}, s{buf_s}, s{sW8}')
    for r in range(8):
        a(f's_add_u32 m0, s{sT1}, {r*XST}')
        if r: a(f's_add_u32 s{sT0}, s{sT0}, 1024')
        a(f'buffer_load_dwordx4 v{L16}, {srd(sC)}, s{sT0} offen lds')

def gemm(a, kind, tag, pre_loop):
    T_ = lambda n: f'{tag}_{n}'
    WS = srd(sWS)
    stride = 2752 if kind == 'F' else 8192
    touch(a, [sA, sB] if kind == 'F' else [sA], stride, sCOL, sTILE)
    a('s_barrier')
    a(f's_mov_b32 s{sNB}, s{sTILE}')
    for b in range(3):
        a(f's_mov_b32 s{sBUF}, {b*XT}')
        x_dma(a, sNB, sBUF)
        a(f's_add_u32 s{sNB}, s{sNB}, s{sSTR}')
    stride = 2752 if kind == 'F' else 8192
    items = wload_items(sA, sB, vA0, vA1, stride, 16, lambda kk, T, j: ('a', (kk*4+T)*4+j), sKB, sT2, imm1=0 if kind == 'F' else 64)
    stream(a, items, RING, RN, maxload=60, older=28)
    wstamp(a, -2)
    a(f's_mov_b32 s{sBUF}, 0')
    nst = 2 if kind == 'F' else 5
    a('s_mov_b32 s57, -1')
    pre_loop(a)
    a.label(T_('loop'))
    a(f's_waitcnt vmcnt({8 + nst})')
    a('s_barrier')
    if kind != 'F':
        a(f'v_mov_b32 v8, s57')
        a(f'buffer_store_dword v8, off, {WS}, s56 sc1')
        a('s_add_u32 s57, s57, 1')
    a(f'v_add_u32 v{EP}, s{sBUF}, v{vRD}')
    def rd(kk, rt): return f'ds_read_b128 {vr(FR+((kk%3)*2+rt)*4,4)}, v{EP} offset:{rt*16*XST + kk*64}'
    for kk in (0, 1):
        a(rd(kk, 0)); a(rd(kk, 1))
    a(f's_add_u32 s{sT2}, s{sBUF}, {3*XT}'); a(f's_cmp_ge_u32 s{sT2}, {4*XT}'); a(f's_cselect_b32 s{sCNT}, {4*XT}, 0'); a(f's_sub_u32 s{sT2}, s{sT2}, s{sCNT}')
    x_dma(a, sNB, sT2)
    a(f's_add_u32 s{sNB}, s{sNB}, s{sSTR}')
    for kk in range(16):
        n = 0
        for rt in range(2):
            for T in range(4):
                d = ACC + (rt*4+T)*4; x = FR + ((kk % 3)*2+rt)*4; w = (kk*4+T)*4
                C = '0' if kk == 0 else vr(d, 4)
                a(mfm(d, x, w, C, 'v', 'a') if kind == 'V' else mfm(d, w, x, C, 'a', 'v'))
                if kk + 2 < 16 and n in (1, 3): a(rd(kk+2, n >> 1))
                n += 1
    a(f's_mul_i32 s{sT0}, s{sTILE}, s{sDM}'); a(f's_add_u32 s{sT0}, s{sT0}, s{sDST}')
    ac = lambda rt, T, r: ACC + (rt*4+T)*4 + r
    if kind == 'K':
        a(f's_add_u32 s{sT1}, s{sT0}, 4096')
        for rt in range(2):
            for u in range(2):
                e = EP + 4 + (rt*2+u)*4
                for r in range(4): a(f'v_cvt_pk_bf16_f32 v{e+r}, v{ac(rt,2*u,r)}, v{ac(rt,2*u+1,r)}')
                a(f'buffer_store_dwordx4 {vr(e,4)}, v{L16}, {WS}, s{sT1 if rt else sT0} offen offset:{u*1024} sc1')
    elif kind == 'V':
        for T in range(4):
            e = EP + 4 + T*4
            for rt in range(2):
                for p in range(2): a(f'v_cvt_pk_bf16_f32 v{e+rt*2+p}, v{ac(rt,T,2*p)}, v{ac(rt,T,2*p+1)}')
            a(f'buffer_store_dwordx4 {vr(e,4)}, v{L16}, {WS}, s{sT0} offen offset:{T*1024} sc1')
    else:
        a(f's_add_u32 s{sT1}, s{sT0}, {43*1024}')
        a(f's_mov_b32 s{sT2}, {fbits(-math.log2(math.e)):#x}')
        for rt in range(2):
            e = EP + 4 + rt*4; t = EP + 12
            G = [ac(rt, tt, r) for r in range(4) for tt in range(2)]
            U = [ac(rt, 2+tt, r) for r in range(4) for tt in range(2)]
            def rnd(L):
                for r in range(4): a(f'v_cvt_pk_bf16_f32 v{t+8+r}, v{L[2*r]}, v{L[2*r+1]}')
                for r in range(4):
                    a(f'v_lshlrev_b32 v{L[2*r]}, 16, v{t+8+r}'); a(f'v_and_b32 v{L[2*r+1]}, 0xffff0000, v{t+8+r}')
            rnd(G); rnd(U)
            for i in range(8): a(f'v_mul_f32 v{t+i}, s{sT2}, v{G[i]}')
            for i in range(8): a(f'v_exp_f32 v{t+i}, v{t+i}')
            for i in range(8): a(f'v_add_f32 v{t+i}, 1.0, v{t+i}')
            for i in range(8): a(f'v_rcp_f32 v{t+i}, v{t+i}')
            for i in range(8): a(f'v_mul_f32 v{G[i]}, v{G[i]}, v{t+i}')
            rnd(G)
            for i in range(8): a(f'v_mul_f32 v{G[i]}, v{G[i]}, v{U[i]}')
            for r in range(4): a(f'v_cvt_pk_bf16_f32 v{e+r}, v{G[2*r]}, v{G[2*r+1]}')
            a(f'buffer_store_dwordx4 {vr(e,4)}, v{L16}, {WS}, s{sT1 if rt else sT0} offen sc1')
    a(f's_add_u32 s{sBUF}, s{sBUF}, {XT}'); a(f's_cmp_ge_u32 s{sBUF}, {4*XT}'); a(f's_cselect_b32 s{sBUF}, 0, s{sBUF}')
    a(f's_add_u32 s{sTILE}, s{sTILE}, s{sSTR}')
    a(f's_cmp_lt_u32 s{sTILE}, 64')
    a(f's_cbranch_scc1 {T_("loop")}')

def set_flag(a, val, base, tag):
    a('s_waitcnt vmcnt(0)')
    a('s_barrier')
    a('s_cmp_lg_u32 s4, 0')
    a(f's_cbranch_scc1 {tag}')
    a(f's_lshl_b32 s{sT0}, s{sIDX}, 2')
    a(f'v_mov_b32 v8, {val}')
    a(f'buffer_store_dword v8, off, {srd(sWS)}, s{sT0} offset:{base} sc1')
    a.label(tag)

def worker_lane_consts(a):
    a('v_and_b32 v3, 63, v0')
    a(f'v_and_b32 v{vC}, 15, v3'); a(f'v_lshrrev_b32 v{vG}, 4, v3'); a(f'v_lshlrev_b32 v{L16}, 4, v3')
    a(f'v_mul_u32_u24 v{vRD}, {XST}, v{vC}'); a(f'v_lshl_add_u32 v{vRD}, v{vG}, 4, v{vRD}')
    a(f's_mov_b32 s{sPLO}, 0x05040100'); a(f's_mov_b32 s{sPHI}, 0x07060302')
    a(f's_mul_i32 s{sW8}, s4, {8*XST}')
    a(f's_mov_b32 s{sKB}, 0')

def waddr(a, stride, col_s):
    a(f's_mov_b32 s{sCOL}, s{col_s}')
    a(f'v_mul_u32_u24 v{vA0}, {8*stride}, v{vG}'); a(f'v_lshl_add_u32 v{vA0}, v{vC}, 2, v{vA0}'); a(f'v_add_u32 v{vA0}, s{col_s}, v{vA0}')
    a(f'v_add_u32 v{vA0+1}, {stride}, v{vA0}')
    a(f'v_mov_b32 v{vA1}, v{vA0}'); a(f'v_mov_b32 v{vA1+1}, v{vA0+1}')

def qkv_setup(a, hp_s, wname, base):
    load_srd(a, sA, wname); load_srd(a, sB, wname)
    a(f's_lshl_b32 s{sT0}, s{hp_s}, 9'); a(f's_lshl_b32 s{sT1}, s4, 7'); a(f's_add_u32 s{sT0}, s{sT0}, s{sT1}')
    waddr(a, 8192, sT0)
    a(f's_lshl_b32 s{sDST}, s{hp_s}, 14'); a(f's_lshr_b32 s{sT1}, s4, 1'); a(f's_lshl_b32 s{sT1}, s{sT1}, 13'); a(f's_add_u32 s{sDST}, s{sDST}, s{sT1}')
    a(f's_and_b32 s{sT1}, s4, 1'); a(f's_lshl_b32 s{sT1}, s{sT1}, {12 if wname == "Wv" else 11}'); a(f's_add_u32 s{sDST}, s{sDST}, s{sT1}')
    a(f's_add_u32 s{sDST}, s{sDST}, {base:#x}')
    a(f's_mov_b32 s{sDM}, {32*8192:#x}')
    a('s_waitcnt lgkmcnt(0)')

def phase1(a, ready_wait):
    worker_lane_consts(a)
    wstamp(a, 1)
    load_srd(a, sC, 'x')
    sSL = 52
    a(f's_mul_hi_u32 s{sSL}, s{sIDX}, {-(-(1 << 32)//7):#x}'); a(f's_mul_i32 s{sT0}, s{sSL}, 7'); a(f's_sub_u32 s{sTILE}, s{sIDX}, s{sT0}')
    a(f's_mov_b32 s{sSTR}, 7')
    a(f's_and_b32 s53, s{sSL}, 15')
    a(f's_mov_b32 s54, 1')
    a(f's_lshl_b32 s56, s{sIDX}, 2'); a(f's_add_u32 s56, s56, {WS_PF}'); a('s_cmp_eq_u32 s4, 0'); a('s_cselect_b32 s56, s56, 0x7fffff00')
    a(f's_cmp_ge_u32 s{sSL}, 16')
    a('s_waitcnt lgkmcnt(0)')
    a('s_cbranch_scc1 W_v')
    qkv_setup(a, 53, 'Wk', WS_KF)
    a.label('W_kq')
    gemm(a, 'K', 'GK', lambda a: ready_wait(a, 'W_rdy1'))
    a('s_cmp_eq_u32 s54, 2')
    a('s_cbranch_scc1 W_r2done')
    a('s_branch W_r1done')
    a.label('W_v')
    qkv_setup(a, 53, 'Wv', WS_VF)
    gemm(a, 'V', 'GV', lambda a: ready_wait(a, 'W_rdy2'))
    a.label('W_r1done')
    set_flag(a, 100, WS_PF, 'W_f1')
    a('s_mov_b32 s56, 0x7fffff00')
    wstamp(a, 5)
    a(f's_lshr_b32 s{sSL}, s{sIDX}, 3'); a(f's_and_b32 s{sTILE}, s{sIDX}, 7'); a(f's_mov_b32 s{sSTR}, 8')
    a('s_mov_b32 s54, 2')
    a(f's_cmp_ge_u32 s{sSL}, 27'); a('s_cbranch_scc1 W_gate')
    a(f's_cmp_ge_u32 s{sSL}, 16'); a('s_cbranch_scc1 W_ffn')
    qkv_setup(a, sSL, 'Wq', WS_QF)
    a('s_branch W_kq')
    a.label('W_ffn')
    load_srd(a, sA, 'Wg'); load_srd(a, sB, 'Wu')
    a(f's_sub_u32 s53, s{sSL}, 16'); a('s_lshl_b32 s53, s53, 2'); a('s_add_u32 s53, s53, s4'); a('s_min_u32 s53, s53, 42')
    a(f's_lshl_b32 s{sT0}, s53, 6')
    waddr(a, 2752, sT0)
    a(f's_lshl_b32 s{sDST}, s53, 10'); a(f's_add_u32 s{sDST}, s{sDST}, {WS_HF:#x}')
    a(f's_mov_b32 s{sDM}, {2*43*1024:#x}')
    a('s_waitcnt lgkmcnt(0)')
    gemm(a, 'F', 'GF', lambda a: None)
    a('s_branch W_r2done')
    a.label('W_gate')
    gate(a)
    a.label('W_r2done')
    set_flag(a, 1, WS_PF2, 'W_f2')
    wstamp(a, 8)

def gate(a):
    load_srd(a, sA, 'gw')
    a(f's_sub_u32 s{sT0}, s{sIDX}, 216'); a(f's_lshl_b32 s{sT0}, s{sT0}, 2'); a(f's_add_u32 s{sT0}, s{sT0}, s4')
    a(f's_lshl_b32 s{sT1}, s{sT0}, 16')
    a(f's_lshl_b32 s{sDST}, s{sT0}, 8'); a(f's_add_u32 s{sDST}, s{sDST}, {WS_G:#x}')
    a('s_waitcnt lgkmcnt(0)')
    GW, X, R, RES, LN = 12, 16, 80, 10, 11
    a(f'buffer_load_dwordx4 {vr(GW,4)}, v{L16}, {srd(sA)}, 0 offen')
    a(f'v_lshrrev_b32 v{LN}, 4, v{L16}')
    a(f'v_mov_b32 v{RES}, 0')
    a(f's_mov_b32 s{sCNT}, 0')
    a.label('WG_loop')
    for i in range(16):
        a(f'buffer_load_dwordx4 {vr(X+4*i,4)}, v{L16}, {srd(sC)}, s{sT1} offen')
        a(f's_add_u32 s{sT1}, s{sT1}, 1024')
    a('s_waitcnt vmcnt(0)')
    for i in range(16): a(f'v_dot2_f32_bf16 v{R+i}, v{X+4*i}, v{GW}, 0')
    for k in range(1, 4):
        for i in range(16): a(f'v_dot2_f32_bf16 v{R+i}, v{X+4*i+k}, v{GW+k}, v{R+i}')
    a('s_nop 3')
    for rot in (8, 4, 2, 1):
        for i in range(16): a(f'v_add_f32_dpp v{R+i}, v{R+i}, v{R+i} row_ror:{rot} row_mask:0xf bank_mask:0xf')
    for sw in ('v_permlane16_swap_b32', 'v_permlane32_swap_b32'):
        for i in range(16): a(f'v_mov_b32 v{X+i}, v{R+i}')
        for i in range(16): a(f'{sw} v{R+i}, v{X+i}')
        for i in range(16): a(f'v_add_f32 v{R+i}, v{R+i}, v{X+i}')
    for i in range(16):
        a(f's_add_u32 s{sT2}, s{sCNT}, {i}')
        a(f'v_cmp_eq_u32 vcc, s{sT2}, v{LN}')
        a(f'v_cndmask_b32 v{RES}, v{RES}, v{R+i}, vcc')
    a(f's_add_u32 s{sCNT}, s{sCNT}, 16'); a(f's_cmp_lt_u32 s{sCNT}, 64'); a('s_cbranch_scc1 WG_loop')
    a(f'v_cvt_pk_bf16_f32 v{RES}, v{RES}, v{RES}'); a(f'v_and_b32 v{RES}, 0xffff0000, v{RES}')
    a(f'v_mul_f32 v{RES}, {fbits(-math.log2(math.e)):#x}, v{RES}')
    a(f'v_exp_f32 v{RES}, v{RES}'); a(f'v_add_f32 v{RES}, 1.0, v{RES}'); a(f'v_rcp_f32 v{RES}, v{RES}')
    a(f'v_cvt_pk_bf16_f32 v{RES}, v{RES}, v{RES}'); a(f'v_and_b32 v{RES}, 0xffff0000, v{RES}')
    a(f'v_lshlrev_b32 v{LN}, 2, v{LN}')
    a(f'buffer_store_dword v{RES}, v{LN}, {srd(sWS)}, s{sDST} offen sc1')

def spin_ge(a, tag, load, nreg, dst, thr, lanes_ok=None, sleep=1):
    a('s_mov_b32 s62, 0')
    a.label(tag)
    a(load)
    a('s_waitcnt vmcnt(0)')
    if nreg == 4:
        a(f'v_min3_i32 v{dst}, v{dst}, v{dst+1}, v{dst+2}'); a(f'v_min_i32 v{dst}, v{dst}, v{dst+3}')
    a(f'v_cmp_gt_i32 vcc, {thr}, v{dst}')
    a(f's_cbranch_vccz {tag}_ok')
    if sleep: a(f's_sleep {sleep}')
    a('s_add_u32 s62, s62, 1')
    a(f's_cmp_lt_u32 s62, {SPIN_MAX}')
    a(f's_cbranch_scc1 {tag}')
    a('s_branch L_fail')
    a.label(tag + '_ok')

def phase2(a, opt):
    WS = srd(sWS)
    if opt.get('no_p1'): worker_lane_consts(a)
    sGI, sCU, sSEG, sRND, sHD, sRH, sGF, sSCL, sTFo, sQO = 63, 64, 65, 66, 67, 68, 69, 70, 71, 72
    WD = 168
    load_srd(a, sA, 'Wo'); load_srd(a, sB, 'Wd'); load_srd(a, sD, 'out')
    a(f's_lshr_b32 s{sGI}, s{sIDX}, 4'); a(f's_and_b32 s{sCU}, s{sIDX}, 15')
    a(f's_lshl_b32 s{sT0}, s{sCU}, 6')
    waddr(a, 1024, sT0)
    a(f's_lshl_b32 s{sKB}, s4, 20')
    a(f's_mul_i32 s{sNB}, s4, {11*32*1024:#x}')
    a('s_waitcnt lgkmcnt(0)')
    items = wload_items(sA, None, vA0, None, 1024, 32, lambda kk, T, j: ('a', (kk*2+T)*4+j), sKB, sT2)
    items += wload_items(sB, None, vA0, None, 1024, 11, lambda kk, T, j: ('v', WD+(kk*2+T)*4+j), sNB, sT2)
    stream(a, items, 100, 64, maxload=60, older=2)
    wstamp(a, 9)
    MSK, KW, KR, RW, RR, OA_, GA, FL = 4, 12, 13, 14, 15, 3, 16, 17
    a(f's_lshr_b32 s{sT0}, s4, 1'); a(f's_lshl_b32 s{sHD}, s{sCU}, 1'); a(f's_add_u32 s{sHD}, s{sHD}, s{sT0}'); a(f's_and_b32 s{sRH}, s4, 1')
    a(f's_mov_b32 s{sSCL}, {fbits((128 ** -0.5) * math.log2(math.e)):#x}')
    a(f's_lshl_b32 s{sT0}, s{sRH}, 4'); a(f'v_add_u32 v18, s{sT0}, v{vC}'); a(f'v_lshlrev_b32 v19, 2, v{vG}'); a('v_sub_u32 v18, v18, v19')
    a(f'v_mov_b32 v19, {fbits(-1e30):#x}')
    for t in range(2):
        for r in range(4):
            a(f'v_cmp_gt_i32 vcc, {16*t+r}, v18'); a(f'v_cndmask_b32 v{MSK+4*t+r}, 0, v19, vcc')
    L_KM, L_RED = 0, 16384
    a(f's_mul_i32 s{sT0}, s4, 2304')
    a(f'v_mul_u32_u24 v{KW}, 576, v{vG}'); a(f'v_lshl_add_u32 v{KW}, v{vC}, 2, v{KW}'); a(f'v_add_u32 v{KW}, s{sT0}, v{KW}')
    a(f'v_lshrrev_b32 v18, 2, v{vC}'); a(f'v_and_b32 v19, 1, v{vC}'); a('v_lshl_add_u32 v18, v18, 1, v19')
    a(f'v_mul_u32_u24 v{KR}, 288, v18'); a(f'v_lshl_add_u32 v{KR}, v{vG}, 4, v{KR}'); a(f'v_add_u32 v{KR}, s{sT0}, v{KR}')
    a(f's_lshl_b32 s{sT0}, s4, 12'); a(f's_add_u32 s{sT0}, s{sT0}, {L_RED}'); a(f'v_add_u32 v{RW}, s{sT0}, v{L16}')
    a(f's_lshr_b32 s{sT0}, s4, 1'); a(f's_lshl_b32 s{sT1}, s{sT0}, 11'); a(f's_lshl_b32 s{sT2}, s{sRH}, 3'); a(f's_add_u32 s{sT1}, s{sT1}, s{sT2}'); a(f's_add_u32 s{sT1}, s{sT1}, {L_RED}')
    a(f'v_add_u32 v{RR}, s{sT1}, v{L16}')
    a(f's_lshl_b32 s{sT1}, s{sT0}, 14'); a(f's_add_u32 s{sT1}, s{sT1}, s{sT2}'); a(f's_lshl_b32 s{sT2}, s{sCU}, 6'); a(f's_add_u32 s{sT1}, s{sT1}, s{sT2}')
    a(f'v_lshlrev_b32 v{OA_}, 10, v{vC}'); a(f'v_lshl_add_u32 v{OA_}, v{vG}, 4, v{OA_}'); a(f'v_add_u32 v{OA_}, s{sT1}, v{OA_}')
    a(f's_lshl_b32 s{sT1}, s{sT0}, 6'); a(f'v_lshlrev_b32 v{GA}, 2, v{vC}'); a(f'v_add_u32 v{GA}, s{sT1}, v{GA}')
    a(f'v_lshlrev_b32 v{FL}, 2, v{vC}')
    a(f's_lshl_b32 s{sGF}, s{sGI}, 8'); a(f's_add_u32 s{sGF}, s{sGF}, {WS_GF:#x}')
    a(f's_lshl_b32 s{sTFo}, s{sHD}, 7'); a(f's_add_u32 s{sTFo}, s{sTFo}, {WS_TF:#x}')
    a(f's_mov_b32 s{sSEG}, s{sGI}'); a(f's_mov_b32 s{sRND}, 1')
    a(f'v_min_u32 v18, {55*16}, v{L16}')
    spin_ge(a, 'P2_pf', f'buffer_load_dwordx4 v[20:23], v18, {WS}, 0 offen offset:{WS_PF2} sc1', 4, 20, 1, sleep=8)
    wstamp(a, 10)
    QQ, KK, VV, KVM, S0, SM, PX, PM, BB, GG = 24, 40, 72, 104, 120, 128, 132, 136, 140, 18
    OC = 40
    KMF = 152
    AC = 24
    a.label('P2_loop')
    a(f's_mul_i32 s{sT0}, s{sSEG}, {2*43*1024:#x}'); a(f's_add_u32 s{sT0}, s{sT0}, {WS_HF:#x}')
    a(f's_mul_i32 s{sT1}, s4, 11')
    for i in range(11):
        a(f's_add_u32 s{sT2}, s{sT1}, {i}'); a(f's_min_u32 s{sT2}, s{sT2}, 42'); a(f's_lshl_b32 s{sT2}, s{sT2}, 10'); a(f's_add_u32 s{sT2}, s{sT2}, s{sT0}')
        a(f'buffer_load_dwordx4 {vr(40+8*i,4)}, v{L16}, {WS}, s{sT2} offen sc1')
        a(f's_add_u32 s{sT2}, s{sT2}, {43*1024}')
        a(f'buffer_load_dwordx4 {vr(44+8*i,4)}, v{L16}, {WS}, s{sT2} offen sc1')
    a(f's_lshl_b32 s{sT0}, s{sSEG}, 7'); a(f's_add_u32 s{sT0}, s{sT0}, {WS_G:#x}')
    a(f'buffer_load_dword v{GG}, v{GA}, {WS}, s{sT0} offen sc1')
    for i in range(11):
        a(f's_waitcnt vmcnt({21 - 2*i})')
        for rt in range(2):
            for t in range(2):
                d = AC + (rt*2+t)*4
                a(mfm(d, WD+(i*2+t)*4, 40+8*i+4*rt, '0' if i == 0 else vr(d,4)))
    a(f's_lshl_b32 s{sT0}, s{sSEG}, 5'); a(f's_add_u32 s{sT0}, s{sT0}, s{sHD}'); a(f's_lshl_b32 s{sQO}, s{sT0}, 13')
    a(f's_add_u32 s{sT0}, s{sQO}, {WS_KF:#x}'); a(f's_add_u32 s{sT1}, s{sT0}, 4096')
    for j in range(8): a(f'buffer_load_dwordx4 {vr(KK+4*j,4)}, v{L16}, {WS}, s{sT1 if j >= 4 else sT0} offen offset:{(j&3)*1024} sc1')
    a(f's_add_u32 s{sT0}, s{sQO}, {WS_VF:#x}'); a(f's_add_u32 s{sT1}, s{sT0}, 4096')
    for j in range(8): a(f'buffer_load_dwordx4 {vr(VV+4*j,4)}, v{L16}, {WS}, s{sT1 if j >= 4 else sT0} offen offset:{(j&3)*1024} sc1')
    def reduce(dst):
        a('s_barrier')
        for q in range(4): a(f'ds_write_b128 v{RW}, {vr(AC+4*q,4)} offset:{q*1024}')
        a('s_waitcnt lgkmcnt(0)')
        a('s_barrier')
        T = 144 - 0
        for w in range(4):
            for t in range(2): a(f'ds_read_b64 {vr(AC+4*w+2*t,2)}, v{RR} offset:{w*4096 + t*1024}')
        for k in range(4): a(f'v_add_f32 v{AC+k}, v{AC+k}, v{AC+4+k}')
        for k in range(4): a(f'v_add_f32 v{AC+8+k}, v{AC+8+k}, v{AC+12+k}')
        for k in range(4): a(f'v_add_f32 v{AC+k}, v{AC+k}, v{AC+8+k}')
        a(f'v_cvt_pk_bf16_f32 v{AC+4}, v{AC}, v{AC+2}'); a(f'v_cvt_pk_bf16_f32 v{AC+5}, v{AC+1}, v{AC+3}')
        for k in range(2):
            a(f'v_lshlrev_b32 v{dst+2*k}, 16, v{AC+4+k}'); a(f'v_and_b32 v{dst+2*k+1}, 0xffff0000, v{AC+4+k}')
    def rnd4(r, t):
        a(f'v_cvt_pk_bf16_f32 v{t}, v{r}, v{r+1}'); a(f'v_cvt_pk_bf16_f32 v{t+1}, v{r+2}, v{r+3}')
        for k in range(2):
            a(f'v_lshlrev_b32 v{r+2*k}, 16, v{t+k}'); a(f'v_and_b32 v{r+2*k+1}, 0xffff0000, v{t+k}')
    reduce(BB)
    a('s_waitcnt vmcnt(16)')
    a(f'v_sub_f32 v19, 1.0, v{GG}'); a('v_cvt_pk_bf16_f32 v19, v19, v19'); a('v_and_b32 v19, 0xffff0000, v19')
    for k in range(4): a(f'v_mul_f32 v{BB+k}, v19, v{BB+k}')
    rnd4(BB, AC+4)
    a(f's_lshl_b32 s{sT0}, s{sRH}, 12'); a(f's_add_u32 s{sT0}, s{sT0}, s{sQO}'); a(f's_add_u32 s{sT0}, s{sT0}, {WS_QF:#x}')
    for j in range(4): a(f'buffer_load_dwordx4 {vr(QQ+4*j,4)}, v{L16}, {WS}, s{sT0} offen offset:{j*1024} sc1')
    a('s_waitcnt vmcnt(0)')
    for j in range(4):
        for t in range(2): a(mfm(S0+4*t, KK+16*t+4*j, QQ+4*j, vr(MSK+4*t,4) if j == 0 else vr(S0+4*t,4)))
    a(f's_add_u32 s{sT1}, s{sSEG}, 1')
    spin_ge(a, 'P2_tf', f'buffer_load_dwordx4 v[20:23], off, {WS}, s{sTFo} sc1', 4, 20, f's{sT1}', sleep=opt.get('tfsleep', 4))
    a(f's_lshr_b32 s{sT0}, s{sQO}, 1'); a(f's_add_u32 s{sT0}, s{sT0}, {WS_KM:#x}')
    for j in range(4): a(f'buffer_load_dwordx4 {vr(KVM+4*j,4)}, v{L16}, {WS}, s{sT0} offen offset:{j*1024} sc1')
    a(f'v_max3_f32 v20, v{S0}, v{S0+1}, v{S0+2}'); a(f'v_max3_f32 v21, v{S0+4}, v{S0+5}, v{S0+6}'); a(f'v_max3_f32 v20, v20, v{S0+3}, v{S0+7}'); a('v_max_f32 v20, v20, v21')
    a(f'v_mov_b32 v{PM+1}, 0'); a(f'v_mov_b32 v{PM+2}, 0')
    for j in range(4):
        a(f's_waitcnt vmcnt({3-j})')
        a(f'ds_write_b32 v{KW}, v{KVM+4*j} offset:{L_KM + j*64}'); a(f'ds_write_b32 v{KW}, v{KVM+4*j+1} offset:{L_KM + j*64 + 288}')
    for j in range(4): a(f'ds_read_b128 {vr(KMF+4*j,4)}, v{KR} offset:{L_KM + j*64}')
    for j in range(4): a(mfm(SM, KMF+4*j, QQ+4*j, '0' if j == 0 else vr(SM,4)))
    a(f'v_max3_f32 v21, v20, v{SM}, v{SM+1}'); a(f'v_max3_f32 v22, v20, v{SM}, v{SM+1}')
    a('v_permlane32_swap_b32 v21, v22'); a('v_max_f32 v20, v21, v22'); a('v_max_f32 v23, v21, v22')
    a('v_permlane16_swap_b32 v20, v23'); a('v_max_f32 v20, v20, v23'); a(f'v_mul_f32 v20, s{sSCL}, v20')
    ex = [S0+i for i in range(8)] + [SM, SM+1]
    for r in ex: a(f'v_fma_f32 v{r}, v{r}, s{sSCL}, -v20')
    for r in ex: a(f'v_exp_f32 v{r}, v{r}')
    a(f'v_add_f32 v21, v{ex[0]}, v{ex[1]}'); a(f'v_add_f32 v22, v{ex[2]}, v{ex[3]}')
    for k in range(4, 10, 2):
        a(f'v_add_f32 v21, v21, v{ex[k]}'); a(f'v_add_f32 v22, v22, v{ex[k+1]}')
    a('v_add_f32 v20, v21, v22'); a('v_add_f32 v23, v21, v22')
    a('v_permlane32_swap_b32 v20, v23'); a('v_add_f32 v21, v20, v23'); a('v_add_f32 v22, v20, v23')
    a('v_permlane16_swap_b32 v21, v22'); a('v_add_f32 v20, v21, v22'); a('v_rcp_f32 v20, v20')
    for r in ex: a(f'v_mul_f32 v{r}, v{r}, v20')
    for k in range(4): a(f'v_cvt_pk_bf16_f32 v{PX+k}, v{S0+2*k}, v{S0+2*k+1}')
    a(f'v_cvt_pk_bf16_f32 v{PM}, v{SM}, v{SM+1}'); a(f'v_cvt_pk_bf16_f32 v{PM+3}, v{SM}, v{SM+1}')
    for et in range(8): a(mfm(OC+4*et, VV+4*et, PX, '0'))
    for et in range(8):
        a(f'v_mfma_f32_16x16x16_bf16 {vr(OC+4*et,4)}, {vr(KVM+4*(et>>1)+2,2)}, {vr(PM+2*(et&1),2)}, {vr(OC+4*et,4)}')
    a(f's_lshl_b32 s{sT0}, s{sRH}, 12'); a(f's_add_u32 s{sT0}, s{sT0}, s{sQO}'); a(f's_add_u32 s{sT0}, s{sT0}, {WS_OF:#x}')
    for ep in range(4):
        for r in range(4): a(f'v_cvt_pk_bf16_f32 v{VV+4*ep+r}, v{OC+8*ep+r}, v{OC+8*ep+4+r}')
        a(f'buffer_store_dwordx4 {vr(VV+4*ep,4)}, v{L16}, {WS}, s{sT0} offen offset:{ep*1024} sc1')
    a(f's_lshl_b32 s{sT0}, s{sCU}, 4'); a(f's_lshl_b32 s{sT1}, s4, 2'); a(f's_add_u32 s{sT0}, s{sT0}, s{sT1}'); a(f's_add_u32 s{sT0}, s{sT0}, s{sGF}')
    a(f'v_mov_b32 v20, s{sRND}')
    a('s_waitcnt vmcnt(0)')
    a(f'buffer_store_dword v20, off, {WS}, s{sT0} sc1')
    a(f's_lshl_b32 s{sT0}, s4, 6'); a(f's_add_u32 s{sT0}, s{sT0}, s{sGF}')
    spin_ge(a, 'P2_gf', f'buffer_load_dword v20, v{FL}, {WS}, s{sT0} offen sc1', 1, 20, f's{sRND}', sleep=opt.get('gfsleep', 1))
    a(f's_lshl_b32 s{sT0}, s{sSEG}, 18'); a(f's_lshl_b32 s{sT1}, s4, 16'); a(f's_add_u32 s{sT0}, s{sT0}, s{sT1}'); a(f's_add_u32 s{sT0}, s{sT0}, {WS_OF:#x}')
    NR = 24; R0 = 40
    def ld(n):
        o = []
        if n % 4 == 0 and n: o.append(f's_add_u32 s{sT0}, s{sT0}, 4096')
        o.append(f'buffer_load_dwordx4 {vr(R0+4*(n%NR),4)}, v{L16}, {WS}, s{sT0} offen offset:{(n&3)*1024} sc1')
        return o
    for n in range(NR):
        for x in ld(n): a(x)
    for n in range(64):
        hh, rt, ks4 = n >> 3, (n >> 2) & 1, n & 3
        kk = 4*hh + ks4
        a(f's_waitcnt vmcnt({min(NR, 64-n) - 1})')
        for t in range(2):
            d = AC + (rt*2+t)*4
            a(mfm(d, (kk*2+t)*4, R0+4*(n % NR), '0' if kk == 0 else vr(d,4), 'a', 'v'))
        if n + NR < 64:
            for x in ld(n + NR): a(x)
    AA = 144
    reduce(AA)
    for k in range(4): a(f'v_mul_f32 v{AA+k}, v{GG}, v{AA+k}')
    rnd4(AA, AC+4)
    for k in range(4): a(f'v_add_f32 v{AA+k}, v{AA+k}, v{BB+k}')
    a(f'v_cvt_pk_bf16_f32 v{AC+4}, v{AA}, v{AA+1}'); a(f'v_cvt_pk_bf16_f32 v{AC+5}, v{AA+2}, v{AA+3}')
    a(f's_lshl_b32 s{sT0}, s{sSEG}, 15')
    a(f'buffer_store_dwordx2 {vr(AC+4,2)}, v{OA_}, {srd(sD)}, s{sT0} offen')
    a(f's_add_u32 s{sSEG}, s{sSEG}, 14'); a(f's_add_u32 s{sRND}, s{sRND}, 1')
    a(f's_cmp_lt_u32 s{sSEG}, 64')
    a('s_cbranch_scc1 P2_loop')
```

```python
import sys, gen
T = 'cdna_kernels/' + gen.NAME + '.s'
ref = open(T + '.ref').read().split('\n')
hdr = [l for l in ref[:ref.index('.amdgcn_target "amdgcn-amd-amdhsa--gfx950"')] if '@launch' not in l]
opt = eval(sys.argv[1]) if len(sys.argv) > 1 else {}
out = sys.argv[2] if len(sys.argv) > 2 else T
open(out, 'w').write('\n'.join(hdr) + '\n' + gen.build(opt))
```

```python
import re

_REG = re.compile(r'^(-|abs\(|\|)?([vas])(?:\[(\d+):(\d+)\]|(\d+))\)?\|?$')

def regs_of(tok):
    tok = tok.strip()
    if tok in ('vcc',): return {('s', 'vcc')}
    if tok in ('vcc_lo', 'vcc_hi'): return {('s', 'vcc')}
    if tok in ('exec', 'exec_lo', 'exec_hi'): return {('s', 'exec')}
    if tok == 'm0': return {('s', 'm0')}
    m = _REG.match(tok)
    if not m: return set()
    k = m.group(2)
    if m.group(5) is not None: return {(k, int(m.group(5)))}
    return {(k, i) for i in range(int(m.group(3)), int(m.group(4)) + 1)}

TRANS = ('v_exp_f32', 'v_log_f32', 'v_rcp_f32', 'v_rsq_f32', 'v_sqrt_f32', 'v_sin_f32', 'v_cos_f32', 'v_rcp_iflag_f32')

class Ins:
    __slots__ = ('text', 'op', 'kind', 'wr', 'rd', 'srcC', 'AB', 'passes', 'states', 'dpp', 'trans', 'stdata', 'label', 'target', 'dtuple', 'ctuple')
    def __init__(self, text):
        self.text = text
        t = text.split(';')[0].strip()
        self.label = None; self.target = None
        self.wr = set(); self.rd = set(); self.srcC = set(); self.AB = set(); self.passes = 0
        self.states = 1; self.dpp = False; self.trans = False; self.stdata = set(); self.dtuple = None; self.ctuple = None
        if t.endswith(':'):
            self.label = t[:-1]; self.kind = 'label'; self.op = ''; self.states = 0; return
        if not t or t.startswith('.'):
            self.kind = 'dir'; self.op = ''; self.states = 0; return
        parts = t.split(None, 1)
        op = parts[0]; self.op = op
        rest = parts[1] if len(parts) > 1 else ''
        ops = [o.strip() for o in rest.split(',')] if rest else []
        mods = ''
        if ops:
            last = ops[-1].split(None, 1)
            ops[-1] = last[0] if last else ''
            mods = last[1] if len(last) > 1 else ''
        R = [regs_of(o) for o in ops]
        U = lambda l: set().union(*l) if l else set()
        if op == 's_nop':
            self.kind = 'salu'; self.states = int(ops[0], 0) + 1
        elif op.startswith('s_cbranch') or op == 's_branch':
            self.kind = 'branch'; self.target = ops[0]
        elif op.startswith('s_'):
            self.kind = 'salu'
            if op.startswith('s_cmp') or op.startswith('s_bitcmp') or op in ('s_waitcnt', 's_barrier', 's_endpgm', 's_sleep', 's_setprio'):
                self.rd = U(R)
            else:
                self.wr = R[0] if R else set(); self.rd = U(R[1:])
                if 'saveexec' in op: self.wr = self.wr | {('s', 'exec')}
        elif op.startswith('v_mfma') or op.startswith('v_smfmac'):
            self.kind = 'mfma'
            self.passes = 8 if '32x32' in op else 4
            self.wr = R[0]; self.dtuple = ops[0]
            if op.startswith('v_smfmac'):
                self.AB = R[1] | R[2] | R[3]; self.srcC = R[0]; self.ctuple = ops[0]
            else:
                self.AB = R[1] | R[2]; self.srcC = R[3]; self.ctuple = ops[3]
            self.rd = self.AB | self.srcC
        elif op.startswith('v_'):
            self.kind = 'valu'
            self.dpp = ('_dpp' in op) or ('row_' in mods) or ('quad_perm' in mods)
            base = op.replace('_e32', '').replace('_e64', '').replace('_dpp', '')
            self.trans = base in TRANS
            if base.startswith('v_permlane') and 'swap' in base:
                self.wr = R[0] | R[1]; self.rd = R[0] | R[1]
            elif base.startswith('v_add_co') or base.startswith('v_sub_co') or base.startswith('v_addc_co') or base.startswith('v_subb_co'):
                self.wr = R[0] | R[1]; self.rd = U(R[2:])
            else:
                self.wr = R[0]; self.rd = U(R[1:])
                if base.startswith('v_fmac') or base.startswith('v_dot2c') or self.dpp or base.startswith('v_writelane'):
                    self.rd = self.rd | R[0]
                if base.startswith('v_cmpx'): self.wr = self.wr | {('s', 'exec')}
        elif op.startswith('ds_'):
            self.kind = 'ds'
            if op.startswith('ds_read') or 'permute' in op or 'swizzle' in op:
                self.wr = R[0]; self.rd = U(R[1:])
            else:
                self.rd = U(R)
        elif op.startswith('global_') or op.startswith('buffer_'):
            self.kind = 'vmem'
            islds = ('_lds_' in op) or re.search(r'\blds\b', mods) is not None
            if islds:
                self.rd = U(R) | {('s', 'm0')}; self.kind = 'dma'
            elif '_load' in op:
                self.wr = R[0]; self.rd = U(R[1:])
                if 'd16' in op: self.rd = self.rd | R[0]
            elif '_atomic' in op:
                if op.startswith('global_') and 'sc0' in mods:
                    self.wr = R[0]; self.rd = U(R[1:])
                else:
                    self.rd = U(R)
                    if 'sc0' in mods: self.wr = R[0]
            elif '_store' in op:
                self.rd = U(R)
                if 'x3' in op or 'x4' in op:
                    self.stdata = R[0] if op.startswith('buffer_') else R[1]
            else:
                pass
        else:
            raise ValueError('unknown instruction: ' + text)

def isv(s): return {r for r in s if r[0] in 'va'}
def iss(s): return {r for r in s if r[0] == 's'}

def need(p, c):
    n = 0
    if p.kind == 'valu':
        w = isv(p.wr); sw = iss(p.wr)
        if c.kind == 'mfma' and (w & c.rd): n = max(n, 2)
        if c.kind == 'valu':
            if (c.op.startswith('v_permlane') or c.dpp) and (w & c.rd): n = max(n, 2)
            if (c.op.startswith('v_readlane') or c.op.startswith('v_readfirstlane')) and (w & c.rd): n = max(n, 1)
            if p.trans and not c.trans and (w & (c.rd | c.wr)): n = max(n, 1)
            crd = set(c.rd)
            if c.op.startswith('v_cndmask') and len(iss(c.rd)) == 0: crd.add(('s', 'vcc'))
            if sw & crd:
                n = max(n, 4 if (c.op.startswith('v_readlane') or c.op.startswith('v_writelane')) else 2)
            if ('s', 'exec') in sw: n = max(n, 5)
        if c.kind in ('vmem', 'dma') and (sw & c.rd): n = max(n, 5)
        if c.kind == 'mfma' and ('s', 'exec') in sw: n = max(n, 4)
        if c.kind in ('salu', 'branch') and (sw & c.rd): n = max(n, 1)
    if p.kind == 'mfma':
        big = 8 if p.passes == 4 else 12
        if c.kind == 'mfma':
            if p.wr & c.AB: n = max(n, big)
            if p.wr & c.srcC:
                if not (p.dtuple == c.ctuple and p.passes == c.passes): n = max(n, big - 2)
            elif p.wr & c.wr and not p.dtuple == c.dtuple: n = max(n, big - 2)
        elif c.kind in ('valu', 'ds', 'vmem', 'dma'):
            if p.wr & (c.rd | c.wr): n = max(n, big)
            if c.kind == 'valu' and (p.srcC & c.wr): n = max(n, 3 if p.passes == 4 else 7)
    if p.kind == 'vmem' and p.stdata:
        if p.stdata & c.wr: n = max(n, 2 if c.kind in ('valu', 'mfma') else 1)
    if p.kind == 'salu' and ('s', 'm0') in p.wr and c.kind == 'dma': n = max(n, 1)
    return n

class Asm:
    def __init__(self):
        self.lines = []
        self.uid = 0
    def __call__(self, text):
        for l in text.split('\n'):
            l = l.strip()
            if l: self.lines.append(l)
    def label(self, name): self.lines.append(name + ':')
    def newlabel(self, base='L'):
        self.uid += 1
        return f'{base}_{self.uid}'
    def nop(self, n):
        while n > 0:
            k = min(16, n); self.lines.append(f's_nop {k-1}'); n -= k

def pad(lines, verbose=False):
    ins = []
    W = 14
    added = 0
    for l in lines:
        if l.startswith(';'):
            continue
        c = Ins(l)
        if c.states or c.kind in ('label', 'dir'):
            if c.kind not in ('label', 'dir'):
                dist = 0; req = 0
                for p in reversed(ins):
                    if p.kind == 'branch' and p.op == 's_branch': break
                    if p.op == 's_endpgm': break
                    if p.states == 0: continue
                    n = need(p, c)
                    if n > dist: req = max(req, n - dist)
                    dist += p.states
                    if dist >= W: break
                if req:
                    ins.append(Ins(f's_nop {req-1}')); added += req
            ins.append(c)
    pos = {x.label: i for i, x in enumerate(ins) if x.label}
    for i, b in enumerate(ins):
        if b.kind != 'branch': continue
        if b.target not in pos: raise ValueError('unknown label ' + b.target)
        prods = []; dist = 0
        for p in reversed(ins[:i + 1]):
            if p is not b and p.kind == 'branch' and p.op == 's_branch': break
            if p.states == 0: continue
            prods.append((p, dist)); dist += p.states
            if dist >= W: break
        d2 = 0
        for c in ins[pos[b.target]:]:
            if c.states == 0: continue
            for p, d in prods:
                if p is b: continue
                n = need(p, c)
                if n > d + d2:
                    raise ValueError(f'hazard across branch {b.text}: {p.text} -> {c.text} need {n} have {d+d2}')
            d2 += c.states
            if d2 >= W or (c.kind == 'branch' and c.op == 's_branch') or c.op == 's_endpgm': break
    if verbose: print('nop states added', added)
    out = []
    for x in ins:
        out.append(x.text if x.kind in ('label', 'dir') else '    ' + x.text)
    return out

_LG = re.compile(r'lgkmcnt\((\d+)\)')
def auto_lgkm(lines):
    out = []
    q = []
    for l in lines:
        if l.startswith(';'):
            out.append(l); continue
        c = Ins(l)
        if c.kind == 'label' or c.kind == 'branch':
            pend = [x for x in q if x[0]]
            if pend and 'keep' not in l:
                raise ValueError('pending LDS/SMEM results at ' + l + ' : ' + str(sorted(pend[0][0]))[:80])
            out.append(l); continue
        if c.kind == 'dir':
            out.append(l); continue
        if c.op == 's_waitcnt':
            m = _LG.search(l)
            if m:
                n = int(m.group(1))
                if n == 0: q = []
                elif not any(x[1] for x in q): q = q[len(q) - n:] if n < len(q) else q
            out.append(l); continue
        touched = c.rd | c.wr
        idx = -1
        for i, x in enumerate(q):
            if x[0] & touched: idx = i
        if idx >= 0:
            n = len(q) - 1 - idx
            if any(x[1] for x in q): n = 0
            n = min(n, 15)
            out.append(f's_waitcnt lgkmcnt({n})')
            q = q[len(q) - n:] if n else []
        if c.kind == 'ds': q.append((set() if 'nowait' in l else set(c.wr), False))
        elif 'nowait' in l: pass
        elif c.op.startswith('s_load') or c.op.startswith('s_memtime') or c.op.startswith('s_memrealtime') or c.op.startswith('s_buffer_load'):
            q.append((set(c.wr), True))
        out.append(l)
    return out

def weave(a, mf, fill, start=0, per=2):
    fill = list(fill); k = 0
    for i, m in enumerate(mf):
        a(m)
        if i >= start:
            for _ in range(per):
                if k < len(fill): a(fill[k]); k += 1
    while k < len(fill): a(fill[k]); k += 1

def vr(b, n=1, f='v'):
    return f'{f}{b}' if n == 1 else f'{f}[{b}:{b+n-1}]'

def resolve_waitv(lines):
    out = []
    for l in lines:
        if l.startswith('waitv '):
            r = regs_of(l.split()[1]); k = 0
            for p in reversed(out):
                if p.startswith(';'): continue
                c = Ins(p)
                if c.kind == 'label' and 'keep' not in p: raise ValueError('waitv crosses label ' + p)
                if c.kind in ('vmem', 'dma'):
                    if c.wr & r: break
                    k += 1
            else: raise ValueError('waitv: no load')
            out.append(f's_waitcnt vmcnt({k})')
        else: out.append(l)
    return out
```

```python
POISON = 0xFFBFFFBF
WS_PF   = 0x0
WS_PF2  = 0x400
WS_TL   = 0x800
WS_TF   = 0x1000
WS_GF   = 0x2000
WS_FLAG_BYTES = 0x4000
WS_G    = 0x10000
WS_SLOT = 0x100000
SLOT_ST = 0x10000
REP_ST = 0
WS_DBG  = 0x40000
WS_INB  = 0x80000
WS_VM   = 0x400000
WS_KM   = 0x800000
WS_QF   = 0x1000000
WS_KF   = 0x2000000
WS_VF   = 0x3000000
WS_OF   = 0x4000000
WS_HF   = 0x5000000
WS_BYTES = 0x10000000
KA = dict(x=0, mem0=8, Wq=16, Wk=24, Wv=32, Wo=40, Wg=64, Wu=72, Wd=80, gw=88, out=96, dbg=104, ws=112)
SZ = dict(x=2048*512*2, mem0=8*512*2, Wq=512*4096*2, Wk=512*4096*2, Wv=512*4096*2, Wo=4096*512*2,
          Wg=512*1376*2, Wu=512*1376*2, Wd=1376*512*2, gw=1024, out=2048*512*2, dbg=256, ws=WS_BYTES)
DB_TEAMRDY = 4
DB_READY = 128
DB_TR = 96
DB_TEAMLD = 192
DB_ERR = 64
DB_OVF = 68
SPIN_MAX = 3000000
sWS, sDBG, sA, sB, sC, sD = 8, 12, 16, 20, 24, 28
def srd(b): return f's[{b}:{b+3}]'
def load_srd(a, b, name):
    a(f's_load_dwordx2 s[{b}:{b+1}], s[0:1], {KA[name]}')
    a(f's_mov_b32 s{b+2}, {SZ[name]:#x}')
    a(f's_mov_b32 s{b+3}, 0x20000')
LDS_MISC = 163584
```

```python
import sys
from asmlib import *
from common import *
import team as TM
import worker as WK
NAME = 'gated_mix__memory_aug_recurrent_mem_tr__swiglu_ffn__prompt'

def spin_dbg(a, off, target, label, v=(60, 61), s=(60, 61), sleep=0):
    a(f'v_mov_b32 v{v[0]}, {off}')
    a(f's_mov_b32 s{s[0]}, 0')
    a.label(label)
    if sleep: a(f's_sleep {sleep}')
    a(f'buffer_load_dword v{v[1]}, v{v[0]}, {srd(sDBG)}, 0 offen sc1')
    a('s_waitcnt vmcnt(0)')
    a(f'v_readfirstlane_b32 s{s[1]}, v{v[1]}')
    a(f's_add_u32 s{s[0]}, s{s[0]}, 1')
    a(f's_cmp_ge_u32 s{s[0]}, {SPIN_MAX}')
    a('s_cbranch_scc1 L_fail')
    a(f's_cmp_lt_u32 s{s[1]}, {target}')
    a(f's_cbranch_scc1 {label}')

def wg_atomic_inc(a, off, tag, v=(60, 61)):
    a('s_waitcnt vmcnt(0)')
    a('s_barrier')
    a('s_cmp_lg_u32 s4, 0')
    a(f's_cbranch_scc1 {tag}')
    a(f'v_mov_b32 v{v[0]}, {off}'); a(f'v_mov_b32 v{v[1]}, 1')
    a('s_mov_b64 exec, 1')
    a(f'buffer_atomic_add v{v[1]}, v{v[0]}, {srd(sDBG)}, 0 offen')
    a('s_mov_b64 exec, -1')
    a.label(tag)

def build(opt):
    a = Asm()
    kn = opt.get('kname', NAME + '_kernel')
    a('s_cmp_ge_u32 s2, 256')
    a('s_cbranch_scc1 L_exit')
    if opt.get('timing') or opt.get('stamps'):
        a('s_memrealtime s[90:91]')
    load_srd(a, sWS, 'ws'); load_srd(a, sDBG, 'dbg'); load_srd(a, sA, 'Wq'); load_srd(a, sB, 'Wo')
    a('s_getreg_b32 s3, hwreg(HW_REG_XCC_ID, 0, 3)')
    a('v_lshrrev_b32 v1, 6, v0')
    a('v_readfirstlane_b32 s4, v1')
    if opt.get('fake_xcc'):
        a(f's_mul_hi_u32 s3, s2, {-(-(1 << 32)//31):#x}'); a('s_min_u32 s3, s3, 7')
    def cnt_off(a, d, x):
        a(f's_lshl_b32 s{d}, s{x}, 2'); a(f's_add_u32 s{d}, s{d}, 128'); a(f's_cmp_eq_u32 s{x}, 0'); a(f's_cselect_b32 s{d}, 0, s{d}')
    cnt_off(a, 6, 3)
    a(f'v_mov_b32 v2, s6'); a('v_mov_b32 v3, 1'); a(f'v_mov_b32 v4, {LDS_MISC}')
    a('v_mov_b64 v[8:9], 0'); a('v_mov_b64 v[10:11], 0'); a('v_lshlrev_b32 v5, 4, v0'); a('s_lshl_b32 s7, s2, 6')
    a(f'v_mov_b32 v6, {DB_READY}'); a('v_mov_b32 v7, 1')
    a('s_waitcnt lgkmcnt(0)')
    if opt.get('team_only'):
        a('s_cmp_lg_u32 s3, 0'); a('s_cbranch_scc1 L_exit')
    if opt.get('cpf', True):
        a('s_cmp_lg_u32 s4, 3'); a('s_cbranch_scc1 L_ncp')
        a('s_lshr_b32 s40, s2, 3'); a(f's_cmp_ge_u32 s40, NCHUNK'); a('s_cbranch_scc1 L_ncp')
        a('s_getpc_b64 s[42:43]')
        a('s_and_b32 s42, s42, 0xffffff00')
        a('s_lshl_b32 s40, s40, 13'); a('v_and_b32 v12, 63, v0'); a('v_lshlrev_b32 v12, 7, v12'); a('v_add_u32 v12, s40, v12')
        a('global_load_dword v251, v12, s[42:43]')
        a.label('L_ncp')
    if opt.get('mall', True):
        a('s_cmp_eq_u32 s3, 0'); a('s_cbranch_scc1 L_nm')
        a('s_cmp_eq_u32 s4, 0'); a('s_cbranch_scc1 L_nm')
        a('v_and_b32 v12, 127, v0'); a('v_lshlrev_b32 v12, 7, v12'); a('s_lshl_b32 s40, s2, 14')
        a('s_cmp_eq_u32 s4, 1'); a('s_cbranch_scc1 L_m1')
        a(f'buffer_load_dword v250, v12, {srd(sB)}, s40 offen')
        a('s_branch L_nm')
        a.label('L_m1')
        a(f'buffer_load_dword v250, v12, {srd(sA)}, s40 offen')
        a('v_xor_b32 v12, 0x2000, v12')
        a(f'buffer_load_dword v250, v12, {srd(sA)}, s40 offen')
        a.label('L_nm')
    a('s_cmp_lg_u32 s4, 0')
    a('s_cbranch_scc1 L_tk')
    a('s_mov_b64 exec, 1')
    a(f'buffer_atomic_add v3, v2, {srd(sDBG)}, 0 offen sc0')
    if not opt.get('dev'):
        a('s_mov_b64 exec, 15')
        a(f'buffer_store_dwordx4 v[8:11], v5, {srd(sWS)}, s7 offen sc1')
        a('s_mov_b64 exec, 1')
    a('s_waitcnt vmcnt(0)')
    a('ds_write_b32 v4, v3')
    a(f'buffer_atomic_add v7, v6, {srd(sDBG)}, 0 offen')
    a('s_waitcnt lgkmcnt(0)')
    a('s_mov_b64 exec, -1')
    a.label('L_tk')
    a('s_barrier')
    a('ds_read_b32 v3, v4')
    a('v_readfirstlane_b32 s5, v3')
    a('s_cmp_ge_u32 s5, 32')
    a('s_cbranch_scc1 L_over')
    a.label('L_role')
    a('s_cmp_lg_u32 s3, 0')
    a('s_cbranch_scc1 L_worker')
    if opt.get('no_team'): a('s_endpgm')
    def wave0_inc(a, off):
        a(f's_mov_b32 s63, {off}'); a('s_cmp_eq_u32 s4, 0'); a(f's_cselect_b32 s63, s63, 0x7fffff00')
        a('v_mov_b32 v98, 1'); a('s_mov_b64 exec, 1')
        a(f'buffer_atomic_add v98, off, {srd(sDBG)}, s63'); a('s_mov_b64 exec, -1')
    def h0(a, tmp):
        TM.team_consts(a, tmp, opt.get('rs', REP_ST)); TM.team_init1(a, tmp); return 4
    def h1(a, tmp): TM.team_init2(a); return 1
    def h3(a, tmp):
        wave0_inc(a, DB_TEAMRDY)
        a(f'buffer_load_dwordx4 v[92:95], off, {srd(sDBG)}, 0 sc1'); return 2
    def h6(a, tmp):
        a('v_readfirstlane_b32 s61, v92'); a('v_readfirstlane_b32 s63, v94')
        a(f's_cmp_ge_u32 s63, {0 if opt.get("dev") else 256}'); a('s_cselect_b32 s62, 1, 0')
        TM.kv_addr(a, 96); TM.kv_issue(a, 96)
        a(f'buffer_load_dwordx4 v[92:95], off, {srd(sDBG)}, 0 sc1')
        wave0_inc(a, DB_TEAMLD)
        return 1
    def h7(a, tmp):
        TM.kv_eval(a, 96)
        a('v_readfirstlane_b32 s63, v93')
        a('s_cmp_ge_u32 s63, 32'); a('s_cselect_b32 s62, s62, 0')
        a(f's_cmp_ge_u32 s{TM.sAV}, 3'); a('s_cselect_b32 s62, s62, 0')
        a('s_cmp_eq_u32 s62, 0'); a('s_cbranch_scc1 L_hc')
        TM.team_first_issue(a, 88)
        a.label('L_hc')
        return 0
    TM.team_setup(a, opt, {'pre': h0, 1: h1, 3: h3, 6: h6, 7: h7})
    if opt.get('timing') or opt.get('stamps'):
        a('s_memrealtime s[92:93]'); a('s_waitcnt lgkmcnt(0)'); a('s_lshl_b32 s91, s92, 1'); a('s_add_u32 s91, s91, s62')
    V2 = (TM.MEMF+24, TM.MEMF+25)
    a('s_cmp_eq_u32 s62, 1'); a('s_cbranch_scc1 L_pre')
    spin_dbg(a, DB_TEAMRDY, 32, 'L_trw', v=V2)
    if not opt.get('dev'): spin_dbg(a, DB_READY, 256, 'L_rdw', v=V2)
    a(f's_mov_b32 s{TM.sT1}, 2')
    TM.kv_wait(a, 'T_kv0', TM.sT1, TM.MEMF+24)
    TM.team_first_issue(a, 88)
    spin_dbg(a, 0, 0, 'L_tc', v=V2)
    a.label('L_pre')
    TM.team_first_kv(a)
    if opt.get('force_slow'):
        TM.team(a, 'sc1', 'S', opt)
    else:
        a('s_cmp_lt_u32 s61, 32'); a('s_cbranch_scc1 L_tslow')
        TM.team(a, '', 'T', opt)
        a.label('L_tslow')
        if opt.get('noslow'): a('s_endpgm')
        else: TM.team(a, 'sc1', 'S', opt)
    a.label('L_over')
    a('s_barrier')
    a('s_cmp_lg_u32 s4, 0'); a('s_cbranch_scc1 L_ov1')
    a(f'v_mov_b32 v2, {DB_OVF}'); a('v_mov_b32 v3, 1'); a('s_mov_b64 exec, 1')
    a(f'buffer_atomic_add v3, v2, {srd(sDBG)}, 0 offen sc0'); a('s_waitcnt vmcnt(0)')
    a('ds_write_b32 v4, v3'); a('s_waitcnt lgkmcnt(0)'); a('s_mov_b64 exec, -1')
    a.label('L_ov1')
    a('s_barrier')
    a('ds_read_b32 v3, v4')
    a('v_readfirstlane_b32 s7, v3')
    spin_dbg(a, DB_READY, 256, 'L_ov2', v=(8, 9))
    a('s_mov_b32 s3, 0')
    a.label('L_ov3')
    cnt_off(a, 6, 3)
    a('v_mov_b32 v8, s6')
    a(f'buffer_load_dword v9, v8, {srd(sDBG)}, 0 offen sc1'); a('s_waitcnt vmcnt(0)')
    a('v_readfirstlane_b32 s5, v9')
    a('s_min_u32 s5, s5, 32'); a('s_add_u32 s5, s5, s7')
    a('s_cmp_lt_u32 s5, 32'); a('s_cbranch_scc1 L_role')
    a('s_sub_u32 s7, s5, 32')
    a('s_add_u32 s3, s3, 1'); a('s_cmp_lt_u32 s3, 8'); a('s_cbranch_scc1 L_ov3')
    a('s_branch L_fail')
    a.label('L_worker')
    a('s_sub_u32 s6, s3, 1'); a('s_lshl_b32 s6, s6, 5'); a('s_add_u32 s6, s6, s5')
    def ready_wait(a, tag):
        if not opt.get('dev'): spin_dbg(a, DB_READY, 256, tag, v=(8, 9))
    WK.WST[0] = bool(opt.get('timing') or opt.get('stamps'))
    if WK.WST[0]:
        a('s_lshl_b32 s60, s6, 7'); a(f's_add_u32 s60, s60, {WS_DBG + 0x8000:#x}')
        a('v_mov_b32 v8, s90')
        a(f'buffer_store_dword v8, off, {srd(sWS)}, s60')
    def pause(a, tag):
        if opt.get('pause', True) and not opt.get('dev'): spin_dbg(a, DB_TEAMLD, 32, tag, v=(8, 9), sleep=8)
    WK.PAUSE[0] = pause
    if not opt.get('no_p1'): WK.phase1(a, ready_wait)
    cnt_off(a, 60, 3)
    a('v_mov_b32 v8, s60')
    a(f'buffer_load_dword v9, v8, {srd(sDBG)}, 0 offen sc1'); a('s_waitcnt vmcnt(0)')
    a('v_readfirstlane_b32 s7, v9')
    a('s_cmp_ge_u32 s7, 32'); a(f's_cselect_b32 s7, {0 if opt.get("force_slow") else 1}, 0')
    if not opt.get('no_p2'): WK.phase2(a, opt)
    WK.wstamp(a, 15)
    a('s_waitcnt vmcnt(0)')
    a('s_endpgm')
    a.label('L_fail')
    a('s_mov_b64 exec, 1')
    a(f'v_mov_b32 v1, {DB_ERR}'); a('v_mov_b32 v2, 1')
    a(f'buffer_atomic_add v2, v1, {srd(sDBG)}, 0 offen')
    a('s_waitcnt vmcnt(0)')
    a.label('L_exit')
    a('s_endpgm')
    body = pad(auto_lgkm(resolve_waitv(a.lines)), verbose=opt.get('verbose', False))
    n_ins = sum(1 for l in body if l.startswith('    '))
    nchunk = 2 if opt.get('noslow') else opt.get('nchunk', 9)
    body = [l.replace('NCHUNK', str(nchunk)) for l in body]
    hdr = [f'; @launch grid=(256,1,1) block=(256,1,1) lds=163840',
           '.amdgcn_target "amdgcn-amd-amdhsa--gfx950"', '.text', f'.globl {kn}', '.p2align 8', f'.type {kn},@function', f'{kn}:']
    ftr = ['.section .rodata,"a"', '.p2align 6', f'.amdhsa_kernel {kn}', '  .amdhsa_next_free_vgpr 512', '  .amdhsa_next_free_sgpr 100',
           '  .amdhsa_accum_offset 256', '  .amdhsa_group_segment_fixed_size 0', '  .amdhsa_kernarg_size 120', '  .amdhsa_user_sgpr_count 2',
           '  .amdhsa_user_sgpr_kernarg_segment_ptr 1', '  .amdhsa_system_sgpr_workgroup_id_x 1', '  .amdhsa_float_denorm_mode_32 3', '.end_amdhsa_kernel']
    return '\n'.join(hdr + body + ftr) + '\n'

if __name__ == '__main__':
    opt = eval(sys.argv[2]) if len(sys.argv) > 2 else {}
    open(sys.argv[1], 'w').write(build(opt))
```

```python
from asmlib import *
from common import *
import math
L_WO, L_K0 = 0, 131072
L_K1 = L_K0 + 8192 + 64
L_QX = L_K1 + 8192 + 64
XS = 288; XSZ = 2304
L_V = L_QX + 3*XSZ
assert L_V + 8192 <= LDS_MISC and L_V % 16 == 0
L16, IDX, POI4 = 0, 1, 2
PST, PUB, XW, QR, KMR, OR_, MR, WOB, VMP = range(6, 15)
SELA, ONES, VB, MEMF, KX, ACQ, ACK, ACV = 16, 20, 24, 40, 72, 104, 112, 120
QF = KX
WV = 128
sHALF, sEVEN, sPOI, sPLO, sPHI, sSCL = 32, 34, 36, 37, 38, 39
sSTEP, sSLOT, sSLOTN, sSLOTP, sINB, sINBO, sKV, sKM, sMK, sSPIN, sT0, sT1, sT2, sKS, sTF, sM0, sINB2, sMV, sW2, sHO = range(40, 60)
sKB, sP1, sKD = sTF, sW2, sHO
sI1, sI2, sI3 = 37, 38, 6
sACC = 16
def db(b): return 32*(b >> 2) + 8*(b & 1) + 2*((b >> 1) & 1)
def smf(d, A, B, f='v'): return f'v_smfmac_f32_16x16x64_bf16 {vr(d,4)}, {vr(A,4)}, {vr(B,8,f)}, v{IDX}'
def mf(d, A, B, C='0'): return f'v_mfma_f32_16x16x32_bf16 {vr(d,4)}, {vr(A,4)}, {vr(B,4)}, {C}'
def z2(r): return f'v_mov_b64 {vr(r,2)}, 0'

def slots(a, mfl, plan):
    for i, m in enumerate(mfl):
        a(m)
        fl = plan.pop(i, [])
        for x in fl:
            if not x.startswith('v_') and not x.startswith('>'): a(x)
        for x in fl:
            if x.startswith('v_'): a(x)
        for x in fl:
            if x.startswith('>'): a(x[1:])
    assert not plan, plan

def heat(a, n, r):
    for _ in range(n):
        a(f'v_mov_b32 v{r}, v{r}'); a('s_nop 2')

def kx_addr(t0, t1):
    return [f'v_and_b32 v{t0}, 0x310, v{L16}', f'v_and_b32 v{t1}, 0x60, v{L16}', f'v_lshl_add_u32 v{t0}, v{t1}, 1, v{t0}',
            f'v_bfe_u32 v{t1}, v{L16}, 7, 1', f'v_mul_u32_u24 v{t1}, {4096+32}, v{t1}', f'v_add3_u32 v{t0}, v{t0}, v{t1}, s{sKB}']
def kv_reads(t0):
    r = [f'ds_read_b128 {vr(KX+4*j,4)}, v{t0} offset:{(j&3)*1024 + (j>>2)*32}' for j in range(8)]
    r += [f'ds_read_b64 {vr(VB+8*t+4*u,2)}, v{MR} offset:{t*1024 + u*8}' for t in (0, 1) for u in (0, 1)]
    return r
def v_dma():
    WS = srd(sWS)
    return [[f's_mov_b32 m0, s{sMV}', f's_add_u32 s{sT2}, s{sKV}, {WS_VF - WS_KF:#x}'],
            [f'buffer_load_dwordx4 v{L16}, {WS}, s{sT2} offen sc1 lds'],
            [f'buffer_load_dwordx4 v{L16}, {WS}, s{sT2} offen offset:1024 sc1 lds']]
def k_dma(adv=True):
    WS = srd(sWS)
    return [[f's_add_u32 m0, s{sMK}, s{sKD}', f's_add_u32 s{sKV}, s{sKV}, {32*8192 if adv else 0:#x}'],
            [f'buffer_load_dwordx4 v{L16}, {WS}, s{sKV} offen sc1 lds'],
            [f'buffer_load_dwordx4 v{L16}, {WS}, s{sKV} offen offset:1024 sc1 lds']]
def xa_set(): return [f's_add_u32 s{sP1}, s{sSLOT}, 0x1000']

DEFAULTS = dict(merge=True, ka=(38,38,39,39,40,40,41), b2=44, b3=47, kg=38, kg2=41, kp=43)
def team(a, sf, tag, opt):
    opt = {**DEFAULTS, **opt}
    if sf != '' or opt.get('shared'): return team1(a, sf, tag, opt, None)
    for w in range(3):
        a(f's_cmp_eq_u32 s4, {w}'); a(f's_cbranch_scc1 {tag}_full{w}')
    for w in (3, 0, 1, 2):
        if w < 3: a.label(f'{tag}_full{w}')
        o = dict(opt); o.update(opt.get('pw', {}).get(w, {}))
        for k, v in opt.get('stag', {}).items():
            base = o[k]
            o[k] = tuple(x + v*w for x in base) if isinstance(base, tuple) else base + v*w
        team1(a, sf, f'{tag}{w}', o, w)

def team1(a, sf, tag, opt, only):
    stamps = opt.get('stamps', False)
    nstep = opt.get('nstep', 64)
    NST = 14
    def st(i): return [f'{"s_memrealtime" if opt.get("raw") else "s_memtime"} s[{60+2*i}:{61+2*i}] ; nowait'] if stamps else []
    def stamp(i):
        for x in st(i): a(x)
    HT = VB+14
    def stamp_acc():
        if stamps:
            a('s_waitcnt lgkmcnt(0)')
            for i in range(NST):
                prev = 98 if i == 0 else 60+2*(i-1)
                if opt.get('raw'):
                    a(f's_cmp_eq_u32 s{sSTEP}, {opt["raw"] + (1 if i < 2 else 0)}')
                    a(f's_cselect_b32 s{sACC+i}, s{60+2*i}, s{sACC+i}')
                else:
                    a(f's_sub_u32 s99, s{60+2*i}, s{prev}')
                    a(f's_add_u32 s{sACC+i}, s{sACC+i}, s99')
                if i % 2 == 0: a(f'v_mov_b32 v{HT}, v{HT}')
            a(f's_mov_b32 s98, s{60+2*(NST-1)}')
    T = lambda n: f'{tag}_{n}'
    WS = srd(sWS)
    IB = VB; RA = MEMF+16; IT = MEMF+20
    p2 = [f'buffer_load_dwordx4 {vr(MEMF,4)}, v{L16}, {WS}, s{sSLOT} offen sc1',
          f'buffer_load_dwordx4 {vr(MEMF+4,4)}, v{L16}, {WS}, s{sSLOT} offen offset:1024 sc1']
    p1 = [f'buffer_load_dwordx4 {vr(IB,4)}, v{L16}, {WS}, s{sINB2} offen sc1',
          f'buffer_load_dwordx4 {vr(IB+4,4)}, v{L16}, {WS}, s{sINB2} offen offset:1024 sc1']
    def check2():
        b, t = MEMF, VB+10
        a(f'v_max3_u32 v{t}, v{b}, v{b+1}, v{b+2}')
        a(f'v_max3_u32 v{t+1}, v{b+4}, v{b+5}, v{b+6}')
        a(f'v_max3_u32 v{t}, v{t}, v{b+3}, v{b+7}')
        a(f'v_max_u32 v{t}, v{t}, v{t+1}')
        a(f'v_cmp_eq_u32 vcc, s{sPOI}, v{t}')
    def check1():
        t = IT
        a(f'v_max3_u32 v{t}, v{IB}, v{IB+1}, v{IB+2}')
        a(f'v_max3_u32 v{t}, v{t}, v{IB+3}, v{IB+4}')
        a(mf(RA, SELA, IB))
        a(f'v_max3_u32 v{t}, v{t}, v{IB+5}, v{IB+6}')
        a(f'v_max_u32 v{t}, v{t}, v{IB+7}')
        a(mf(RA, SELA, IB+4, vr(RA,4)))
        a(f'v_cmp_eq_u32 vcc, s{sPOI}, v{t}')
    def sample(name, loads, chk, depth, cnt, fill, warm=None):
        for i in range(depth - 1):
            for x in loads: a(x)
            fill(i)
        a(T(name) + ': ; keep')
        for x in loads: a(x)
        if warm: a(warm)
        if stamps: a(f's_add_u32 s{sACC+cnt}, s{sACC+cnt}, 1')
        a(f's_add_u32 s{sSPIN}, s{sSPIN}, 1')
        a(f's_cmp_ge_u32 s{sSPIN}, {SPIN_MAX}')
        a('s_cbranch_scc1 L_fail ; keep')
        a(f's_waitcnt vmcnt({2*(depth-1)})')
        chk()
        a(f's_cbranch_vccnz {T(name)} ; keep')
        a(T(name + 'ok') + ': ; keep')
    if stamps or opt.get('timing', False):
        for i in range(16): a(f's_mov_b32 s{sACC+i}, 0')
        a('s_memtime s[92:93]'); a('s_memrealtime s[94:95]'); a('s_waitcnt lgkmcnt(0)'); a('s_mov_b32 s98, s92')
    a(f's_mov_b32 s{sSPIN}, 0')
    for x in p2: a(x)
    for x in xa_set(): a(x)
    a('s_waitcnt vmcnt(0)')
    a(T('p2ok') + ': ; keep')
    eb = opt.get('eb', 2)
    Q = lambda k, t: smf(ACQ+4*t, MEMF+4*k, (k*2+t)*8, 'a')
    K = lambda k, t: smf(ACK+4*t, MEMF+4*k, 128+(k*2+t)*8, 'a')
    V = lambda k, t: smf(ACV+4*t, MEMF+4*k, WV+(k*2+t)*8)
    own = [Q(0,0), Q(0,1), Q(1,0), Q(1,1), K(0,0), K(0,1), K(1,0), K(1,1), V(0,0), V(0,1), V(1,0), V(1,1)]
    qk_ = [f(k, t) for k in range(2, 8) for f in (Q, K) for t in (0, 1)]
    vr_ = [V(k, t) for k in range(2, 8) for t in (0, 1)]
    S0, S1, SM, P = ACQ, ACQ+4, ACK, ACK+4
    xs = []
    for j in range(4):
        xs.append(mf(S0, KX+4*j, MEMF+4*j, '0' if j == 0 else vr(S0,4)))
        xs.append(mf(S1, KX+16+4*j, MEMF+4*j, '0' if j == 0 else vr(S1,4)))
    ms = [mf(SM, MEMF+16+4*j, MEMF+4*j, '0' if j == 0 else vr(SM,4)) for j in range(4)]
    M = own + qk_ + vr_ + xs + ms
    mld = lambda k: f'buffer_load_dwordx4 {vr(MEMF+4*k,4)}, v{L16}, {WS}, s{sP1 if k >= 4 else sSLOT} offen offset:{(k&3)*1024} sc1'
    def pk(ac): return [f'v_add_f32 v{ac}, v{ac}, v{ac+2}', f'v_add_f32 v{ac+1}, v{ac+1}, v{ac+3}',
                        f'v_add_f32 v{ac+4}, v{ac+4}, v{ac+6}', f'v_add_f32 v{ac+5}, v{ac+5}, v{ac+7}',
                        f'v_cvt_pk_bf16_f32 v{ac+2}, v{ac}, v{ac+4}', f'v_cvt_pk_bf16_f32 v{ac+3}, v{ac+1}, v{ac+5}']
    def xw(ac, off): return [f'ds_write_b32 v{XW}, v{ac+2} offset:{off}', f'ds_write_b32 v{XW}, v{ac+3} offset:{off+XS}']
    plan = {}
    def put(i, *xs_): plan.setdefault(i, []).extend(xs_)
    lat = opt.get('lat', (-1, -1, 0, 3, 6, 9))
    for k in range(2, 2+eb): a(mld(k))
    a(T('p2go') + ': ; keep')
    stamp(0)
    for k in range(2+eb, 8):
        if lat[k-2] < 0: a(mld(k))
        else: put(lat[k-2], mld(k))
    a('s_waitcnt lgkmcnt(1)')
    put(1, 's_waitcnt lgkmcnt(0)')
    da = opt.get('da', (36, 37, 40, 23, 24, 27)); po = opt.get('po', (20, 30)); kp = opt.get('kp', 46); fp = opt.get('fp', 22)
    CT = VB+10
    for k in range(2, 8):
        u = 12 + 4*(k-2) - 1
        put(u, f'waitv v{MEMF+4*k}')
        b = MEMF+4*k
        o = 0 if k == 7 else 1
        put(u+o, f'v_max_u32 v{CT}, v{b}, v{b+1}' if k == 2 else f'v_max3_u32 v{CT}, v{CT}, v{b}, v{b+1}')
        put(u+o+1, f'v_max3_u32 v{CT}, v{CT}, v{b+2}, v{b+3}')
    put(33, f'v_cmp_eq_u32 vcc, s{sPOI}, v{CT}')
    put(35, f's_cbranch_vccnz {T("redo")} ; keep')
    put(11, *st(1))
    KV4 = ACQ+4
    kget = [f'ds_read_b32 v{KV4}, v{XW} offset:{XSZ}', f'ds_read_b32 v{KV4+1}, v{XW} offset:{XSZ+XS}', f'v_mov_b64 {vr(KV4+2,2)}, {vr(VMP,2)}']
    kput = f'buffer_store_dwordx4 {vr(KV4,4)}, v{L16}, {WS}, s{sKM} offen sc1'
    put(opt.get('kg', 39), *kget[:2]); put(opt.get('kg2', 38), kget[2])
    for n, r in zip((14, 18, 1, 4), (VB+3, VB+7, VB+15, VB+11)): put(n, f'v_mov_b32 v{r}, 0')
    vrd = kv_reads(0)[8:]
    put(12, vrd[0], vrd[1]); put(14, vrd[2], vrd[3])
    put(da[0], 's_waitcnt lgkmcnt(0)')
    put(0, f's_xor_b32 s{sINBO}, s{sINB2}, 0x40000')
    put(3, f's_add_u32 s{sI1}, s{sINB}, 0x1000')
    kd = k_dma()
    kd[0][1] = f's_add_u32 s{sI2}, s{sKV}, {32*8192:#x}'
    kd = [[x.replace(f's{sKV} offen', f's{sI2} offen') for x in g] for g in kd]
    put(52, f's_mov_b32 s{sKV}, s{sI2}')
    for n, xs_ in enumerate(v_dma() + kd): put(da[n], *xs_)
    assert da[1] > 35 and (da[5] < da[0] or da[3] > da[2])
    pst = [f'buffer_store_dwordx4 {vr(POI4,4)}, v{L16}, {WS}, s{sINBO} offen offset:{o} {sf}' for o in (0, 1024)]
    for n in range(2):
        if po[n] < 60: put(po[n], pst[n])
    put(fp, f'buffer_store_dword v{POI4}, v{PUB}, {WS}, s{sSLOTP} offen {sf}')
    put(kp, kput)
    for i in opt.get('lwm', ()): put(i, f'ds_read_b32 v{VB+2}, v{XW} ; nowait')
    put(23, *st(2))
    put(35, *st(3))
    qa = opt.get('qa', (35, 35, 36, 36, 37, 37, 38))
    for n, x in enumerate(pk(ACQ)): put(qa[n], x)
    put(qa[6], *xw(ACQ, 0))
    put(33, 's_nop 1'); put(34, 's_nop 1')
    b2 = opt.get('b2', 42)
    if not opt.get('merge'): put(b2, 's_waitcnt lgkmcnt(0)', 's_barrier')
    qrd = [f'ds_read_b128 {vr(MEMF+4*j,4)}, v{QR} offset:{j*64}' for j in range(4)]
    k0 = opt.get('k0', 39)
    ka = opt.get('ka', tuple(k0+n for n in range(7)))
    for n, x in enumerate(pk(ACK)): put(ka[n], x)
    put(ka[6], *xw(ACK, XSZ))
    if opt.get('merge'): put(b2, 's_waitcnt lgkmcnt(0)', 's_barrier')
    put(b2, qrd[0]); put(b2+1, qrd[1], qrd[2]); put(b2+2, qrd[3])
    put(47, *st(4))
    b3 = opt.get('b3', 49)
    if not opt.get('merge'): put(b3, 's_waitcnt lgkmcnt(0)', 's_barrier')
    kmr = [f'ds_read_b128 {vr(MEMF+16+4*j,4)}, v{KMR} offset:{XSZ + j*64}' for j in range(4)]
    put(b3, kmr[0]); put(b3+1, kmr[1], kmr[2]); put(b3+2, kmr[3])
    ac = ACV
    fv = [f'v_add_f32 v{ac}, v{ac}, v{ac+2}', f'v_add_f32 v{ac+1}, v{ac+1}, v{ac+3}',
          f'v_add_f32 v{ac+4}, v{ac+4}, v{ac+6}', f'v_add_f32 v{ac+5}, v{ac+5}, v{ac+7}',
          f'v_cvt_pk_bf16_f32 v{VMP}, v{ac}, v{ac+1}', f'v_cvt_pk_bf16_f32 v{VMP+1}, v{ac+4}, v{ac+5}',
          f'v_cndmask_b32 v{VB+2}, 0, v{VMP}, s[{sEVEN}:{sEVEN+1}]', f'v_cndmask_b32 v{VB+6}, v{VMP}, 0, s[{sEVEN}:{sEVEN+1}]',
          f'v_cndmask_b32 v{VB+10}, 0, v{VMP+1}, s[{sEVEN}:{sEVEN+1}]', f'v_cndmask_b32 v{VB+14}, v{VMP+1}, 0, s[{sEVEN}:{sEVEN+1}]']
    for n in range(5): put(51+n, fv[2*n], fv[2*n+1])
    put(55, *st(5))
    order = [(2*ph + t, ks2) for ph in range(4) for ks2 in (0, 1) for t in (0, 1)]
    bufs = ([KX+8*b for b in range(4)] + [MEMF+8*b for b in range(4)]) * 2
    def word(n):
        return [f'ds_read_b128 {vr(bufs[n]+4*hf,4)}, v{WOB} offset:{wo_off(order[n][0], order[n][1], hf)}' for hf in range(2)]
    w2, w3, w4, w5 = word(0), word(1), word(2), word(3)
    put(52, w2[0]); put(53, w4[0]); put(54, w2[1]); put(55, w4[1]); put(56, w3[0]); put(57, w5[0]); put(58, w3[1]); put(59, w5[1])
    put(55, 's_waitcnt lgkmcnt(3)')
    put(56, z2(ACV), z2(ACV+2)); put(57, z2(ACV+4), z2(ACV+6))
    put(58, f'v_max3_f32 v{P}, v{S0}, v{S0+1}, v{S0+2}', f'v_max3_f32 v{P+1}, v{S1}, v{S1+1}, v{S1+2}')
    put(53, f's_cmp_eq_u32 s{sSTEP}, {nstep-1}')
    fin_at = 54
    drop = opt.get('drop', [])
    for i, m in enumerate(M):
        slots(a, [m], {0: [x for x in plan.pop(i, []) if not any(d in x for d in drop)]})
    assert not plan
    pre = word(4) + word(5) + word(6) + word(7)
    M0, M1 = SM+2, SM+3
    a(f's_cbranch_scc1 {T("fin")} ; keep')
    LS, O = SM, ACV
    ex = [S0, S0+1, S0+2, S0+3, SM, SM+1]
    sm = [f'v_max3_f32 v{P}, v{P}, v{S0+3}, v{S1+3}', f'v_max_f32 v{P}, v{P}, v{P+1}']
    sm += [f'v_cndmask_b32 v{S0+r}, v{S0+r}, v{S1+r}, s[{sHALF}:{sHALF+1}]' for r in range(4)]
    sm += [f'v_max3_f32 v{M0}, v{P}, v{SM}, v{SM+1}', f'v_max3_f32 v{M1}, v{P}, v{SM}, v{SM+1}',
           f'v_permlane32_swap_b32 v{M0}, v{M1}', f'v_max_f32 v{P}, v{M0}, v{M1}', f'v_max_f32 v{P+1}, v{M0}, v{M1}',
           f'v_permlane16_swap_b32 v{P}, v{P+1}', f'v_max_f32 v{M0}, v{P}, v{P+1}', f'v_mul_f32 v{M0}, s{sSCL}, v{M0}']
    sm += [f'v_fma_f32 v{r}, v{r}, s{sSCL}, -v{M0}' for r in ex]
    sm += [f'v_exp_f32 v{r}, v{r}' for r in ex]
    sm += [f'v_cvt_pk_bf16_f32 v{P}, v{S0}, v{S0+1}', f'v_cvt_pk_bf16_f32 v{P+2}, v{S0+2}, v{S0+3}',
           f'v_cvt_pk_bf16_f32 v{P+1}, v{SM}, v{SM+1}', f'v_cvt_pk_bf16_f32 v{P+3}, v{SM}, v{SM+1}']
    sm += [mf(LS, P, ONES), smf(O, P, VB), smf(O+4, P, VB+8)]
    sm += [f'v_add_f32 v{LS}, v{LS}, v{LS+2}', f'v_add_f32 v{LS+1}, v{LS+1}, v{LS+3}', f'v_rcp_f32 v{LS}, v{LS}', f'v_rcp_f32 v{LS+1}, v{LS+1}',
           f'v_pk_add_f32 {vr(O,2)}, {vr(O,2)}, {vr(O+2,2)}', f'v_pk_add_f32 {vr(O+4,2)}, {vr(O+4,2)}, {vr(O+6,2)}',
           f'v_pk_mul_f32 {vr(O,2)}, {vr(O,2)}, {vr(LS,2)}', f'v_pk_mul_f32 {vr(O+4,2)}, {vr(O+4,2)}, {vr(LS,2)}',
           f'v_cvt_pk_bf16_f32 v{O+2}, v{O}, v{O+4}', f'v_cvt_pk_bf16_f32 v{O+3}, v{O+1}, v{O+5}']
    pp = list(opt.get('pp', (7, 10, 29, 30, 31, 31, 32, 32)))
    bp = opt.get('bp', 42)
    n99 = pp.count(99)
    def sm_emit(lo, hi):
        for n in range(lo, hi):
            if n == 6: stamp(6)
            if n == 30: stamp(7)
            a(sm[n])
            for r, q in zip(pre, pp):
                if q == n: a(r)
    sm_emit(0, bp+1)
    def sm_rest():
        sm_emit(bp+1, len(sm))
        for x in xw(O, 2*XSZ): a(x)
        for r, q in zip(pre, pp):
            if q == 99: a(r)
        stamp(8)
    PW = opt.get('pw', {})
    DEF = [dict(er=(14,), n1=3, g1=5, d2=0, n2=4, g2=4), dict(d1=0, n1=2, g1=7), dict(d1=5, n1=2, g1=7), dict(d1=9, n1=2, g1=7)]
    def tailcode(w, gopt):
        nonlocal plan
        opt = dict(gopt); opt.update(DEF[w]); opt.update(PW.get(w, {}))
        if bp < len(sm) - 1 and w < 3: a.nop(max(0, opt.get('bn', 4) - 2*w))
        sm_rest()
        PA = [VB, VB+8, ACQ, ACK]
        if po[0] == 60: a(pst[0])
        zb = opt.get('zb', 4)
        zin = opt.get('zin', (0, 0, 1, 1, 2, 2, 3, 3))
        zs = [z2(VB+2*z) for z in range(4)] + [z2(ACK+2*z) for z in range(4)] + [z2(VB+8+2*z) for z in range(4)] + [z2(ACQ+2*z) for z in range(4)]
        zi = zs[16-len(zin):]; zs = zs[:16-len(zin)]
        for x in zs[:zb]: a(x)
        a(f's_waitcnt lgkmcnt({n99})')
        a('s_barrier')
        OA = ACV
        a(f'ds_read_b128 {vr(OA,4)}, v{OR_} offset:{2*XSZ}')
        a(f'ds_read_b128 {vr(OA+4,4)}, v{OR_} offset:{2*XSZ+128}')
        for r, q in zip(pre, pp):
            if q == 100: a(r)
        if po[1] == 61: a(pst[1])
        for x in zs[zb:]: a(x)
        heat(a, opt.get('h4b', 1), VB)
        stamp(9)
        W = [smf(PA[n >> 2]+4*(order[n][0] & 1), OA+4*order[n][1], bufs[n]) for n in range(16)]
        plan = {}
        for x, i in zip(zi, zin): put(i, x)
        rd = [x for n in range(8, 16) for x in word(n)]
        at = opt.get('at', [0, 0, 1, 1, 2, 3, 3, 4, 5, 5, 6, 7, 8, 8, 9, 10])
        for n, (x, i) in enumerate(zip(rd, at)):
            assert i >= n // 2
            put(i, x)
        pstore = lambda ph: f'buffer_store_dwordx2 {vr(PA[ph]+2,2)}, v{PST}, {WS}, s{sI1 if ph >= 2 else sINB} offen offset:{(ph&1)*2048} {sf}'
        er = opt.get('er', ())
        for e in er: put(e, *p1)
        pa = opt.get('pa', (0, 1, 1, 2, 3, 3, 4))
        tail = []
        for ph in range(3):
            for x, r in zip(pk(PA[ph]) + [pstore(ph)], pa):
                if 4*(ph+1) + r <= 15: put(4*(ph+1) + r, x)
                else: tail.append(x)
        for i in opt.get('ww', (7, 9, 11, 13)):
            need_n = 2*(i+2-8) + 2
            issued = sum(1 for x in at if x <= i)
            put(i, f's_waitcnt lgkmcnt({issued - need_n})')
        put(0, f's_waitcnt lgkmcnt({sum(1 for x in at if x == 0) + pp.count(100)})')
        slots(a, W, plan)
        for x in tail: a(x)
        p = PA[3]
        a(f'v_pk_add_f32 {vr(p,2)}, {vr(p,2)}, {vr(p+2,2)}'); a(f'v_pk_add_f32 {vr(p+4,2)}, {vr(p+4,2)}, {vr(p+6,2)}')
        for x in pk(p)[4:]: a(x)
        a(pstore(3))
        stamp(10)
        kvr = kv_reads(IT+1)
        work = kx_addr(IT+1, IT+2)
        for z in range(12): work += [kvr[z], z2(ACQ+2*z)] if z < 8 else [z2(ACQ+2*z)]
        nb = opt.get('w1', 26)
        stamp(11)
        if er:
            nb = opt.get('w0', 12)
            def fill(i):
                if i == 0:
                    for x in work[:nb]: a(x)
                if i == opt['n1'] - 2:
                    nst = 1 + sum(1 for ph in range(3) if 4*(ph+1) + pa[6] >= er[opt.get('ec', 0)])
                    a(f's_waitcnt vmcnt({2*(opt["n1"]-1) + nst + 2*(len(er)-1-opt.get("ec", 0))})')
                    check1()
                    a(f's_cbranch_vccz {T("s1w%dok" % w)} ; keep')
                elif i: heat(a, opt['g1'], IT)
        else:
            for x in work[:nb]: a(x)
            heat(a, opt.get('d1', 0), IT)
            def fill(i): heat(a, opt['g1'], IT)
        sample('s1w%d' % w, p1, check1, opt['n1'], 14, fill)
        for rot in (4, 8):
            for r in range(2): a(f'v_add_f32_dpp v{RA+r}, v{RA+r}, v{RA+r} row_ror:{rot} row_mask:0xf bank_mask:0xf')
        a(f'v_cvt_pk_bf16_f32 v{RA}, v{RA}, v{RA+1}')
        a(f'buffer_store_dword v{RA}, v{PUB}, {WS}, s{sSLOTN} offen {sf}')
        stamp(12)
        sc = [f's_add_u32 s{sSTEP}, s{sSTEP}, 1', f's_xor_b32 s{sT0}, s{sSLOTN}, {2*SLOT_ST:#x}',
              f's_mov_b32 s{sSLOTN}, s{sSLOTP}', f's_mov_b32 s{sSLOTP}, s{sT0}', f's_xor_b32 s{sINB}, s{sINB}, 0x40000',
              f's_xor_b32 s{sINB2}, s{sINB2}, 0x40000', f's_add_u32 s{sKM}, s{sKM}, {32*4096:#x}', f's_mov_b32 s{sSPIN}, 0',
              f's_mov_b32 s{sKD}, s{sKB}', f's_sub_u32 s{sKB}, {L_K0 + L_K1}, s{sKB}'] + xa_set()
        a(f's_add_u32 s{sSLOT}, s{sSLOTN}, s{sI3}')
        def part_a():
            for x in work[nb:]: a(x)
        def part_b():
            a(f'v_add_u32 v{HT}, {L_QX + 2*XSZ}, v{L16}')
            for m, x in enumerate(sc):
                if m % 3 == 2: a(f'v_mov_b32 v{HT}, v{HT}')
                a(x)
            stamp(13)
            a(f's_add_u32 s{sT1}, s{sSTEP}, 2')
            a(f's_cmp_ge_u32 s{sT1}, s{sAV}')
            a(f's_cbranch_scc1 {T("kvw%d" % w)} ; keep')
            a(T('kvo%d' % w) + ': ; keep')
        if w == 0:
            parts = [part_a, part_b, stamp_acc]
            pre_n = opt.get('pn', 1)
            for f in parts[:pre_n]: f()
            parts = parts[pre_n:]
            heat(a, opt.get('d2', 0), VB+15)
            def fill2(i):
                if parts and (parts[0] is not stamp_acc or stamps): parts.pop(0)()
                else: heat(a, opt['g2'], VB+15)
                if i == opt['n2'] - 2:
                    while parts: parts.pop(0)()
            sample('s2', p2, check2, opt['n2'], 15, fill2)
            if eb: a('s_barrier')
            a(f'ds_write_b128 v{HT}, {vr(MEMF,4)}')
            a(f'ds_write_b128 v{HT}, {vr(MEMF+4,4)} offset:1024')
            for k in range(2, 2+eb): a(mld(k))
            a('s_waitcnt lgkmcnt(0)')
            a('s_barrier')
        else:
            part_a(); part_b(); stamp_acc()
            a('s_waitcnt lgkmcnt(0)')
            if eb: a('s_barrier')
            for k in range(2, 2+eb): a(mld(k))
            a('s_barrier')
            a(f'ds_read_b128 {vr(MEMF,4)}, v{HT}')
            a(f'ds_read_b128 {vr(MEMF+4,4)}, v{HT} offset:1024')
        a(f's_branch {T("p2go")} ; keep')
        a('s_waitcnt lgkmcnt(0)')
        a.label(T('kvw%d' % w))
        kv_wait(a, T('kvl%d' % w), sT1, MEMF+24)
        a(f's_branch {T("kvo%d" % w)}')
    if only is not None:
        tailcode(only, opt)
    else:
        for w in range(3):
            a(f's_cmp_eq_u32 s4, {w}'); a(f's_cbranch_scc1 {T("w%d" % w)} ; keep')
        tailcode(3, opt)
        for w in range(3):
            a('s_waitcnt lgkmcnt(0)')
            a.label(T('w%d' % w)); tailcode(w, opt)
    a('s_waitcnt lgkmcnt(0)')
    a.label(T('redo'))
    if stamps: a(f's_add_u32 s{sACC+15}, s{sACC+15}, 0x10000')
    a(f's_add_u32 s{sSPIN}, s{sSPIN}, 1'); a(f's_cmp_ge_u32 s{sSPIN}, {SPIN_MAX}'); a('s_cbranch_scc1 L_fail')
    a('s_nop 7')
    for z in range(12): a(z2(ACQ+2*z))
    a(f's_branch {T("p2ok")}')
    a.label(T('fin'))
    a('s_waitcnt lgkmcnt(0)')
    a('s_nop 7')
    for x in kget: a(x)
    a(f's_add_u32 s{sKM}, s{sKM}, {32*4096:#x}')
    a(kput)
    if stamps or opt.get('timing', False):
        a('s_memtime s[60:61]'); a('s_memrealtime s[96:97]'); a('s_waitcnt lgkmcnt(0)')
        a('s_sub_u32 s92, s60, s92'); a('s_sub_u32 s93, s96, s94')
        a(f's_lshl_b32 s{sT0}, s5, 2'); a(f's_add_u32 s{sT0}, s{sT0}, s4'); a(f's_lshl_b32 s{sT0}, s{sT0}, 7'); a(f's_add_u32 s{sT0}, s{sT0}, {WS_DBG:#x}')
        vals = [92, 93, 94, 96, 90] + [sACC+i for i in range(16)] + [91] + ([70+2*i for i in range(9)] if opt.get('ustamp') else [])
        for i, s in enumerate(vals):
            a(f'v_mov_b32 v{VB}, s{s}')
            a(f'buffer_store_dword v{VB}, off, {WS}, s{sT0} offset:{4*i}')
    a('s_waitcnt vmcnt(0)')
    a('s_endpgm')

def wo_off(Tt, ks2, hf): return (Tt >> 2)*32768 + (ks2*2 + hf)*4096 + (Tt & 3)*1024

def team_setup(a, opt, hooks):
    if opt.get('ustamp'): a('s_memrealtime s[70:71]')
    load_srd(a, sA, 'Wq'); load_srd(a, sB, 'Wk'); load_srd(a, sC, 'Wv'); load_srd(a, sD, 'Wo')
    lane, c, g, t0, t1, va, vo, rA, rB, r8 = 100, 101, 102, 103, 104, 105, 106, 107, 109, 110
    a(f'v_and_b32 v{lane}, 63, v0')
    a(f'v_bfe_u32 v{t0}, v{lane}, 4, 1'); a(f'v_lshlrev_b32 v{vo}, 4, v{t0}')
    a(f'v_bfe_u32 v{t0}, v{lane}, 3, 1'); a(f'v_lshl_add_u32 v{vo}, v{t0}, 2, v{vo}')
    a(f'v_lshrrev_b32 v{t0}, 5, v{lane}'); a(f'v_add_u32 v{vo}, v{vo}, v{t0}')
    a(f'v_and_b32 v{t1}, 7, v{lane}'); a(f'v_lshlrev_b32 v{t1}, 4, v{t1}')
    a(f's_lshr_b32 s{sT2}, s4, 1'); a(f's_lshl_b32 s{sT0}, s5, 8'); a(f's_lshl_b32 s{sT1}, s{sT2}, 7'); a(f's_add_u32 s{sT0}, s{sT0}, s{sT1}')
    a(f'v_lshl_add_u32 v{va}, v{vo}, 13, v{t1}'); a(f'v_add_u32 v{va}, s{sT0}, v{va}')
    a(f's_lshl_b32 s{sW2}, s4, 20'); a(f's_and_b32 s{sW2}, s{sW2}, 0x100000')
    a(f's_lshl_b32 s{sTF}, s{sT2}, 16'); a(f's_and_b32 s{sT2}, s4, 1'); a(f's_lshl_b32 s{sT1}, s{sT2}, 14'); a(f's_add_u32 s{sTF}, s{sTF}, s{sT1}')
    a('s_waitcnt lgkmcnt(0)')
    units = []
    B0 = 24
    def qkv(S, dstf):
        for U in range(2):
            h = (len(units) & 1)*32768
            iss, rd, tr = [], [], []
            for j in range(2):
                for b in range(8):
                    iss += [f's_add_u32 m0, s{sTF}, {h + (j*8+b)*1024}', f's_xor_b32 s{sT1}, s{sW2}, {((4*U+j) << 19) + db(b)*8192:#x}',
                            f'buffer_load_dwordx4 v{va}, {srd(S)}, s{sT1} offen lds']
            for jj in range(4):
                for b in range(8):
                    r = B0 + (jj*8+b)*2; o = (h + ((jj & 1)*8+b)*1024) // 256
                    rd.append(f'ds_read2st64_b32 {vr(r,2)}, v{rB if jj >= 2 else rA} offset0:{o} offset1:{o+2}')
                    for t, sel in ((0, sPLO), (1, sPHI)):
                        kind, d = dstf(4*U+jj, t, b)
                        if kind == 'v': tr.append(f'v_perm_b32 v{d}, v{r+1}, v{r}, s{sel}')
                        else: tr += [f'v_perm_b32 v{124+t}, v{r+1}, v{r}, s{sel}', f'v_accvgpr_write_b32 a{d}, v{124+t}']
            units.append((iss, rd, tr))
    OUT = 112
    def wo():
        for cq in range(2):
            assert (len(units) & 1) == cq
            h = cq*32768
            iss, rd, tr = [], [], []
            for ks2 in range(2):
                for b in range(8):
                    sl = ks2*8 + b
                    iss += [f's_add_u32 m0, s{sTF}, {h + sl*1024}', f's_add_u32 s{sT1}, s{sHO}, {(64*ks2 + db(b))*1024 + cq*512:#x}',
                            f'buffer_load_dwordx4 v{vo}, {srd(sD)}, s{sT1} offen lds']
                    r = B0 + sl*4; o = (h + sl*1024) // 256
                    rd += [f'ds_read2st64_b32 {vr(r+2*pl,2)}, v{(rA, rB)[pl]} offset0:{o} offset1:{o+2}' for pl in range(2)]
                    tr += [f'v_perm_b32 v{OUT+4*i+(b&3)}, v{r+2*(i>>1)+1}, v{r+2*(i>>1)}, s{sPHI if i&1 else sPLO}' for i in range(4)]
                    if (b & 3) == 3:
                        tr += [f'ds_write_b128 v{WOB}, {vr(OUT+4*i,4)} offset:{wo_off(4*cq+i, ks2, b >> 2)}' for i in range(4)]
                        tr += ['s_waitcnt lgkmcnt(0)']
            units.append((iss, rd, tr))
    for ch in opt.get('worder', 'qkv'):
        if ch == 'q': qkv(sA, lambda k, t, b: ('a', (k*2+t)*8+b))
        if ch == 'k': qkv(sB, lambda k, t, b: ('a', 128+(k*2+t)*8+b))
        if ch == 'v': qkv(sC, lambda k, t, b: ('v', WV+(k*2+t)*8+b))
    wo()
    for U in range(2):
        for x in units[U][0]: a(x)
    a(f'v_and_b32 v{c}, 15, v{lane}'); a(f'v_lshrrev_b32 v{g}, 4, v{lane}'); a(f'v_lshlrev_b32 v{L16}, 4, v{lane}')
    a(f's_mov_b32 s{sPLO}, 0x05040100'); a(f's_mov_b32 s{sPHI}, 0x07060302')
    a(f's_lshl_b32 s{sHO}, s5, 17')
    a(f'v_add_u32 v{WOB}, s{sTF}, v{L16}')
    a(f'v_lshlrev_b32 v{rA}, 7, v{g}'); a(f'v_lshl_add_u32 v{rA}, v{c}, 2, v{rA}'); a(f's_lshl_b32 s{sT1}, s{sT2}, 6'); a(f's_add_u32 s{sT1}, s{sT1}, s{sTF}')
    a(f's_and_b32 s{sT1}, s{sT1}, 0xffffbfff')
    a(f'v_add_u32 v{rA}, s{sT1}, v{rA}'); a(f'v_add_u32 v{rB}, 0x4000, v{rA}')
    a(f'v_lshl_add_u32 v{vo}, v{vo}, 10, v{t1}'); a(f's_lshl_b32 s{sT0}, s{sT2}, 8'); a(f's_lshr_b32 s{sT1}, s4, 1'); a(f's_lshl_b32 s{sT1}, s{sT1}, 7')
    a(f's_add_u32 s{sT0}, s{sT0}, s{sT1}'); a(f'v_add_u32 v{vo}, s{sT0}, v{vo}')
    tmp = (lane, c, g, t0, t1)
    young = hooks['pre'](a, tmp)
    for U in range(8):
        a(f's_waitcnt vmcnt({(16 if U < 7 else 0) + young})')
        if opt.get('ustamp'): a(f's_memrealtime s[{72+2*U}:{73+2*U}]')
        a('s_barrier')
        for x in units[U][1]: a(x)
        a('s_waitcnt lgkmcnt(0)')
        a('s_barrier')
        if U + 2 < 8:
            for x in units[U+2][0]: a(x)
        young = hooks[U](a, tmp) if U in hooks else 0
        for x in units[U][2]: a(x)

def stream(a, items, RING0, RN, maxload=60, older=0, hooks={}):
    n = len(items)
    pos = []; head = 0
    issued = 0; consumed = 0
    used = 0; infl = 0
    alloc = {}
    while consumed < n:
        while issued < n:
            iss, nl, nr, con = items[issued]
            h = head
            waste = 0
            if h + nr > RN: waste = RN - h; h = 0
            if used + waste + nr > RN or infl + nl > (maxload - older if consumed == 0 else maxload): break
            alloc[issued] = (h, waste + nr)
            for x in iss(RING0 + h): a(x)
            head = h + nr; used += waste + nr; infl += nl; issued += 1
        if consumed in hooks: hooks[consumed](a)
        iss, nl, nr, con = items[consumed]
        infl -= nl
        a(f's_waitcnt vmcnt({infl})')
        for x in con(RING0 + alloc[consumed][0]): a(x)
        used -= alloc[consumed][1]
        consumed += 1

def team_consts(a, tmp, RS=REP_ST):
    lane, c, g, t0, t1 = tmp
    a(f's_mov_b32 s{sPOI}, {POISON:#x}')
    scl = (128 ** -0.5) * math.log2(math.e)
    import struct
    a(f's_mov_b32 s{sSCL}, {struct.unpack("<I", struct.pack("<f", scl))[0]:#x}')
    a(f's_mov_b32 s{sHALF}, 0xcccccccc'); a(f's_mov_b32 s{sHALF+1}, 0xcccccccc')
    a(f's_mov_b32 s{sEVEN}, 0x0000ffff'); a(f's_mov_b32 s{sEVEN+1}, 0x0000ffff')
    a(f'v_mov_b32 v{t0}, 0x4444'); a(f'v_mov_b32 v{t1}, 0xeeee')
    a(f'v_cndmask_b32 v{IDX}, v{t0}, v{t1}, s[{sHALF}:{sHALF+1}]')
    a(f's_lshl_b32 s{sM0}, s4, 11')
    a(f's_lshl_b32 s{sKS}, s4, 6')
    for r in range(4): a(f'v_mov_b32 v{POI4+r}, s{sPOI}')
    a(f's_lshl_b32 s{sT0}, s4, 16'); a(f's_lshl_b32 s{sT1}, s5, 6'); a(f's_add_u32 s{sT0}, s{sT0}, s{sT1}')
    a(f'v_lshrrev_b32 v{t0}, 3, v{lane}'); a(f'v_lshlrev_b32 v{t0}, 13, v{t0}')
    a(f'v_and_b32 v{t1}, 7, v{c}'); a(f'v_lshl_add_u32 v{t0}, v{t1}, 3, v{t0}'); a(f'v_add_u32 v{PST}, s{sT0}, v{t0}')
    a(f's_lshr_b32 s{sT0}, s5, 3'); a(f's_lshl_b32 s{sT0}, s{sT0}, 9'); a(f's_add_u32 s{sT0}, s{sT0}, s{sM0}')
    a(f's_and_b32 s{sT1}, s5, 1'); a(f's_lshl_b32 s{sT1}, s{sT1}, 8'); a(f's_add_u32 s{sT0}, s{sT0}, s{sT1}')
    a(f's_and_b32 s{sT1}, s5, 6'); a(f's_lshl_b32 s{sT1}, s{sT1}, 5'); a(f's_add_u32 s{sT0}, s{sT0}, s{sT1}')
    a(f'v_and_b32 v{t0}, 2, v{c}'); a(f'v_lshlrev_b32 v{t0}, 4, v{t0}')
    a(f'v_lshrrev_b32 v{t1}, 1, v{g}'); a(f'v_lshl_add_u32 v{t0}, v{t1}, 2, v{t0}')
    a(f'v_and_b32 v{t1}, 1, v{g}'); a(f'v_lshl_add_u32 v{t0}, v{t1}, 4, v{t0}')
    a(f'v_and_b32 v{t1}, 1, v{c}'); a(f'v_lshl_add_u32 v{t0}, v{t1}, 3, v{t0}'); a(f'v_add_u32 v{t0}, s{sT0}, v{t0}')
    if RS: a(f'v_lshrrev_b32 v{PUB}, 2, v{c}'); a(f'v_mul_u32_u24 v{PUB}, {RS}, v{PUB}'); a(f'v_add_u32 v{PUB}, v{PUB}, v{t0}')
    else: a(f'v_mov_b32 v{PUB}, 0x7fffff00'); a(f'v_cmp_gt_u32 vcc, 4, v{c}'); a(f'v_cndmask_b32 v{PUB}, v{PUB}, v{t0}, vcc')
    a(f'v_mul_u32_u24 v{t0}, {2*XS}, v{g}'); a(f'v_lshl_add_u32 v{t0}, v{c}, 2, v{t0}'); a(f'v_add_u32 v{t0}, s{sKS}, v{t0}')
    a(f'v_add_u32 v{XW}, {L_QX}, v{t0}')
    mm = 108
    a(f'v_lshrrev_b32 v{mm}, 2, v{c}'); a(f'v_lshl_add_u32 v{mm}, v{mm}, 1, v{t1}')
    a(f'v_mul_u32_u24 v{t0}, {XS}, v{mm}'); a(f'v_add_u32 v{t0}, {L_QX}, v{t0}')
    a(f'v_lshl_add_u32 v{QR}, v{g}, 4, v{t0}')
    a(f'v_lshl_add_u32 v{OR_}, v{g}, 5, v{t0}'); a(f'v_and_b32 v{mm}, 2, v{c}'); a(f'v_lshl_add_u32 v{OR_}, v{mm}, 3, v{OR_}')
    a(f'v_and_b32 v{mm}, 4, v{c}'); a(f'v_add_u32 v{mm}, v{mm}, v{t1}')
    a(f'v_lshrrev_b32 v{t0}, 3, v{c}'); a(f'v_lshl_add_u32 v{mm}, v{t0}, 1, v{mm}')
    a(f'v_mul_u32_u24 v{mm}, {XS}, v{mm}'); a(f'v_lshl_add_u32 v{mm}, v{g}, 4, v{mm}'); a(f'v_add_u32 v{KMR}, {L_QX}, v{mm}')
    a(f'v_add_u32 v{MR}, s{sM0}, v{L16}'); a(f'v_add_u32 v{MR}, {L_V}, v{MR}')
    a(f'v_mov_b32 v{t0}, 0x3f80'); a(f'v_lshlrev_b32 v{mm}, 4, v{t1}'); a(f'v_lshlrev_b32 v{t0}, v{mm}, v{t0}')
    a(f'v_lshrrev_b32 v{mm}, 1, v{c}')
    for r in range(4):
        a(f'v_cmp_eq_u32 vcc, {2*r}, v{mm}'); a(f'v_cndmask_b32 v{SELA+r}, 0, v{t0}, vcc')
    a(f'v_mov_b32 v{ONES}, 0x3f803f80'); a(f'v_mov_b32 v{ONES+1}, 0x3e803e80'); a(f'v_mov_b32 v{ONES+2}, 0x3f803f80'); a(f'v_mov_b32 v{ONES+3}, 0x3e803e80')
    a(f's_mov_b32 s{sSTEP}, 0')
    a(f's_mul_i32 s{sI3}, s4, {RS}'); a(f's_add_u32 s{sSLOT}, s{sI3}, {WS_SLOT:#x}'); a(f's_mov_b32 s{sSLOTN}, {WS_SLOT+SLOT_ST:#x}'); a(f's_mov_b32 s{sSLOTP}, {WS_SLOT+2*SLOT_ST:#x}')
    a(f's_mov_b32 s{sINB}, {WS_INB:#x}')
    a(f's_lshl_b32 s{sINB2}, s5, 13'); a(f's_add_u32 s{sINB2}, s{sINB2}, s{sM0}'); a(f's_add_u32 s{sINB2}, s{sINB2}, {WS_INB:#x}')
    a(f's_lshl_b32 s{sKV}, s5, 13'); a(f's_add_u32 s{sKV}, s{sKV}, {WS_KF:#x}')
    a(f's_lshl_b32 s{sKM}, s5, 12'); a(f's_lshl_b32 s{sT0}, s4, 10'); a(f's_add_u32 s{sKM}, s{sKM}, s{sT0}'); a(f's_add_u32 s{sKM}, s{sKM}, {WS_KM - 32*4096:#x}')
    a(f's_add_u32 s{sKV}, s{sKV}, s{sM0}')
    a(f's_lshr_b32 s{sT0}, s4, 1'); a(f's_lshl_b32 s{sT0}, s{sT0}, 5'); a(f's_add_u32 s{sMK}, s{sM0}, s{sT0}')
    a(f's_add_u32 s{sMV}, s{sM0}, {L_V}')

def team_init1(a, tmp):
    lane, c, g, t0, t1 = tmp
    WS = srd(sWS)
    load_srd(a, 64, 'mem0')
    for o in (0, 1024):
        a(f'buffer_store_dwordx4 {vr(POI4,4)}, v{L16}, {WS}, s{sINB2} offen offset:{o} sc1')
    a(f's_and_b32 s{sT0}, s5, 6'); a(f's_lshl_b32 s{sT0}, s{sT0}, 10'); a(f's_lshr_b32 s{sT1}, s5, 3'); a(f's_lshl_b32 s{sT1}, s{sT1}, 6')
    a(f's_add_u32 s{sT0}, s{sT0}, s{sT1}'); a(f's_lshl_b32 s{sT1}, s4, 8'); a(f's_add_u32 s{sT0}, s{sT0}, s{sT1}')
    a(f's_and_b32 s{sT1}, s5, 1'); a(f's_lshl_b32 s{sT1}, s{sT1}, 5'); a(f's_add_u32 s{sT0}, s{sT0}, s{sT1}')
    a(f'v_and_b32 v{t0}, 1, v{g}'); a(f'v_lshlrev_b32 v{t0}, 10, v{t0}'); a(f'v_and_b32 v{t1}, 3, v{c}'); a(f'v_lshl_add_u32 v{t0}, v{t1}, 3, v{t0}')
    a(f'v_lshrrev_b32 v{t1}, 1, v{g}'); a(f'v_lshl_add_u32 v{t0}, v{t1}, 2, v{t0}')
    a('s_waitcnt lgkmcnt(0)')
    a(f'buffer_load_dword v99, v{t0}, {srd(64)}, s{sT0} offen')
    a(f'buffer_store_dword v{POI4}, v{PUB}, {WS}, s{sSLOTN} offen sc1')
def team_init2(a):
    a(f's_mov_b32 s{sT0}, {WS_SLOT:#x}')
    a(f'buffer_store_dword v99, v{PUB}, {srd(sWS)}, s{sT0} offen sc1')

sAV = 7
def kv_addr(a, t):
    a(f'v_bfe_u32 v{t}, v{L16}, 4, 4'); a(f'v_min_u32 v{t}, 13, v{t}')
    a(f'v_cmp_lt_u32 vcc, 6, v{t}'); a(f'v_add_u32 v{t+1}, {16*7-7}, v{t}'); a(f'v_cndmask_b32 v{t}, v{t}, v{t+1}, vcc'); a(f'v_lshlrev_b32 v{t}, 2, v{t}')
    a(f's_lshr_b32 s{sT2}, s5, 1'); a(f's_mul_i32 s{sT2}, s{sT2}, 28')
def kv_issue(a, t): a(f'buffer_load_dword v{t+1}, v{t}, {srd(sWS)}, s{sT2} offen offset:{WS_PF} sc1')
def kv_eval(a, t):
    for rot in (8, 4, 2, 1): a(f'v_min_i32_dpp v{t+1}, v{t+1}, v{t+1} row_ror:{rot} row_mask:0xf bank_mask:0xf')
    a(f'v_readfirstlane_b32 s{sAV}, v{t+1}')
    a(f's_max_i32 s{sAV}, s{sAV}, 0'); a(f's_mul_i32 s{sAV}, s{sAV}, 7')
def kv_wait(a, tag, need_s, t):
    kv_addr(a, t)
    a(f's_mov_b32 s{sSPIN}, 0')
    a.label(tag)
    kv_issue(a, t)
    a('s_waitcnt vmcnt(0)')
    kv_eval(a, t)
    a(f's_add_u32 s{sSPIN}, s{sSPIN}, 1'); a(f's_cmp_ge_u32 s{sSPIN}, {SPIN_MAX}'); a('s_cbranch_scc1 L_fail')
    a(f's_cmp_ge_u32 s{need_s}, s{sAV}')
    a(f's_cbranch_scc1 {tag}')
    a(f's_mov_b32 s{sSPIN}, 0')

def team_first_issue(a, d):
    a(f's_mov_b32 s{sKB}, {L_K0}'); a(f's_mov_b32 s{sKD}, {L_K0}')
    for g in k_dma(False) + v_dma() + [[f's_mov_b32 s{sKD}, {L_K1}']] + k_dma():
        for x in g: a(x)
    a(f's_and_b32 s{sT2}, s5, 3'); a(f's_lshl_b32 s{sT2}, s{sT2}, 11'); a(f's_add_u32 s{sT2}, s{sT2}, s{sSLOT}'); a(f's_add_u32 s{sT0}, s{sT2}, {SLOT_ST:#x}')
    for so in (sINB2, sT0, sT2):
        for o in (0, 1024): a(f'buffer_load_dwordx4 {vr(d,4)}, v{L16}, {srd(sWS)}, s{so} offen offset:{o} sc1')

def team_first_kv(a):
    for x in kx_addr(MEMF+21, MEMF+22): a(x)
    for z in range(12): a(z2(ACQ+2*z))
    a('s_waitcnt vmcnt(0)')
    a('s_barrier')
    for x in kv_reads(MEMF+21)[:8]: a(x)
    a(f's_mov_b32 s{sKB}, {L_K1}'); a(f's_mov_b32 s{sKD}, {L_K0}')
    a('s_waitcnt lgkmcnt(0)')
```

```python
from asmlib import *
from common import *
from team import stream
import math, struct
def fbits(x): return struct.unpack("<I", struct.pack("<f", x))[0]
L16 = 0
sIDX = 6
sPLO, sPHI = 37, 38
XST = 1056; XT = 32*XST
def mfm(d, A, B, C, fa='v', fb='v'): return f'v_mfma_f32_16x16x32_bf16 {vr(d,4)}, {vr(A,4,fa)}, {vr(B,4,fb)}, {C}'

def wload_items(S0, S1, va0, va1, stride, nk, dst, kbase_s, sT, imm1=0):
    items = []
    for kk in range(nk):
        for j in range(4):
            def iss(r, kk=kk, j=j):
                off = (32*kk + 2*j)*stride
                o = [f's_add_u32 s{sT}, s{kbase_s}, {off:#x}',
                     f'buffer_load_dword v{r}, v{va0}, {srd(S0)}, s{sT} offen',
                     f'buffer_load_dword v{r+1}, v{va0+1}, {srd(S0)}, s{sT} offen']
                if S1 is not None:
                    o += [f'buffer_load_dword v{r+2}, v{va1}, {srd(S1)}, s{sT} offen offset:{imm1}',
                          f'buffer_load_dword v{r+3}, v{va1+1}, {srd(S1)}, s{sT} offen offset:{imm1}']
                return o
            def con(r, kk=kk, j=j):
                o = []
                for T in range(4 if S1 is not None else 2):
                    b = r + 2*(T >> 1); sel = sPHI if T & 1 else sPLO
                    f, d = dst(kk, T, j)
                    if f == 'v': o.append(f'v_perm_b32 v{d}, v{b+1}, v{b}, s{sel}')
                    else: o += [f'v_perm_b32 v{8+(T&1)}, v{b+1}, v{b}, s{sel}', f'v_accvgpr_write_b32 a{d}, v{8+(T&1)}']
                return o
            n = 4 if S1 is not None else 2
            items.append((iss, n, n, con))
    return items

vC, vG, vA0, vA1, vRD = 1, 2, 4, 6, 3
ACC = 16
FR = 48
EP = 72
RING, RN = 104, 128
sTILE, sSTR, sBUF, sDST, sT0, sT1, sT2, sKB, sCNT, sW8, sNB, sDM = range(40, 52)
sCOL = 55

WST = [False]
PAUSE = [None]
def wstamp(a, i):
    if WST[0]:
        a('s_memrealtime s[92:93]'); a('s_memtime s[94:95]'); a('s_waitcnt lgkmcnt(0)')
        a('s_lshl_b32 s60, s6, 7'); a(f's_add_u32 s60, s60, {WS_DBG + 0x8000:#x}')
        if i < 0:
            a('s_min_u32 s61, s54, 2'); a('s_mul_i32 s61, s61, 12'); a('s_add_u32 s60, s60, s61'); i = -i - 1
        a('v_mov_b32 v20, s92'); a('v_mov_b32 v21, s94')
        a(f'buffer_store_dword v20, off, {srd(sWS)}, s60 offset:{4*i}')
        a(f'buffer_store_dword v21, off, {srd(sWS)}, s60 offset:{64+4*i}')
        a('s_waitcnt vmcnt(0)')

def touch(a, srds, stride, col_s, blk_s, t=10):
    a(f'v_lshrrev_b32 v{t}, 4, v{L16}'); a(f'v_mul_u32_u24 v{t}, {stride}, v{t}'); a(f'v_add_u32 v{t}, s{col_s}, v{t}')
    a(f's_mul_i32 s{sT2}, s{blk_s}, {64*stride:#x}')
    a(f's_mov_b32 s{sT1}, {7*64*stride:#x}')
    for S in srds:
        a(f'buffer_load_dword v{t+1}, v{t}, {srd(S)}, s{sT2} offen')
        a(f'buffer_load_dword v{t+1}, v{t}, {srd(S)}, s{sT1} offen')

def x_dma(a, tile_s, buf_s):
    a(f's_lshl_b32 s{sT0}, s{tile_s}, 15')
    a(f's_lshl_b32 s{sT1}, s4, 13'); a(f's_add_u32 s{sT0}, s{sT0}, s{sT1}')
    a(f's_add_u32 s{sT1}, s{buf_s}, s{sW8}')
    for r in range(8):
        a(f's_add_u32 m0, s{sT1}, {r*XST}')
        if r: a(f's_add_u32 s{sT0}, s{sT0}, 1024')
        a(f'buffer_load_dwordx4 v{L16}, {srd(sC)}, s{sT0} offen lds')

def gemm(a, kind, tag, pre_loop):
    T_ = lambda n: f'{tag}_{n}'
    WS = srd(sWS)
    stride = 2752 if kind == 'F' else 8192
    touch(a, [sA, sB] if kind == 'F' else [sA], stride, sCOL, sTILE)
    a('s_barrier')
    a(f's_mov_b32 s{sNB}, s{sTILE}')
    for b in range(3):
        a(f's_mov_b32 s{sBUF}, {b*XT}')
        x_dma(a, sNB, sBUF)
        a(f's_add_u32 s{sNB}, s{sNB}, s{sSTR}')
    stride = 2752 if kind == 'F' else 8192
    items = wload_items(sA, sB, vA0, vA1, stride, 16, lambda kk, T, j: ('a', (kk*4+T)*4+j), sKB, sT2, imm1=0 if kind == 'F' else 64)
    stream(a, items, RING, RN, maxload=60, older=28)
    wstamp(a, -2)
    a(f's_mov_b32 s{sBUF}, 0')
    nst = {'F': 2, 'V': 5, 'K': 7}[kind]
    a('s_mov_b32 s57, 0')
    pre_loop(a)
    a.label(T_('loop'))
    if kind != 'F':
        a('s_cmp_lg_u32 s57, s54')
        a(f's_cbranch_scc1 {T_("nd")}')
        a('s_waitcnt vmcnt(0)')
        a.label(T_('nd'))
    a(f's_waitcnt vmcnt({8 + nst})')
    a('s_barrier')
    if kind != 'F':
        a('s_sub_u32 s59, s57, 1'); a(f's_min_i32 s{sT0}, s57, 1'); a(f's_max_i32 s59, s59, s{sT0}')
        a(f'v_mov_b32 v8, s59')
        a(f'buffer_store_dword v8, off, {WS}, s56 sc1')
        a('s_add_u32 s57, s57, 1')
    a(f'v_add_u32 v{EP}, s{sBUF}, v{vRD}')
    def rd(kk, rt): return f'ds_read_b128 {vr(FR+((kk%3)*2+rt)*4,4)}, v{EP} offset:{rt*16*XST + kk*64}'
    for kk in (0, 1):
        a(rd(kk, 0)); a(rd(kk, 1))
    a(f's_add_u32 s{sT2}, s{sBUF}, {3*XT}'); a(f's_cmp_ge_u32 s{sT2}, {4*XT}'); a(f's_cselect_b32 s{sCNT}, {4*XT}, 0'); a(f's_sub_u32 s{sT2}, s{sT2}, s{sCNT}')
    x_dma(a, sNB, sT2)
    a(f's_add_u32 s{sNB}, s{sNB}, s{sSTR}')
    for kk in range(16):
        n = 0
        for rt in range(2):
            for T in range(4):
                d = ACC + (rt*4+T)*4; x = FR + ((kk % 3)*2+rt)*4; w = (kk*4+T)*4
                C = '0' if kk == 0 else vr(d, 4)
                a(mfm(d, x, w, C, 'v', 'a') if kind == 'V' else mfm(d, w, x, C, 'a', 'v'))
                if kk + 2 < 16 and n in (1, 3): a(rd(kk+2, n >> 1))
                n += 1
    if kind != 'F':
        a('s_add_u32 s59, s54, 1'); a('s_cmp_lg_u32 s57, s59')
        a(f's_cbranch_scc1 {T_("np")}')
        PAUSE[0](a, T_('pz'))
        a.label(T_('np'))
    a(f's_mul_i32 s{sT0}, s{sTILE}, s{sDM}'); a(f's_add_u32 s{sT0}, s{sT0}, s{sDST}')
    ac = lambda rt, T, r: ACC + (rt*4+T)*4 + r
    if kind == 'K':
        a(f's_lshl_b32 s{sT1}, s{sTILE}, 17'); a(f's_add_u32 s{sT1}, s{sT1}, s58')
        for o in (0, 1024): a(f'buffer_store_dwordx4 v[12:15], v{L16}, {WS}, s{sT1} offen offset:{o} sc1')
        a(f's_add_u32 s{sT1}, s{sT0}, 4096')
        for rt in range(2):
            for u in range(2):
                e = EP + 4 + (rt*2+u)*4
                for r in range(4): a(f'v_cvt_pk_bf16_f32 v{e+r}, v{ac(rt,2*u,r)}, v{ac(rt,2*u+1,r)}')
                a(f'buffer_store_dwordx4 {vr(e,4)}, v{L16}, {WS}, s{sT1 if rt else sT0} offen offset:{u*1024} sc1')
    elif kind == 'V':
        for T in range(4):
            e = EP + 4 + T*4
            for rt in range(2):
                for p in range(2): a(f'v_cvt_pk_bf16_f32 v{e+rt*2+p}, v{ac(rt,T,2*p)}, v{ac(rt,T,2*p+1)}')
            a(f'buffer_store_dwordx4 {vr(e,4)}, v{L16}, {WS}, s{sT0} offen offset:{T*1024} sc1')
    else:
        a(f's_add_u32 s{sT1}, s{sT0}, {43*1024}')
        a(f's_mov_b32 s{sT2}, {fbits(-math.log2(math.e)):#x}')
        for rt in range(2):
            e = EP + 4 + rt*4; t = EP + 12
            G = [ac(rt, tt, r) for r in range(4) for tt in range(2)]
            U = [ac(rt, 2+tt, r) for r in range(4) for tt in range(2)]
            def rnd(L):
                for r in range(4): a(f'v_cvt_pk_bf16_f32 v{t+8+r}, v{L[2*r]}, v{L[2*r+1]}')
                for r in range(4):
                    a(f'v_lshlrev_b32 v{L[2*r]}, 16, v{t+8+r}'); a(f'v_and_b32 v{L[2*r+1]}, 0xffff0000, v{t+8+r}')
            rnd(G); rnd(U)
            for i in range(8): a(f'v_mul_f32 v{t+i}, s{sT2}, v{G[i]}')
            for i in range(8): a(f'v_exp_f32 v{t+i}, v{t+i}')
            for i in range(8): a(f'v_add_f32 v{t+i}, 1.0, v{t+i}')
            for i in range(8): a(f'v_rcp_f32 v{t+i}, v{t+i}')
            for i in range(8): a(f'v_mul_f32 v{G[i]}, v{G[i]}, v{t+i}')
            rnd(G)
            for i in range(8): a(f'v_mul_f32 v{G[i]}, v{G[i]}, v{U[i]}')
            for r in range(4): a(f'v_cvt_pk_bf16_f32 v{e+r}, v{G[2*r]}, v{G[2*r+1]}')
            a(f'buffer_store_dwordx4 {vr(e,4)}, v{L16}, {WS}, s{sT1 if rt else sT0} offen sc1')
    a(f's_add_u32 s{sBUF}, s{sBUF}, {XT}'); a(f's_cmp_ge_u32 s{sBUF}, {4*XT}'); a(f's_cselect_b32 s{sBUF}, 0, s{sBUF}')
    a(f's_add_u32 s{sTILE}, s{sTILE}, s{sSTR}')
    a(f's_cmp_lt_u32 s{sTILE}, 64')
    a(f's_cbranch_scc1 {T_("loop")}')

def set_flag(a, val, base, tag):
    a('s_waitcnt vmcnt(0)')
    a('s_barrier')
    a('s_cmp_lg_u32 s4, 0')
    a(f's_cbranch_scc1 {tag}')
    a(f's_lshl_b32 s{sT0}, s{sIDX}, 2')
    a(f'v_mov_b32 v8, {val}')
    a(f'buffer_store_dword v8, off, {srd(sWS)}, s{sT0} offset:{base} sc1')
    a.label(tag)

def worker_lane_consts(a):
    a('v_and_b32 v3, 63, v0')
    a(f'v_and_b32 v{vC}, 15, v3'); a(f'v_lshrrev_b32 v{vG}, 4, v3'); a(f'v_lshlrev_b32 v{L16}, 4, v3')
    a(f'v_mul_u32_u24 v{vRD}, {XST}, v{vC}'); a(f'v_lshl_add_u32 v{vRD}, v{vG}, 4, v{vRD}')
    a(f's_mov_b32 s{sPLO}, 0x05040100'); a(f's_mov_b32 s{sPHI}, 0x07060302')
    a(f's_mul_i32 s{sW8}, s4, {8*XST}')
    a(f's_mov_b32 s{sKB}, 0')
    for r in range(4): a(f'v_mov_b32 v{12+r}, {POISON:#x}')

def waddr(a, stride, col_s):
    a(f's_mov_b32 s{sCOL}, s{col_s}')
    a(f'v_mul_u32_u24 v{vA0}, {8*stride}, v{vG}'); a(f'v_lshl_add_u32 v{vA0}, v{vC}, 2, v{vA0}'); a(f'v_add_u32 v{vA0}, s{col_s}, v{vA0}')
    a(f'v_add_u32 v{vA0+1}, {stride}, v{vA0}')
    a(f'v_mov_b32 v{vA1}, v{vA0}'); a(f'v_mov_b32 v{vA1+1}, v{vA0+1}')

def qkv_setup(a, hp_s, wname, base):
    load_srd(a, sA, wname); load_srd(a, sB, wname)
    a(f's_lshl_b32 s{sT0}, s{hp_s}, 9'); a(f's_lshl_b32 s{sT1}, s4, 7'); a(f's_add_u32 s{sT0}, s{sT0}, s{sT1}')
    waddr(a, 8192, sT0)
    a(f's_lshl_b32 s{sDST}, s{hp_s}, 14'); a(f's_lshr_b32 s{sT1}, s4, 1'); a(f's_lshl_b32 s{sT1}, s{sT1}, 13'); a(f's_add_u32 s{sDST}, s{sDST}, s{sT1}')
    a(f's_and_b32 s{sT1}, s4, 1'); a(f's_lshl_b32 s{sT1}, s{sT1}, {12 if wname == "Wv" else 11}'); a(f's_add_u32 s{sDST}, s{sDST}, s{sT1}')
    a(f's_add_u32 s{sDST}, s{sDST}, {base:#x}')
    a(f's_mov_b32 s{sDM}, {32*8192:#x}')
    a('s_waitcnt lgkmcnt(0)')

def phase1(a, ready_wait):
    worker_lane_consts(a)
    wstamp(a, 1)
    load_srd(a, sC, 'x')
    sSL = 52
    a(f's_mul_hi_u32 s{sSL}, s{sIDX}, {-(-(1 << 32)//7):#x}'); a(f's_mul_i32 s{sT0}, s{sSL}, 7'); a(f's_sub_u32 s{sTILE}, s{sIDX}, s{sT0}')
    a(f's_mov_b32 s{sSTR}, 7')
    a(f's_and_b32 s53, s{sSL}, 15')
    a(f's_mov_b32 s54, 1')
    a(f's_lshl_b32 s56, s{sIDX}, 2'); a(f's_add_u32 s56, s56, {WS_PF}'); a('s_cmp_eq_u32 s4, 0'); a('s_cselect_b32 s56, s56, 0x7fffff00')
    a(f's_cmp_ge_u32 s{sSL}, 16')
    a('s_waitcnt lgkmcnt(0)')
    a('s_cbranch_scc1 W_v')
    qkv_setup(a, 53, 'Wk', WS_KF)
    a('s_lshl_b32 s58, s53, 13'); a(f's_lshl_b32 s{sT0}, s4, 11'); a(f's_add_u32 s58, s58, s{sT0}'); a(f's_add_u32 s58, s58, {WS_KM:#x}')
    a.label('W_kq')
    gemm(a, 'K', 'GK', lambda a: ready_wait(a, 'W_rdy1'))
    a('s_cmp_eq_u32 s54, 99')
    a('s_cbranch_scc1 W_r2done')
    a('s_branch W_r1done')
    a.label('W_v')
    qkv_setup(a, 53, 'Wv', WS_VF)
    gemm(a, 'V', 'GV', lambda a: ready_wait(a, 'W_rdy2'))
    a.label('W_r1done')
    set_flag(a, 100, WS_PF, 'W_f1')
    a('s_mov_b32 s56, 0x7fffff00'); a('s_mov_b32 s58, 0x70000000')
    wstamp(a, 5)
    a(f's_lshr_b32 s{sSL}, s{sIDX}, 3'); a(f's_and_b32 s{sTILE}, s{sIDX}, 7'); a(f's_mov_b32 s{sSTR}, 8')
    a('s_mov_b32 s54, 99')
    a(f's_cmp_ge_u32 s{sSL}, 27'); a('s_cbranch_scc1 W_gate')
    a(f's_cmp_ge_u32 s{sSL}, 16'); a('s_cbranch_scc1 W_ffn')
    qkv_setup(a, sSL, 'Wq', WS_QF)
    a('s_branch W_kq')
    a.label('W_ffn')
    load_srd(a, sA, 'Wg'); load_srd(a, sB, 'Wu')
    a(f's_sub_u32 s53, s{sSL}, 16'); a('s_lshl_b32 s53, s53, 2'); a('s_add_u32 s53, s53, s4'); a('s_min_u32 s53, s53, 42')
    a(f's_lshl_b32 s{sT0}, s53, 6')
    waddr(a, 2752, sT0)
    a(f's_lshl_b32 s{sDST}, s53, 10'); a(f's_add_u32 s{sDST}, s{sDST}, {WS_HF:#x}')
    a(f's_mov_b32 s{sDM}, {2*43*1024:#x}')
    a('s_waitcnt lgkmcnt(0)')
    gemm(a, 'F', 'GF', lambda a: None)
    a('s_branch W_r2done')
    a.label('W_gate')
    gate(a)
    a.label('W_r2done')
    set_flag(a, 1, WS_PF2, 'W_f2')
    wstamp(a, 8)

def gate(a):
    load_srd(a, sA, 'gw')
    a(f's_sub_u32 s{sT0}, s{sIDX}, 216'); a(f's_lshl_b32 s{sT0}, s{sT0}, 2'); a(f's_add_u32 s{sT0}, s{sT0}, s4')
    a(f's_lshl_b32 s{sT1}, s{sT0}, 16')
    a(f's_lshl_b32 s{sDST}, s{sT0}, 8'); a(f's_add_u32 s{sDST}, s{sDST}, {WS_G:#x}')
    a('s_waitcnt lgkmcnt(0)')
    GW, X, R, RES, LN = 12, 16, 80, 10, 11
    a(f'buffer_load_dwordx4 {vr(GW,4)}, v{L16}, {srd(sA)}, 0 offen')
    a(f'v_lshrrev_b32 v{LN}, 4, v{L16}')
    a(f'v_mov_b32 v{RES}, 0')
    a(f's_mov_b32 s{sCNT}, 0')
    a.label('WG_loop')
    for i in range(16):
        a(f'buffer_load_dwordx4 {vr(X+4*i,4)}, v{L16}, {srd(sC)}, s{sT1} offen')
        a(f's_add_u32 s{sT1}, s{sT1}, 1024')
    a('s_waitcnt vmcnt(0)')
    for i in range(16): a(f'v_dot2_f32_bf16 v{R+i}, v{X+4*i}, v{GW}, 0')
    for k in range(1, 4):
        for i in range(16): a(f'v_dot2_f32_bf16 v{R+i}, v{X+4*i+k}, v{GW+k}, v{R+i}')
    a('s_nop 3')
    for rot in (8, 4, 2, 1):
        for i in range(16): a(f'v_add_f32_dpp v{R+i}, v{R+i}, v{R+i} row_ror:{rot} row_mask:0xf bank_mask:0xf')
    for sw in ('v_permlane16_swap_b32', 'v_permlane32_swap_b32'):
        for i in range(16): a(f'v_mov_b32 v{X+i}, v{R+i}')
        for i in range(16): a(f'{sw} v{R+i}, v{X+i}')
        for i in range(16): a(f'v_add_f32 v{R+i}, v{R+i}, v{X+i}')
    for i in range(16):
        a(f's_add_u32 s{sT2}, s{sCNT}, {i}')
        a(f'v_cmp_eq_u32 vcc, s{sT2}, v{LN}')
        a(f'v_cndmask_b32 v{RES}, v{RES}, v{R+i}, vcc')
    a(f's_add_u32 s{sCNT}, s{sCNT}, 16'); a(f's_cmp_lt_u32 s{sCNT}, 64'); a('s_cbranch_scc1 WG_loop')
    a(f'v_cvt_pk_bf16_f32 v{RES}, v{RES}, v{RES}'); a(f'v_and_b32 v{RES}, 0xffff0000, v{RES}')
    a(f'v_mul_f32 v{RES}, {fbits(-math.log2(math.e)):#x}, v{RES}')
    a(f'v_exp_f32 v{RES}, v{RES}'); a(f'v_add_f32 v{RES}, 1.0, v{RES}'); a(f'v_rcp_f32 v{RES}, v{RES}')
    a(f'v_cvt_pk_bf16_f32 v{RES}, v{RES}, v{RES}'); a(f'v_and_b32 v{RES}, 0xffff0000, v{RES}')
    a(f'v_lshlrev_b32 v{LN}, 2, v{LN}')
    a(f'buffer_store_dword v{RES}, v{LN}, {srd(sWS)}, s{sDST} offen sc1')

def spin_ge(a, tag, load, nreg, dst, thr, lanes_ok=None, sleep=1):
    a('s_mov_b32 s62, 0')
    a.label(tag)
    a(load)
    a('s_waitcnt vmcnt(0)')
    if nreg == 4:
        a(f'v_min3_i32 v{dst}, v{dst}, v{dst+1}, v{dst+2}'); a(f'v_min_i32 v{dst}, v{dst}, v{dst+3}')
    a(f'v_cmp_gt_i32 vcc, {thr}, v{dst}')
    a(f's_cbranch_vccz {tag}_ok')
    if sleep: a(f's_sleep {sleep}')
    a('s_add_u32 s62, s62, 1')
    a(f's_cmp_lt_u32 s62, {SPIN_MAX}')
    a(f's_cbranch_scc1 {tag}')
    a('s_branch L_fail')
    a.label(tag + '_ok')

def phase2(a, opt):
    WS = srd(sWS)
    if opt.get('no_p1'): worker_lane_consts(a)
    sGI, sCU, sUN, sRND, sHD, sRH, sGF, sSCL, sEH, sQO, sOB, sPOI = range(63, 75)
    WD = 168
    load_srd(a, sA, 'Wo'); load_srd(a, sB, 'Wd'); load_srd(a, sD, 'out')
    a(f's_lshr_b32 s{sGI}, s{sIDX}, 4'); a(f's_and_b32 s{sCU}, s{sIDX}, 15')
    a(f's_lshl_b32 s{sT0}, s{sCU}, 6')
    waddr(a, 1024, sT0)
    a(f's_lshl_b32 s{sKB}, s4, 20')
    a(f's_mul_i32 s{sNB}, s4, {11*32*1024:#x}')
    a('s_waitcnt lgkmcnt(0)')
    items = wload_items(sA, None, vA0, None, 1024, 32, lambda kk, T, j: ('a', (kk*2+T)*4+j), sKB, sT2)
    items += wload_items(sB, None, vA0, None, 1024, 11, lambda kk, T, j: ('v', WD+(kk*2+T)*4+j), sNB, sT2)
    stream(a, items, 100, 64, maxload=60, older=2)
    wstamp(a, 9)
    MSK, KW, KR, RW, RR, OA_, FL = 4, 12, 13, 14, 15, 3, 17
    a(f's_lshr_b32 s{sT0}, s4, 1'); a(f's_lshl_b32 s{sHD}, s{sCU}, 1'); a(f's_add_u32 s{sHD}, s{sHD}, s{sT0}')
    a(f's_and_b32 s{sRH}, s{sGI}, 1'); a(f's_and_b32 s{sEH}, s4, 1')
    a(f's_mov_b32 s{sSCL}, {fbits((128 ** -0.5) * math.log2(math.e)):#x}')
    a(f's_mov_b32 s{sPOI}, {POISON:#x}')
    a(f's_lshl_b32 s{sT0}, s{sRH}, 4'); a(f'v_add_u32 v18, s{sT0}, v{vC}'); a(f'v_lshlrev_b32 v19, 2, v{vG}'); a('v_sub_u32 v18, v18, v19')
    a(f'v_mov_b32 v19, {fbits(-1e30):#x}')
    for t in range(2):
        for r in range(4):
            a(f'v_cmp_gt_i32 vcc, {16*t+r}, v18'); a(f'v_cndmask_b32 v{MSK+4*t+r}, 0, v19, vcc')
    L_KM, L_RED = 0, 16384
    a(f's_mul_i32 s{sT0}, s4, 2304')
    a(f'v_mul_u32_u24 v{KW}, 576, v{vG}'); a(f'v_lshl_add_u32 v{KW}, v{vC}, 2, v{KW}'); a(f'v_add_u32 v{KW}, s{sT0}, v{KW}')
    a(f's_lshl_b32 s{sT1}, s{sEH}, 7'); a(f'v_add_u32 v16, s{sT1}, v{KW}')
    a(f's_xor_b32 s{sT1}, s{sT1}, 128'); a(f'v_add_u32 v{KW}, s{sT1}, v{KW}')
    a(f'v_lshrrev_b32 v18, 2, v{vC}'); a(f'v_and_b32 v19, 1, v{vC}'); a('v_lshl_add_u32 v18, v18, 1, v19')
    a(f'v_mul_u32_u24 v{KR}, 288, v18'); a(f'v_lshl_add_u32 v{KR}, v{vG}, 4, v{KR}'); a(f'v_add_u32 v{KR}, s{sT0}, v{KR}')
    a(f's_lshl_b32 s{sT0}, s4, 11'); a(f's_add_u32 s{sT0}, s{sT0}, {L_RED}'); a(f'v_add_u32 v{RW}, s{sT0}, v{L16}')
    a(f's_lshl_b32 s{sT2}, s4, 2'); a(f's_add_u32 s{sT1}, s{sT2}, {L_RED}'); a(f'v_add_u32 v{RR}, s{sT1}, v{L16}')
    a(f's_lshl_b32 s{sT1}, s{sCU}, 6'); a(f's_add_u32 s{sT1}, s{sT1}, s{sT2}')
    a(f'v_lshlrev_b32 v{OA_}, 10, v{vC}'); a(f'v_lshl_add_u32 v{OA_}, v{vG}, 4, v{OA_}'); a(f'v_add_u32 v{OA_}, s{sT1}, v{OA_}')
    a(f'v_lshlrev_b32 v{FL}, 2, v{vC}')
    a(f's_lshl_b32 s{sGF}, s{sGI}, 8'); a(f's_add_u32 s{sGF}, s{sGF}, {WS_GF:#x}')
    a(f's_lshl_b32 s{sOB}, s{sGI}, 18'); a(f's_add_u32 s{sOB}, s{sOB}, {WS_OF:#x}')
    a(f's_mov_b32 s{sUN}, s{sGI}'); a(f's_mov_b32 s{sRND}, 1')
    a(f'v_min_u32 v18, {55*16}, v{L16}')
    spin_ge(a, 'P2_pf', f'buffer_load_dwordx4 v[20:23], v18, {WS}, 0 offen offset:{WS_PF2} sc1', 4, 20, 1, sleep=8)
    wstamp(a, 10)
    AC, QQ, KK, VV, KVM, HH, S0, SM = 24, 32, 48, 80, 96, 112, 156, 164
    PX, PM, KMF, OC, OP = 112, 116, 120, 136, 48
    GG, BB = 18, 22
    def both(plain, tag):
        a(f's_cbranch_scc1 {tag}f')
        for x in plain: a(x + ' sc1')
        a(f's_branch {tag}e')
        a.label(tag + 'f')
        for x in plain: a(x)
        a.label(tag + 'e')
    a.label('P2_loop')
    a(f's_mul_i32 s{sT0}, s{sUN}, {43*1024:#x}'); a(f's_add_u32 s{sT0}, s{sT0}, {WS_HF:#x}')
    a(f's_mul_i32 s{sT1}, s4, 11')
    for i in range(11):
        a(f's_add_u32 s{sT2}, s{sT1}, {i}'); a(f's_min_u32 s{sT2}, s{sT2}, 42'); a(f's_lshl_b32 s{sT2}, s{sT2}, 10'); a(f's_add_u32 s{sT2}, s{sT2}, s{sT0}')
        a(f'buffer_load_dwordx4 {vr(HH+4*i,4)}, v{L16}, {WS}, s{sT2} offen sc1')
    a(f's_lshl_b32 s{sT0}, s{sUN}, 6'); a(f's_add_u32 s{sT0}, s{sT0}, {WS_G:#x}')
    a(f'buffer_load_dword v{GG}, v{FL}, {WS}, s{sT0} offen sc1')
    a(f's_lshr_b32 s{sT0}, s{sUN}, 1'); a(f's_lshl_b32 s{sT0}, s{sT0}, 5'); a(f's_add_u32 s{sT0}, s{sT0}, s{sHD}'); a(f's_lshl_b32 s{sQO}, s{sT0}, 13')
    a(f's_lshl_b32 s{sT0}, s{sRH}, 12'); a(f's_add_u32 s{sT0}, s{sT0}, s{sQO}'); a(f's_add_u32 s{sT0}, s{sT0}, {WS_QF:#x}')
    for j in range(4): a(f'buffer_load_dwordx4 {vr(QQ+4*j,4)}, v{L16}, {WS}, s{sT0} offen offset:{j*1024} sc1')
    a(f's_add_u32 s{sT0}, s{sQO}, {WS_KF:#x}'); a(f's_add_u32 s{sT1}, s{sT0}, 4096')
    for j in range(8): a(f'buffer_load_dwordx4 {vr(KK+4*j,4)}, v{L16}, {WS}, s{sT1 if j >= 4 else sT0} offen offset:{(j&3)*1024} sc1')
    a(f's_lshl_b32 s{sT0}, s{sEH}, 12'); a(f's_add_u32 s{sT0}, s{sT0}, s{sQO}'); a(f's_add_u32 s{sT0}, s{sT0}, {WS_VF:#x}')
    for j in range(4): a(f'buffer_load_dwordx4 {vr(VV+4*j,4)}, v{L16}, {WS}, s{sT0} offen offset:{j*1024} sc1')
    sK0, sK1 = 75, 76
    a(f's_lshr_b32 s{sK0}, s{sQO}, 1'); a(f's_add_u32 s{sK0}, s{sK0}, {WS_KM:#x}'); a(f's_lshl_b32 s{sT0}, s{sEH}, 11'); a(f's_add_u32 s{sK0}, s{sK0}, s{sT0}'); a(f's_xor_b32 s{sK1}, s{sK0}, 2048')
    kvl = [f'buffer_load_dwordx4 {vr(KVM+4*j,4)}, v{L16}, {WS}, s{sK1 if j >= 2 else sK0} offen offset:{(j&1)*1024} sc1' for j in range(4)]
    for x in kvl: a(x)
    for i in range(11):
        a(f's_waitcnt vmcnt({10 - i + 21})')
        for t in range(2): a(mfm(AC+4*t, WD+(i*2+t)*4, HH+4*i, '0' if i == 0 else vr(AC+4*t,4)))
    def reduce(dst, first):
        o = 0 if first else 8192
        for q in range(2): a(f'ds_write_b128 v{RW}, {vr(AC+4*q,4)} offset:{o + q*1024}')
        a('s_waitcnt lgkmcnt(0)')
        a('s_barrier')
        for w in range(4):
            for t in range(2): a(f'ds_read_b32 v{AC+2*w+t}, v{RR} offset:{o + w*2048 + t*1024}')
        a(f'v_pk_add_f32 {vr(AC,2)}, {vr(AC,2)}, {vr(AC+2,2)}'); a(f'v_pk_add_f32 {vr(AC+4,2)}, {vr(AC+4,2)}, {vr(AC+6,2)}')
        a(f'v_pk_add_f32 {vr(AC,2)}, {vr(AC,2)}, {vr(AC+4,2)}')
        rnd2(AC, dst)
    def rnd2(r, dst):
        a(f'v_cvt_pk_bf16_f32 v{AC+6}, v{r}, v{r+1}')
        a(f'v_lshlrev_b32 v{dst}, 16, v{AC+6}'); a(f'v_and_b32 v{dst+1}, 0xffff0000, v{AC+6}')
    reduce(BB, True)
    a('s_waitcnt vmcnt(8)')
    a(f'v_sub_f32 v19, 1.0, v{GG}'); a('v_cvt_pk_bf16_f32 v19, v19, v19'); a('v_and_b32 v19, 0xffff0000, v19')
    for j in range(4):
        for t in range(2): a(mfm(S0+4*t, KK+16*t+4*j, QQ+4*j, vr(MSK+4*t,4) if j == 0 else vr(S0+4*t,4)))
    for k in range(2): a(f'v_mul_f32 v{BB+k}, v19, v{BB+k}')
    rnd2(BB, BB)
    a(f'v_mov_b32 v{PM+1}, 0'); a(f'v_mov_b32 v{PM+2}, 0')
    a(f'v_max3_f32 v19, v{S0}, v{S0+1}, v{S0+2}'); a(f'v_max3_f32 v21, v{S0+4}, v{S0+5}, v{S0+6}'); a(f'v_max3_f32 v19, v19, v{S0+3}, v{S0+7}'); a('v_max_f32 v19, v19, v21')
    a('s_mov_b32 s62, 0')
    a.label('P2_kc')
    a('s_waitcnt vmcnt(0)')
    a(f'v_max3_u32 v20, v{KVM}, v{KVM+1}, v{KVM+2}')
    for k in range(3, 15, 2): a(f'v_max3_u32 v20, v20, v{KVM+k}, v{KVM+k+1}')
    a(f'v_max_u32 v20, v20, v{KVM+15}')
    a(f'v_cmp_eq_u32 vcc, s{sPOI}, v20')
    a('s_cbranch_vccz P2_kok')
    a(f's_sleep {opt.get("tfsleep", 2)}')
    for x in kvl: a(x)
    a('s_add_u32 s62, s62, 1'); a(f's_cmp_lt_u32 s62, {SPIN_MAX}'); a('s_cbranch_scc1 P2_kc')
    a('s_branch L_fail')
    a.label('P2_kok')
    for j in range(4):
        kw = KW if j >= 2 else 16
        a(f'ds_write_b32 v{kw}, v{KVM+4*j} offset:{L_KM + (j&1)*64}'); a(f'ds_write_b32 v{kw}, v{KVM+4*j+1} offset:{L_KM + (j&1)*64 + 288}')
    for j in range(4): a(f'ds_read_b128 {vr(KMF+4*j,4)}, v{KR} offset:{L_KM + j*64}')
    for j in range(4): a(mfm(SM, KMF+4*j, QQ+4*j, '0' if j == 0 else vr(SM,4)))
    t0, t1, t2, t3 = AC, AC+1, AC+2, AC+3
    a(f'v_max3_f32 v{t1}, v19, v{SM}, v{SM+1}'); a(f'v_max3_f32 v{t2}, v19, v{SM}, v{SM+1}')
    a(f'v_permlane32_swap_b32 v{t1}, v{t2}'); a(f'v_max_f32 v{t0}, v{t1}, v{t2}'); a(f'v_max_f32 v{t3}, v{t1}, v{t2}')
    a(f'v_permlane16_swap_b32 v{t0}, v{t3}'); a(f'v_max_f32 v{t0}, v{t0}, v{t3}'); a(f'v_mul_f32 v{t0}, s{sSCL}, v{t0}')
    ex = [S0+i for i in range(8)] + [SM, SM+1]
    for r in ex: a(f'v_fma_f32 v{r}, v{r}, s{sSCL}, -v{t0}')
    for r in ex: a(f'v_exp_f32 v{r}, v{r}')
    a(f'v_pk_add_f32 {vr(t0,2)}, {vr(S0,2)}, {vr(S0+2,2)}'); a(f'v_pk_add_f32 {vr(t2,2)}, {vr(S0+4,2)}, {vr(S0+6,2)}')
    a(f'v_pk_add_f32 {vr(t0,2)}, {vr(t0,2)}, {vr(SM,2)}'); a(f'v_pk_add_f32 {vr(t0,2)}, {vr(t0,2)}, {vr(t2,2)}')
    a(f'v_add_f32 v{t2}, v{t0}, v{t1}'); a(f'v_add_f32 v{t3}, v{t0}, v{t1}')
    a(f'v_permlane32_swap_b32 v{t2}, v{t3}'); a(f'v_add_f32 v{t0}, v{t2}, v{t3}'); a(f'v_add_f32 v{t1}, v{t2}, v{t3}')
    a(f'v_permlane16_swap_b32 v{t0}, v{t1}'); a(f'v_add_f32 v{t0}, v{t0}, v{t1}'); a(f'v_rcp_f32 v{t0}, v{t0}')
    for r in ex: a(f'v_mul_f32 v{r}, v{r}, v{t0}')
    for k in range(4): a(f'v_cvt_pk_bf16_f32 v{PX+k}, v{S0+2*k}, v{S0+2*k+1}')
    a(f'v_cvt_pk_bf16_f32 v{PM}, v{SM}, v{SM+1}'); a(f'v_cvt_pk_bf16_f32 v{PM+3}, v{SM}, v{SM+1}')
    for et in range(4): a(mfm(OC+4*et, VV+4*et, PX, '0'))
    for et in range(4):
        a(f'v_mfma_f32_16x16x16_bf16 {vr(OC+4*et,4)}, {vr(KVM+4*(et>>1)+2,2)}, {vr(PM+2*(et&1),2)}, {vr(OC+4*et,4)}')
    a(f's_lshl_b32 s{sT0}, s{sHD}, 12'); a(f's_lshl_b32 s{sT1}, s{sEH}, 11'); a(f's_add_u32 s{sT0}, s{sT0}, s{sT1}'); a(f's_add_u32 s{sT0}, s{sT0}, s{sOB}')
    a(f's_lshl_b32 s{sT1}, s{sCU}, 4'); a(f's_lshl_b32 s{sT2}, s4, 2'); a(f's_add_u32 s{sT1}, s{sT1}, s{sT2}'); a(f's_add_u32 s{sT1}, s{sT1}, s{sGF}')
    a(f'v_mov_b32 v20, s{sRND}')
    for ep in range(2):
        for r in range(4): a(f'v_cvt_pk_bf16_f32 v{OP+4*ep+r}, v{OC+8*ep+r}, v{OC+8*ep+4+r}')
    a('s_cmp_eq_u32 s7, 1')
    both([f'buffer_store_dwordx4 {vr(OP+4*ep,4)}, v{L16}, {WS}, s{sT0} offen offset:{ep*1024}' for ep in range(2)], 'P2_so')
    a('s_waitcnt vmcnt(0)')
    both([f'buffer_store_dword v20, off, {WS}, s{sT1}'], 'P2_sf')
    a(f's_lshl_b32 s{sT0}, s4, 6'); a(f's_add_u32 s{sT0}, s{sT0}, s{sGF}')
    spin_ge(a, 'P2_gf', f'buffer_load_dword v20, v{FL}, {WS}, s{sT0} offen sc1', 1, 20, f's{sRND}', sleep=opt.get('gfsleep', 0))
    a(f's_lshl_b32 s{sT1}, s4, 15'); a(f's_add_u32 s{sT0}, s{sOB}, s{sT1}')
    R0 = 32
    for n in range(32):
        if n % 4 == 0 and n: a(f's_add_u32 s{sT0}, s{sT0}, 4096')
        a(f'buffer_load_dwordx4 {vr(R0+4*n,4)}, v{L16}, {WS}, s{sT0} offen offset:{(n&3)*1024} sc1')
    for n in range(32):
        a(f's_waitcnt vmcnt({31-n})')
        for t in range(2): a(mfm(AC+4*t, (n*2+t)*4, R0+4*n, '0' if n == 0 else vr(AC+4*t,4), 'a', 'v'))
    AA = 20
    reduce(AA, False)
    for k in range(2): a(f'v_mul_f32 v{AA+k}, v{GG}, v{AA+k}')
    rnd2(AA, AA)
    a(f'v_pk_add_f32 {vr(AA,2)}, {vr(AA,2)}, {vr(BB,2)}')
    a(f'v_cvt_pk_bf16_f32 v{AA}, v{AA}, v{AA+1}')
    a(f's_lshl_b32 s{sT0}, s{sUN}, 14')
    a(f'buffer_store_dword v{AA}, v{OA_}, {srd(sD)}, s{sT0} offen')
    a(f's_xor_b32 s{sOB}, s{sOB}, 0x20000')
    a(f's_add_u32 s{sUN}, s{sUN}, 14'); a(f's_add_u32 s{sRND}, s{sRND}, 1')
    a(f's_cmp_lt_u32 s{sUN}, 128')
    a('s_cbranch_scc1 P2_loop')
```

```python
import re

_REG = re.compile(r'^(-|abs\(|\|)?([vas])(?:\[(\d+):(\d+)\]|(\d+))\)?\|?$')

def regs_of(tok):
    tok = tok.strip()
    if tok in ('vcc',): return {('s', 'vcc')}
    if tok in ('vcc_lo', 'vcc_hi'): return {('s', 'vcc')}
    if tok in ('exec', 'exec_lo', 'exec_hi'): return {('s', 'exec')}
    if tok == 'm0': return {('s', 'm0')}
    m = _REG.match(tok)
    if not m: return set()
    k = m.group(2)
    if m.group(5) is not None: return {(k, int(m.group(5)))}
    return {(k, i) for i in range(int(m.group(3)), int(m.group(4)) + 1)}

TRANS = ('v_exp_f32', 'v_log_f32', 'v_rcp_f32', 'v_rsq_f32', 'v_sqrt_f32', 'v_sin_f32', 'v_cos_f32', 'v_rcp_iflag_f32')

class Ins:
    __slots__ = ('text', 'op', 'kind', 'wr', 'rd', 'srcC', 'AB', 'passes', 'states', 'dpp', 'trans', 'stdata', 'label', 'target', 'dtuple', 'ctuple')
    def __init__(self, text):
        self.text = text
        t = text.split(';')[0].strip()
        self.label = None; self.target = None
        self.wr = set(); self.rd = set(); self.srcC = set(); self.AB = set(); self.passes = 0
        self.states = 1; self.dpp = False; self.trans = False; self.stdata = set(); self.dtuple = None; self.ctuple = None
        if t.endswith(':'):
            self.label = t[:-1]; self.kind = 'label'; self.op = ''; self.states = 0; return
        if not t or t.startswith('.'):
            self.kind = 'dir'; self.op = ''; self.states = 0; return
        parts = t.split(None, 1)
        op = parts[0]; self.op = op
        rest = parts[1] if len(parts) > 1 else ''
        ops = [o.strip() for o in rest.split(',')] if rest else []
        mods = ''
        if ops:
            last = ops[-1].split(None, 1)
            ops[-1] = last[0] if last else ''
            mods = last[1] if len(last) > 1 else ''
        R = [regs_of(o) for o in ops]
        U = lambda l: set().union(*l) if l else set()
        if op == 's_nop':
            self.kind = 'salu'; self.states = int(ops[0], 0) + 1
        elif op.startswith('s_cbranch') or op == 's_branch':
            self.kind = 'branch'; self.target = ops[0]
        elif op.startswith('s_'):
            self.kind = 'salu'
            if op.startswith('s_cmp') or op.startswith('s_bitcmp') or op in ('s_waitcnt', 's_barrier', 's_endpgm', 's_sleep', 's_setprio'):
                self.rd = U(R)
            else:
                self.wr = R[0] if R else set(); self.rd = U(R[1:])
                if 'saveexec' in op: self.wr = self.wr | {('s', 'exec')}
        elif op.startswith('v_mfma') or op.startswith('v_smfmac'):
            self.kind = 'mfma'
            self.passes = 8 if '32x32' in op else 4
            self.wr = R[0]; self.dtuple = ops[0]
            if op.startswith('v_smfmac'):
                self.AB = R[1] | R[2] | R[3]; self.srcC = R[0]; self.ctuple = ops[0]
            else:
                self.AB = R[1] | R[2]; self.srcC = R[3]; self.ctuple = ops[3]
            self.rd = self.AB | self.srcC
        elif op.startswith('v_'):
            self.kind = 'valu'
            self.dpp = ('_dpp' in op) or ('row_' in mods) or ('quad_perm' in mods)
            base = op.replace('_e32', '').replace('_e64', '').replace('_dpp', '')
            self.trans = base in TRANS
            if base.startswith('v_permlane') and 'swap' in base:
                self.wr = R[0] | R[1]; self.rd = R[0] | R[1]
            elif base.startswith('v_add_co') or base.startswith('v_sub_co') or base.startswith('v_addc_co') or base.startswith('v_subb_co'):
                self.wr = R[0] | R[1]; self.rd = U(R[2:])
            else:
                self.wr = R[0]; self.rd = U(R[1:])
                if base.startswith('v_fmac') or base.startswith('v_dot2c') or self.dpp or base.startswith('v_writelane'):
                    self.rd = self.rd | R[0]
                if base.startswith('v_cmpx'): self.wr = self.wr | {('s', 'exec')}
        elif op.startswith('ds_'):
            self.kind = 'ds'
            if op.startswith('ds_read') or 'permute' in op or 'swizzle' in op:
                self.wr = R[0]; self.rd = U(R[1:])
            else:
                self.rd = U(R)
        elif op.startswith('global_') or op.startswith('buffer_'):
            self.kind = 'vmem'
            islds = ('_lds_' in op) or re.search(r'\blds\b', mods) is not None
            if islds:
                self.rd = U(R) | {('s', 'm0')}; self.kind = 'dma'
            elif '_load' in op:
                self.wr = R[0]; self.rd = U(R[1:])
                if 'd16' in op: self.rd = self.rd | R[0]
            elif '_atomic' in op:
                if op.startswith('global_') and 'sc0' in mods:
                    self.wr = R[0]; self.rd = U(R[1:])
                else:
                    self.rd = U(R)
                    if 'sc0' in mods: self.wr = R[0]
            elif '_store' in op:
                self.rd = U(R)
                if 'x3' in op or 'x4' in op:
                    self.stdata = R[0] if op.startswith('buffer_') else R[1]
            else:
                pass
        else:
            raise ValueError('unknown instruction: ' + text)

def isv(s): return {r for r in s if r[0] in 'va'}
def iss(s): return {r for r in s if r[0] == 's'}

def need(p, c):
    n = 0
    if p.kind == 'valu':
        w = isv(p.wr); sw = iss(p.wr)
        if c.kind == 'mfma' and (w & c.rd): n = max(n, 2)
        if c.kind == 'valu':
            if (c.op.startswith('v_permlane') or c.dpp) and (w & c.rd): n = max(n, 2)
            if (c.op.startswith('v_readlane') or c.op.startswith('v_readfirstlane')) and (w & c.rd): n = max(n, 1)
            if p.trans and not c.trans and (w & (c.rd | c.wr)): n = max(n, 1)
            crd = set(c.rd)
            if c.op.startswith('v_cndmask') and len(iss(c.rd)) == 0: crd.add(('s', 'vcc'))
            if sw & crd:
                n = max(n, 4 if (c.op.startswith('v_readlane') or c.op.startswith('v_writelane')) else 2)
            if ('s', 'exec') in sw: n = max(n, 5)
        if c.kind in ('vmem', 'dma') and (sw & c.rd): n = max(n, 5)
        if c.kind == 'mfma' and ('s', 'exec') in sw: n = max(n, 4)
        if c.kind in ('salu', 'branch') and (sw & c.rd): n = max(n, 1)
    if p.kind == 'mfma':
        big = 8 if p.passes == 4 else 12
        if c.kind == 'mfma':
            if p.wr & c.AB: n = max(n, big)
            if p.wr & c.srcC:
                if not (p.dtuple == c.ctuple and p.passes == c.passes): n = max(n, big - 2)
            elif p.wr & c.wr and not p.dtuple == c.dtuple: n = max(n, big - 2)
        elif c.kind in ('valu', 'ds', 'vmem', 'dma'):
            if p.wr & (c.rd | c.wr): n = max(n, big)
            if c.kind == 'valu' and (p.srcC & c.wr): n = max(n, 3 if p.passes == 4 else 7)
    if p.kind == 'vmem' and p.stdata:
        if p.stdata & c.wr: n = max(n, 2 if c.kind in ('valu', 'mfma') else 1)
    if p.kind == 'salu' and ('s', 'm0') in p.wr and c.kind == 'dma': n = max(n, 1)
    return n

class Asm:
    def __init__(self):
        self.lines = []
        self.uid = 0
    def __call__(self, text):
        for l in text.split('\n'):
            l = l.strip()
            if l: self.lines.append(l)
    def label(self, name): self.lines.append(name + ':')
    def newlabel(self, base='L'):
        self.uid += 1
        return f'{base}_{self.uid}'
    def nop(self, n):
        while n > 0:
            k = min(16, n); self.lines.append(f's_nop {k-1}'); n -= k

def pad(lines, verbose=False):
    ins = []
    W = 14
    added = 0
    for l in lines:
        if l.startswith(';'):
            continue
        c = Ins(l)
        if c.states or c.kind in ('label', 'dir'):
            if c.kind not in ('label', 'dir'):
                dist = 0; req = 0
                for p in reversed(ins):
                    if p.kind == 'branch' and p.op == 's_branch': break
                    if p.op == 's_endpgm': break
                    if p.states == 0: continue
                    n = need(p, c)
                    if n > dist: req = max(req, n - dist)
                    dist += p.states
                    if dist >= W: break
                if req:
                    ins.append(Ins(f's_nop {req-1}')); added += req
            ins.append(c)
    pos = {x.label: i for i, x in enumerate(ins) if x.label}
    for i, b in enumerate(ins):
        if b.kind != 'branch': continue
        if b.target not in pos: raise ValueError('unknown label ' + b.target)
        prods = []; dist = 0
        for p in reversed(ins[:i + 1]):
            if p is not b and p.kind == 'branch' and p.op == 's_branch': break
            if p.states == 0: continue
            prods.append((p, dist)); dist += p.states
            if dist >= W: break
        d2 = 0
        for c in ins[pos[b.target]:]:
            if c.states == 0: continue
            for p, d in prods:
                if p is b: continue
                n = need(p, c)
                if n > d + d2:
                    raise ValueError(f'hazard across branch {b.text}: {p.text} -> {c.text} need {n} have {d+d2}')
            d2 += c.states
            if d2 >= W or (c.kind == 'branch' and c.op == 's_branch') or c.op == 's_endpgm': break
    if verbose: print('nop states added', added)
    out = []
    for x in ins:
        out.append(x.text if x.kind in ('label', 'dir') else '    ' + x.text)
    return out

_LG = re.compile(r'lgkmcnt\((\d+)\)')
def auto_lgkm(lines):
    out = []
    q = []
    for l in lines:
        if l.startswith(';'):
            out.append(l); continue
        c = Ins(l)
        if c.kind == 'label' or c.kind == 'branch':
            pend = [x for x in q if x[0]]
            if pend and 'keep' not in l:
                raise ValueError('pending LDS/SMEM results at ' + l + ' : ' + str(sorted(pend[0][0]))[:80])
            out.append(l); continue
        if c.kind == 'dir':
            out.append(l); continue
        if c.op == 's_waitcnt':
            m = _LG.search(l)
            if m:
                n = int(m.group(1))
                if n == 0: q = []
                elif not any(x[1] for x in q): q = q[len(q) - n:] if n < len(q) else q
            out.append(l); continue
        touched = c.rd | c.wr
        idx = -1
        for i, x in enumerate(q):
            if x[0] & touched: idx = i
        if idx >= 0:
            n = len(q) - 1 - idx
            if any(x[1] for x in q): n = 0
            n = min(n, 15)
            out.append(f's_waitcnt lgkmcnt({n})')
            q = q[len(q) - n:] if n else []
        if c.kind == 'ds': q.append((set() if 'nowait' in l else set(c.wr), False))
        elif 'nowait' in l: pass
        elif c.op.startswith('s_load') or c.op.startswith('s_memtime') or c.op.startswith('s_memrealtime') or c.op.startswith('s_buffer_load'):
            q.append((set(c.wr), True))
        out.append(l)
    return out

def weave(a, mf, fill, start=0, per=2):
    fill = list(fill); k = 0
    for i, m in enumerate(mf):
        a(m)
        if i >= start:
            for _ in range(per):
                if k < len(fill): a(fill[k]); k += 1
    while k < len(fill): a(fill[k]); k += 1

def vr(b, n=1, f='v'):
    return f'{f}{b}' if n == 1 else f'{f}[{b}:{b+n-1}]'

def resolve_waitv(lines):
    out = []
    for l in lines:
        if l.startswith('waitv '):
            r = regs_of(l.split()[1]); k = 0
            for p in reversed(out):
                if p.startswith(';'): continue
                c = Ins(p)
                if c.kind == 'label' and 'keep' not in p: raise ValueError('waitv crosses label ' + p)
                if c.kind in ('vmem', 'dma'):
                    if c.wr & r: break
                    k += 1
            else: raise ValueError('waitv: no load')
            out.append(f's_waitcnt vmcnt({k})')
        elif l.startswith('waitm '):
            mk = '; ' + l.split()[1]; k = 0
            for p in reversed(out):
                if p.startswith(';'): continue
                if p.endswith(mk): break
                if Ins(p).kind in ('vmem', 'dma'): k += 1
            out.append(f's_waitcnt vmcnt({k})')
        else: out.append(l)
    return out
```

```python
from asmlib import *
from common import *
import math
L_WO, L_K0 = 0, 131072
L_K1 = L_K0 + 8192 + 64
L_QX = L_K1 + 8192 + 64
XS = 288; XSZ = 2304
L_V = L_QX + 3*XSZ
assert L_V + 8192 <= LDS_MISC and L_V % 16 == 0
L16, IDX, POI4 = 0, 1, 2
PST, PUB, XW, QR, OR_, WOB, V4 = range(6, 13)
VMP = V4+2
SELA, ONES, VB, MEMF, KX, ACQ, ACK, ACV = 16, 20, 24, 40, 72, 104, 112, 120
KMR = VB+2
QF = KX
WV = 128
sHALF, sEVEN, sPOI, sPLO, sPHI, sSCL = 32, 34, 36, 37, 38, 39
sSTEP, sSLOT, sSLOTN, sSLOTP, sINB, sINBO, sKV, sKM, sMK, sSPIN, sT0, sT1, sT2, sKS, sTF, sM0, sINB2, sMV, sW2, sHO = range(40, 60)
sKB, sP1, sKD = sTF, sW2, sHO
sI1, sI2, sI3 = 37, 38, 6
sPEX = 88
sACC = 16
def db(b): return 32*(b >> 2) + 8*(b & 1) + 2*((b >> 1) & 1)
def smf(d, A, B, f='v'): return f'v_smfmac_f32_16x16x64_bf16 {vr(d,4)}, {vr(A,4)}, {vr(B,8,f)}, v{IDX}'
def mf(d, A, B, C='0'): return f'v_mfma_f32_16x16x32_bf16 {vr(d,4)}, {vr(A,4)}, {vr(B,4)}, {C}'
def z2(r): return f'v_mov_b64 {vr(r,2)}, 0'

def slots(a, mfl, plan):
    for i, m in enumerate(mfl):
        a(m)
        fl = plan.pop(i, [])
        for x in fl:
            if not x.startswith('v_') and not x.startswith('>'): a(x)
        for x in fl:
            if x.startswith('v_'): a(x)
        for x in fl:
            if x.startswith('>'): a(x[1:])
    assert not plan, plan

def heat(a, n, r):
    for _ in range(n):
        a(f'v_mov_b32 v{r}, v{r}'); a('s_nop 2')

def kx_addr(t0, t1):
    return [f'v_and_b32 v{t0}, 0x310, v{L16}', f'v_and_b32 v{t1}, 0x60, v{L16}', f'v_lshl_add_u32 v{t0}, v{t1}, 1, v{t0}',
            f'v_bfe_u32 v{t1}, v{L16}, 7, 1', f'v_mul_u32_u24 v{t1}, {4096+32}, v{t1}', f'v_add3_u32 v{t0}, v{t0}, v{t1}, s{sKB}']
def kv_reads(t0, MR):
    r = [f'ds_read_b128 {vr(KX+4*j,4)}, v{t0} offset:{(j&3)*1024 + (j>>2)*32}' for j in range(8)]
    r += [f'ds_read_b64 {vr(VB+8*t+4*u,2)}, v{MR} offset:{t*1024 + u*8}' for t in (0, 1) for u in (0, 1)]
    return r
def v_dma():
    WS = srd(sWS)
    return [[f's_mov_b32 m0, s{sMV}', f's_add_u32 s{sT2}, s{sKV}, {WS_VF - WS_KF:#x}'],
            [f'buffer_load_dwordx4 v{L16}, {WS}, s{sT2} offen sc1 lds'],
            [f'buffer_load_dwordx4 v{L16}, {WS}, s{sT2} offen offset:1024 sc1 lds']]
def k_dma(adv=True):
    WS = srd(sWS)
    return [[f's_add_u32 m0, s{sMK}, s{sKD}', f's_add_u32 s{sKV}, s{sKV}, {32*8192 if adv else 0:#x}'],
            [f'buffer_load_dwordx4 v{L16}, {WS}, s{sKV} offen sc1 lds'],
            [f'buffer_load_dwordx4 v{L16}, {WS}, s{sKV} offen offset:1024 sc1 lds']]
def xa_set(): return [f's_add_u32 s{sP1}, s{sSLOT}, 0x1000']

DEFAULTS = dict(merge=True, nq=0, qa=(35,35,35,35,36,36,37), ka=(37,37,37,37,38,38,39), b2=43, b3=47, kp=33, vd=(34,36), nops=(33,), fp=41,
                lat=(-1,-1,-1,2,5,8), da=(13,14,18,21,22,26), zb=5, h4b=0, po=(24,30), stp=(11,23,35,47,55), pa0=(0,0,0,0,1,1,2))
def team(a, sf, tag, opt):
    opt = {**DEFAULTS, **opt}
    if sf != '' or opt.get('shared'): return team1(a, sf, tag, opt, None)
    for w in range(3):
        a(f's_cmp_eq_u32 s4, {w}'); a(f's_cbranch_scc1 {tag}_full{w}')
    for w in (3, 0, 1, 2):
        if w < 3: a.label(f'{tag}_full{w}')
        o = dict(opt); o.update(opt.get('pw', {}).get(w, {}))
        for k, v in opt.get('stag', {}).items():
            base = o[k]
            o[k] = tuple(x + v*w for x in base) if isinstance(base, tuple) else base + v*w
        team1(a, sf, f'{tag}{w}', o, w)

def team1(a, sf, tag, opt, only):
    stamps = opt.get('stamps', False)
    nstep = opt.get('nstep', 64)
    NST = 14
    def st(i): return [f'{"s_memrealtime" if opt.get("raw") else "s_memtime"} s[{60+2*i}:{61+2*i}] ; nowait'] if stamps else []
    def stamp(i):
        for x in st(i): a(x)
    HT = VB+14
    def stamp_acc():
        if stamps:
            a('s_waitcnt lgkmcnt(0)')
            for i in range(NST):
                prev = 98 if i == 0 else 60+2*(i-1)
                if opt.get('raw'):
                    a(f's_cmp_eq_u32 s{sSTEP}, {opt["raw"] + (1 if i < 2 else 0)}')
                    a(f's_cselect_b32 s{sACC+i}, s{60+2*i}, s{sACC+i}')
                else:
                    a(f's_sub_u32 s99, s{60+2*i}, s{prev}')
                    a(f's_add_u32 s{sACC+i}, s{sACC+i}, s99')
                if i % 2 == 0: a(f'v_mov_b32 v{HT}, v{HT}')
            a(f's_mov_b32 s98, s{60+2*(NST-1)}')
    T = lambda n: f'{tag}_{n}'
    WS = srd(sWS)
    IB = MEMF+8; RA = MEMF+16; IT = MEMF+20
    p2 = [f'buffer_load_dwordx4 {vr(MEMF,4)}, v{L16}, {WS}, s{sSLOT} offen sc1',
          f'buffer_load_dwordx4 {vr(MEMF+4,4)}, v{L16}, {WS}, s{sSLOT} offen offset:1024 sc1']
    p1 = [f'buffer_load_dwordx4 {vr(IB,4)}, v{L16}, {WS}, s{sINB2} offen sc1',
          f'buffer_load_dwordx4 {vr(IB+4,4)}, v{L16}, {WS}, s{sINB2} offen offset:1024 sc1']
    def check2():
        b, t = MEMF, VB+10
        a(f'v_max3_u32 v{t}, v{b}, v{b+1}, v{b+2}')
        a(f'v_max3_u32 v{t}, v{t}, v{b+3}, v{b+4}')
        a(f'v_max3_u32 v{t}, v{t}, v{b+5}, v{b+6}')
        a(f'v_max_u32 v{t}, v{t}, v{b+7}')
        a(f'v_cmp_eq_u32 vcc, s{sPOI}, v{t}')
    def redtail():
        for rot in (4, 8):
            for r in range(2): a(f'v_add_f32_dpp v{RA+r}, v{RA+r}, v{RA+r} row_ror:{rot} row_mask:0xf bank_mask:0xf')
        a(f'v_cvt_pk_bf16_f32 v{IT+4}, v{RA}, v{RA+1}')
    def check1():
        t = IT
        a(f'v_max3_u32 v{t}, v{IB}, v{IB+1}, v{IB+2}')
        a(f'v_max3_u32 v{t}, v{t}, v{IB+3}, v{IB+4}')
        a(mf(RA, SELA, IB))
        a(f'v_max3_u32 v{t}, v{t}, v{IB+5}, v{IB+6}')
        a(f'v_max_u32 v{t}, v{t}, v{IB+7}')
        a(mf(RA, SELA, IB+4, vr(RA,4)))
        a(f'v_cmp_eq_u32 vcc, s{sPOI}, v{t}')
        if opt.get('spec', 0): redtail()
    def sample(name, loads, chk, depth, cnt, fill, warm=None, extra=0):
        for i in range(depth - 1):
            for x in loads: a(x)
            fill(i)
        a(T(name) + ': ; keep')
        for x in loads: a(x)
        if warm: a(warm)
        if stamps: a(f's_add_u32 s{sACC+cnt}, s{sACC+cnt}, 1')
        a(f's_add_u32 s{sSPIN}, s{sSPIN}, 1')
        a(f's_cmp_ge_u32 s{sSPIN}, {SPIN_MAX}')
        a('s_cbranch_scc1 L_fail ; keep')
        a(f's_waitcnt vmcnt({len(loads)*(depth-1) + extra})')
        chk()
        a(f's_cbranch_vccnz {T(name)} ; keep')
        a(T(name + 'ok') + ': ; keep')
    if stamps or opt.get('timing', False):
        for i in range(16): a(f's_mov_b32 s{sACC+i}, 0')
        a('s_memtime s[92:93]'); a('s_memrealtime s[94:95]'); a('s_waitcnt lgkmcnt(0)'); a('s_mov_b32 s98, s92')
    a(f's_mov_b32 s{sSPIN}, 0')
    for x in p2: a(x)
    for x in xa_set(): a(x)
    a('s_waitcnt vmcnt(0)')
    a(T('p2ok') + ': ; keep')
    eb = opt.get('eb', 2)
    Q = lambda k, t: smf(ACQ+4*t, MEMF+4*k, (k*2+t)*8, 'a')
    K = lambda k, t: smf(ACK+4*t, MEMF+4*k, 128+(k*2+t)*8, 'a')
    V = lambda k, t: smf(ACV+4*t, MEMF+4*k, WV+(k*2+t)*8)
    own = [Q(0,0), Q(0,1), Q(1,0), Q(1,1), K(0,0), K(0,1), K(1,0), K(1,1), V(0,0), V(0,1), V(1,0), V(1,1)]
    nq = opt.get('nq', 0)
    qk_ = [f(k, t) for k in range(2, 8-nq) for f in (Q, K) for t in (0, 1)] + [f(k, t) for f in (Q, K) for k in range(8-nq, 8) for t in (0, 1)]
    first = {k: 12 + qk_.index(Q(k, 0)) for k in range(2, 8)}
    vr_ = [V(k, t) for k in range(2, 8) for t in (0, 1)]
    S0, S1, SM, P = ACQ, ACQ+4, ACK, ACK+4
    xs = []
    for j in range(4):
        xs.append(mf(S0, KX+4*j, MEMF+4*j, '0' if j == 0 else vr(S0,4)))
        xs.append(mf(S1, KX+16+4*j, MEMF+4*j, '0' if j == 0 else vr(S1,4)))
    ms = [mf(SM, MEMF+16+4*j, MEMF+4*j, '0' if j == 0 else vr(SM,4)) for j in range(4)]
    M = own + qk_ + vr_ + xs + ms
    mld = lambda k: f'buffer_load_dwordx4 {vr(MEMF+4*k,4)}, v{L16}, {WS}, s{sP1 if k >= 4 else sSLOT} offen offset:{(k&3)*1024} sc1'
    def pk(ac): return [f'v_add_f32 v{ac}, v{ac}, v{ac+2}', f'v_add_f32 v{ac+1}, v{ac+1}, v{ac+3}',
                        f'v_add_f32 v{ac+4}, v{ac+4}, v{ac+6}', f'v_add_f32 v{ac+5}, v{ac+5}, v{ac+7}',
                        f'v_cvt_pk_bf16_f32 v{ac+2}, v{ac}, v{ac+4}', f'v_cvt_pk_bf16_f32 v{ac+3}, v{ac+1}, v{ac+5}']
    def xw(ac, off): return [f'ds_write_b32 v{XW}, v{ac+2} offset:{off}', f'ds_write_b32 v{XW}, v{ac+3} offset:{off+XS}']
    plan = {}
    def put(i, *xs_): plan.setdefault(i, []).extend(xs_)
    lat = opt.get('lat', (-1, -1, 0, 3, 6, 9))
    for k in range(2, 2+eb): a(mld(k))
    a(T('p2go') + ': ; keep')
    stamp(0)
    for k in range(2+eb, 8):
        if lat[k-2] < 0: a(mld(k))
        else: put(lat[k-2], mld(k))
    a('s_waitcnt lgkmcnt(1)')
    put(1, 's_waitcnt lgkmcnt(0)')
    da = opt.get('da', (13, 14, 16, 17, 18, 20)); po = opt.get('po', (24, 30)); kp = opt.get('kp', 46); fp = opt.get('fp', 27)
    CT = VB+10
    for k in range(2, 8):
        u = first[k] - 1
        put(u, f'waitv v{MEMF+4*k}')
        b = MEMF+4*k
        put(u+1, f'v_max_u32 v{CT}, v{b}, v{b+1}' if k == 2 else f'v_max3_u32 v{CT}, v{CT}, v{b}, v{b+1}')
        put(u+2, f'v_max3_u32 v{CT}, v{CT}, v{b+2}, v{b+3}')
    vd = opt.get('vd', (34, 36))
    assert vd[0] > first[7] + 1
    put(vd[0], f'v_cmp_eq_u32 vcc, s{sPOI}, v{CT}')
    put(vd[1], f's_cbranch_vccnz {T("redo")} ; keep')
    put(opt['stp'][0], *['>'+x for x in st(1)])
    kput = f'buffer_store_dwordx4 {vr(V4,4)}, v{L16}, {WS}, s{sKM} offen sc1'
    put(6, f'v_mov_b32 v{KMR}, v{QR}')
    put(7, f'v_mov_b32_dpp v{KMR}, v{QR} row_shl:4 row_mask:0xf bank_mask:0x2')
    put(9, f'v_mov_b32_dpp v{KMR}, v{QR} row_shr:4 row_mask:0xf bank_mask:0x4')
    put(0, f's_xor_b32 s{sINBO}, s{sINB2}, 0x40000')
    put(3, f's_add_u32 s{sI1}, s{sINB}, 0x1000')
    kd = k_dma()
    kd[0][1] = f's_add_u32 s{sI2}, s{sKV}, {32*8192:#x}'
    kd = [[x.replace(f's{sKV} offen', f's{sI2} offen') for x in g] for g in kd]
    put(42, f's_mov_b32 s{sKV}, s{sI2}')
    for n, xs_ in enumerate(v_dma() + kd): put(da[n], *xs_)
    assert (da[5] < da[0] or da[3] > da[2])
    pst = [f'buffer_store_dwordx4 {vr(POI4,4)}, v{L16}, {WS}, s{sINBO} offen offset:{o} {sf}' for o in (0, 1024)]
    for n in range(2):
        if po[n] < 60: put(po[n], pst[n])
    put(fp, f'buffer_store_dword v{POI4}, v{PUB}, {WS}, s{sSLOTP} offen {sf}')
    put(kp, kput)
    for i in opt.get('lwm', ()): put(i, f'ds_read_b32 v{VB+2}, v{XW} ; nowait')
    put(opt['stp'][1], *['>'+x for x in st(2)])
    put(opt['stp'][2], *['>'+x for x in st(3)])
    qa = opt.get('qa', (35, 35, 36, 36, 37, 37, 38))
    for n, x in enumerate(pk(ACQ)): put(qa[n], x)
    put(qa[6], *xw(ACQ, 0))
    for i in opt.get('nops', (27, 28, 35)): put(i, 's_nop 1')
    assert qa[6] >= vd[1]
    b2 = opt.get('b2', 42)
    if not opt.get('merge'): put(b2, 's_waitcnt lgkmcnt(0)', 's_barrier')
    qrd = [f'ds_read_b128 {vr(MEMF+4*j,4)}, v{QR} offset:{j*64}' for j in range(4)]
    k0 = opt.get('k0', 39)
    ka = opt.get('ka', tuple(k0+n for n in range(7)))
    pkk = pk(ACK)[:4] + [f'v_cvt_pk_bf16_f32 v{V4}, v{ACK}, v{ACK+4}', f'v_cvt_pk_bf16_f32 v{V4+1}, v{ACK+1}, v{ACK+5}']
    for n, x in enumerate(pkk): put(ka[n], x)
    put(ka[6], *xw(V4-2, XSZ))
    assert kp < ka[4]
    if opt.get('merge'): put(b2, 's_waitcnt lgkmcnt(0)', 's_barrier')
    put(b2, qrd[0]); put(b2+1, qrd[1], qrd[2]); put(b2+2, qrd[3])
    put(opt['stp'][3], *['>'+x for x in st(4)])
    b3 = opt.get('b3', 49)
    if not opt.get('merge'): put(b3, 's_waitcnt lgkmcnt(0)', 's_barrier')
    kmr = [f'ds_read_b128 {vr(MEMF+16+4*j,4)}, v{KMR} offset:{XSZ + j*64}' for j in range(4)]
    put(b3, kmr[0]); put(b3+1, kmr[1], kmr[2]); put(b3+2, kmr[3])
    ac = ACV
    fv = [f'v_add_f32 v{ac}, v{ac}, v{ac+2}', f'v_add_f32 v{ac+1}, v{ac+1}, v{ac+3}',
          f'v_add_f32 v{ac+4}, v{ac+4}, v{ac+6}', f'v_add_f32 v{ac+5}, v{ac+5}, v{ac+7}',
          f'v_cvt_pk_bf16_f32 v{VMP}, v{ac}, v{ac+1}', f'v_cvt_pk_bf16_f32 v{VMP+1}, v{ac+4}, v{ac+5}',
          f'v_cndmask_b32 v{VB+2}, 0, v{VMP}, s[{sEVEN}:{sEVEN+1}]', f'v_cndmask_b32 v{VB+6}, v{VMP}, 0, s[{sEVEN}:{sEVEN+1}]',
          f'v_cndmask_b32 v{VB+10}, 0, v{VMP+1}, s[{sEVEN}:{sEVEN+1}]', f'v_cndmask_b32 v{VB+14}, v{VMP+1}, 0, s[{sEVEN}:{sEVEN+1}]']
    fa = opt.get('fa', (50, 50, 51, 51, 52, 52, 53, 54, 55, 55))
    for x, i in zip(fv, fa): put(i, x)
    put(opt['stp'][4], *['>'+x for x in st(5)])
    order = [(2*ph + t, ks2) for ph in range(4) for ks2 in (0, 1) for t in (0, 1)]
    bufs = ([KX+8*b for b in range(4)] + [MEMF+8*b for b in range(4)]) * 2
    def word(n):
        return [f'ds_read_b128 {vr(bufs[n]+4*hf,4)}, v{WOB} offset:{wo_off(order[n][0], order[n][1], hf)}' for hf in range(2)]
    w2, w3, w4, w5 = word(0), word(1), word(2), word(3)
    put(52, w2[0]); put(53, w4[0]); put(54, w2[1]); put(55, w4[1]); put(56, w3[0]); put(57, w5[0]); put(58, w3[1]); put(59, w5[1])
    put(55, 's_waitcnt lgkmcnt(3)')
    put(56, z2(ACV), z2(ACV+2)); put(57, z2(ACV+4), z2(ACV+6))
    put(58, f'v_max3_f32 v{P}, v{S0}, v{S0+1}, v{S0+2}', f'v_max3_f32 v{P+1}, v{S1}, v{S1+1}, v{S1+2}')
    put(46, f's_cmp_eq_u32 s{sSTEP}, {nstep-1}')
    put(49, 's_waitcnt lgkmcnt(4)')
    fin_at = 54
    drop = opt.get('drop', [])
    for i, m in enumerate(M):
        slots(a, [m], {0: [x for x in plan.pop(i, []) if not any(d in x for d in drop)]})
    assert not plan
    pre = word(4) + word(5) + word(6) + word(7)
    M0, M1 = SM+2, SM+3
    a(f's_cbranch_scc1 {T("fin")} ; keep')
    LS, O = SM, ACV
    ex = [S0, S0+1, S0+2, S0+3, SM, SM+1]
    sm = [f'v_max3_f32 v{P}, v{P}, v{S0+3}, v{S1+3}', f'v_max_f32 v{P}, v{P}, v{P+1}']
    sm += [f'v_cndmask_b32 v{S0+r}, v{S0+r}, v{S1+r}, s[{sHALF}:{sHALF+1}]' for r in range(4)]
    sm += [f'v_max3_f32 v{M0}, v{P}, v{SM}, v{SM+1}', f'v_max3_f32 v{M1}, v{P}, v{SM}, v{SM+1}',
           f'v_permlane32_swap_b32 v{M0}, v{M1}', f'v_max_f32 v{P}, v{M0}, v{M1}', f'v_max_f32 v{P+1}, v{M0}, v{M1}',
           f'v_permlane16_swap_b32 v{P}, v{P+1}', f'v_max_f32 v{M0}, v{P}, v{P+1}', f'v_mul_f32 v{M0}, s{sSCL}, v{M0}']
    sm += [f'v_fma_f32 v{r}, v{r}, s{sSCL}, -v{M0}' for r in ex]
    sm += [f'v_exp_f32 v{r}, v{r}' for r in ex]
    sm += [f'v_cvt_pk_bf16_f32 v{P}, v{S0}, v{S0+1}', f'v_cvt_pk_bf16_f32 v{P+2}, v{S0+2}, v{S0+3}',
           f'v_cvt_pk_bf16_f32 v{P+1}, v{SM}, v{SM+1}', f'v_cvt_pk_bf16_f32 v{P+3}, v{SM}, v{SM+1}']
    sm += [mf(LS, P, ONES), smf(O, P, VB), smf(O+4, P, VB+8)]
    sm += [f'v_add_f32 v{LS}, v{LS}, v{LS+2}', f'v_add_f32 v{LS+1}, v{LS+1}, v{LS+3}', f'v_rcp_f32 v{LS}, v{LS}', f'v_rcp_f32 v{LS+1}, v{LS+1}',
           f'v_pk_add_f32 {vr(O,2)}, {vr(O,2)}, {vr(O+2,2)}', f'v_pk_add_f32 {vr(O+4,2)}, {vr(O+4,2)}, {vr(O+6,2)}',
           f'v_pk_mul_f32 {vr(O,2)}, {vr(O,2)}, {vr(LS,2)}', f'v_pk_mul_f32 {vr(O+4,2)}, {vr(O+4,2)}, {vr(LS,2)}',
           f'v_cvt_pk_bf16_f32 v{O+2}, v{O}, v{O+4}', f'v_cvt_pk_bf16_f32 v{O+3}, v{O+1}, v{O+5}']
    pp = list(opt.get('pp', (7, 10, 29, 30, 31, 31, 32, 32)))
    bp = opt.get('bp', 42)
    n99 = pp.count(99)
    def sm_emit(lo, hi):
        for n in range(lo, hi):
            if n == 6: stamp(6)
            if n == 30: stamp(7)
            a(sm[n])
            for r, q in zip(pre, pp):
                if q == n: a(r)
    sm_emit(0, bp+1)
    def sm_rest():
        sm_emit(bp+1, len(sm))
        for x in xw(O, 2*XSZ): a(x)
        for r, q in zip(pre, pp):
            if q == 99: a(r)
        stamp(8)
    PW = opt.get('pw', {})
    DEF = [dict(er=(14,), n1=2, g1=5, d2=0, n2=3, g2=4), dict(d1=0, n1=2, g1=7), dict(d1=5, n1=2, g1=7), dict(d1=9, n1=2, g1=7)]
    def tailcode(w, gopt):
        nonlocal plan
        opt = dict(gopt); opt.update(DEF[w]); opt.update(PW.get(w, {}))
        if bp < len(sm) - 1 and w < 3: a.nop(max(0, opt.get('bn', 4) - 2*w))
        sm_rest()
        PA = [VB, VB+8, ACQ, ACK]
        if po[0] == 60: a(pst[0])
        zb = opt.get('zb', 4)
        zin = opt.get('zin', (0, 0, 1, 1, 2, 2, 3, 3))
        zs = [z2(VB+2*z) for z in range(4)] + [z2(ACK+2*z) for z in range(4)] + [z2(VB+8+2*z) for z in range(4)] + [z2(ACQ+2*z) for z in range(4)]
        zi = zs[16-len(zin):]; zs = zs[:16-len(zin)]
        for x in zs[:zb]: a(x)
        a(f's_waitcnt lgkmcnt({n99})')
        a('s_barrier')
        OA = ACV
        a(f'ds_read_b128 {vr(OA,4)}, v{OR_} offset:{2*XSZ}')
        a(f'ds_read_b128 {vr(OA+4,4)}, v{OR_} offset:{2*XSZ+128}')
        for r, q in zip(pre, pp):
            if q == 100: a(r)
        if po[1] == 61: a(pst[1])
        for x in zs[zb:]: a(x)
        heat(a, opt.get('h4b', 1), VB)
        stamp(9)
        W = [smf(PA[n >> 2]+4*(order[n][0] & 1), OA+4*order[n][1], bufs[n]) for n in range(16)]
        plan = {}
        for x, i in zip(zi, zin): put(i, x)
        rd = [x for n in range(8, 16) for x in word(n)]
        at = opt.get('at', [0, 0, 1, 1, 2, 3, 3, 4, 5, 5, 6, 7, 8, 8, 9, 10])
        for n, (x, i) in enumerate(zip(rd, at)):
            assert i >= n // 2
            put(i, x)
        pstore = lambda ph: f'buffer_store_dwordx2 {vr(PA[ph]+2,2)}, v{PST}, {WS}, s{sI1 if ph >= 2 else sINB} offen offset:{(ph&1)*2048} {sf}'
        er = opt.get('er', ())
        for e in er:
            if e < 16: put(e, *[x + f' ; r{e}' for x in p1])
        pa = opt.get('pa', (0, 1, 1, 2, 3, 3, 4))
        pa0 = opt.get('pa0', pa)
        tail = []
        for ph in range(3):
            for x, r in zip(pk(PA[ph]) + [pstore(ph)], pa0 if ph == 0 else pa):
                if 4*(ph+1) + r <= 15: put(4*(ph+1) + r, x)
                else: tail.append(x)
        for i in opt.get('ww', (7, 9, 11, 13)):
            need_n = 2*(i+2-8) + 2
            issued = sum(1 for x in at if x <= i)
            put(i, f's_waitcnt lgkmcnt({issued - need_n})')
        put(0, f's_waitcnt lgkmcnt({sum(1 for x in at if x == 0) + pp.count(100)})')
        slots(a, W, plan)
        if 16 in er:
            for x in p1: a(x + ' ; r16')
        for x in tail: a(x)
        if 17 in er:
            for x in p1: a(x + ' ; r17')
        p = PA[3]
        a(f'v_pk_add_f32 {vr(p,2)}, {vr(p,2)}, {vr(p+2,2)}'); a(f'v_pk_add_f32 {vr(p+4,2)}, {vr(p+4,2)}, {vr(p+6,2)}')
        for x in pk(p)[4:]: a(x)
        a(pstore(3))
        stamp(10)
        kvr = kv_reads(IT+1, IT+3)
        work = kx_addr(IT+1, IT+2)
        zv = [f'v_add_u32 v{IT+3}, s{sMV}, v{L16}'] + [f'v_mov_b32 v{r}, 0' for r in (VB+3, VB+7, VB+11, VB+15)]
        for z in range(12): work += [kvr[z], z2(ACQ+2*z)] if z < 8 else [z2(ACQ+2*z)]
        nb = opt.get('w1', 26)
        stamp(11)
        if er:
            nb = opt.get('w0', 12)
            def fill(i):
                if i == 0:
                    for x in work[:nb]: a(x)
                if i == opt['n1'] - 2:
                    for e in er[opt.get('ec', 0):]:
                        a(f'waitm r{e}')
                        check1()
                        a(f's_cbranch_vccz {T("s1w%dok" % w)} ; keep')
                elif i: heat(a, opt['g1'], IT)
        else:
            for x in work[:nb]: a(x)
            heat(a, opt.get('d1', 0), IT)
            def fill(i): heat(a, opt['g1'], IT)
        sample('s1w%d' % w, p1, check1, opt['n1'], 14, fill)
        if not opt.get('spec', 0): redtail()
        a(f'buffer_store_dword v{IT+4}, v{PUB}, {WS}, s{sSLOTN} offen {sf}')
        stamp(12)
        sc = [f's_add_u32 s{sSTEP}, s{sSTEP}, 1', f's_xor_b32 s{sT0}, s{sSLOTN}, {2*SLOT_ST:#x}',
              f's_mov_b32 s{sSLOTN}, s{sSLOTP}', f's_mov_b32 s{sSLOTP}, s{sT0}', f's_xor_b32 s{sINB}, s{sINB}, 0x40000',
              f's_xor_b32 s{sINB2}, s{sINB2}, 0x40000', f's_add_u32 s{sKM}, s{sKM}, {32*4096:#x}', f's_mov_b32 s{sSPIN}, 0',
              f's_mov_b32 s{sKD}, s{sKB}', f's_sub_u32 s{sKB}, {L_K0 + L_K1}, s{sKB}'] + xa_set()
        a(f's_add_u32 s{sSLOT}, s{sSLOTN}, s{sI3}')
        def part_a():
            for x in work[nb:]: a(x)
            for x in zv + kvr[8:]: a(x)
        def part_b():
            a(f'v_add_u32 v{HT}, {L_QX + 2*XSZ}, v{L16}')
            for m, x in enumerate(sc):
                if m % 3 == 2: a(f'v_mov_b32 v{HT}, v{HT}')
                a(x)
            stamp(13)
            a(f's_add_u32 s{sT1}, s{sSTEP}, 2')
            a(f's_cmp_ge_u32 s{sT1}, s{sAV}')
            a(f's_cbranch_scc1 {T("kvw%d" % w)} ; keep')
            a(T('kvo%d' % w) + ': ; keep')
        dl = opt.get('dl', 0)
        if w == 0:
            if dl: a(f's_mov_b32 m0, {L_QX + 2*XSZ}')
            parts = [part_a, part_b, stamp_acc]
            pre_n = opt.get('pn', 1)
            for f in parts[:pre_n]: f()
            parts = parts[pre_n:]
            heat(a, opt.get('d2', 0), VB+6)
            def fill2(i):
                if parts and (parts[0] is not stamp_acc or stamps): parts.pop(0)()
                else: heat(a, opt['g2'], VB+6)
                if i == opt['n2'] - 2:
                    while parts: parts.pop(0)()
                    if dl: a('s_waitcnt lgkmcnt(0)')
            if dl:
                p2d = p2 + [f'buffer_load_dwordx4 v{L16}, {WS}, s{sSLOT} offen offset:{o} sc1 lds' for o in (0, 1024)]
                def chk2():
                    check2()
                    a(f's_waitcnt vmcnt({4*(opt["n2"]-1)})')
                sample('s2', p2d, chk2, opt['n2'], 15, fill2, extra=2)
                a('s_barrier')
                for k in range(2, 2+eb): a(mld(k))
            else:
                def chk2():
                    check2()
                    if opt.get('spec2', 0):
                        a(f'ds_write_b128 v{HT}, {vr(MEMF,4)}')
                        a(f'ds_write_b128 v{HT}, {vr(MEMF+4,4)} offset:1024')
                sample('s2', p2, chk2, opt['n2'], 15, fill2)
                if eb: a('s_barrier')
                if not opt.get('spec2', 0):
                    a(f'ds_write_b128 v{HT}, {vr(MEMF,4)}')
                    a(f'ds_write_b128 v{HT}, {vr(MEMF+4,4)} offset:1024')
                for k in range(2, 2+eb): a(mld(k))
                a('s_waitcnt lgkmcnt(0)')
                a('s_barrier')
        else:
            part_a(); part_b(); stamp_acc()
            if opt.get('series') and w == 1:
                a('s_memrealtime s[60:61]'); a(f's_lshl_b32 s62, s5, 8'); a(f's_lshl_b32 s63, s{sSTEP}, 2'); a('s_add_u32 s62, s62, s63'); a(f's_add_u32 s62, s62, {WS_DBG+0x10000:#x}')
                a(f'v_mov_b32 v{VB+6}, s60'); a(f'buffer_store_dword v{VB+6}, off, {WS}, s62')
            a('s_waitcnt lgkmcnt(0)')
            if eb and not dl:
                a('s_barrier')
                for k in range(2, 2+eb): a(mld(k))
            a('s_barrier')
            a(f'ds_read_b128 {vr(MEMF,4)}, v{HT}')
            a(f'ds_read_b128 {vr(MEMF+4,4)}, v{HT} offset:1024')
            if dl:
                for k in range(2, 2+eb): a(mld(k))
        a(f's_branch {T("p2go")} ; keep')
        a('s_waitcnt lgkmcnt(0)')
        a.label(T('kvw%d' % w))
        kv_wait(a, T('kvl%d' % w), sT1, MEMF+24)
        a(f's_branch {T("kvo%d" % w)}')
    if only is not None:
        tailcode(only, opt)
    else:
        for w in range(3):
            a(f's_cmp_eq_u32 s4, {w}'); a(f's_cbranch_scc1 {T("w%d" % w)} ; keep')
        tailcode(3, opt)
        for w in range(3):
            a('s_waitcnt lgkmcnt(0)')
            a.label(T('w%d' % w)); tailcode(w, opt)
    a('s_waitcnt lgkmcnt(0)')
    a.label(T('redo'))
    if stamps: a(f's_add_u32 s{sACC+15}, s{sACC+15}, 0x10000')
    a(f's_add_u32 s{sSPIN}, s{sSPIN}, 1'); a(f's_cmp_ge_u32 s{sSPIN}, {SPIN_MAX}'); a('s_cbranch_scc1 L_fail')
    a('s_nop 7')
    for z in range(12): a(z2(ACQ+2*z))
    a(f's_branch {T("p2ok")}')
    a.label(T('fin'))
    a('s_waitcnt lgkmcnt(0)')
    a(f's_add_u32 s{sKM}, s{sKM}, {32*4096:#x}')
    a(kput)
    if stamps or opt.get('timing', False):
        a('s_memtime s[60:61]'); a('s_memrealtime s[96:97]'); a('s_waitcnt lgkmcnt(0)')
        a('s_sub_u32 s92, s60, s92'); a('s_sub_u32 s93, s96, s94')
        a(f's_lshl_b32 s{sT0}, s5, 2'); a(f's_add_u32 s{sT0}, s{sT0}, s4'); a(f's_lshl_b32 s{sT0}, s{sT0}, 7'); a(f's_add_u32 s{sT0}, s{sT0}, {WS_DBG:#x}')
        vals = [92, 93, 94, 96, 90] + [sACC+i for i in range(16)] + [91] + ([70+2*i for i in range(9)] if opt.get('ustamp') else [])
        for i, s in enumerate(vals):
            a(f'v_mov_b32 v{VB}, s{s}')
            a(f'buffer_store_dword v{VB}, off, {WS}, s{sT0} offset:{4*i}')
    a('s_waitcnt vmcnt(0)')
    a('s_endpgm')

def wo_off(Tt, ks2, hf): return (Tt >> 2)*32768 + (ks2*2 + hf)*4096 + (Tt & 3)*1024

def team_setup(a, opt, hooks):
    if opt.get('ustamp'): a('s_memrealtime s[70:71]')
    load_srd(a, sA, 'Wq'); load_srd(a, sB, 'Wk'); load_srd(a, sC, 'Wv'); load_srd(a, sD, 'Wo')
    lane, c, g, t0, t1, va, vo, rA, rB, r8 = 100, 101, 102, 103, 104, 105, 106, 107, 109, 110
    a(f'v_and_b32 v{lane}, 63, v0')
    a(f'v_bfe_u32 v{t0}, v{lane}, 4, 1'); a(f'v_lshlrev_b32 v{vo}, 4, v{t0}')
    a(f'v_bfe_u32 v{t0}, v{lane}, 3, 1'); a(f'v_lshl_add_u32 v{vo}, v{t0}, 2, v{vo}')
    a(f'v_lshrrev_b32 v{t0}, 5, v{lane}'); a(f'v_add_u32 v{vo}, v{vo}, v{t0}')
    a(f'v_and_b32 v{t1}, 7, v{lane}'); a(f'v_lshlrev_b32 v{t1}, 4, v{t1}')
    a(f's_lshr_b32 s{sT2}, s4, 1'); a(f's_lshl_b32 s{sT0}, s5, 8'); a(f's_lshl_b32 s{sT1}, s{sT2}, 7'); a(f's_add_u32 s{sT0}, s{sT0}, s{sT1}')
    a(f'v_lshl_add_u32 v{va}, v{vo}, 13, v{t1}'); a(f'v_add_u32 v{va}, s{sT0}, v{va}')
    a(f's_lshl_b32 s{sW2}, s4, 20'); a(f's_and_b32 s{sW2}, s{sW2}, 0x100000')
    a(f's_lshl_b32 s{sTF}, s{sT2}, 16'); a(f's_and_b32 s{sT2}, s4, 1'); a(f's_lshl_b32 s{sT1}, s{sT2}, 14'); a(f's_add_u32 s{sTF}, s{sTF}, s{sT1}')
    a('s_waitcnt lgkmcnt(0)')
    units = []
    B0 = 24
    def qkv(S, dstf):
        for U in range(2):
            h = (len(units) & 1)*32768
            iss, rd, tr = [], [], []
            for j in range(2):
                for b in range(8):
                    iss += [f's_add_u32 m0, s{sTF}, {h + (j*8+b)*1024}', f's_xor_b32 s{sT1}, s{sW2}, {((4*U+j) << 19) + db(b)*8192:#x}',
                            f'buffer_load_dwordx4 v{va}, {srd(S)}, s{sT1} offen lds']
            for jj in range(4):
                for b in range(8):
                    r = B0 + (jj*8+b)*2; o = (h + ((jj & 1)*8+b)*1024) // 256
                    rd.append(f'ds_read2st64_b32 {vr(r,2)}, v{rB if jj >= 2 else rA} offset0:{o} offset1:{o+2}')
                    for t, sel in ((0, sPLO), (1, sPHI)):
                        kind, d = dstf(4*U+jj, t, b)
                        if kind == 'v': tr.append(f'v_perm_b32 v{d}, v{r+1}, v{r}, s{sel}')
                        else: tr += [f'v_perm_b32 v{124+t}, v{r+1}, v{r}, s{sel}', f'v_accvgpr_write_b32 a{d}, v{124+t}']
            units.append((iss, rd, tr))
    OUT = 112
    def wo():
        for cq in range(2):
            assert (len(units) & 1) == cq
            h = cq*32768
            iss, rd, tr = [], [], []
            for ks2 in range(2):
                for b in range(8):
                    sl = ks2*8 + b
                    iss += [f's_add_u32 m0, s{sTF}, {h + sl*1024}', f's_add_u32 s{sT1}, s{sHO}, {(64*ks2 + db(b))*1024 + cq*512:#x}',
                            f'buffer_load_dwordx4 v{vo}, {srd(sD)}, s{sT1} offen lds']
                    r = B0 + sl*4; o = (h + sl*1024) // 256
                    rd += [f'ds_read2st64_b32 {vr(r+2*pl,2)}, v{r8+pl} offset0:{o} offset1:{o+2}' for pl in range(2)]
                    tr += [f'v_perm_b32 v{OUT+4*i+(b&3)}, v{r+2*(i>>1)+1}, v{r+2*(i>>1)}, s{sPHI if i&1 else sPLO}' for i in range(4)]
                    if (b & 3) == 3:
                        tr += [f'ds_write_b128 v{WOB}, {vr(OUT+4*i,4)} offset:{wo_off(4*cq+i, ks2, b >> 2)}' for i in range(4)]
                        tr += ['s_waitcnt lgkmcnt(0)']
            units.append((iss, rd, tr))
    for ch in opt.get('worder', 'qkv'):
        if ch == 'q': qkv(sA, lambda k, t, b: ('a', (k*2+t)*8+b))
        if ch == 'k': qkv(sB, lambda k, t, b: ('a', 128+(k*2+t)*8+b))
        if ch == 'v': qkv(sC, lambda k, t, b: ('v', WV+(k*2+t)*8+b))
    wo()
    for U in range(2):
        for x in units[U][0]: a(x)
    a(f'v_and_b32 v{c}, 15, v{lane}'); a(f'v_lshrrev_b32 v{g}, 4, v{lane}'); a(f'v_lshlrev_b32 v{L16}, 4, v{lane}')
    a(f's_mov_b32 s{sPLO}, 0x05040100'); a(f's_mov_b32 s{sPHI}, 0x07060302')
    a(f's_lshl_b32 s{sHO}, s5, 17')
    a(f'v_add_u32 v{WOB}, s{sTF}, v{L16}')
    a(f'v_lshlrev_b32 v{rA}, 7, v{g}'); a(f'v_lshl_add_u32 v{rA}, v{c}, 2, v{rA}'); a(f's_lshl_b32 s{sT1}, s{sT2}, 6'); a(f's_add_u32 s{sT1}, s{sT1}, s{sTF}')
    a(f's_and_b32 s{sT1}, s{sT1}, 0xffffbfff')
    a(f'v_add_u32 v{rA}, s{sT1}, v{rA}'); a(f'v_add_u32 v{rB}, 0x4000, v{rA}')
    a(f'v_and_b32 v{r8}, 0xffffffe3, v{rA}'); a(f'v_and_b32 v{t0}, 1, v{c}'); a(f'v_lshl_add_u32 v{r8}, v{t0}, 4, v{r8}')
    a(f'v_and_b32 v{t0}, 6, v{c}'); a(f'v_lshl_add_u32 v{r8}, v{t0}, 1, v{r8}'); a(f'v_add_u32 v{r8+1}, 0x4000, v{r8}')
    a(f'v_lshl_add_u32 v{vo}, v{vo}, 10, v{t1}'); a(f's_lshl_b32 s{sT0}, s{sT2}, 8'); a(f's_lshr_b32 s{sT1}, s4, 1'); a(f's_lshl_b32 s{sT1}, s{sT1}, 7')
    a(f's_add_u32 s{sT0}, s{sT0}, s{sT1}'); a(f'v_add_u32 v{vo}, s{sT0}, v{vo}')
    tmp = (lane, c, g, t0, t1)
    young = hooks['pre'](a, tmp)
    for U in range(8):
        a(f's_waitcnt vmcnt({(16 if U < 7 else 0) + young})')
        if opt.get('ustamp'): a(f's_memrealtime s[{72+2*U}:{73+2*U}]')
        a('s_barrier')
        for x in units[U][1]: a(x)
        a('s_waitcnt lgkmcnt(0)')
        a('s_barrier')
        if U + 2 < 8:
            for x in units[U+2][0]: a(x)
        young = hooks[U](a, tmp) if U in hooks else 0
        for x in units[U][2]: a(x)

def stream(a, items, RING0, RN, maxload=60, older=0, hooks={}):
    n = len(items)
    pos = []; head = 0
    issued = 0; consumed = 0
    used = 0; infl = 0
    alloc = {}
    while consumed < n:
        while issued < n:
            iss, nl, nr, con = items[issued]
            h = head
            waste = 0
            if h + nr > RN: waste = RN - h; h = 0
            if used + waste + nr > RN or infl + nl > (maxload - older if consumed == 0 else maxload): break
            alloc[issued] = (h, waste + nr)
            for x in iss(RING0 + h): a(x)
            head = h + nr; used += waste + nr; infl += nl; issued += 1
        if consumed in hooks: hooks[consumed](a)
        iss, nl, nr, con = items[consumed]
        infl -= nl
        a(f's_waitcnt vmcnt({infl})')
        for x in con(RING0 + alloc[consumed][0]): a(x)
        used -= alloc[consumed][1]
        consumed += 1

def team_consts(a, tmp, RS=REP_ST):
    lane, c, g, t0, t1 = tmp
    a(f's_mov_b32 s{sPOI}, {POISON:#x}')
    scl = (128 ** -0.5) * math.log2(math.e)
    import struct
    a(f's_mov_b32 s{sSCL}, {struct.unpack("<I", struct.pack("<f", scl))[0]:#x}')
    a(f's_mov_b32 s{sHALF}, 0xcccccccc'); a(f's_mov_b32 s{sHALF+1}, 0xcccccccc')
    a(f's_mov_b32 s{sPEX}, 0x000f000f'); a(f's_mov_b32 s{sPEX+1}, 0x000f000f')
    a(f's_mov_b32 s{sEVEN}, 0x0000ffff'); a(f's_mov_b32 s{sEVEN+1}, 0x0000ffff')
    a(f'v_mov_b32 v{t0}, 0x4444'); a(f'v_mov_b32 v{t1}, 0xeeee')
    a(f'v_cndmask_b32 v{IDX}, v{t0}, v{t1}, s[{sHALF}:{sHALF+1}]')
    a(f's_lshl_b32 s{sM0}, s4, 11')
    a(f's_lshl_b32 s{sKS}, s4, 6')
    for r in range(4): a(f'v_mov_b32 v{POI4+r}, s{sPOI}')
    a(f's_lshl_b32 s{sT0}, s4, 16'); a(f's_lshl_b32 s{sT1}, s5, 6'); a(f's_add_u32 s{sT0}, s{sT0}, s{sT1}')
    a(f'v_lshrrev_b32 v{t0}, 3, v{lane}'); a(f'v_lshlrev_b32 v{t0}, 13, v{t0}')
    a(f'v_and_b32 v{t1}, 7, v{c}'); a(f'v_lshl_add_u32 v{t0}, v{t1}, 3, v{t0}'); a(f'v_add_u32 v{PST}, s{sT0}, v{t0}')
    a(f's_lshr_b32 s{sT0}, s5, 3'); a(f's_lshl_b32 s{sT0}, s{sT0}, 9'); a(f's_add_u32 s{sT0}, s{sT0}, s{sM0}')
    a(f's_and_b32 s{sT1}, s5, 1'); a(f's_lshl_b32 s{sT1}, s{sT1}, 8'); a(f's_add_u32 s{sT0}, s{sT0}, s{sT1}')
    a(f's_and_b32 s{sT1}, s5, 6'); a(f's_lshl_b32 s{sT1}, s{sT1}, 5'); a(f's_add_u32 s{sT0}, s{sT0}, s{sT1}')
    a(f'v_and_b32 v{t0}, 3, v{c}'); a(f'v_lshlrev_b32 v{t0}, 2, v{t0}'); a(f'v_lshl_add_u32 v{t0}, v{g}, 4, v{t0}'); a(f'v_add_u32 v{t0}, s{sT0}, v{t0}')
    a(f'v_and_b32 v{t1}, 1, v{c}')
    if RS: a(f'v_lshrrev_b32 v{PUB}, 2, v{c}'); a(f'v_mul_u32_u24 v{PUB}, {RS}, v{PUB}'); a(f'v_add_u32 v{PUB}, v{PUB}, v{t0}')
    else: a(f'v_mov_b32 v{PUB}, 0x7fffff00'); a(f'v_cmp_gt_u32 vcc, 4, v{c}'); a(f'v_cndmask_b32 v{PUB}, v{PUB}, v{t0}, vcc')
    a(f'v_mul_u32_u24 v{t0}, {2*XS}, v{g}'); a(f'v_lshl_add_u32 v{t0}, v{c}, 2, v{t0}'); a(f'v_add_u32 v{t0}, s{sKS}, v{t0}')
    a(f'v_add_u32 v{XW}, {L_QX}, v{t0}')
    mm = 108
    a(f'v_lshrrev_b32 v{mm}, 2, v{c}'); a(f'v_lshl_add_u32 v{mm}, v{mm}, 1, v{t1}')
    a(f'v_mul_u32_u24 v{t0}, {XS}, v{mm}'); a(f'v_add_u32 v{t0}, {L_QX}, v{t0}')
    a(f'v_lshl_add_u32 v{QR}, v{g}, 4, v{t0}')
    a(f'v_lshl_add_u32 v{OR_}, v{g}, 5, v{t0}'); a(f'v_and_b32 v{mm}, 2, v{c}'); a(f'v_lshl_add_u32 v{OR_}, v{mm}, 3, v{OR_}')
    a(f'v_mov_b32 v{t0}, 0x3f80'); a(f'v_lshlrev_b32 v{mm}, 4, v{t1}'); a(f'v_lshlrev_b32 v{t0}, v{mm}, v{t0}')
    a(f'v_lshrrev_b32 v{mm}, 1, v{c}')
    for r in range(4):
        a(f'v_cmp_eq_u32 vcc, {2*r}, v{mm}'); a(f'v_cndmask_b32 v{SELA+r}, 0, v{t0}, vcc')
    a(f'v_mov_b32 v{ONES}, 0x3f803f80'); a(f'v_mov_b32 v{ONES+1}, 0x3e803e80'); a(f'v_mov_b32 v{ONES+2}, 0x3f803f80'); a(f'v_mov_b32 v{ONES+3}, 0x3e803e80')
    a(f's_mov_b32 s{sSTEP}, 0')
    a(f's_mul_i32 s{sI3}, s4, {RS}'); a(f's_add_u32 s{sSLOT}, s{sI3}, {WS_SLOT:#x}'); a(f's_mov_b32 s{sSLOTN}, {WS_SLOT+SLOT_ST:#x}'); a(f's_mov_b32 s{sSLOTP}, {WS_SLOT+2*SLOT_ST:#x}')
    a(f's_mov_b32 s{sINB}, {WS_INB:#x}')
    a(f's_lshl_b32 s{sINB2}, s5, 13'); a(f's_add_u32 s{sINB2}, s{sINB2}, s{sM0}'); a(f's_add_u32 s{sINB2}, s{sINB2}, {WS_INB:#x}')
    a(f's_lshl_b32 s{sKV}, s5, 13'); a(f's_add_u32 s{sKV}, s{sKV}, {WS_KF:#x}')
    a(f's_lshl_b32 s{sKM}, s5, 12'); a(f's_lshl_b32 s{sT0}, s4, 10'); a(f's_add_u32 s{sKM}, s{sKM}, s{sT0}'); a(f's_add_u32 s{sKM}, s{sKM}, {WS_KM - 32*4096:#x}')
    a(f's_add_u32 s{sKV}, s{sKV}, s{sM0}')
    a(f's_lshr_b32 s{sT0}, s4, 1'); a(f's_lshl_b32 s{sT0}, s{sT0}, 5'); a(f's_add_u32 s{sMK}, s{sM0}, s{sT0}')
    a(f's_add_u32 s{sMV}, s{sM0}, {L_V}')

def team_init1(a, tmp):
    lane, c, g, t0, t1 = tmp
    WS = srd(sWS)
    load_srd(a, 64, 'mem0')
    for o in (0, 1024):
        a(f'buffer_store_dwordx4 {vr(POI4,4)}, v{L16}, {WS}, s{sINB2} offen offset:{o} sc1')
    a(f's_and_b32 s{sT0}, s5, 6'); a(f's_lshl_b32 s{sT0}, s{sT0}, 10'); a(f's_lshr_b32 s{sT1}, s5, 3'); a(f's_lshl_b32 s{sT1}, s{sT1}, 6')
    a(f's_add_u32 s{sT0}, s{sT0}, s{sT1}'); a(f's_lshl_b32 s{sT1}, s4, 8'); a(f's_add_u32 s{sT0}, s{sT0}, s{sT1}')
    a(f's_and_b32 s{sT1}, s5, 1'); a(f's_lshl_b32 s{sT1}, s{sT1}, 5'); a(f's_add_u32 s{sT0}, s{sT0}, s{sT1}')
    a(f'v_and_b32 v{t0}, 1, v{g}'); a(f'v_lshlrev_b32 v{t0}, 10, v{t0}'); a(f'v_and_b32 v{t1}, 3, v{c}'); a(f'v_lshl_add_u32 v{t0}, v{t1}, 2, v{t0}')
    a(f'v_lshrrev_b32 v{t1}, 1, v{g}'); a(f'v_lshl_add_u32 v{t0}, v{t1}, 4, v{t0}')
    a('s_waitcnt lgkmcnt(0)')
    a(f'buffer_load_dword v99, v{t0}, {srd(64)}, s{sT0} offen')
    a(f'buffer_store_dword v{POI4}, v{PUB}, {WS}, s{sSLOTN} offen sc1')
def team_init2(a):
    a(f's_mov_b32 s{sT0}, {WS_SLOT:#x}')
    a(f'buffer_store_dword v99, v{PUB}, {srd(sWS)}, s{sT0} offen sc1')

sAV = 7
def kv_addr(a, t):
    a(f'v_bfe_u32 v{t}, v{L16}, 4, 4'); a(f'v_min_u32 v{t}, 13, v{t}')
    a(f'v_cmp_lt_u32 vcc, 6, v{t}'); a(f'v_add_u32 v{t+1}, {16*7-7}, v{t}'); a(f'v_cndmask_b32 v{t}, v{t}, v{t+1}, vcc'); a(f'v_lshlrev_b32 v{t}, 2, v{t}')
    a(f's_lshr_b32 s{sT2}, s5, 1'); a(f's_mul_i32 s{sT2}, s{sT2}, 28')
def kv_issue(a, t): a(f'buffer_load_dword v{t+1}, v{t}, {srd(sWS)}, s{sT2} offen offset:{WS_PF} sc1')
def kv_eval(a, t):
    for rot in (8, 4, 2, 1): a(f'v_min_i32_dpp v{t+1}, v{t+1}, v{t+1} row_ror:{rot} row_mask:0xf bank_mask:0xf')
    a(f'v_readfirstlane_b32 s{sAV}, v{t+1}')
    a(f's_max_i32 s{sAV}, s{sAV}, 0'); a(f's_mul_i32 s{sAV}, s{sAV}, 7')
def kv_wait(a, tag, need_s, t):
    kv_addr(a, t)
    a(f's_mov_b32 s{sSPIN}, 0')
    a.label(tag)
    kv_issue(a, t)
    a('s_waitcnt vmcnt(0)')
    kv_eval(a, t)
    a(f's_add_u32 s{sSPIN}, s{sSPIN}, 1'); a(f's_cmp_ge_u32 s{sSPIN}, {SPIN_MAX}'); a('s_cbranch_scc1 L_fail')
    a(f's_cmp_ge_u32 s{need_s}, s{sAV}')
    a(f's_cbranch_scc1 {tag}')
    a(f's_mov_b32 s{sSPIN}, 0')

def team_first_issue(a, d):
    a(f's_mov_b32 s{sKB}, {L_K0}'); a(f's_mov_b32 s{sKD}, {L_K0}')
    for g in k_dma(False) + v_dma() + [[f's_mov_b32 s{sKD}, {L_K1}']] + k_dma():
        for x in g: a(x)
    a(f's_and_b32 s{sT2}, s5, 3'); a(f's_lshl_b32 s{sT2}, s{sT2}, 11'); a(f's_mul_i32 s{sT0}, s4, {SLOT_ST:#x}'); a(f's_add_u32 s{sT2}, s{sT2}, s{sT0}'); a(f's_add_u32 s{sT2}, s{sT2}, {WS_SLOT:#x}')
    a(f's_xor_b32 s{sT0}, s{sINB2}, 0x40000')
    for so in (sT2, sINB2, sT0):
        for o in (0, 1024): a(f'buffer_load_dwordx4 {vr(d,4)}, v{L16}, {srd(sWS)}, s{so} offen offset:{o} sc1')

def team_first_kv(a):
    for x in kx_addr(MEMF+21, MEMF+22): a(x)
    for z in range(12): a(z2(ACQ+2*z))
    a('s_waitcnt vmcnt(0)')
    a('s_barrier')
    a(f'v_add_u32 v{MEMF+23}, s{sMV}, v{L16}')
    for r in (VB+3, VB+7, VB+11, VB+15): a(f'v_mov_b32 v{r}, 0')
    for x in kv_reads(MEMF+21, MEMF+23): a(x)
    a(f's_mov_b32 s{sKB}, {L_K1}'); a(f's_mov_b32 s{sKD}, {L_K0}')
    a('s_waitcnt lgkmcnt(0)')
```

```python
import re

_REG = re.compile(r'^(-|abs\(|\|)?([vas])(?:\[(\d+):(\d+)\]|(\d+))\)?\|?$')

def regs_of(tok):
    tok = tok.strip()
    if tok in ('vcc',): return {('s', 'vcc')}
    if tok in ('vcc_lo', 'vcc_hi'): return {('s', 'vcc')}
    if tok in ('exec', 'exec_lo', 'exec_hi'): return {('s', 'exec')}
    if tok == 'm0': return {('s', 'm0')}
    m = _REG.match(tok)
    if not m: return set()
    k = m.group(2)
    if m.group(5) is not None: return {(k, int(m.group(5)))}
    return {(k, i) for i in range(int(m.group(3)), int(m.group(4)) + 1)}

TRANS = ('v_exp_f32', 'v_log_f32', 'v_rcp_f32', 'v_rsq_f32', 'v_sqrt_f32', 'v_sin_f32', 'v_cos_f32', 'v_rcp_iflag_f32')

class Ins:
    __slots__ = ('text', 'op', 'kind', 'wr', 'rd', 'srcC', 'AB', 'passes', 'states', 'dpp', 'trans', 'stdata', 'label', 'target', 'dtuple', 'ctuple')
    def __init__(self, text):
        self.text = text
        t = text.split(';')[0].strip()
        self.label = None; self.target = None
        self.wr = set(); self.rd = set(); self.srcC = set(); self.AB = set(); self.passes = 0
        self.states = 1; self.dpp = False; self.trans = False; self.stdata = set(); self.dtuple = None; self.ctuple = None
        if t.endswith(':'):
            self.label = t[:-1]; self.kind = 'label'; self.op = ''; self.states = 0; return
        if not t or t.startswith('.'):
            self.kind = 'dir'; self.op = ''; self.states = 0; return
        parts = t.split(None, 1)
        op = parts[0]; self.op = op
        rest = parts[1] if len(parts) > 1 else ''
        rest = re.sub(r'\s(op_sel|op_sel_hi|neg_lo|neg_hi):\[[^\]]*\]', '', rest)
        ops = [o.strip() for o in rest.split(',')] if rest else []
        mods = ''
        if ops:
            last = ops[-1].split(None, 1)
            ops[-1] = last[0] if last else ''
            mods = last[1] if len(last) > 1 else ''
        R = [regs_of(o) for o in ops]
        U = lambda l: set().union(*l) if l else set()
        if op == 's_nop':
            self.kind = 'salu'; self.states = int(ops[0], 0) + 1
        elif op.startswith('s_cbranch') or op == 's_branch':
            self.kind = 'branch'; self.target = ops[0]
        elif op.startswith('s_'):
            self.kind = 'salu'
            if op.startswith('s_cmp') or op.startswith('s_bitcmp') or op in ('s_waitcnt', 's_barrier', 's_endpgm', 's_sleep', 's_setprio'):
                self.rd = U(R)
            else:
                self.wr = R[0] if R else set(); self.rd = U(R[1:])
                if 'saveexec' in op: self.wr = self.wr | {('s', 'exec')}
        elif op.startswith('v_mfma') or op.startswith('v_smfmac'):
            self.kind = 'mfma'
            self.passes = 8 if '32x32' in op else 4
            self.wr = R[0]; self.dtuple = ops[0]
            if op.startswith('v_smfmac'):
                self.AB = R[1] | R[2] | R[3]; self.srcC = R[0]; self.ctuple = ops[0]
            else:
                self.AB = R[1] | R[2]; self.srcC = R[3]; self.ctuple = ops[3]
            self.rd = self.AB | self.srcC
        elif op.startswith('v_'):
            self.kind = 'valu'
            self.dpp = ('_dpp' in op) or ('row_' in mods) or ('quad_perm' in mods)
            base = op.replace('_e32', '').replace('_e64', '').replace('_dpp', '')
            self.trans = base in TRANS
            if base.startswith('v_permlane') and 'swap' in base:
                self.wr = R[0] | R[1]; self.rd = R[0] | R[1]
            elif base.startswith('v_add_co') or base.startswith('v_sub_co') or base.startswith('v_addc_co') or base.startswith('v_subb_co'):
                self.wr = R[0] | R[1]; self.rd = U(R[2:])
            else:
                self.wr = R[0]; self.rd = U(R[1:])
                if base.startswith('v_fmac') or base.startswith('v_dot2c') or self.dpp or base.startswith('v_writelane'):
                    self.rd = self.rd | R[0]
                if base.startswith('v_cmpx'): self.wr = self.wr | {('s', 'exec')}
        elif op.startswith('ds_'):
            self.kind = 'ds'
            if op.startswith('ds_read') or 'permute' in op or 'swizzle' in op:
                self.wr = R[0]; self.rd = U(R[1:])
            else:
                self.rd = U(R)
        elif op.startswith('global_') or op.startswith('buffer_'):
            self.kind = 'vmem'
            islds = ('_lds_' in op) or re.search(r'\blds\b', mods) is not None
            if islds:
                self.rd = U(R) | {('s', 'm0')}; self.kind = 'dma'
            elif '_load' in op:
                self.wr = R[0]; self.rd = U(R[1:])
                if 'd16' in op: self.rd = self.rd | R[0]
            elif '_atomic' in op:
                if op.startswith('global_') and 'sc0' in mods:
                    self.wr = R[0]; self.rd = U(R[1:])
                else:
                    self.rd = U(R)
                    if 'sc0' in mods: self.wr = R[0]
            elif '_store' in op:
                self.rd = U(R)
                if 'x3' in op or 'x4' in op:
                    self.stdata = R[0] if op.startswith('buffer_') else R[1]
            else:
                pass
        else:
            raise ValueError('unknown instruction: ' + text)

def isv(s): return {r for r in s if r[0] in 'va'}
def iss(s): return {r for r in s if r[0] == 's'}

def need(p, c):
    n = 0
    if p.kind == 'valu':
        w = isv(p.wr); sw = iss(p.wr)
        if c.kind == 'mfma' and (w & c.rd): n = max(n, 2)
        if c.kind == 'valu':
            if (c.op.startswith('v_permlane') or c.dpp) and (w & c.rd): n = max(n, 2)
            if (c.op.startswith('v_readlane') or c.op.startswith('v_readfirstlane')) and (w & c.rd): n = max(n, 1)
            if p.trans and not c.trans and (w & (c.rd | c.wr)): n = max(n, 1)
            crd = set(c.rd)
            if c.op.startswith('v_cndmask') and len(iss(c.rd)) == 0: crd.add(('s', 'vcc'))
            if sw & crd:
                n = max(n, 4 if (c.op.startswith('v_readlane') or c.op.startswith('v_writelane')) else 2)
            if ('s', 'exec') in sw: n = max(n, 5)
        if c.kind in ('vmem', 'dma') and (sw & c.rd): n = max(n, 5)
        if c.kind == 'mfma' and ('s', 'exec') in sw: n = max(n, 4)
        if c.kind in ('salu', 'branch') and (sw & c.rd): n = max(n, 1)
    if p.kind == 'mfma':
        big = 8 if p.passes == 4 else 12
        if c.kind == 'mfma':
            if p.wr & c.AB: n = max(n, big)
            if p.wr & c.srcC:
                if not (p.dtuple == c.ctuple and p.passes == c.passes): n = max(n, big - 2)
            elif p.wr & c.wr and not p.dtuple == c.dtuple: n = max(n, big - 2)
        elif c.kind in ('valu', 'ds', 'vmem', 'dma'):
            if p.wr & (c.rd | c.wr): n = max(n, big)
            if c.kind == 'valu' and (p.srcC & c.wr): n = max(n, 3 if p.passes == 4 else 7)
    if p.kind == 'vmem' and p.stdata:
        if p.stdata & c.wr: n = max(n, 2 if c.kind in ('valu', 'mfma') else 1)
    if p.kind == 'salu' and ('s', 'm0') in p.wr and c.kind == 'dma': n = max(n, 1)
    return n

class Asm:
    def __init__(self):
        self.lines = []
        self.uid = 0
    def __call__(self, text):
        for l in text.split('\n'):
            l = l.strip()
            if l: self.lines.append(l)
    def label(self, name): self.lines.append(name + ':')
    def newlabel(self, base='L'):
        self.uid += 1
        return f'{base}_{self.uid}'
    def nop(self, n):
        while n > 0:
            k = min(16, n); self.lines.append(f's_nop {k-1}'); n -= k

def pad(lines, verbose=False):
    ins = []
    W = 14
    added = 0
    for l in lines:
        if l.startswith(';'):
            continue
        c = Ins(l)
        if c.states or c.kind in ('label', 'dir'):
            if c.kind not in ('label', 'dir'):
                dist = 0; req = 0
                for p in reversed(ins):
                    if p.kind == 'branch' and p.op == 's_branch': break
                    if p.op == 's_endpgm': break
                    if p.states == 0: continue
                    n = need(p, c)
                    if n > dist: req = max(req, n - dist)
                    dist += p.states
                    if dist >= W: break
                if req:
                    ins.append(Ins(f's_nop {req-1}')); added += req
            ins.append(c)
    pos = {x.label: i for i, x in enumerate(ins) if x.label}
    for i, b in enumerate(ins):
        if b.kind != 'branch': continue
        if b.target not in pos: raise ValueError('unknown label ' + b.target)
        prods = []; dist = 0
        for p in reversed(ins[:i + 1]):
            if p is not b and p.kind == 'branch' and p.op == 's_branch': break
            if p.states == 0: continue
            prods.append((p, dist)); dist += p.states
            if dist >= W: break
        d2 = 0
        for c in ins[pos[b.target]:]:
            if c.states == 0: continue
            for p, d in prods:
                if p is b: continue
                n = need(p, c)
                if n > d + d2:
                    raise ValueError(f'hazard across branch {b.text}: {p.text} -> {c.text} need {n} have {d+d2}')
            d2 += c.states
            if d2 >= W or (c.kind == 'branch' and c.op == 's_branch') or c.op == 's_endpgm': break
    if verbose: print('nop states added', added)
    out = []
    for x in ins:
        out.append(x.text if x.kind in ('label', 'dir') else '    ' + x.text)
    return out

_LG = re.compile(r'lgkmcnt\((\d+)\)')
def auto_lgkm(lines):
    out = []
    q = []
    for l in lines:
        if l.startswith(';'):
            out.append(l); continue
        if l.startswith('waitl ') or l == 'waitw':
            r = regs_of(l.split()[1]) if l != 'waitw' else None
            idx = -1
            for i, x in enumerate(q):
                if (r is not None and x[0] & r) or (r is None and len(x) > 2): idx = i
            if idx >= 0:
                n = min(len(q) - 1 - idx, 15)
                out.append(f's_waitcnt lgkmcnt({n})'); q = q[len(q) - n:] if n else []
            continue
        c = Ins(l)
        if c.kind == 'label' or c.kind == 'branch':
            pend = [x for x in q if x[0]]
            if pend and 'keep' not in l:
                raise ValueError('pending LDS/SMEM results at ' + l + ' : ' + str(sorted(pend[0][0]))[:80])
            out.append(l); continue
        if c.kind == 'dir':
            out.append(l); continue
        if c.op == 's_waitcnt':
            m = _LG.search(l)
            if m:
                n = int(m.group(1))
                if n == 0: q = []
                elif not any(x[1] for x in q): q = q[len(q) - n:] if n < len(q) else q
            out.append(l); continue
        touched = c.rd | c.wr
        idx = -1
        for i, x in enumerate(q):
            if x[0] & touched: idx = i
        if idx >= 0:
            n = len(q) - 1 - idx
            if any(x[1] for x in q): n = 0
            n = min(n, 15)
            out.append(f's_waitcnt lgkmcnt({n})')
            q = q[len(q) - n:] if n else []
        if c.kind == 'ds' and c.op.startswith('ds_write'): q.append((set(), False, 'w'))
        elif c.kind == 'ds': q.append((set() if 'nowait' in l else set(c.wr), False))
        elif 'nowait' in l: pass
        elif c.op.startswith('s_load') or c.op.startswith('s_memtime') or c.op.startswith('s_memrealtime') or c.op.startswith('s_buffer_load'):
            q.append((set(c.wr), True))
        out.append(l)
    return out

def weave(a, mf, fill, start=0, per=2):
    fill = list(fill); k = 0
    for i, m in enumerate(mf):
        a(m)
        if i >= start:
            for _ in range(per):
                if k < len(fill): a(fill[k]); k += 1
    while k < len(fill): a(fill[k]); k += 1

def vr(b, n=1, f='v'):
    return f'{f}{b}' if n == 1 else f'{f}[{b}:{b+n-1}]'

def resolve_waitv(lines):
    out = []
    for l in lines:
        if l.startswith('waitv '):
            r = regs_of(l.split()[1]); k = 0
            for p in reversed(out):
                if p.startswith(';') or p.startswith('wait'): continue
                c = Ins(p)
                if c.kind == 'label' and 'keep' not in p: raise ValueError('waitv crosses label ' + p)
                if c.kind in ('vmem', 'dma'):
                    if c.wr & r: break
                    k += 1
            else: raise ValueError('waitv: no load')
            out.append(f's_waitcnt vmcnt({k})')
        elif l.startswith('waitm '):
            mk = '; ' + l.split()[1]; k = 0
            for p in reversed(out):
                if p.startswith(';') or p.startswith('wait'): continue
                if p.endswith(mk): break
                if Ins(p).kind in ('vmem', 'dma'): k += 1
            out.append(f's_waitcnt vmcnt({k})')
        else: out.append(l)
    return out
```

```python
import sys
from asmlib import *
from common import *
import team as TM
import worker as WK
NAME = 'gated_mix__memory_aug_recurrent_mem_tr__swiglu_ffn__prompt'

def spin_dbg(a, off, target, label, v=(60, 61), s=(60, 61), sleep=0):
    a(f'v_mov_b32 v{v[0]}, {off}')
    a(f's_mov_b32 s{s[0]}, 0')
    a.label(label)
    if sleep: a(f's_sleep {sleep}')
    a(f'buffer_load_dword v{v[1]}, v{v[0]}, {srd(sDBG)}, 0 offen sc1')
    a('s_waitcnt vmcnt(0)')
    a(f'v_readfirstlane_b32 s{s[1]}, v{v[1]}')
    a(f's_add_u32 s{s[0]}, s{s[0]}, 1')
    a(f's_cmp_ge_u32 s{s[0]}, {SPIN_MAX}')
    a('s_cbranch_scc1 L_fail')
    a(f's_cmp_lt_u32 s{s[1]}, {target}')
    a(f's_cbranch_scc1 {label}')

def spin_ready(a, label, v=(8, 9)): spin_dbg(a, DB_READY, 256, label, v=v, s=(60, 63))

def report(a, v):
    a(f's_mov_b32 s63, {DB_READY}'); a('s_cmp_eq_u32 s99, 0'); a('s_cselect_b32 s63, s63, 0x7fffff00'); a('s_mov_b32 s99, 1')
    a(f'v_mov_b32 v{v}, 1'); a('s_mov_b64 exec, 1')
    a(f'buffer_atomic_add v{v}, off, {srd(sDBG)}, s63'); a('s_mov_b64 exec, -1')

def wg_atomic_inc(a, off, tag, v=(60, 61)):
    a('s_waitcnt vmcnt(0)')
    a('s_barrier')
    a('s_cmp_lg_u32 s4, 0')
    a(f's_cbranch_scc1 {tag}')
    a(f'v_mov_b32 v{v[0]}, {off}'); a(f'v_mov_b32 v{v[1]}, 1')
    a('s_mov_b64 exec, 1')
    a(f'buffer_atomic_add v{v[1]}, v{v[0]}, {srd(sDBG)}, 0 offen')
    a('s_mov_b64 exec, -1')
    a.label(tag)

def build(opt):
    a = Asm()
    kn = opt.get('kname', NAME + '_kernel')
    a('s_cmp_ge_u32 s2, %d' % (0 if opt.get('empty') else 256))
    a('s_cbranch_scc1 L_exit')
    if opt.get('timing') or opt.get('stamps'):
        a('s_memrealtime s[90:91]')
    load_srd(a, sWS, 'ws'); load_srd(a, sDBG, 'dbg'); load_srd(a, sA, 'Wq'); load_srd(a, sB, 'Wo')
    a('s_getreg_b32 s3, hwreg(HW_REG_XCC_ID, 0, 3)')
    a('v_lshrrev_b32 v1, 6, v0')
    a('v_readfirstlane_b32 s4, v1')
    if opt.get('fake_xcc'):
        a(f's_mul_hi_u32 s3, s2, {-(-(1 << 32)//31):#x}'); a('s_min_u32 s3, s3, 7')
    def cnt_off(a, d, x):
        a(f's_lshl_b32 s{d}, s{x}, 2'); a(f's_add_u32 s{d}, s{d}, 128'); a(f's_cmp_eq_u32 s{x}, 0'); a(f's_cselect_b32 s{d}, 0, s{d}')
    cnt_off(a, 6, 3)
    a(f'v_mov_b32 v2, s6'); a('v_mov_b32 v3, 1'); a(f'v_mov_b32 v4, {LDS_MISC}')
    a('v_mov_b64 v[8:9], 0'); a('v_mov_b64 v[10:11], 0'); a('v_lshlrev_b32 v5, 4, v0'); a('s_lshl_b32 s7, s2, 6')
    a('s_waitcnt lgkmcnt(0)')
    if opt.get('team_only'):
        a('s_cmp_lg_u32 s3, 0'); a('s_cbranch_scc1 L_exit')
    a('s_mov_b32 s99, s4')
    a('s_cmp_lg_u32 s4, 0')
    a('s_cbranch_scc1 L_hint')
    a('s_mov_b64 exec, 1')
    a(f'buffer_atomic_add v3, v2, {srd(sDBG)}, 0 offen sc0')
    if not opt.get('dev'):
        a('s_mov_b64 exec, 15')
        a(f'buffer_store_dwordx4 v[8:11], v5, {srd(sWS)}, s7 offen sc1')
        a('s_mov_b64 exec, 1')
    a('s_barrier')
    a('s_waitcnt vmcnt(0)')
    a('ds_write_b32 v4, v3')
    a('s_waitcnt lgkmcnt(0)')
    a('s_mov_b64 exec, -1')
    a('s_branch L_tk')
    a.label('L_hint')
    a('v_and_b32 v12, 63, v0'); a('v_lshlrev_b32 v12, 7, v12'); a('s_lshr_b32 s40, s2, 3')
    a('s_barrier')
    a('s_cmp_lg_u32 s3, 0'); a('s_cbranch_scc1 L_h1')
    a('s_sub_u32 s41, s4, 1'); a('s_lshl_b32 s41, s41, 5'); a('s_add_u32 s41, s41, s40'); a('s_lshl_b32 s41, s41, 13')
    for i in range(opt.get('npf', 3)):
        a(f'buffer_load_dword v250, v12, {srd(sA)}, s41 offen'); a(f's_add_u32 s41, s41, {96*8192:#x}')
    a('s_branch L_h2')
    a.label('L_h1')
    if opt.get('mall', True):
        a('s_lshl_b32 s41, s2, 14'); a('s_add_u32 s42, s41, 0x2000')
        a('s_cmp_eq_u32 s4, 1'); a('s_cbranch_scc1 L_m1')
        a('s_cmp_eq_u32 s4, 3'); a('s_cbranch_scc1 L_h2')
        a(f'buffer_load_dword v250, v12, {srd(sB)}, s41 offen'); a(f'buffer_load_dword v250, v12, {srd(sB)}, s42 offen')
        a('s_branch L_h2')
        a.label('L_m1')
        a(f'buffer_load_dword v250, v12, {srd(sA)}, s41 offen'); a(f'buffer_load_dword v250, v12, {srd(sA)}, s42 offen')
    a.label('L_h2')
    if opt.get('cpf', True):
        a('s_cmp_lg_u32 s4, 3'); a('s_cbranch_scc1 L_tk')
        a(f's_cmp_ge_u32 s40, NCHUNK'); a('s_cbranch_scc1 L_tk')
        a('s_getpc_b64 s[42:43]')
        a('s_and_b32 s42, s42, 0xffffff00')
        a('s_lshl_b32 s40, s40, 13'); a('v_add_u32 v12, s40, v12')
        a('global_load_dword v251, v12, s[42:43]')
    a.label('L_tk')
    a('s_barrier')
    a('ds_read_b32 v3, v4')
    a('v_readfirstlane_b32 s5, v3')
    a('s_cmp_ge_u32 s5, 32')
    a('s_cbranch_scc1 L_over')
    a.label('L_role')
    a('s_cmp_lg_u32 s3, 0')
    a('s_cbranch_scc1 L_worker')
    if opt.get('no_team'): a('s_endpgm')
    def wave0_inc(a, off):
        a(f's_mov_b32 s63, {off}'); a('s_cmp_eq_u32 s4, 0'); a(f's_cselect_b32 s63, s63, 0x7fffff00')
        a('v_mov_b32 v98, 1'); a('s_mov_b64 exec, 1')
        a(f'buffer_atomic_add v98, off, {srd(sDBG)}, s63'); a('s_mov_b64 exec, -1')
    def h0(a, tmp):
        TM.team_consts(a, tmp, opt.get('rs', REP_ST)); TM.team_init1(a, tmp); return 4
    def h1(a, tmp):
        TM.team_init2(a)
        report(a, 98)
        return 2
    def h3(a, tmp):
        wave0_inc(a, DB_TEAMRDY)
        return 1
    def h4(a, tmp):
        a(f'buffer_load_dword v88, off, {srd(sDBG)}, 0 offset:{DB_READY} sc1'); return 1
    def ask(a):
        TM.kv_addr(a, 96); TM.kv_issue(a, 96)
        a(f'buffer_load_dwordx4 v[92:95], off, {srd(sDBG)}, 0 sc1')
    def judge(a, tag):
        TM.kv_eval(a, 96)
        a('v_readfirstlane_b32 s61, v92'); a('v_readfirstlane_b32 s63, v93')
        a('s_cmp_ge_u32 s63, 32'); a('s_cselect_b32 s62, s60, 0')
        a(f's_cmp_ge_u32 s{TM.sAV}, 3'); a('s_cselect_b32 s62, s62, 0')
        a('s_cmp_eq_u32 s62, 0'); a(f's_cbranch_scc1 {tag}')
        TM.team_first_issue(a, 88)
    def h5(a, tmp):
        a('v_readfirstlane_b32 s63, v88')
        a(f's_cmp_ge_u32 s63, {0 if opt.get("dev") else 256}'); a('s_cselect_b32 s60, 1, 0')
        ask(a)
    def h6(a, tmp):
        judge(a, 'L_h6n')
        a('s_branch L_h6e')
        a.label('L_h6n')
        ask(a)
        a.label('L_h6e')
        if opt.get('rel', 6) == 6: wave0_inc(a, DB_TEAMLD)
        return 0
    def h7(a, tmp):
        if opt.get('rel', 6) == 7: wave0_inc(a, DB_TEAMLD)
        a('s_cmp_eq_u32 s62, 1'); a('s_cbranch_scc1 L_hc')
        judge(a, 'L_hc')
        a.label('L_hc')
        return 0
    if opt.get('ej', 0):
        TM.team_setup(a, opt, {'pre': h0, 1: h1, 3: lambda a, tmp: h3(a, tmp) + h4(a, tmp), ('b', 5): h5, 6: h6, 7: h7})
    else:
        def hw(a, tmp): TM.team_warm(a, 120); return 8
        def g6(a, tmp):
            h5(a, tmp); a('s_mov_b32 s62, 0')
            if opt.get('rel', 6) == 6: wave0_inc(a, DB_TEAMLD); return 1
            return 0
        hk = {'pre': h0, 1: h1, 3: h3, 4: h4, 6: g6, 7: h7}
        wu = opt.get('wu', 4)
        if wu == 4: hk[4] = lambda a, tmp: h4(a, tmp) + hw(a, tmp)
        else: hk[3] = lambda a, tmp: h3(a, tmp) + hw(a, tmp)
        TM.team_setup(a, opt, hk)
    if opt.get('timing') or opt.get('stamps'):
        a('s_memrealtime s[92:93]'); a('s_waitcnt lgkmcnt(0)'); a('s_lshl_b32 s91, s92, 1'); a('s_add_u32 s91, s91, s62')
    V2 = (TM.MEMF+24, TM.MEMF+25)
    a('s_cmp_eq_u32 s62, 1'); a('s_cbranch_scc1 L_pre')
    spin_dbg(a, DB_TEAMRDY, 32, 'L_trw', v=V2)
    if not opt.get('dev'): spin_ready(a, 'L_rdw', v=V2)
    a(f's_mov_b32 s{TM.sT1}, 2')
    TM.kv_wait(a, 'T_kv0', TM.sT1, TM.MEMF+24)
    TM.team_first_issue(a, 88)
    spin_dbg(a, 0, 0, 'L_tc', v=V2)
    a.label('L_pre')
    TM.team_first_kv(a)
    if opt.get('force_slow'):
        TM.team(a, 'sc1', 'S', opt)
    else:
        a('s_cmp_lt_u32 s61, 32'); a('s_cbranch_scc1 L_tslow')
        TM.team(a, '', 'T', opt)
        a.label('L_tslow')
        if opt.get('noslow'): a('s_endpgm')
        else: TM.team(a, 'sc1', 'S', opt)
    a.label('L_over')
    a('s_barrier')
    a('s_cmp_lg_u32 s4, 0'); a('s_cbranch_scc1 L_ov1')
    a(f'v_mov_b32 v2, {DB_OVF}'); a('v_mov_b32 v3, 1'); a('s_mov_b64 exec, 1')
    a(f'buffer_atomic_add v3, v2, {srd(sDBG)}, 0 offen sc0')
    a('s_waitcnt vmcnt(0)')
    a('ds_write_b32 v4, v3'); a('s_waitcnt lgkmcnt(0)'); a('s_mov_b64 exec, -1')
    a.label('L_ov1')
    a('s_barrier')
    a('ds_read_b32 v3, v4')
    a('v_readfirstlane_b32 s7, v3')
    report(a, 7)
    spin_ready(a, 'L_ov2')
    a('s_mov_b32 s3, 0')
    a.label('L_ov3')
    cnt_off(a, 6, 3)
    a('v_mov_b32 v8, s6')
    a(f'buffer_load_dword v9, v8, {srd(sDBG)}, 0 offen sc1'); a('s_waitcnt vmcnt(0)')
    a('v_readfirstlane_b32 s5, v9')
    a('s_min_u32 s5, s5, 32'); a('s_add_u32 s5, s5, s7')
    a('s_cmp_lt_u32 s5, 32'); a('s_cbranch_scc1 L_role')
    a('s_sub_u32 s7, s5, 32')
    a('s_add_u32 s3, s3, 1'); a('s_cmp_lt_u32 s3, 8'); a('s_cbranch_scc1 L_ov3')
    a('s_branch L_fail')
    a.label('L_worker')
    a('s_sub_u32 s6, s3, 1'); a('s_lshl_b32 s6, s6, 5'); a('s_add_u32 s6, s6, s5')
    def ready_wait(a, tag):
        if not opt.get('dev'): spin_ready(a, tag)
    WK.WST[0] = bool(opt.get('timing') or opt.get('stamps'))
    if WK.WST[0]:
        a('s_lshl_b32 s60, s6, 7'); a(f's_add_u32 s60, s60, {WS_DBG + 0x8000:#x}')
        a('v_mov_b32 v8, s90')
        a(f'buffer_store_dword v8, off, {srd(sWS)}, s60')
    def pause(a, tag):
        if opt.get('pause', True) and not opt.get('dev'): spin_dbg(a, DB_TEAMLD, 32, tag, v=(8, 9), sleep=8)
    WK.PAUSE[0] = pause
    WK.REPORT[0] = report
    WK.OPT.clear(); WK.OPT.update(opt)
    if not opt.get('no_p1'): WK.phase1(a, ready_wait)
    cnt_off(a, 60, 3)
    a('v_mov_b32 v8, s60')
    a(f'buffer_load_dword v9, v8, {srd(sDBG)}, 0 offen sc1'); a('s_waitcnt vmcnt(0)')
    a('v_readfirstlane_b32 s7, v9')
    a('s_cmp_ge_u32 s7, 32'); a(f's_cselect_b32 s7, {0 if opt.get("force_slow") else 1}, 0')
    if not opt.get('no_p2'): WK.phase2(a, opt)
    WK.wstamp(a, 15)
    a('s_waitcnt vmcnt(0)')
    a('s_endpgm')
    a.label('L_fail')
    a('s_mov_b64 exec, 1')
    a(f'v_mov_b32 v1, {DB_ERR}'); a('v_mov_b32 v2, 1')
    a(f'buffer_atomic_add v2, v1, {srd(sDBG)}, 0 offen')
    a('s_waitcnt vmcnt(0)')
    a.label('L_exit')
    a('s_endpgm')
    body = pad(auto_lgkm(resolve_waitv(a.lines)), verbose=opt.get('verbose', False))
    n_ins = sum(1 for l in body if l.startswith('    '))
    nchunk = 2 if opt.get('noslow') else opt.get('nchunk', 9)
    body = [l.replace('NCHUNK', str(nchunk)) for l in body]
    hdr = [f'; @launch grid=(256,1,1) block=(256,1,1) lds=163840',
           '.amdgcn_target "amdgcn-amd-amdhsa--gfx950"', '.text', f'.globl {kn}', '.p2align 8', f'.type {kn},@function', f'{kn}:']
    ftr = ['.section .rodata,"a"', '.p2align 6', f'.amdhsa_kernel {kn}', '  .amdhsa_next_free_vgpr 512', '  .amdhsa_next_free_sgpr 100',
           '  .amdhsa_accum_offset 256', '  .amdhsa_group_segment_fixed_size 0', '  .amdhsa_kernarg_size 120', '  .amdhsa_user_sgpr_count 2',
           '  .amdhsa_user_sgpr_kernarg_segment_ptr 1', '  .amdhsa_system_sgpr_workgroup_id_x 1', '  .amdhsa_float_denorm_mode_32 3', '.end_amdhsa_kernel']
    return '\n'.join(hdr + body + ftr) + '\n'

if __name__ == '__main__':
    opt = eval(sys.argv[2]) if len(sys.argv) > 2 else {}
    open(sys.argv[1], 'w').write(build(opt))
```

```python
from asmlib import *
from common import *
import math
L_WO, L_K0 = 0, 131072
L_K1 = L_K0 + 8192 + 64
L_QX = L_K1 + 8192 + 64
XS = 288; XSZ = 2304
L_V = L_QX + 3*XSZ
assert L_V + 8192 <= LDS_MISC and L_V % 16 == 0
L16, IDX, POI4 = 0, 1, 2
PST, PUB, XW, QR, OR_, WOB, V4 = range(6, 13)
VMP = V4+2
SELA, ONES, VB, MEMF, KX, ACQ, ACK, ACV = 16, 20, 24, 40, 72, 104, 112, 120
KMR = VB+2
QF = KX
WV = 128
sHALF, sEVEN, sPOI, sPLO, sPHI, sSCL = 32, 34, 36, 37, 38, 39
sSTEP, sSLOT, sSLOTN, sSLOTP, sINB, sINBO, sKV, sKM, sMK, sSPIN, sT0, sT1, sT2, sKS, sTF, sM0, sINB2, sMV, sW2, sHO = range(40, 60)
sKB, sP1, sKD = sTF, sW2, sHO
sI1, sI2, sI3 = 37, 38, 6
sPEX = 88
sFO = 68
sACC = 16
def db(b): return 32*(b >> 2) + 8*(b & 1) + 2*((b >> 1) & 1)
def smf(d, A, B, f='v'): return f'v_smfmac_f32_16x16x64_bf16 {vr(d,4)}, {vr(A,4)}, {vr(B,8,f)}, v{IDX}'
def mf(d, A, B, C='0'): return f'v_mfma_f32_16x16x32_bf16 {vr(d,4)}, {vr(A,4)}, {vr(B,4)}, {C}'
def z2(r): return f'v_mov_b64 {vr(r,2)}, 0'

def slots(a, mfl, plan):
    for i, m in enumerate(mfl):
        a(m)
        fl = plan.pop(i, [])
        for x in fl:
            if not x.startswith('v_') and not x.startswith('>'): a(x)
        for x in fl:
            if x.startswith('v_'): a(x)
        for x in fl:
            if x.startswith('>'): a(x[1:])
    assert not plan, plan

HM = [0]
def heat(a, n, r):
    for i in range(n):
        if HM[0] == 1: a(smf(MEMF+28, KX, 8*(i % 32), 'a'))
        elif HM[0] == 2: a('s_nop 3')
        else: a(f'v_mov_b32 v{r}, v{r}'); a('s_nop 2')

def kx_addr(t0, t1):
    return [f'v_and_b32 v{t0}, 0x310, v{L16}', f'v_and_b32 v{t1}, 0x60, v{L16}', f'v_lshl_add_u32 v{t0}, v{t1}, 1, v{t0}',
            f'v_bfe_u32 v{t1}, v{L16}, 7, 1', f'v_mul_u32_u24 v{t1}, {4096+32}, v{t1}', f'v_add3_u32 v{t0}, v{t0}, v{t1}, s{sKB}']
def kv_reads(t0, MR):
    r = [f'ds_read_b128 {vr(KX+4*j,4)}, v{t0} offset:{(j&3)*1024 + (j>>2)*32}' for j in range(8)]
    r += [f'ds_read_b64 {vr(VB+8*t+4*u,2)}, v{MR} offset:{t*1024 + u*8}' for t in (0, 1) for u in (0, 1)]
    return r
def v_dma():
    WS = srd(sWS)
    return [[f's_mov_b32 m0, s{sMV}', f's_add_u32 s{sT2}, s{sKV}, {WS_VF - WS_KF:#x}'],
            [f'buffer_load_dwordx4 v{L16}, {WS}, s{sT2} offen sc1 lds'],
            [f'buffer_load_dwordx4 v{L16}, {WS}, s{sT2} offen offset:1024 sc1 lds ; vdma']]
def k_dma(adv=True):
    WS = srd(sWS)
    return [[f's_add_u32 m0, s{sMK}, s{sKD}', f's_add_u32 s{sKV}, s{sKV}, {32*8192 if adv else 0:#x}'],
            [f'buffer_load_dwordx4 v{L16}, {WS}, s{sKV} offen sc1 lds'],
            [f'buffer_load_dwordx4 v{L16}, {WS}, s{sKV} offen offset:1024 sc1 lds']]
def xa_set(): return [f's_add_u32 s{sP1}, s{sSLOT}, 0x1000']

DEFAULTS = dict(merge=True, nq=0, qa=(35,35,35,35,36,36,37), ka=(37,37,37,37,38,38,39), b2=43, b3=47, kp=33, vd=(34,36), nops=(33,), fp=41,
                lat=(-1,-1,-1,2,5,8), da=(13,14,18,21,22,26), zb=5, h4b=0, po=(24,30), stp=(11,23,35,47,55), pa0=(0,0,0,0,1,1,2), zin=(1,2,3,3,6,6,7,7))
def team(a, sf, tag, opt):
    opt = {**DEFAULTS, **opt}
    HM[0] = opt.get('hm', 0)
    if sf != '' or opt.get('shared'): return team1(a, sf, tag, opt, None)
    for w in range(3):
        a(f's_cmp_eq_u32 s4, {w}'); a(f's_cbranch_scc1 {tag}_full{w}')
    for w in (3, 0, 1, 2):
        if w < 3: a.label(f'{tag}_full{w}')
        o = dict(opt); o.update(opt.get('pw', {}).get(w, {}))
        for k, v in opt.get('stag', {}).items():
            base = o[k]
            o[k] = tuple(x + v*w for x in base) if isinstance(base, tuple) else base + v*w
        team1(a, sf, f'{tag}{w}', o, w)

def team1(a, sf, tag, opt, only):
    stamps = opt.get('stamps', False)
    nstep = opt.get('nstep', 64)
    NST = 14
    def st(i): return [f'{"s_memrealtime" if opt.get("raw") else "s_memtime"} s[{60+2*i}:{61+2*i}] ; nowait'] if stamps else []
    def stamp(i):
        for x in st(i): a(x)
    HT = VB+14
    def stamp_acc():
        if stamps and not opt.get('lacc'):
            a('s_waitcnt lgkmcnt(0)')
            for i in range(NST):
                prev = 98 if i == 0 else 60+2*(i-1)
                if opt.get('raw'):
                    a(f's_cmp_eq_u32 s{sSTEP}, {opt["raw"] + (1 if i < 2 else 0)}')
                    a(f's_cselect_b32 s{sACC+i}, s{60+2*i}, s{sACC+i}')
                else:
                    a(f's_sub_u32 s99, s{60+2*i}, s{prev}')
                    a(f's_add_u32 s{sACC+i}, s{sACC+i}, s99')
                if i % 2 == 0: a(f'v_mov_b32 v{HT}, v{HT}')
            a(f's_mov_b32 s98, s{60+2*(NST-1)}')
    T = lambda n: f'{tag}_{n}'
    WS = srd(sWS)
    IB = MEMF+8; RA = MEMF+16; IT = MEMF+20
    p2 = [f'buffer_load_dwordx4 {vr(MEMF,4)}, v{L16}, {WS}, s{sSLOT} offen sc1',
          f'buffer_load_dwordx4 {vr(MEMF+4,4)}, v{L16}, {WS}, s{sSLOT} offen offset:1024 sc1']
    p1 = [f'buffer_load_dwordx4 {vr(IB,4)}, v{L16}, {WS}, s{sINB2} offen sc1',
          f'buffer_load_dwordx4 {vr(IB+4,4)}, v{L16}, {WS}, s{sINB2} offen offset:1024 sc1']
    def check2():
        b, t = MEMF, VB+10
        a(f'v_max3_u32 v{t}, v{b}, v{b+1}, v{b+2}')
        a(f'v_max3_u32 v{t}, v{t}, v{b+3}, v{b+4}')
        a(f'v_max3_u32 v{t}, v{t}, v{b+5}, v{b+6}')
        a(f'v_max_u32 v{t}, v{t}, v{b+7}')
        a(f'v_cmp_eq_u32 vcc, s{sPOI}, v{t}')
    def redtail():
        for rot in (4, 8):
            for r in range(2): a(f'v_add_f32_dpp v{RA+r}, v{RA+r}, v{RA+r} row_ror:{rot} row_mask:0xf bank_mask:0xf')
        a(f'v_cvt_pk_bf16_f32 v{IT+4}, v{RA}, v{RA+1}')
    def check1():
        t = IT
        a(f'v_max3_u32 v{t}, v{IB}, v{IB+1}, v{IB+2}')
        a(f'v_max3_u32 v{t}, v{t}, v{IB+3}, v{IB+4}')
        a(mf(RA, SELA, IB))
        a(f'v_max3_u32 v{t}, v{t}, v{IB+5}, v{IB+6}')
        a(f'v_max_u32 v{t}, v{t}, v{IB+7}')
        a(mf(RA, SELA, IB+4, vr(RA,4)))
        a(f'v_cmp_eq_u32 vcc, s{sPOI}, v{t}')
        if opt.get('spec', 1): redtail()
    def sample(name, loads, chk, depth, cnt, fill, warm=None, extra=0):
        for i in range(depth - 1):
            for x in loads: a(x)
            fill(i)
        a(T(name) + ': ; keep')
        for x in loads: a(x)
        if warm: a(warm)
        if stamps: a(f's_add_u32 s{sACC+cnt}, s{sACC+cnt}, 1')
        a(f's_add_u32 s{sSPIN}, s{sSPIN}, 1')
        a(f's_cmp_ge_u32 s{sSPIN}, {SPIN_MAX}')
        a('s_cbranch_scc1 L_fail ; keep')
        a(f's_waitcnt vmcnt({len(loads)*(depth-1) + extra})')
        chk()
        a(f's_cbranch_vccnz {T(name)} ; keep')
        a(T(name + 'ok') + ': ; keep')
    if stamps or opt.get('timing', False):
        for i in range(16): a(f's_mov_b32 s{sACC+i}, 0')
        a('s_memtime s[92:93]'); a('s_memrealtime s[94:95]'); a('s_waitcnt lgkmcnt(0)'); a('s_mov_b32 s98, s92')
        for i in range(14 if stamps else 0): a(f's_mov_b32 s{60+2*i}, s92')
    a(f's_mov_b32 s{sSPIN}, 0')
    for x in p2: a(x)
    for x in xa_set(): a(x)
    a('s_waitcnt vmcnt(0)')
    a(T('p2ok') + ': ; keep')
    eb = opt.get('eb', 2)
    Q = lambda k, t: smf(ACQ+4*t, MEMF+4*k, (k*2+t)*8, 'a')
    K = lambda k, t: smf(ACK+4*t, MEMF+4*k, 128+(k*2+t)*8, 'a')
    V = lambda k, t: smf(ACV+4*t, MEMF+4*k, WV+(k*2+t)*8)
    own = [Q(0,0), Q(0,1), Q(1,0), Q(1,1), K(0,0), K(0,1), K(1,0), K(1,1), V(0,0), V(0,1), V(1,0), V(1,1)]
    nq = opt.get('nq', 0)
    qk_ = [f(k, t) for k in range(2, 8-nq) for f in (Q, K) for t in (0, 1)] + [f(k, t) for f in (Q, K) for k in range(8-nq, 8) for t in (0, 1)]
    first = {k: 12 + qk_.index(Q(k, 0)) for k in range(2, 8)}
    vr_ = [V(k, t) for k in range(2, 8) for t in (0, 1)]
    S0, S1, SM, P = ACQ, ACQ+4, ACK, ACK+4
    xs = []
    for j in range(4):
        xs.append(mf(S0, KX+4*j, MEMF+4*j, '0' if j == 0 else vr(S0,4)))
        xs.append(mf(S1, KX+16+4*j, MEMF+4*j, '0' if j == 0 else vr(S1,4)))
    ms = [mf(SM, MEMF+16+4*j, MEMF+4*j, '0' if j == 0 else vr(SM,4)) for j in range(4)]
    M = own + qk_ + vr_ + xs + ms
    mld = lambda k: f'buffer_load_dwordx4 {vr(MEMF+4*k,4)}, v{L16}, {WS}, s{sP1 if k >= 4 else sSLOT} offen offset:{(k&3)*1024} sc1'
    def pk(ac): return [f'v_add_f32 v{ac}, v{ac}, v{ac+2}', f'v_add_f32 v{ac+1}, v{ac+1}, v{ac+3}',
                        f'v_add_f32 v{ac+4}, v{ac+4}, v{ac+6}', f'v_add_f32 v{ac+5}, v{ac+5}, v{ac+7}',
                        f'v_cvt_pk_bf16_f32 v{ac+2}, v{ac}, v{ac+4}', f'v_cvt_pk_bf16_f32 v{ac+3}, v{ac+1}, v{ac+5}']
    def xw(ac, off): return [f'ds_write_b32 v{XW}, v{ac+2} offset:{off}', f'ds_write_b32 v{XW}, v{ac+3} offset:{off+XS}']
    plan = {}
    def put(i, *xs_): plan.setdefault(i, []).extend(xs_)
    lat = opt.get('lat', (-1, -1, 0, 3, 6, 9))
    for k in range(2, 2+eb): a(mld(k))
    a(T('p2go') + ': ; keep')
    stamp(0)
    for k in range(2+eb, 8):
        if lat[k-2] < 0: a(mld(k))
        else: put(lat[k-2], mld(k))
    a('s_waitcnt lgkmcnt(1)')
    put(1, 's_waitcnt lgkmcnt(0)')
    da = opt.get('da', (13, 14, 16, 17, 18, 20)); po = opt.get('po', (24, 30)); kp = opt.get('kp', 46); fp = opt.get('fp', 27)
    CT = VB+10
    for k in range(2, 8):
        u = first[k] - 1
        put(u, f'waitv v{MEMF+4*k}')
        b = MEMF+4*k
        put(u+1, f'v_max_u32 v{CT}, v{b}, v{b+1}' if k == 2 else f'v_max3_u32 v{CT}, v{CT}, v{b}, v{b+1}')
        put(u+2, f'v_max3_u32 v{CT}, v{CT}, v{b+2}, v{b+3}')
    vd = opt.get('vd', (34, 36))
    assert vd[0] > first[7] + 1
    put(vd[0], f'v_cmp_eq_u32 vcc, s{sPOI}, v{CT}')
    put(vd[1], f's_cbranch_vccnz {T("redo")} ; keep')
    put(opt['stp'][0], *['>'+x for x in st(1)])
    kput = f'buffer_store_dwordx4 {vr(V4,4)}, v{L16}, {WS}, s{sKM} offen sc1'
    put(6, f'v_mov_b32 v{KMR}, v{QR}')
    put(7, f'v_mov_b32_dpp v{KMR}, v{QR} row_shl:4 row_mask:0xf bank_mask:0x2')
    put(9, f'v_mov_b32_dpp v{KMR}, v{QR} row_shr:4 row_mask:0xf bank_mask:0x4')
    put(0, f's_xor_b32 s{sINBO}, s{sINB2}, 0x40000')
    put(3, f's_add_u32 s{sI1}, s{sINB}, 0x1000')
    kd = k_dma()
    kd[0][1] = f's_add_u32 s{sI2}, s{sKV}, {32*8192:#x}'
    kd = [[x.replace(f's{sKV} offen', f's{sI2} offen') for x in g] for g in kd]
    put(42, f's_mov_b32 s{sKV}, s{sI2}')
    for n, xs_ in enumerate(v_dma() + kd): put(da[n], *xs_)
    assert (da[5] < da[0] or da[3] > da[2])
    pst = [f'buffer_store_dwordx4 {vr(POI4,4)}, v{L16}, {WS}, s{sINBO} offen offset:{o} {sf}' for o in (0, 1024)]
    for n in range(2):
        if po[n] < 60: put(po[n], pst[n])
    put(fp, f'buffer_store_dword v{POI4}, v{PUB}, {WS}, s{sSLOTP} offen {sf}')
    put(kp, kput)
    for i in opt.get('lwm', ()): put(i, f'ds_read_b32 v{VB+2}, v{XW} ; nowait')
    put(opt['stp'][1], *['>'+x for x in st(2)])
    put(opt['stp'][2], *['>'+x for x in st(3)])
    qa = opt.get('qa', (35, 35, 36, 36, 37, 37, 38))
    for n, x in enumerate(pk(ACQ)): put(qa[n], x)
    put(qa[6], *xw(ACQ, 0))
    for i in opt.get('nops', (27, 28, 35)): put(i, 's_nop 1')
    assert qa[6] >= vd[1]
    b2 = opt.get('b2', 42)
    if not opt.get('merge'): put(b2, 's_waitcnt lgkmcnt(0)', 's_barrier')
    qrd = [f'ds_read_b128 {vr(MEMF+4*j,4)}, v{QR} offset:{j*64}' for j in range(4)]
    k0 = opt.get('k0', 39)
    ka = opt.get('ka', tuple(k0+n for n in range(7)))
    pkk = pk(ACK)[:4] + [f'v_cvt_pk_bf16_f32 v{V4}, v{ACK}, v{ACK+4}', f'v_cvt_pk_bf16_f32 v{V4+1}, v{ACK+1}, v{ACK+5}']
    for n, x in enumerate(pkk): put(ka[n], x)
    put(ka[6], *xw(V4-2, XSZ))
    assert kp < ka[4]
    if opt.get('merge'): put(b2, 's_waitcnt lgkmcnt(0)', 's_barrier')
    put(b2, qrd[0]); put(b2+1, qrd[1], qrd[2]); put(b2+2, qrd[3])
    put(opt['stp'][3], *['>'+x for x in st(4)])
    b3 = opt.get('b3', 49)
    if not opt.get('merge'): put(b3, 's_waitcnt lgkmcnt(0)', 's_barrier')
    kmr = [f'ds_read_b128 {vr(MEMF+16+4*j,4)}, v{KMR} offset:{XSZ + j*64}' for j in range(4)]
    put(b3, kmr[0]); put(b3+1, kmr[1], kmr[2]); put(b3+2, kmr[3])
    ac = ACV
    fv = [f'v_add_f32 v{ac}, v{ac}, v{ac+2}', f'v_add_f32 v{ac+1}, v{ac+1}, v{ac+3}',
          f'v_add_f32 v{ac+4}, v{ac+4}, v{ac+6}', f'v_add_f32 v{ac+5}, v{ac+5}, v{ac+7}',
          f'v_cvt_pk_bf16_f32 v{VMP}, v{ac}, v{ac+1}', f'v_cvt_pk_bf16_f32 v{VMP+1}, v{ac+4}, v{ac+5}',
          f'v_cndmask_b32 v{VB+2}, 0, v{VMP}, s[{sEVEN}:{sEVEN+1}]', f'v_cndmask_b32 v{VB+6}, v{VMP}, 0, s[{sEVEN}:{sEVEN+1}]',
          f'v_cndmask_b32 v{VB+10}, 0, v{VMP+1}, s[{sEVEN}:{sEVEN+1}]', f'v_cndmask_b32 v{VB+14}, v{VMP+1}, 0, s[{sEVEN}:{sEVEN+1}]']
    fa = opt.get('fa', (50, 50, 51, 51, 52, 52, 53, 54, 55, 55))
    for x, i in zip(fv, fa): put(i, x)
    put(opt['stp'][4], *['>'+x for x in st(5)])
    order = [(2*ph + t, ks2) for ph in range(4) for ks2 in (0, 1) for t in (0, 1)]
    bufs = ([KX+8*b for b in range(4)] + [MEMF+8*b for b in range(4)]) * 2
    def word(n):
        return [f'ds_read_b128 {vr(bufs[n]+4*hf,4)}, v{WOB} offset:{wo_off(order[n][0], order[n][1], hf)}' for hf in range(2)]
    w2, w3, w4, w5 = word(0), word(1), word(2), word(3)
    put(52, w2[0]); put(53, w4[0]); put(54, w2[1]); put(55, w4[1]); put(56, w3[0]); put(57, w5[0]); put(58, w3[1]); put(59, w5[1])
    put(55, 's_waitcnt lgkmcnt(3)')
    put(56, z2(ACV), z2(ACV+2)); put(57, z2(ACV+4), z2(ACV+6))
    put(58, f'v_max3_f32 v{P}, v{S0}, v{S0+1}, v{S0+2}', f'v_max3_f32 v{P+1}, v{S1}, v{S1+1}, v{S1+2}')
    put(46, f's_cmp_eq_u32 s{sSTEP}, {nstep-1}')
    put(49, 's_waitcnt lgkmcnt(4)')
    fin_at = 54
    put(max(fa[4], fa[5]) + 1, f's_cbranch_scc1 {T("fin")} ; keep')
    if opt.get('akv', 0) and not stamps:
        put(2, f's_load_dwordx8 s[16:23], s[8:9], s{sFO} glc ; nowait')
        put(4, f's_load_dwordx8 s[24:31], s[8:9], s{sFO+1} glc ; nowait')
    if stamps and opt.get('lacc'):
        seq = list(range(2, 14)) + [0, 1]
        put(12, 's_waitcnt lgkmcnt(0)')
        for n, i in enumerate(seq):
            prev = 98 if n == 0 else 60+2*seq[n-1]
            if opt.get('raw'): put(13 + n*10//14, f's_cmp_eq_u32 s{sSTEP}, {opt["raw"]}', f's_cselect_b32 s{sACC+i}, s{60+2*i}, s{sACC+i}')
            else: put(13 + n*10//14, f's_sub_u32 s99, s{60+2*i}, s{prev}', f's_add_u32 s{sACC+i}, s{sACC+i}, s99')
        put(23, f's_mov_b32 s98, s62')
    drop = opt.get('drop', [])
    for i, m in enumerate(M):
        slots(a, [m], {0: [x for x in plan.pop(i, []) if not any(d in x for d in drop)]})
    assert not plan
    pre = word(4) + word(5) + word(6) + word(7)
    M0, M1 = SM+2, SM+3
    LS, O = SM, ACV
    ex = [S0, S0+1, S0+2, S0+3, SM, SM+1]
    sm = [f'v_max3_f32 v{P}, v{P}, v{S0+3}, v{S1+3}', f'v_max_f32 v{P}, v{P}, v{P+1}']
    sm += [f'v_cndmask_b32 v{S0+r}, v{S0+r}, v{S1+r}, s[{sHALF}:{sHALF+1}]' for r in range(4)]
    sm += [f'v_max3_f32 v{M0}, v{P}, v{SM}, v{SM+1}', f'v_max3_f32 v{M1}, v{P}, v{SM}, v{SM+1}',
           f'v_permlane32_swap_b32 v{M0}, v{M1}', f'v_max_f32 v{P}, v{M0}, v{M1}', f'v_max_f32 v{P+1}, v{M0}, v{M1}',
           f'v_permlane16_swap_b32 v{P}, v{P+1}', f'v_max_f32 v{M0}, v{P}, v{P+1}', f'v_mul_f32 v{M0}, s{sSCL}, v{M0}']
    sm += [f'v_fma_f32 v{r}, v{r}, s{sSCL}, -v{M0}' for r in ex]
    sm += [f'v_exp_f32 v{r}, v{r}' for r in ex]
    sm += [f'v_cvt_pk_bf16_f32 v{P}, v{S0}, v{S0+1}', f'v_cvt_pk_bf16_f32 v{P+2}, v{S0+2}, v{S0+3}',
           f'v_cvt_pk_bf16_f32 v{P+1}, v{SM}, v{SM+1}', f'v_cvt_pk_bf16_f32 v{P+3}, v{SM}, v{SM+1}']
    sm += [mf(LS, P, ONES), smf(O, P, VB), smf(O+4, P, VB+8)]
    sm += [f'v_add_f32 v{LS}, v{LS}, v{LS+2}', f'v_add_f32 v{LS+1}, v{LS+1}, v{LS+3}', f'v_rcp_f32 v{LS}, v{LS}', f'v_rcp_f32 v{LS+1}, v{LS+1}',
           f'v_pk_add_f32 {vr(O,2)}, {vr(O,2)}, {vr(O+2,2)}', f'v_pk_add_f32 {vr(O+4,2)}, {vr(O+4,2)}, {vr(O+6,2)}',
           f'v_pk_mul_f32 {vr(O,2)}, {vr(O,2)}, {vr(LS,2)}', f'v_pk_mul_f32 {vr(O+4,2)}, {vr(O+4,2)}, {vr(LS,2)}',
           f'v_cvt_pk_bf16_f32 v{O+2}, v{O}, v{O+4}', f'v_cvt_pk_bf16_f32 v{O+3}, v{O+1}, v{O+5}']
    pp = list(opt.get('pp', (7, 10, 29, 30, 31, 31, 32, 32)))
    bp = opt.get('bp', 42)
    n99 = pp.count(99)
    def sm_emit(lo, hi):
        for n in range(lo, hi):
            if n == 6: stamp(6)
            if n == 30: stamp(7)
            a(sm[n])
            for r, q in zip(pre, pp):
                if q == n: a(r)
    sm_emit(0, bp+1)
    def sm_rest():
        sm_emit(bp+1, len(sm))
        for x in xw(O, 2*XSZ): a(x)
        for r, q in zip(pre, pp):
            if q == 99: a(r)
        stamp(8)
    PW = opt.get('pw', {})
    DEF = [dict(er=(14,), n1=2, g1=5, d2=0, n2=3, g2=4), dict(d1=0, n1=2, g1=1, pre=2), dict(d1=0, n1=2, g1=7, pre=1), dict(d1=3, n1=2, g1=7, pre=1)]
    def tailcode(w, gopt):
        nonlocal plan
        opt = dict(gopt); opt.update(DEF[w]); opt.update(PW.get(w, {}))
        if bp < len(sm) - 1 and w < 3: a.nop(max(0, opt.get('bn', 4) - 2*w))
        sm_rest()
        PA = [VB, VB+8, ACQ, ACK]
        if po[0] == 60: a(pst[0])
        zb = opt.get('zb', 4)
        zin = opt.get('zin', (0, 0, 1, 1, 2, 2, 3, 3))
        zs = [z2(VB+2*z) for z in range(4)] + [z2(ACK+2*z) for z in range(4)] + [z2(VB+8+2*z) for z in range(4)] + [z2(ACQ+2*z) for z in range(4)]
        zi = zs[16-len(zin):]; zs = zs[:16-len(zin)]
        for x in zs[:zb]: a(x)
        a(f's_waitcnt lgkmcnt({n99})')
        a('s_barrier')
        OA = ACV
        a(f'ds_read_b128 {vr(OA,4)}, v{OR_} offset:{2*XSZ}')
        a(f'ds_read_b128 {vr(OA+4,4)}, v{OR_} offset:{2*XSZ+128}')
        for r, q in zip(pre, pp):
            if q == 100: a(r)
        if po[1] == 61: a(pst[1])
        for x in zs[zb:]: a(x)
        heat(a, opt.get('h4b', 1), VB)
        if opt.get('s9') is None: stamp(9)
        W = [smf(PA[n >> 2]+4*(order[n][0] & 1), OA+4*order[n][1], bufs[n]) for n in range(16)]
        plan = {}
        for x, i in zip(zi, zin): put(i, x)
        if opt.get('s9') is not None: put(opt['s9'], *['>'+x for x in st(9)])
        rd = [x for n in range(8, 16) for x in word(n)]
        at = opt.get('at', [0, 0, 1, 1, 2, 3, 3, 4, 5, 5, 6, 7, 8, 8, 9, 10])
        for n, (x, i) in enumerate(zip(rd, at)):
            assert i >= n // 2
            put(i, x)
        pstore = lambda ph: f'buffer_store_dwordx2 {vr(PA[ph]+2,2)}, v{PST}, {WS}, s{sI1 if ph >= 2 else sINB} offen offset:{(ph&1)*2048} {sf}'
        er = opt.get('er', ())
        for e in er:
            if e < 16: put(e, *[x + f' ; r{e}' for x in p1])
        pa = opt.get('pa', (0, 1, 1, 2, 3, 3, 4))
        pa0 = opt.get('pa0', pa)
        tail = []
        for ph in range(3):
            for x, r in zip(pk(PA[ph]) + [pstore(ph)], pa0 if ph == 0 else pa):
                if 4*(ph+1) + r <= 15: put(4*(ph+1) + r, x)
                else: tail.append(x)
        for i in opt.get('ww', (7, 9, 11, 13)):
            need_n = 2*(i+2-8) + 2
            issued = sum(1 for x in at if x <= i)
            put(i, f's_waitcnt lgkmcnt({issued - need_n})')
        put(0, f's_waitcnt lgkmcnt({sum(1 for x in at if x == 0) + pp.count(100)})')
        slots(a, W, plan)
        if 16 in er:
            for x in p1: a(x + ' ; r16')
        late = [x for x in tail if opt.get('l2') and x.startswith('buffer_store')]
        for x in tail:
            if x not in late: a(x)
        if 17 in er:
            for x in p1: a(x + ' ; r17')
        p = PA[3]
        a(f'v_pk_add_f32 {vr(p,2)}, {vr(p,2)}, {vr(p+2,2)}'); a(f'v_pk_add_f32 {vr(p+4,2)}, {vr(p+4,2)}, {vr(p+6,2)}')
        for x in pk(p)[4:]: a(x)
        if 18 in er:
            for x in p1: a(x + ' ; r18')
        a.nop(opt.get('l2n', 0))
        for x in late: a(x)
        a(pstore(3))
        stamp(10)
        kvr = kv_reads(IT+1, IT+3)
        work = kx_addr(IT+1, IT+2)
        zv = [f'v_add_u32 v{IT+3}, s{sMV}, v{L16}'] + [f'v_mov_b32 v{r}, 0' for r in (VB+3, VB+7, VB+11, VB+15)]
        for z in range(12): work += [kvr[z], z2(ACQ+2*z)] if z < 8 else [z2(ACQ+2*z)]
        nb = opt.get('w0', 12) if er else opt.get('w1', 26)
        sc = [f's_add_u32 s{sSTEP}, s{sSTEP}, 1', f's_xor_b32 s{sT0}, s{sSLOTN}, {2*SLOT_ST:#x}',
              f's_mov_b32 s{sSLOTN}, s{sSLOTP}', f's_mov_b32 s{sSLOTP}, s{sT0}', f's_xor_b32 s{sINB}, s{sINB}, 0x40000',
              f's_add_u32 s{sKM}, s{sKM}, {32*4096:#x}', f's_mov_b32 s{sSPIN}, 0',
              f's_mov_b32 s{sKD}, s{sKB}', f's_sub_u32 s{sKB}, {L_K0 + L_K1}, s{sKB}'] + xa_set()
        a(f's_mov_b32 s{sSLOT}, s{sSLOTN}')
        def part_a():
            for x in work[nb:]: a(x)
            for x in zv: a(x)
            a('waitm vdma' if only is not None else 's_waitcnt vmcnt(4)')
            for x in kvr[8:]: a(x)
        def part_b():
            a(f'v_add_u32 v{HT}, {L_QX + 2*XSZ}, v{L16}')
            for x in sc: a(x)
            a(f's_add_u32 s{sT1}, s{sSTEP}, 2')
            a(f's_cmp_ge_u32 s{sT1}, s{sAV}')
            a(f's_cbranch_scc1 {T("kvw%d" % w)} ; keep')
            a(T('kvo%d' % w) + ': ; keep')
        pre_ = opt.get('pre', 0)
        stamp(11)
        if er:
            def fill(i):
                if i == 0:
                    for x in work[:nb]: a(x)
                if i == opt['n1'] - 2:
                    for e in er[opt.get('ec', 0):]:
                        a(f'waitm r{e}')
                        check1()
                        a(f's_cbranch_vccz {T("s1w%dok" % w)} ; keep')
                elif i: heat(a, opt['g1'], IT)
        else:
            for x in work[:nb]: a(x)
            if pre_ == 1: part_a(); part_b()
            heat(a, opt.get('d1', 0), IT)
            def fill(i):
                if pre_ == 2 and i == 0: part_a(); part_b()
                heat(a, opt['g1'], IT)
        sample('s1w%d' % w, p1, check1, opt['n1'], 14, fill)
        if not opt.get('spec', 1): redtail()
        a(f'buffer_store_dword v{IT+4}, v{PUB}, {WS}, s{sSLOT} offen {sf}')
        a(f's_xor_b32 s{sINB2}, s{sINB2}, 0x40000')
        stamp(12)
        if not opt.get('s13'): stamp(13)
        dl = opt.get('dl', 0)
        if w == 0:
            if dl: a(f's_mov_b32 m0, {L_QX + 2*XSZ}')
            parts = [part_a, part_b, stamp_acc]
            pre_n = opt.get('pn', 1)
            for f in parts[:pre_n]: f()
            parts = parts[pre_n:]
            heat(a, opt.get('d2', 0), VB+6)
            def fill2(i):
                if parts and (parts[0] is not stamp_acc or stamps): parts.pop(0)()
                else: heat(a, opt['g2'], VB+6)
                if i == opt['n2'] - 2:
                    while parts: parts.pop(0)()
                    if dl: a('s_waitcnt lgkmcnt(0)')
            if dl:
                p2d = p2 + [f'buffer_load_dwordx4 v{L16}, {WS}, s{sSLOT} offen offset:{o} sc1 lds' for o in (0, 1024)]
                def chk2():
                    check2()
                    a(f's_waitcnt vmcnt({4*(opt["n2"]-1)})')
                sample('s2', p2d, chk2, opt['n2'], 15, fill2, extra=2)
                a('s_barrier')
                for k in range(2, 2+eb): a(mld(k))
            else:
                def chk2():
                    check2()
                    if opt.get('spec2', 0):
                        a(f'ds_write_b128 v{HT}, {vr(MEMF,4)}')
                        a(f'ds_write_b128 v{HT}, {vr(MEMF+4,4)} offset:1024')
                sample('s2', p2, chk2, opt['n2'], 15, fill2)
                if opt.get('s13'): stamp(13)
                if eb: a('s_barrier')
                if not opt.get('spec2', 0):
                    a(f'ds_write_b128 v{HT}, {vr(MEMF,4)}')
                    a(f'ds_write_b128 v{HT}, {vr(MEMF+4,4)} offset:1024')
                for k in range(2, 2+eb): a(mld(k))
                a('s_waitcnt lgkmcnt(0)')
                a('s_barrier')
        else:
            if not pre_: part_a(); part_b()
            stamp_acc()
            if opt.get('series') and w == 1:
                a('s_memrealtime s[60:61]'); a(f's_lshl_b32 s62, s5, 8'); a(f's_lshl_b32 s63, s{sSTEP}, 2'); a('s_add_u32 s62, s62, s63'); a(f's_add_u32 s62, s62, {WS_DBG+0x10000:#x}')
                a(f'v_mov_b32 v{VB+6}, s60'); a(f'buffer_store_dword v{VB+6}, off, {WS}, s62')
            a('s_waitcnt lgkmcnt(0)')
            if opt.get('s13'): stamp(13)
            if eb and not dl:
                a('s_barrier')
                for k in range(2, 2+eb): a(mld(k))
            a('s_barrier')
            a(f'ds_read_b128 {vr(MEMF,4)}, v{HT}')
            a(f'ds_read_b128 {vr(MEMF+4,4)}, v{HT} offset:1024')
            if dl:
                for k in range(2, 2+eb): a(mld(k))
        a(f's_branch {T("p2go")} ; keep')
        a('s_waitcnt lgkmcnt(0)')
        a.label(T('kvw%d' % w))
        kv_wait(a, T('kvl%d' % w), sT1, MEMF+24)
        a(f's_branch {T("kvo%d" % w)}')
    if only is not None:
        tailcode(only, opt)
    else:
        for w in range(3):
            a(f's_cmp_eq_u32 s4, {w}'); a(f's_cbranch_scc1 {T("w%d" % w)} ; keep')
        tailcode(3, opt)
        for w in range(3):
            a('s_waitcnt lgkmcnt(0)')
            a.label(T('w%d' % w)); tailcode(w, opt)
    a('s_waitcnt lgkmcnt(0)')
    a.label(T('redo'))
    if stamps: a(f's_add_u32 s{sACC+15}, s{sACC+15}, 0x10000')
    a(f's_add_u32 s{sSPIN}, s{sSPIN}, 1'); a(f's_cmp_ge_u32 s{sSPIN}, {SPIN_MAX}'); a('s_cbranch_scc1 L_fail')
    a('s_nop 7')
    for z in range(12): a(z2(ACQ+2*z))
    a(f's_branch {T("p2ok")}')
    a.label(T('fin'))
    a('s_waitcnt lgkmcnt(0)')
    a(f's_add_u32 s{sKM}, s{sKM}, {32*4096:#x}')
    a(kput)
    if stamps or opt.get('timing', False):
        a('s_memtime s[60:61]'); a('s_memrealtime s[96:97]'); a('s_waitcnt lgkmcnt(0)')
        a('s_sub_u32 s92, s60, s92'); a('s_sub_u32 s93, s96, s94')
        a(f's_lshl_b32 s{sT0}, s5, 2'); a(f's_add_u32 s{sT0}, s{sT0}, s4'); a(f's_lshl_b32 s{sT0}, s{sT0}, 7'); a(f's_add_u32 s{sT0}, s{sT0}, {WS_DBG:#x}')
        vals = [92, 93, 94, 96, 90] + [sACC+i for i in range(16)] + [91] + ([70+2*i for i in range(9)] if opt.get('ustamp') else [])
        for i, s in enumerate(vals):
            a(f'v_mov_b32 v{VB}, s{s}')
            a(f'buffer_store_dword v{VB}, off, {WS}, s{sT0} offset:{4*i}')
    a('s_waitcnt vmcnt(0)')
    a('s_endpgm')

def wo_off(Tt, ks2, hf): return (Tt >> 2)*32768 + (ks2*2 + hf)*4096 + (Tt & 3)*1024

def team_setup(a, opt, hooks):
    if opt.get('ustamp'): a('s_memrealtime s[70:71]')
    load_srd(a, sA, 'Wq'); load_srd(a, sB, 'Wk'); load_srd(a, sC, 'Wv'); load_srd(a, sD, 'Wo')
    lane, c, g, t0, t1, va, vo, rA, rB, r8 = 100, 101, 102, 103, 104, 105, 106, 107, 109, 110
    a(f'v_and_b32 v{lane}, 63, v0')
    a(f'v_bfe_u32 v{t0}, v{lane}, 4, 1'); a(f'v_lshlrev_b32 v{vo}, 4, v{t0}')
    a(f'v_bfe_u32 v{t0}, v{lane}, 3, 1'); a(f'v_lshl_add_u32 v{vo}, v{t0}, 2, v{vo}')
    a(f'v_lshrrev_b32 v{t0}, 5, v{lane}'); a(f'v_add_u32 v{vo}, v{vo}, v{t0}')
    a(f'v_and_b32 v{t1}, 7, v{lane}'); a(f'v_lshlrev_b32 v{t1}, 4, v{t1}')
    if opt.get('swz', 1): a(f'v_and_b32 v{t0}, 8, v{lane}'); a(f'v_lshlrev_b32 v{t0}, 3, v{t0}'); a(f'v_xor_b32 v{t1}, v{t1}, v{t0}')
    a(f's_lshr_b32 s{sT2}, s4, 1'); a(f's_lshl_b32 s{sT0}, s5, 8'); a(f's_lshl_b32 s{sT1}, s{sT2}, 7'); a(f's_add_u32 s{sT0}, s{sT0}, s{sT1}')
    a(f'v_lshl_add_u32 v{va}, v{vo}, 13, v{t1}'); a(f'v_add_u32 v{va}, s{sT0}, v{va}')
    a(f's_lshl_b32 s{sW2}, s4, 20'); a(f's_and_b32 s{sW2}, s{sW2}, 0x100000')
    a(f's_lshl_b32 s{sTF}, s{sT2}, 16'); a(f's_and_b32 s{sT2}, s4, 1'); a(f's_lshl_b32 s{sT1}, s{sT2}, 14'); a(f's_add_u32 s{sTF}, s{sTF}, s{sT1}')
    a('s_waitcnt lgkmcnt(0)')
    units = []
    B0 = 24
    def qkv(S, dstf):
        for U in range(2):
            h = (len(units) & 1)*32768
            iss, rd, tr = [], [], []
            for j in range(2):
                for b in range(8):
                    iss += [f's_add_u32 m0, s{sTF}, {h + (j*8+b)*1024}', f's_xor_b32 s{sT1}, s{sW2}, {((4*U+j) << 19) + db(b)*8192:#x}',
                            f'buffer_load_dwordx4 v{va}, {srd(S)}, s{sT1} offen {opt.get("wf", "")} lds']
            for jj in range(4):
                for b in range(8):
                    r = B0 + (jj*8+b)*2; o = (h + ((jj & 1)*8+b)*1024) // 256
                    rd.append(f'ds_read2st64_b32 {vr(r,2)}, v{rB if jj >= 2 else rA} offset0:{o} offset1:{o+2}')
                    for t, sel in ((0, sPLO), (1, sPHI)):
                        kind, d = dstf(4*U+jj, t, b)
                        if kind == 'v': tr.append(f'v_perm_b32 v{d}, v{r+1}, v{r}, s{sel}')
                        else: tr += [f'v_perm_b32 v{124+t}, v{r+1}, v{r}, s{sel}', f'v_accvgpr_write_b32 a{d}, v{124+t}']
            units.append((iss, rd, tr))
    OUT = 112
    def wo():
        for cq in range(2):
            assert (len(units) & 1) == cq
            h = cq*32768
            iss, rd, tr = [], [], []
            for ks2 in range(2):
                for b in range(8):
                    sl = ks2*8 + b
                    iss += [f's_add_u32 m0, s{sTF}, {h + sl*1024}', f's_add_u32 s{sT1}, s{sHO}, {(64*ks2 + db(b))*1024 + cq*512:#x}',
                            f'buffer_load_dwordx4 v{vo}, {srd(sD)}, s{sT1} offen {opt.get("wf", "")} lds']
                    r = B0 + sl*4; o = (h + sl*1024) // 256
                    rd += [f'ds_read2st64_b32 {vr(r+2*pl,2)}, v{r8+pl} offset0:{o} offset1:{o+2}' for pl in range(2)]
                    ob = OUT if sl < 4 else B0 + (sl//4 - 1)*16
                    tr += [f'v_perm_b32 v{ob+4*i+(b&3)}, v{r+2*(i>>1)+1}, v{r+2*(i>>1)}, s{sPHI if i&1 else sPLO}' for i in range(4)]
                    if (b & 3) == 3:
                        tr += [f'ds_write_b128 v{WOB}, {vr(ob+4*i,4)} offset:{wo_off(4*cq+i, ks2, b >> 2)}' for i in range(4)]
            tr += ['s_waitcnt lgkmcnt(0)']
            units.append((iss, rd, tr))
    for ch in opt.get('worder', 'qkv'):
        if ch == 'q': qkv(sA, lambda k, t, b: ('a', (k*2+t)*8+b))
        if ch == 'k': qkv(sB, lambda k, t, b: ('a', 128+(k*2+t)*8+b))
        if ch == 'v': qkv(sC, lambda k, t, b: ('v', WV+(k*2+t)*8+b))
    wo()
    for U in range(2):
        for x in units[U][0]: a(x)
    a(f'v_and_b32 v{c}, 15, v{lane}'); a(f'v_lshrrev_b32 v{g}, 4, v{lane}'); a(f'v_lshlrev_b32 v{L16}, 4, v{lane}')
    a(f's_mov_b32 s{sPLO}, 0x05040100'); a(f's_mov_b32 s{sPHI}, 0x07060302')
    a(f's_lshl_b32 s{sHO}, s5, 17')
    a(f'v_add_u32 v{WOB}, s{sTF}, v{L16}')
    a(f'v_lshlrev_b32 v{rA}, 7, v{g}'); a(f'v_lshl_add_u32 v{rA}, v{c}, 2, v{rA}'); a(f's_lshl_b32 s{sT1}, s{sT2}, 6'); a(f's_add_u32 s{sT1}, s{sT1}, s{sTF}')
    a(f's_and_b32 s{sT1}, s{sT1}, 0xffffbfff')
    a(f'v_add_u32 v{rA}, s{sT1}, v{rA}')
    if opt.get('swz', 1): a(f'v_and_b32 v{t0}, 1, v{g}'); a(f'v_lshlrev_b32 v{t0}, 6, v{t0}'); a(f'v_xor_b32 v{rA}, v{rA}, v{t0}')
    a(f'v_add_u32 v{rB}, 0x4000, v{rA}')
    a(f'v_and_b32 v{r8}, 0xffffffe3, v{rA}'); a(f'v_and_b32 v{t0}, 1, v{c}'); a(f'v_lshl_add_u32 v{r8}, v{t0}, 4, v{r8}')
    a(f'v_and_b32 v{t0}, 6, v{c}'); a(f'v_lshl_add_u32 v{r8}, v{t0}, 1, v{r8}'); a(f'v_add_u32 v{r8+1}, 0x4000, v{r8}')
    a(f'v_lshl_add_u32 v{vo}, v{vo}, 10, v{t1}'); a(f's_lshl_b32 s{sT0}, s{sT2}, 8'); a(f's_lshr_b32 s{sT1}, s4, 1'); a(f's_lshl_b32 s{sT1}, s{sT1}, 7')
    a(f's_add_u32 s{sT0}, s{sT0}, s{sT1}'); a(f'v_add_u32 v{vo}, s{sT0}, v{vo}')
    tmp = (lane, c, g, t0, t1)
    young = hooks['pre'](a, tmp)
    for U in range(8):
        a(f's_waitcnt vmcnt({(16 if U < 7 else 0) + young})')
        if opt.get('ustamp'): a(f's_memrealtime s[{72+2*U}:{73+2*U}]')
        a('s_barrier')
        for x in units[U][1]: a(x)
        a('s_waitcnt lgkmcnt(0)')
        a('s_barrier')
        if ('b', U) in hooks: hooks[('b', U)](a, tmp)
        if U + 2 < 8:
            for x in units[U+2][0]: a(x)
        young = hooks[U](a, tmp) if U in hooks else 0
        for x in units[U][2]: a(x)

def stream(a, items, RING0, RN, maxload=60, older=0, hooks={}):
    n = len(items)
    pos = []; head = 0
    issued = 0; consumed = 0
    used = 0; infl = 0
    alloc = {}
    while consumed < n:
        while issued < n:
            iss, nl, nr, con = items[issued]
            h = head
            waste = 0
            if h + nr > RN: waste = RN - h; h = 0
            if used + waste + nr > RN or infl + nl > (maxload - older if consumed == 0 else maxload): break
            alloc[issued] = (h, waste + nr)
            for x in iss(RING0 + h): a(x)
            head = h + nr; used += waste + nr; infl += nl; issued += 1
        if consumed in hooks: hooks[consumed](a)
        iss, nl, nr, con = items[consumed]
        infl -= nl
        a(f's_waitcnt vmcnt({infl})')
        for x in con(RING0 + alloc[consumed][0]): a(x)
        used -= alloc[consumed][1]
        consumed += 1

def team_consts(a, tmp, RS=REP_ST):
    lane, c, g, t0, t1 = tmp
    a(f's_mov_b32 s{sPOI}, {POISON:#x}')
    scl = (128 ** -0.5) * math.log2(math.e)
    import struct
    a(f's_mov_b32 s{sSCL}, {struct.unpack("<I", struct.pack("<f", scl))[0]:#x}')
    a(f's_mov_b32 s{sHALF}, 0xcccccccc'); a(f's_mov_b32 s{sHALF+1}, 0xcccccccc')
    a(f's_mov_b32 s{sPEX}, 0x000f000f'); a(f's_mov_b32 s{sPEX+1}, 0x000f000f')
    a(f's_lshr_b32 s{sFO}, s5, 1'); a(f's_mul_i32 s{sFO}, s{sFO}, 28'); a(f's_add_u32 s{sFO}, s{sFO}, {WS_PF}'); a(f's_add_u32 s{sFO+1}, s{sFO}, {16*28}')
    a(f's_mov_b32 s{sEVEN}, 0x0000ffff'); a(f's_mov_b32 s{sEVEN+1}, 0x0000ffff')
    a(f'v_mov_b32 v{t0}, 0x4444'); a(f'v_mov_b32 v{t1}, 0xeeee')
    a(f'v_cndmask_b32 v{IDX}, v{t0}, v{t1}, s[{sHALF}:{sHALF+1}]')
    a(f's_lshl_b32 s{sM0}, s4, 11')
    a(f's_lshl_b32 s{sKS}, s4, 6')
    for r in range(4): a(f'v_mov_b32 v{POI4+r}, s{sPOI}')
    a(f's_lshl_b32 s{sT0}, s4, 16'); a(f's_lshl_b32 s{sT1}, s5, 6'); a(f's_add_u32 s{sT0}, s{sT0}, s{sT1}')
    a(f'v_lshrrev_b32 v{t0}, 3, v{lane}'); a(f'v_lshlrev_b32 v{t0}, 13, v{t0}')
    a(f'v_and_b32 v{t1}, 7, v{c}'); a(f'v_lshl_add_u32 v{t0}, v{t1}, 3, v{t0}'); a(f'v_add_u32 v{PST}, s{sT0}, v{t0}')
    a(f's_lshr_b32 s{sT0}, s5, 3'); a(f's_lshl_b32 s{sT0}, s{sT0}, 9'); a(f's_add_u32 s{sT0}, s{sT0}, s{sM0}')
    a(f's_and_b32 s{sT1}, s5, 1'); a(f's_lshl_b32 s{sT1}, s{sT1}, 8'); a(f's_add_u32 s{sT0}, s{sT0}, s{sT1}')
    a(f's_and_b32 s{sT1}, s5, 6'); a(f's_lshl_b32 s{sT1}, s{sT1}, 5'); a(f's_add_u32 s{sT0}, s{sT0}, s{sT1}')
    a(f'v_and_b32 v{t0}, 3, v{c}'); a(f'v_lshlrev_b32 v{t0}, 2, v{t0}'); a(f'v_lshl_add_u32 v{t0}, v{g}, 4, v{t0}'); a(f'v_add_u32 v{t0}, s{sT0}, v{t0}')
    a(f'v_and_b32 v{t1}, 1, v{c}')
    if RS: a(f'v_lshrrev_b32 v{PUB}, 2, v{c}'); a(f'v_mul_u32_u24 v{PUB}, {RS}, v{PUB}'); a(f'v_add_u32 v{PUB}, v{PUB}, v{t0}')
    else: a(f'v_mov_b32 v{PUB}, 0x7fffff00'); a(f'v_cmp_gt_u32 vcc, 4, v{c}'); a(f'v_cndmask_b32 v{PUB}, v{PUB}, v{t0}, vcc')
    a(f'v_mul_u32_u24 v{t0}, {2*XS}, v{g}'); a(f'v_lshl_add_u32 v{t0}, v{c}, 2, v{t0}'); a(f'v_add_u32 v{t0}, s{sKS}, v{t0}')
    a(f'v_add_u32 v{XW}, {L_QX}, v{t0}')
    mm = 108
    a(f'v_lshrrev_b32 v{mm}, 2, v{c}'); a(f'v_lshl_add_u32 v{mm}, v{mm}, 1, v{t1}')
    a(f'v_mul_u32_u24 v{t0}, {XS}, v{mm}'); a(f'v_add_u32 v{t0}, {L_QX}, v{t0}')
    a(f'v_lshl_add_u32 v{QR}, v{g}, 4, v{t0}')
    a(f'v_lshl_add_u32 v{OR_}, v{g}, 5, v{t0}'); a(f'v_and_b32 v{mm}, 2, v{c}'); a(f'v_lshl_add_u32 v{OR_}, v{mm}, 3, v{OR_}')
    a(f'v_mov_b32 v{t0}, 0x3f80'); a(f'v_lshlrev_b32 v{mm}, 4, v{t1}'); a(f'v_lshlrev_b32 v{t0}, v{mm}, v{t0}')
    a(f'v_lshrrev_b32 v{mm}, 1, v{c}')
    for r in range(4):
        a(f'v_cmp_eq_u32 vcc, {2*r}, v{mm}'); a(f'v_cndmask_b32 v{SELA+r}, 0, v{t0}, vcc')
    a(f'v_mov_b32 v{ONES}, 0x3f803f80'); a(f'v_mov_b32 v{ONES+1}, 0x3e803e80'); a(f'v_mov_b32 v{ONES+2}, 0x3f803f80'); a(f'v_mov_b32 v{ONES+3}, 0x3e803e80')
    a(f's_mov_b32 s{sSTEP}, 0')
    a(f's_mul_i32 s{sI3}, s4, {RS}'); a(f's_add_u32 s{sSLOT}, s{sI3}, {WS_SLOT:#x}'); a(f's_mov_b32 s{sSLOTN}, {WS_SLOT+SLOT_ST:#x}'); a(f's_mov_b32 s{sSLOTP}, {WS_SLOT+2*SLOT_ST:#x}')
    a(f's_mov_b32 s{sINB}, {WS_INB:#x}')
    a(f's_lshl_b32 s{sINB2}, s5, 13'); a(f's_add_u32 s{sINB2}, s{sINB2}, s{sM0}'); a(f's_add_u32 s{sINB2}, s{sINB2}, {WS_INB:#x}')
    a(f's_lshl_b32 s{sKV}, s5, 13'); a(f's_add_u32 s{sKV}, s{sKV}, {WS_KF:#x}')
    a(f's_lshl_b32 s{sKM}, s5, 12'); a(f's_lshl_b32 s{sT0}, s4, 10'); a(f's_add_u32 s{sKM}, s{sKM}, s{sT0}'); a(f's_add_u32 s{sKM}, s{sKM}, {WS_KM - 32*4096:#x}')
    a(f's_add_u32 s{sKV}, s{sKV}, s{sM0}')
    a(f's_lshr_b32 s{sT0}, s4, 1'); a(f's_lshl_b32 s{sT0}, s{sT0}, 5'); a(f's_add_u32 s{sMK}, s{sM0}, s{sT0}')
    a(f's_add_u32 s{sMV}, s{sM0}, {L_V}')

def team_init1(a, tmp):
    lane, c, g, t0, t1 = tmp
    WS = srd(sWS)
    load_srd(a, 64, 'mem0')
    for o in (0, 1024):
        a(f'buffer_store_dwordx4 {vr(POI4,4)}, v{L16}, {WS}, s{sINB2} offen offset:{o} sc1')
    a(f's_and_b32 s{sT0}, s5, 6'); a(f's_lshl_b32 s{sT0}, s{sT0}, 10'); a(f's_lshr_b32 s{sT1}, s5, 3'); a(f's_lshl_b32 s{sT1}, s{sT1}, 6')
    a(f's_add_u32 s{sT0}, s{sT0}, s{sT1}'); a(f's_lshl_b32 s{sT1}, s4, 8'); a(f's_add_u32 s{sT0}, s{sT0}, s{sT1}')
    a(f's_and_b32 s{sT1}, s5, 1'); a(f's_lshl_b32 s{sT1}, s{sT1}, 5'); a(f's_add_u32 s{sT0}, s{sT0}, s{sT1}')
    a(f'v_and_b32 v{t0}, 1, v{g}'); a(f'v_lshlrev_b32 v{t0}, 10, v{t0}'); a(f'v_and_b32 v{t1}, 3, v{c}'); a(f'v_lshl_add_u32 v{t0}, v{t1}, 2, v{t0}')
    a(f'v_lshrrev_b32 v{t1}, 1, v{g}'); a(f'v_lshl_add_u32 v{t0}, v{t1}, 4, v{t0}')
    a('s_waitcnt lgkmcnt(0)')
    a(f'buffer_load_dword v99, v{t0}, {srd(64)}, s{sT0} offen')
    a(f'buffer_store_dword v{POI4}, v{PUB}, {WS}, s{sSLOTN} offen sc1')
def team_init2(a):
    a(f's_mov_b32 s{sT0}, {WS_SLOT:#x}')
    a(f'buffer_store_dword v99, v{PUB}, {srd(sWS)}, s{sT0} offen sc1')

sAV = 7
def kv_addr(a, t):
    a(f'v_bfe_u32 v{t}, v{L16}, 4, 4'); a(f'v_min_u32 v{t}, 13, v{t}')
    a(f'v_cmp_lt_u32 vcc, 6, v{t}'); a(f'v_add_u32 v{t+1}, {16*7-7}, v{t}'); a(f'v_cndmask_b32 v{t}, v{t}, v{t+1}, vcc'); a(f'v_lshlrev_b32 v{t}, 2, v{t}')
    a(f's_lshr_b32 s{sT2}, s5, 1'); a(f's_mul_i32 s{sT2}, s{sT2}, 28')
def kv_issue(a, t): a(f'buffer_load_dword v{t+1}, v{t}, {srd(sWS)}, s{sT2} offen offset:{WS_PF} sc1')
def kv_eval(a, t):
    for rot in (8, 4, 2, 1): a(f'v_min_i32_dpp v{t+1}, v{t+1}, v{t+1} row_ror:{rot} row_mask:0xf bank_mask:0xf')
    a(f'v_readfirstlane_b32 s{sAV}, v{t+1}')
    a(f's_max_i32 s{sAV}, s{sAV}, 0'); a(f's_mul_i32 s{sAV}, s{sAV}, 7')
def kv_wait(a, tag, need_s, t):
    kv_addr(a, t)
    a(f's_mov_b32 s{sSPIN}, 0')
    a.label(tag)
    kv_issue(a, t)
    a('s_waitcnt vmcnt(0)')
    kv_eval(a, t)
    a(f's_add_u32 s{sSPIN}, s{sSPIN}, 1'); a(f's_cmp_ge_u32 s{sSPIN}, {SPIN_MAX}'); a('s_cbranch_scc1 L_fail')
    a(f's_cmp_ge_u32 s{need_s}, s{sAV}')
    a(f's_cbranch_scc1 {tag}')
    a(f's_mov_b32 s{sSPIN}, 0')

def team_first_issue(a, d):
    a(f's_mov_b32 s{sKB}, {L_K0}'); a(f's_mov_b32 s{sKD}, {L_K0}')
    for g in k_dma(False) + v_dma() + [[f's_mov_b32 s{sKD}, {L_K1}']] + k_dma():
        for x in g: a(x)

def team_warm(a, d):
    a(f's_add_u32 s{sT2}, s{sKV}, {WS_VF - WS_KF:#x}')
    for so in (sKV, sT2): a(f'buffer_load_dword v{d}, off, {srd(sWS)}, s{so} sc1')
    a(f's_and_b32 s{sT2}, s5, 3'); a(f's_lshl_b32 s{sT2}, s{sT2}, 11'); a(f's_mul_i32 s{sT0}, s4, {SLOT_ST:#x}'); a(f's_add_u32 s{sT2}, s{sT2}, s{sT0}'); a(f's_add_u32 s{sT2}, s{sT2}, {WS_SLOT:#x}')
    a(f's_xor_b32 s{sT0}, s{sINB2}, 0x40000')
    for so in (sT2, sINB2, sT0):
        for o in (0, 1024): a(f'buffer_load_dwordx4 {vr(d,4)}, v{L16}, {srd(sWS)}, s{so} offen offset:{o} sc1')

def team_first_kv(a):
    for x in kx_addr(MEMF+21, MEMF+22): a(x)
    for z in range(12): a(z2(ACQ+2*z))
    a('s_waitcnt vmcnt(0)')
    a('s_barrier')
    a(f'v_add_u32 v{MEMF+23}, s{sMV}, v{L16}')
    for r in (VB+3, VB+7, VB+11, VB+15): a(f'v_mov_b32 v{r}, 0')
    for x in kv_reads(MEMF+21, MEMF+23): a(x)
    a(f's_mov_b32 s{sKB}, {L_K1}'); a(f's_mov_b32 s{sKD}, {L_K0}')
    a('s_waitcnt lgkmcnt(0)')
```

```python
from asmlib import *
from common import *
from team import stream
import math, struct
def fbits(x): return struct.unpack("<I", struct.pack("<f", x))[0]
L16 = 0
sIDX = 6
sPLO, sPHI = 37, 38
XST = 1056; XT = 32*XST
def mfm(d, A, B, C, fa='v', fb='v'): return f'v_mfma_f32_16x16x32_bf16 {vr(d,4)}, {vr(A,4,fa)}, {vr(B,4,fb)}, {C}'

def wload_items(S0, S1, va0, va1, stride, nk, dst, kbase_s, sT, imm1=0):
    items = []
    for kk in range(nk):
        for j in range(4):
            def iss(r, kk=kk, j=j):
                off = (32*kk + 2*j)*stride
                o = [f's_add_u32 s{sT}, s{kbase_s}, {off:#x}',
                     f'buffer_load_dword v{r}, v{va0}, {srd(S0)}, s{sT} offen',
                     f'buffer_load_dword v{r+1}, v{va0+1}, {srd(S0)}, s{sT} offen']
                if S1 is not None:
                    o += [f'buffer_load_dword v{r+2}, v{va1}, {srd(S1)}, s{sT} offen offset:{imm1}',
                          f'buffer_load_dword v{r+3}, v{va1+1}, {srd(S1)}, s{sT} offen offset:{imm1}']
                return o
            def con(r, kk=kk, j=j):
                o = []
                for T in range(4 if S1 is not None else 2):
                    b = r + 2*(T >> 1); sel = sPHI if T & 1 else sPLO
                    f, d = dst(kk, T, j)
                    if f == 'v': o.append(f'v_perm_b32 v{d}, v{b+1}, v{b}, s{sel}')
                    else: o += [f'v_perm_b32 v{8+(T&1)}, v{b+1}, v{b}, s{sel}', f'v_accvgpr_write_b32 a{d}, v{8+(T&1)}']
                return o
            n = 4 if S1 is not None else 2
            items.append((iss, n, n, con))
    return items

vC, vG, vA0, vA1, vRD = 1, 2, 4, 6, 3
ACC = 16
FR = 48
EP = 72
RING, RN = 104, 128
sTILE, sSTR, sBUF, sDST, sT0, sT1, sT2, sKB, sCNT, sW8, sNB, sDM = range(40, 52)
sCOL = 55

WST = [False]
PAUSE = [None]
REPORT = [None]
OPT = {}
def wstamp(a, i):
    if WST[0]:
        a('s_memrealtime s[92:93]'); a('s_memtime s[94:95]'); a('s_waitcnt lgkmcnt(0)')
        a('s_lshl_b32 s60, s6, 7'); a(f's_add_u32 s60, s60, {WS_DBG + 0x8000:#x}')
        if i < 0:
            a('s_min_u32 s61, s54, 2'); a('s_mul_i32 s61, s61, 12'); a('s_add_u32 s60, s60, s61'); i = -i - 1
        a('v_mov_b32 v20, s92'); a('v_mov_b32 v21, s94')
        a(f'buffer_store_dword v20, off, {srd(sWS)}, s60 offset:{4*i}')
        a(f'buffer_store_dword v21, off, {srd(sWS)}, s60 offset:{64+4*i}')
        a('s_waitcnt vmcnt(0)')

def touch(a, srds, stride, col_s, blk_s, t=10):
    a(f'v_lshrrev_b32 v{t}, 4, v{L16}'); a(f'v_mul_u32_u24 v{t}, {stride}, v{t}'); a(f'v_add_u32 v{t}, s{col_s}, v{t}')
    a(f's_mul_i32 s{sT2}, s{blk_s}, {64*stride:#x}')
    a(f's_mov_b32 s{sT1}, {7*64*stride:#x}')
    for S in srds:
        a(f'buffer_load_dword v{t+1}, v{t}, {srd(S)}, s{sT2} offen')
        a(f'buffer_load_dword v{t+1}, v{t}, {srd(S)}, s{sT1} offen')

def x_dma(a, tile_s, buf_s):
    a(f's_lshl_b32 s{sT0}, s{tile_s}, 15')
    a(f's_lshl_b32 s{sT1}, s4, 13'); a(f's_add_u32 s{sT0}, s{sT0}, s{sT1}')
    a(f's_add_u32 s{sT1}, s{buf_s}, s{sW8}')
    for r in range(8):
        a(f's_add_u32 m0, s{sT1}, {r*XST}')
        if r: a(f's_add_u32 s{sT0}, s{sT0}, 1024')
        a(f'buffer_load_dwordx4 v{L16}, {srd(sC)}, s{sT0} offen lds')

def wload_dma(a, S, NS=24):
    va, r0, t = vA0, vA1, 10
    a(f'v_lshrrev_b32 v{t}, 9, v{L16}'); a(f'v_bfe_u32 v{va}, v{L16}, 7, 2'); a(f'v_lshl_add_u32 v{va}, v{va}, 3, v{t}')
    a(f'v_and_b32 v{t}, 0x70, v{L16}'); a(f'v_lshl_add_u32 v{va}, v{va}, 13, v{t}'); a(f'v_add_u32 v{va}, s{sCOL}, v{va}')
    a(f's_mul_i32 s{sCNT}, s4, {NS*1024}'); a(f's_add_u32 s{sCNT}, s{sCNT}, {XT}')
    def iss(n): return [f's_add_u32 m0, s{sCNT}, {(n % NS)*1024}', f's_mov_b32 s{sT2}, {(32*(n >> 2) + 2*(n & 3))*8192:#x}',
                        f'buffer_load_dwordx4 v{va}, {srd(S)}, s{sT2} offen lds']
    for n in range(NS):
        for x in iss(n): a(x)
    REPORT[0](a, 11)
    a(f'v_lshlrev_b32 v{r0}, 7, v{vG}'); a(f'v_lshl_add_u32 v{r0}, v{vC}, 2, v{r0}'); a(f'v_add_u32 v{r0}, s{sCNT}, v{r0}'); a(f'v_add_u32 v{r0+1}, 64, v{r0}')
    def reads(kk):
        R = RING + (kk & 1)*16
        for j in range(4):
            o = ((4*kk+j) % NS)*4
            for pl in range(2): a(f'ds_read2st64_b32 {vr(R+4*j+2*pl,2)}, v{r0+pl} offset0:{o} offset1:{o+2}')
    a(f's_waitcnt vmcnt({NS - 4})')
    reads(0)
    for kk in range(16):
        n0 = 4*kk
        a(f's_waitcnt vmcnt({max(0, min(64, n0+NS) - (n0+8))}) lgkmcnt(0)')
        if kk < 15: reads(kk+1)
        R = RING + (kk & 1)*16
        nxt = list(range(n0+NS, min(64, n0+NS+4)))
        for j in range(4):
            if j < len(nxt):
                for x in iss(nxt[j]): a(x)
            for T in range(4):
                b = R + 4*j + 2*(T >> 1)
                a(f'v_perm_b32 v{8+(T&1)}, v{b+1}, v{b}, s{sPHI if T & 1 else sPLO}'); a(f'v_accvgpr_write_b32 a{(kk*4+T)*4+j}, v{8+(T&1)}')

def gemm(a, kind, tag, pre_loop):
    T_ = lambda n: f'{tag}_{n}'
    WS = srd(sWS)
    stride = 2752 if kind == 'F' else 8192
    if kind == 'F' or OPT.get('wt', 0): touch(a, [sA, sB] if kind == 'F' else [sA], stride, sCOL, sTILE)
    a('s_barrier')
    a(f's_mov_b32 s{sNB}, s{sTILE}')
    def xpre(bs):
        for b in bs:
            a(f's_mov_b32 s{sBUF}, {b*XT}')
            x_dma(a, sNB, sBUF)
            a(f's_add_u32 s{sNB}, s{sNB}, s{sSTR}')
    nst = {'F': 2, 'V': 5, 'K': 7}[kind]
    a('s_mov_b32 s57, 0')
    if kind == 'F':
        xpre((0, 1, 2))
        items = wload_items(sA, sB, vA0, vA1, stride, 16, lambda kk, T, j: ('a', (kk*4+T)*4+j), sKB, sT2, imm1=0)
        stream(a, items, RING, RN, maxload=60, older=28)
        wstamp(a, -2)
        a(f's_mov_b32 s{sBUF}, 0')
    else:
        xpre((0,))
        wload_dma(a, sA)
        wstamp(a, -2)
        pre_loop(a)
        a('s_barrier')
        xpre((1, 2))
        a(f's_mov_b32 s{sBUF}, 0')
        a(f's_branch {T_("in")}')
    a.label(T_('loop'))
    if kind != 'F':
        a('s_cmp_lg_u32 s57, s54')
        a(f's_cbranch_scc1 {T_("nd")}')
        a('s_waitcnt vmcnt(0)')
        a.label(T_('nd'))
    a(f's_waitcnt vmcnt({8 + nst})')
    a('s_barrier')
    if kind != 'F':
        a.label(T_('in'))
        a('s_sub_u32 s59, s57, 1'); a(f's_min_i32 s{sT0}, s57, 1'); a(f's_max_i32 s59, s59, s{sT0}')
        a(f'v_mov_b32 v8, s59')
        a(f'buffer_store_dword v8, off, {WS}, s56 sc1')
        a('s_add_u32 s57, s57, 1')
    a(f'v_add_u32 v{EP}, s{sBUF}, v{vRD}')
    def rd(kk, rt): return f'ds_read_b128 {vr(FR+((kk%3)*2+rt)*4,4)}, v{EP} offset:{rt*16*XST + kk*64}'
    for kk in (0, 1):
        a(rd(kk, 0)); a(rd(kk, 1))
    a(f's_add_u32 s{sT2}, s{sBUF}, {3*XT}'); a(f's_cmp_ge_u32 s{sT2}, {4*XT}'); a(f's_cselect_b32 s{sCNT}, {4*XT}, 0'); a(f's_sub_u32 s{sT2}, s{sT2}, s{sCNT}')
    x_dma(a, sNB, sT2)
    a(f's_add_u32 s{sNB}, s{sNB}, s{sSTR}')
    for kk in range(16):
        n = 0
        for rt in range(2):
            for T in range(4):
                d = ACC + (rt*4+T)*4; x = FR + ((kk % 3)*2+rt)*4; w = (kk*4+T)*4
                C = '0' if kk == 0 else vr(d, 4)
                a(mfm(d, x, w, C, 'v', 'a') if kind == 'V' else mfm(d, w, x, C, 'a', 'v'))
                if kk + 2 < 16 and n in (1, 3): a(rd(kk+2, n >> 1))
                n += 1
    if kind != 'F':
        a('s_add_u32 s59, s54, 1'); a('s_cmp_lg_u32 s57, s59')
        a(f's_cbranch_scc1 {T_("np")}')
        PAUSE[0](a, T_('pz'))
        a.label(T_('np'))
    a(f's_mul_i32 s{sT0}, s{sTILE}, s{sDM}'); a(f's_add_u32 s{sT0}, s{sT0}, s{sDST}')
    ac = lambda rt, T, r: ACC + (rt*4+T)*4 + r
    if kind == 'K':
        a(f's_lshl_b32 s{sT1}, s{sTILE}, 17'); a(f's_add_u32 s{sT1}, s{sT1}, s58')
        for o in (0, 1024): a(f'buffer_store_dwordx4 v[12:15], v{L16}, {WS}, s{sT1} offen offset:{o} sc1')
        a(f's_add_u32 s{sT1}, s{sT0}, 4096')
        for rt in range(2):
            for u in range(2):
                e = EP + 4 + (rt*2+u)*4
                for r in range(4): a(f'v_cvt_pk_bf16_f32 v{e+r}, v{ac(rt,2*u,r)}, v{ac(rt,2*u+1,r)}')
                a(f'buffer_store_dwordx4 {vr(e,4)}, v{L16}, {WS}, s{sT1 if rt else sT0} offen offset:{u*1024} sc1')
    elif kind == 'V':
        for T in range(4):
            e = EP + 4 + T*4
            for rt in range(2):
                for p in range(2): a(f'v_cvt_pk_bf16_f32 v{e+rt*2+p}, v{ac(rt,T,2*p)}, v{ac(rt,T,2*p+1)}')
            a(f'buffer_store_dwordx4 {vr(e,4)}, v{L16}, {WS}, s{sT0} offen offset:{T*1024} sc1')
    else:
        a(f's_add_u32 s{sT1}, s{sT0}, {43*1024}')
        a(f's_mov_b32 s{sT2}, {fbits(-math.log2(math.e)):#x}')
        for rt in range(2):
            e = EP + 4 + rt*4; t = EP + 12
            G = [ac(rt, tt, r) for r in range(4) for tt in range(2)]
            U = [ac(rt, 2+tt, r) for r in range(4) for tt in range(2)]
            def rnd(L):
                for r in range(4): a(f'v_cvt_pk_bf16_f32 v{t+8+r}, v{L[2*r]}, v{L[2*r+1]}')
                for r in range(4):
                    a(f'v_lshlrev_b32 v{L[2*r]}, 16, v{t+8+r}'); a(f'v_and_b32 v{L[2*r+1]}, 0xffff0000, v{t+8+r}')
            rnd(G); rnd(U)
            for i in range(8): a(f'v_mul_f32 v{t+i}, s{sT2}, v{G[i]}')
            for i in range(8): a(f'v_exp_f32 v{t+i}, v{t+i}')
            for i in range(8): a(f'v_add_f32 v{t+i}, 1.0, v{t+i}')
            for i in range(8): a(f'v_rcp_f32 v{t+i}, v{t+i}')
            for i in range(8): a(f'v_mul_f32 v{G[i]}, v{G[i]}, v{t+i}')
            rnd(G)
            for i in range(8): a(f'v_mul_f32 v{G[i]}, v{G[i]}, v{U[i]}')
            for r in range(4): a(f'v_cvt_pk_bf16_f32 v{e+r}, v{G[2*r]}, v{G[2*r+1]}')
            a(f'buffer_store_dwordx4 {vr(e,4)}, v{L16}, {WS}, s{sT1 if rt else sT0} offen sc1')
    a(f's_add_u32 s{sBUF}, s{sBUF}, {XT}'); a(f's_cmp_ge_u32 s{sBUF}, {4*XT}'); a(f's_cselect_b32 s{sBUF}, 0, s{sBUF}')
    a(f's_add_u32 s{sTILE}, s{sTILE}, s{sSTR}')
    a(f's_cmp_lt_u32 s{sTILE}, 64')
    a(f's_cbranch_scc1 {T_("loop")}')

def set_flag(a, val, base, tag):
    a('s_waitcnt vmcnt(0)')
    a('s_barrier')
    a('s_cmp_lg_u32 s4, 0')
    a(f's_cbranch_scc1 {tag}')
    a(f's_lshl_b32 s{sT0}, s{sIDX}, 2')
    a(f'v_mov_b32 v8, {val}')
    a(f'buffer_store_dword v8, off, {srd(sWS)}, s{sT0} offset:{base} sc1')
    a.label(tag)

def worker_lane_consts(a):
    a('v_and_b32 v3, 63, v0')
    a(f'v_and_b32 v{vC}, 15, v3'); a(f'v_lshrrev_b32 v{vG}, 4, v3'); a(f'v_lshlrev_b32 v{L16}, 4, v3')
    a(f'v_mul_u32_u24 v{vRD}, {XST}, v{vC}'); a(f'v_lshl_add_u32 v{vRD}, v{vG}, 4, v{vRD}')
    a(f's_mov_b32 s{sPLO}, 0x05040100'); a(f's_mov_b32 s{sPHI}, 0x07060302')
    a(f's_mul_i32 s{sW8}, s4, {8*XST}')
    a(f's_mov_b32 s{sKB}, 0')
    for r in range(4): a(f'v_mov_b32 v{12+r}, {POISON:#x}')

def waddr(a, stride, col_s):
    a(f's_mov_b32 s{sCOL}, s{col_s}')
    a(f'v_mul_u32_u24 v{vA0}, {8*stride}, v{vG}'); a(f'v_lshl_add_u32 v{vA0}, v{vC}, 2, v{vA0}'); a(f'v_add_u32 v{vA0}, s{col_s}, v{vA0}')
    a(f'v_add_u32 v{vA0+1}, {stride}, v{vA0}')
    a(f'v_mov_b32 v{vA1}, v{vA0}'); a(f'v_mov_b32 v{vA1+1}, v{vA0+1}')

def qkv_setup(a, hp_s, wname, base):
    load_srd(a, sA, wname); load_srd(a, sB, wname)
    a(f's_lshl_b32 s{sT0}, s{hp_s}, 9'); a(f's_lshl_b32 s{sT1}, s4, 7'); a(f's_add_u32 s{sT0}, s{sT0}, s{sT1}')
    waddr(a, 8192, sT0)
    a(f's_lshl_b32 s{sDST}, s{hp_s}, 14'); a(f's_lshr_b32 s{sT1}, s4, 1'); a(f's_lshl_b32 s{sT1}, s{sT1}, 13'); a(f's_add_u32 s{sDST}, s{sDST}, s{sT1}')
    a(f's_and_b32 s{sT1}, s4, 1'); a(f's_lshl_b32 s{sT1}, s{sT1}, {12 if wname == "Wv" else 11}'); a(f's_add_u32 s{sDST}, s{sDST}, s{sT1}')
    a(f's_add_u32 s{sDST}, s{sDST}, {base:#x}')
    a(f's_mov_b32 s{sDM}, {32*8192:#x}')
    a('s_waitcnt lgkmcnt(0)')

def phase1(a, ready_wait):
    worker_lane_consts(a)
    wstamp(a, 1)
    load_srd(a, sC, 'x')
    sSL = 52
    a(f's_mul_hi_u32 s{sSL}, s{sIDX}, {-(-(1 << 32)//7):#x}'); a(f's_mul_i32 s{sT0}, s{sSL}, 7'); a(f's_sub_u32 s{sTILE}, s{sIDX}, s{sT0}')
    a(f's_mov_b32 s{sSTR}, 7')
    a(f's_and_b32 s53, s{sSL}, 15')
    a(f's_mov_b32 s54, 1')
    a(f's_lshl_b32 s56, s{sIDX}, 2'); a(f's_add_u32 s56, s56, {WS_PF}'); a('s_cmp_eq_u32 s4, 0'); a('s_cselect_b32 s56, s56, 0x7fffff00')
    a(f's_cmp_ge_u32 s{sSL}, 16')
    a('s_waitcnt lgkmcnt(0)')
    a('s_cbranch_scc1 W_v')
    qkv_setup(a, 53, 'Wk', WS_KF)
    a('s_lshl_b32 s58, s53, 13'); a(f's_lshl_b32 s{sT0}, s4, 11'); a(f's_add_u32 s58, s58, s{sT0}'); a(f's_add_u32 s58, s58, {WS_KM:#x}')
    a.label('W_kq')
    gemm(a, 'K', 'GK', lambda a: ready_wait(a, 'W_rdy1'))
    a('s_cmp_eq_u32 s54, 99')
    a('s_cbranch_scc1 W_r2done')
    a('s_branch W_r1done')
    a.label('W_v')
    qkv_setup(a, 53, 'Wv', WS_VF)
    gemm(a, 'V', 'GV', lambda a: ready_wait(a, 'W_rdy2'))
    a.label('W_r1done')
    set_flag(a, 100, WS_PF, 'W_f1')
    a('s_mov_b32 s56, 0x7fffff00'); a('s_mov_b32 s58, 0x70000000')
    wstamp(a, 5)
    a(f's_lshr_b32 s{sSL}, s{sIDX}, 3'); a(f's_and_b32 s{sTILE}, s{sIDX}, 7'); a(f's_mov_b32 s{sSTR}, 8')
    a('s_mov_b32 s54, 99')
    a(f's_cmp_ge_u32 s{sSL}, 27'); a('s_cbranch_scc1 W_gate')
    a(f's_cmp_ge_u32 s{sSL}, 16'); a('s_cbranch_scc1 W_ffn')
    qkv_setup(a, sSL, 'Wq', WS_QF)
    a('s_branch W_kq')
    a.label('W_ffn')
    load_srd(a, sA, 'Wg'); load_srd(a, sB, 'Wu')
    a(f's_sub_u32 s53, s{sSL}, 16'); a('s_lshl_b32 s53, s53, 2'); a('s_add_u32 s53, s53, s4'); a('s_min_u32 s53, s53, 42')
    a(f's_lshl_b32 s{sT0}, s53, 6')
    waddr(a, 2752, sT0)
    a(f's_lshl_b32 s{sDST}, s53, 10'); a(f's_add_u32 s{sDST}, s{sDST}, {WS_HF:#x}')
    a(f's_mov_b32 s{sDM}, {2*43*1024:#x}')
    a('s_waitcnt lgkmcnt(0)')
    gemm(a, 'F', 'GF', lambda a: None)
    a('s_branch W_r2done')
    a.label('W_gate')
    gate(a)
    a.label('W_r2done')
    set_flag(a, 1, WS_PF2, 'W_f2')
    wstamp(a, 8)

def gate(a):
    load_srd(a, sA, 'gw')
    a(f's_sub_u32 s{sT0}, s{sIDX}, 216'); a(f's_lshl_b32 s{sT0}, s{sT0}, 2'); a(f's_add_u32 s{sT0}, s{sT0}, s4')
    a(f's_lshl_b32 s{sT1}, s{sT0}, 16')
    a(f's_lshl_b32 s{sDST}, s{sT0}, 8'); a(f's_add_u32 s{sDST}, s{sDST}, {WS_G:#x}')
    a('s_waitcnt lgkmcnt(0)')
    GW, X, R, RES, LN = 12, 16, 80, 10, 11
    a(f'buffer_load_dwordx4 {vr(GW,4)}, v{L16}, {srd(sA)}, 0 offen')
    a(f'v_lshrrev_b32 v{LN}, 4, v{L16}')
    a(f'v_mov_b32 v{RES}, 0')
    a(f's_mov_b32 s{sCNT}, 0')
    a.label('WG_loop')
    for i in range(16):
        a(f'buffer_load_dwordx4 {vr(X+4*i,4)}, v{L16}, {srd(sC)}, s{sT1} offen')
        a(f's_add_u32 s{sT1}, s{sT1}, 1024')
    a('s_waitcnt vmcnt(0)')
    for i in range(16): a(f'v_dot2_f32_bf16 v{R+i}, v{X+4*i}, v{GW}, 0')
    for k in range(1, 4):
        for i in range(16): a(f'v_dot2_f32_bf16 v{R+i}, v{X+4*i+k}, v{GW+k}, v{R+i}')
    a('s_nop 3')
    for rot in (8, 4, 2, 1):
        for i in range(16): a(f'v_add_f32_dpp v{R+i}, v{R+i}, v{R+i} row_ror:{rot} row_mask:0xf bank_mask:0xf')
    for sw in ('v_permlane16_swap_b32', 'v_permlane32_swap_b32'):
        for i in range(16): a(f'v_mov_b32 v{X+i}, v{R+i}')
        for i in range(16): a(f'{sw} v{R+i}, v{X+i}')
        for i in range(16): a(f'v_add_f32 v{R+i}, v{R+i}, v{X+i}')
    for i in range(16):
        a(f's_add_u32 s{sT2}, s{sCNT}, {i}')
        a(f'v_cmp_eq_u32 vcc, s{sT2}, v{LN}')
        a(f'v_cndmask_b32 v{RES}, v{RES}, v{R+i}, vcc')
    a(f's_add_u32 s{sCNT}, s{sCNT}, 16'); a(f's_cmp_lt_u32 s{sCNT}, 64'); a('s_cbranch_scc1 WG_loop')
    a(f'v_cvt_pk_bf16_f32 v{RES}, v{RES}, v{RES}'); a(f'v_and_b32 v{RES}, 0xffff0000, v{RES}')
    a(f'v_mul_f32 v{RES}, {fbits(-math.log2(math.e)):#x}, v{RES}')
    a(f'v_exp_f32 v{RES}, v{RES}'); a(f'v_add_f32 v{RES}, 1.0, v{RES}'); a(f'v_rcp_f32 v{RES}, v{RES}')
    a(f'v_cvt_pk_bf16_f32 v{RES}, v{RES}, v{RES}'); a(f'v_and_b32 v{RES}, 0xffff0000, v{RES}')
    a(f'v_lshlrev_b32 v{LN}, 2, v{LN}')
    a(f'buffer_store_dword v{RES}, v{LN}, {srd(sWS)}, s{sDST} offen sc1')

def spin_ge(a, tag, load, nreg, dst, thr, lanes_ok=None, sleep=1):
    a('s_mov_b32 s62, 0')
    a.label(tag)
    a(load)
    a('s_waitcnt vmcnt(0)')
    if nreg == 4:
        a(f'v_min3_i32 v{dst}, v{dst}, v{dst+1}, v{dst+2}'); a(f'v_min_i32 v{dst}, v{dst}, v{dst+3}')
    a(f'v_cmp_gt_i32 vcc, {thr}, v{dst}')
    a(f's_cbranch_vccz {tag}_ok')
    if sleep: a(f's_sleep {sleep}')
    a('s_add_u32 s62, s62, 1')
    a(f's_cmp_lt_u32 s62, {SPIN_MAX}')
    a(f's_cbranch_scc1 {tag}')
    a('s_branch L_fail')
    a.label(tag + '_ok')

def phase2(a, opt):
    WS = srd(sWS)
    if opt.get('no_p1'): worker_lane_consts(a)
    sGI, sCU, sUN, sRND, sHD, sRH, sGF, sSCL, sEH, sQO, sOB, sPOI = range(63, 75)
    WD = 168
    load_srd(a, sA, 'Wo'); load_srd(a, sB, 'Wd'); load_srd(a, sD, 'out')
    a(f's_lshr_b32 s{sGI}, s{sIDX}, 4'); a(f's_and_b32 s{sCU}, s{sIDX}, 15')
    a(f's_lshl_b32 s{sT0}, s{sCU}, 6')
    waddr(a, 1024, sT0)
    a(f's_lshl_b32 s{sKB}, s4, 20')
    a(f's_mul_i32 s{sNB}, s4, {11*32*1024:#x}')
    a('s_waitcnt lgkmcnt(0)')
    items = wload_items(sA, None, vA0, None, 1024, 32, lambda kk, T, j: ('a', (kk*2+T)*4+j), sKB, sT2)
    items += wload_items(sB, None, vA0, None, 1024, 11, lambda kk, T, j: ('v', WD+(kk*2+T)*4+j), sNB, sT2)
    stream(a, items, 100, 64, maxload=60, older=2)
    wstamp(a, 9)
    MSK, KW, KR, RW, RR, OA_, FL = 4, 12, 13, 14, 15, 3, 17
    a(f's_lshr_b32 s{sT0}, s4, 1'); a(f's_lshl_b32 s{sHD}, s{sCU}, 1'); a(f's_add_u32 s{sHD}, s{sHD}, s{sT0}')
    a(f's_and_b32 s{sRH}, s{sGI}, 1'); a(f's_and_b32 s{sEH}, s4, 1')
    a(f's_mov_b32 s{sSCL}, {fbits((128 ** -0.5) * math.log2(math.e)):#x}')
    a(f's_mov_b32 s{sPOI}, {POISON:#x}')
    a(f's_lshl_b32 s{sT0}, s{sRH}, 4'); a(f'v_add_u32 v18, s{sT0}, v{vC}'); a(f'v_lshlrev_b32 v19, 2, v{vG}'); a('v_sub_u32 v18, v18, v19')
    a(f'v_mov_b32 v19, {fbits(-1e30):#x}')
    for t in range(2):
        for r in range(4):
            a(f'v_cmp_gt_i32 vcc, {16*t+r}, v18'); a(f'v_cndmask_b32 v{MSK+4*t+r}, 0, v19, vcc')
    L_KM, L_RED = 0, 16384
    a(f's_mul_i32 s{sT0}, s4, 2304')
    a(f'v_mul_u32_u24 v{KW}, 576, v{vG}'); a(f'v_lshl_add_u32 v{KW}, v{vC}, 2, v{KW}'); a(f'v_add_u32 v{KW}, s{sT0}, v{KW}')
    a(f's_lshl_b32 s{sT1}, s{sEH}, 7'); a(f'v_add_u32 v16, s{sT1}, v{KW}')
    a(f's_xor_b32 s{sT1}, s{sT1}, 128'); a(f'v_add_u32 v{KW}, s{sT1}, v{KW}')
    a(f'v_lshrrev_b32 v18, 2, v{vC}'); a(f'v_and_b32 v19, 1, v{vC}'); a('v_lshl_add_u32 v18, v18, 1, v19')
    a(f'v_mul_u32_u24 v{KR}, 288, v18'); a(f'v_lshl_add_u32 v{KR}, v{vG}, 4, v{KR}'); a(f'v_add_u32 v{KR}, s{sT0}, v{KR}')
    a(f's_lshl_b32 s{sT0}, s4, 11'); a(f's_add_u32 s{sT0}, s{sT0}, {L_RED}'); a(f'v_add_u32 v{RW}, s{sT0}, v{L16}')
    a(f's_lshl_b32 s{sT2}, s4, 2'); a(f's_add_u32 s{sT1}, s{sT2}, {L_RED}'); a(f'v_add_u32 v{RR}, s{sT1}, v{L16}')
    a(f's_lshl_b32 s{sT1}, s{sCU}, 6'); a(f's_add_u32 s{sT1}, s{sT1}, s{sT2}')
    a(f'v_lshlrev_b32 v{OA_}, 10, v{vC}'); a(f'v_lshl_add_u32 v{OA_}, v{vG}, 4, v{OA_}'); a(f'v_add_u32 v{OA_}, s{sT1}, v{OA_}')
    a(f'v_lshlrev_b32 v{FL}, 2, v{vC}')
    a(f's_lshl_b32 s{sGF}, s{sGI}, 8'); a(f's_add_u32 s{sGF}, s{sGF}, {WS_GF:#x}')
    a(f's_lshl_b32 s{sOB}, s{sGI}, 18'); a(f's_add_u32 s{sOB}, s{sOB}, {WS_OF:#x}')
    a(f's_mov_b32 s{sUN}, s{sGI}'); a(f's_mov_b32 s{sRND}, 1')
    a(f'v_min_u32 v18, {55*16}, v{L16}')
    spin_ge(a, 'P2_pf', f'buffer_load_dwordx4 v[20:23], v18, {WS}, 0 offen offset:{WS_PF2} sc1', 4, 20, 1, sleep=8)
    wstamp(a, 10)
    AC, QQ, KK, VV, KVM, HH, S0, SM = 24, 32, 48, 80, 96, 112, 156, 164
    PX, PM, KMF, OC, OP = 112, 116, 120, 136, 48
    GG, BB = 18, 22
    def both(plain, tag):
        a(f's_cbranch_scc1 {tag}f')
        for x in plain: a(x + ' sc1')
        a(f's_branch {tag}e')
        a.label(tag + 'f')
        for x in plain: a(x)
        a.label(tag + 'e')
    a.label('P2_loop')
    a(f's_mul_i32 s{sT0}, s{sUN}, {43*1024:#x}'); a(f's_add_u32 s{sT0}, s{sT0}, {WS_HF:#x}')
    a(f's_mul_i32 s{sT1}, s4, 11')
    for i in range(11):
        a(f's_add_u32 s{sT2}, s{sT1}, {i}'); a(f's_min_u32 s{sT2}, s{sT2}, 42'); a(f's_lshl_b32 s{sT2}, s{sT2}, 10'); a(f's_add_u32 s{sT2}, s{sT2}, s{sT0}')
        a(f'buffer_load_dwordx4 {vr(HH+4*i,4)}, v{L16}, {WS}, s{sT2} offen sc1')
    a(f's_lshl_b32 s{sT0}, s{sUN}, 6'); a(f's_add_u32 s{sT0}, s{sT0}, {WS_G:#x}')
    a(f'buffer_load_dword v{GG}, v{FL}, {WS}, s{sT0} offen sc1')
    a(f's_lshr_b32 s{sT0}, s{sUN}, 1'); a(f's_lshl_b32 s{sT0}, s{sT0}, 5'); a(f's_add_u32 s{sT0}, s{sT0}, s{sHD}'); a(f's_lshl_b32 s{sQO}, s{sT0}, 13')
    a(f's_lshl_b32 s{sT0}, s{sRH}, 12'); a(f's_add_u32 s{sT0}, s{sT0}, s{sQO}'); a(f's_add_u32 s{sT0}, s{sT0}, {WS_QF:#x}')
    for j in range(4): a(f'buffer_load_dwordx4 {vr(QQ+4*j,4)}, v{L16}, {WS}, s{sT0} offen offset:{j*1024} sc1')
    a(f's_add_u32 s{sT0}, s{sQO}, {WS_KF:#x}'); a(f's_add_u32 s{sT1}, s{sT0}, 4096')
    for j in range(8): a(f'buffer_load_dwordx4 {vr(KK+4*j,4)}, v{L16}, {WS}, s{sT1 if j >= 4 else sT0} offen offset:{(j&3)*1024} sc1')
    a(f's_lshl_b32 s{sT0}, s{sEH}, 12'); a(f's_add_u32 s{sT0}, s{sT0}, s{sQO}'); a(f's_add_u32 s{sT0}, s{sT0}, {WS_VF:#x}')
    for j in range(4): a(f'buffer_load_dwordx4 {vr(VV+4*j,4)}, v{L16}, {WS}, s{sT0} offen offset:{j*1024} sc1')
    sK0, sK1 = 75, 76
    a(f's_lshr_b32 s{sK0}, s{sQO}, 1'); a(f's_add_u32 s{sK0}, s{sK0}, {WS_KM:#x}'); a(f's_lshl_b32 s{sT0}, s{sEH}, 11'); a(f's_add_u32 s{sK0}, s{sK0}, s{sT0}'); a(f's_xor_b32 s{sK1}, s{sK0}, 2048')
    kvl = [f'buffer_load_dwordx4 {vr(KVM+4*j,4)}, v{L16}, {WS}, s{sK1 if j >= 2 else sK0} offen offset:{(j&1)*1024} sc1' for j in range(4)]
    for x in kvl: a(x)
    for i in range(11):
        a(f's_waitcnt vmcnt({10 - i + 21})')
        for t in range(2): a(mfm(AC+4*t, WD+(i*2+t)*4, HH+4*i, '0' if i == 0 else vr(AC+4*t,4)))
    def reduce(dst, first):
        o = 0 if first else 8192
        for q in range(2): a(f'ds_write_b128 v{RW}, {vr(AC+4*q,4)} offset:{o + q*1024}')
        a('s_waitcnt lgkmcnt(0)')
        a('s_barrier')
        for w in range(4):
            for t in range(2): a(f'ds_read_b32 v{AC+2*w+t}, v{RR} offset:{o + w*2048 + t*1024}')
        a(f'v_pk_add_f32 {vr(AC,2)}, {vr(AC,2)}, {vr(AC+2,2)}'); a(f'v_pk_add_f32 {vr(AC+4,2)}, {vr(AC+4,2)}, {vr(AC+6,2)}')
        a(f'v_pk_add_f32 {vr(AC,2)}, {vr(AC,2)}, {vr(AC+4,2)}')
        rnd2(AC, dst)
    def rnd2(r, dst):
        a(f'v_cvt_pk_bf16_f32 v{AC+6}, v{r}, v{r+1}')
        a(f'v_lshlrev_b32 v{dst}, 16, v{AC+6}'); a(f'v_and_b32 v{dst+1}, 0xffff0000, v{AC+6}')
    reduce(BB, True)
    a('s_waitcnt vmcnt(8)')
    a(f'v_sub_f32 v19, 1.0, v{GG}'); a('v_cvt_pk_bf16_f32 v19, v19, v19'); a('v_and_b32 v19, 0xffff0000, v19')
    for j in range(4):
        for t in range(2): a(mfm(S0+4*t, KK+16*t+4*j, QQ+4*j, vr(MSK+4*t,4) if j == 0 else vr(S0+4*t,4)))
    for k in range(2): a(f'v_mul_f32 v{BB+k}, v19, v{BB+k}')
    rnd2(BB, BB)
    a(f'v_mov_b32 v{PM+1}, 0'); a(f'v_mov_b32 v{PM+2}, 0')
    a(f'v_max3_f32 v19, v{S0}, v{S0+1}, v{S0+2}'); a(f'v_max3_f32 v21, v{S0+4}, v{S0+5}, v{S0+6}'); a(f'v_max3_f32 v19, v19, v{S0+3}, v{S0+7}'); a('v_max_f32 v19, v19, v21')
    a('s_mov_b32 s62, 0')
    a.label('P2_kc')
    a('s_waitcnt vmcnt(0)')
    a(f'v_max3_u32 v20, v{KVM}, v{KVM+1}, v{KVM+2}')
    for k in range(3, 15, 2): a(f'v_max3_u32 v20, v20, v{KVM+k}, v{KVM+k+1}')
    a(f'v_max_u32 v20, v20, v{KVM+15}')
    a(f'v_cmp_eq_u32 vcc, s{sPOI}, v20')
    a('s_cbranch_vccz P2_kok')
    a(f's_sleep {opt.get("tfsleep", 2)}')
    for x in kvl: a(x)
    a('s_add_u32 s62, s62, 1'); a(f's_cmp_lt_u32 s62, {SPIN_MAX}'); a('s_cbranch_scc1 P2_kc')
    a('s_branch L_fail')
    a.label('P2_kok')
    for j in range(4):
        kw = KW if j >= 2 else 16
        a(f'ds_write_b32 v{kw}, v{KVM+4*j} offset:{L_KM + (j&1)*64}'); a(f'ds_write_b32 v{kw}, v{KVM+4*j+1} offset:{L_KM + (j&1)*64 + 288}')
    for j in range(4): a(f'ds_read_b128 {vr(KMF+4*j,4)}, v{KR} offset:{L_KM + j*64}')
    for j in range(4): a(mfm(SM, KMF+4*j, QQ+4*j, '0' if j == 0 else vr(SM,4)))
    t0, t1, t2, t3 = AC, AC+1, AC+2, AC+3
    a(f'v_max3_f32 v{t1}, v19, v{SM}, v{SM+1}'); a(f'v_max3_f32 v{t2}, v19, v{SM}, v{SM+1}')
    a(f'v_permlane32_swap_b32 v{t1}, v{t2}'); a(f'v_max_f32 v{t0}, v{t1}, v{t2}'); a(f'v_max_f32 v{t3}, v{t1}, v{t2}')
    a(f'v_permlane16_swap_b32 v{t0}, v{t3}'); a(f'v_max_f32 v{t0}, v{t0}, v{t3}'); a(f'v_mul_f32 v{t0}, s{sSCL}, v{t0}')
    ex = [S0+i for i in range(8)] + [SM, SM+1]
    for r in ex: a(f'v_fma_f32 v{r}, v{r}, s{sSCL}, -v{t0}')
    for r in ex: a(f'v_exp_f32 v{r}, v{r}')
    a(f'v_pk_add_f32 {vr(t0,2)}, {vr(S0,2)}, {vr(S0+2,2)}'); a(f'v_pk_add_f32 {vr(t2,2)}, {vr(S0+4,2)}, {vr(S0+6,2)}')
    a(f'v_pk_add_f32 {vr(t0,2)}, {vr(t0,2)}, {vr(SM,2)}'); a(f'v_pk_add_f32 {vr(t0,2)}, {vr(t0,2)}, {vr(t2,2)}')
    a(f'v_add_f32 v{t2}, v{t0}, v{t1}'); a(f'v_add_f32 v{t3}, v{t0}, v{t1}')
    a(f'v_permlane32_swap_b32 v{t2}, v{t3}'); a(f'v_add_f32 v{t0}, v{t2}, v{t3}'); a(f'v_add_f32 v{t1}, v{t2}, v{t3}')
    a(f'v_permlane16_swap_b32 v{t0}, v{t1}'); a(f'v_add_f32 v{t0}, v{t0}, v{t1}'); a(f'v_rcp_f32 v{t0}, v{t0}')
    for r in ex: a(f'v_mul_f32 v{r}, v{r}, v{t0}')
    for k in range(4): a(f'v_cvt_pk_bf16_f32 v{PX+k}, v{S0+2*k}, v{S0+2*k+1}')
    a(f'v_cvt_pk_bf16_f32 v{PM}, v{SM}, v{SM+1}'); a(f'v_cvt_pk_bf16_f32 v{PM+3}, v{SM}, v{SM+1}')
    for et in range(4): a(mfm(OC+4*et, VV+4*et, PX, '0'))
    for et in range(4):
        a(f'v_mfma_f32_16x16x16_bf16 {vr(OC+4*et,4)}, {vr(KVM+4*(et>>1)+2,2)}, {vr(PM+2*(et&1),2)}, {vr(OC+4*et,4)}')
    a(f's_lshl_b32 s{sT0}, s{sHD}, 12'); a(f's_lshl_b32 s{sT1}, s{sEH}, 11'); a(f's_add_u32 s{sT0}, s{sT0}, s{sT1}'); a(f's_add_u32 s{sT0}, s{sT0}, s{sOB}')
    a(f's_lshl_b32 s{sT1}, s{sCU}, 4'); a(f's_lshl_b32 s{sT2}, s4, 2'); a(f's_add_u32 s{sT1}, s{sT1}, s{sT2}'); a(f's_add_u32 s{sT1}, s{sT1}, s{sGF}')
    a(f'v_mov_b32 v20, s{sRND}')
    for ep in range(2):
        for r in range(4): a(f'v_cvt_pk_bf16_f32 v{OP+4*ep+r}, v{OC+8*ep+r}, v{OC+8*ep+4+r}')
    a('s_cmp_eq_u32 s7, 1')
    both([f'buffer_store_dwordx4 {vr(OP+4*ep,4)}, v{L16}, {WS}, s{sT0} offen offset:{ep*1024}' for ep in range(2)], 'P2_so')
    a('s_waitcnt vmcnt(0)')
    both([f'buffer_store_dword v20, off, {WS}, s{sT1}'], 'P2_sf')
    a(f's_lshl_b32 s{sT0}, s4, 6'); a(f's_add_u32 s{sT0}, s{sT0}, s{sGF}')
    spin_ge(a, 'P2_gf', f'buffer_load_dword v20, v{FL}, {WS}, s{sT0} offen sc1', 1, 20, f's{sRND}', sleep=opt.get('gfsleep', 0))
    a(f's_lshl_b32 s{sT1}, s4, 15'); a(f's_add_u32 s{sT0}, s{sOB}, s{sT1}')
    R0 = 32
    for n in range(32):
        if n % 4 == 0 and n: a(f's_add_u32 s{sT0}, s{sT0}, 4096')
        a(f'buffer_load_dwordx4 {vr(R0+4*n,4)}, v{L16}, {WS}, s{sT0} offen offset:{(n&3)*1024} sc1')
    for n in range(32):
        a(f's_waitcnt vmcnt({31-n})')
        for t in range(2): a(mfm(AC+4*t, (n*2+t)*4, R0+4*n, '0' if n == 0 else vr(AC+4*t,4), 'a', 'v'))
    AA = 20
    reduce(AA, False)
    for k in range(2): a(f'v_mul_f32 v{AA+k}, v{GG}, v{AA+k}')
    rnd2(AA, AA)
    a(f'v_pk_add_f32 {vr(AA,2)}, {vr(AA,2)}, {vr(BB,2)}')
    a(f'v_cvt_pk_bf16_f32 v{AA}, v{AA}, v{AA+1}')
    a(f's_lshl_b32 s{sT0}, s{sUN}, 14')
    a(f'buffer_store_dword v{AA}, v{OA_}, {srd(sD)}, s{sT0} offen')
    a(f's_xor_b32 s{sOB}, s{sOB}, 0x20000')
    a(f's_add_u32 s{sUN}, s{sUN}, 14'); a(f's_add_u32 s{sRND}, s{sRND}, 1')
    a(f's_cmp_lt_u32 s{sUN}, 128')
    a('s_cbranch_scc1 P2_loop')
```

```python
import sys
from asmlib import *
from common import *
import team as TM
import worker as WK
NAME = 'gated_mix__memory_aug_recurrent_mem_tr__swiglu_ffn__prompt'

def spin_dbg(a, off, target, label, v=(60, 61), s=(60, 61), sleep=0, mask=None):
    a(f'v_mov_b32 v{v[0]}, {off}')
    a(f's_mov_b32 s{s[0]}, 0')
    a.label(label)
    if sleep: a(f's_sleep {sleep}')
    a(f'buffer_load_dword v{v[1]}, v{v[0]}, {srd(sDBG)}, 0 offen sc1')
    a('s_waitcnt vmcnt(0)')
    a(f'v_readfirstlane_b32 s{s[1]}, v{v[1]}')
    if mask: a(f's_and_b32 s{s[1]}, s{s[1]}, {mask:#x}')
    a(f's_add_u32 s{s[0]}, s{s[0]}, 1')
    a(f's_cmp_ge_u32 s{s[0]}, {SPIN_MAX}')
    a('s_cbranch_scc1 L_fail')
    a(f's_cmp_lt_u32 s{s[1]}, {target}')
    a(f's_cbranch_scc1 {label}')

def spin_ready(a, label, v=(8, 9)): spin_dbg(a, DB_READY, 256, label, v=v, s=(60, 63), mask=0xffff)

def report(a, v):
    a(f's_mov_b32 s63, {DB_READY}'); a('s_cmp_eq_u32 s99, 0'); a('s_cselect_b32 s63, s63, 0x7fffff00'); a('s_mov_b32 s99, 1')
    a(f'v_mov_b32 v{v}, 1'); a('s_mov_b64 exec, 1')
    a(f'buffer_atomic_add v{v}, off, {srd(sDBG)}, s63'); a('s_mov_b64 exec, -1')

def wg_atomic_inc(a, off, tag, v=(60, 61)):
    a('s_waitcnt vmcnt(0)')
    a('s_barrier')
    a('s_cmp_lg_u32 s4, 0')
    a(f's_cbranch_scc1 {tag}')
    a(f'v_mov_b32 v{v[0]}, {off}'); a(f'v_mov_b32 v{v[1]}, 1')
    a('s_mov_b64 exec, 1')
    a(f'buffer_atomic_add v{v[1]}, v{v[0]}, {srd(sDBG)}, 0 offen')
    a('s_mov_b64 exec, -1')
    a.label(tag)

def build(opt):
    a = Asm()
    kn = opt.get('kname', NAME + '_kernel')
    a('s_cmp_ge_u32 s2, %d' % (0 if opt.get('empty') else 256))
    a('s_cbranch_scc1 L_exit')
    if opt.get('timing') or opt.get('stamps'):
        a('s_memrealtime s[90:91]')
    load_srd(a, sWS, 'ws'); load_srd(a, sDBG, 'dbg'); load_srd(a, sA, 'Wq'); load_srd(a, sB, 'Wo')
    a('s_getreg_b32 s3, hwreg(HW_REG_XCC_ID, 0, 3)')
    a('v_lshrrev_b32 v1, 6, v0')
    a('v_readfirstlane_b32 s4, v1')
    if opt.get('fake_xcc'):
        a(f's_mul_hi_u32 s3, s2, {-(-(1 << 32)//31):#x}'); a('s_min_u32 s3, s3, 7')
    def cnt_off(a, d, x):
        a(f's_lshl_b32 s{d}, s{x}, 2'); a(f's_add_u32 s{d}, s{d}, 128'); a(f's_cmp_eq_u32 s{x}, 0'); a(f's_cselect_b32 s{d}, 0, s{d}')
    cnt_off(a, 6, 3)
    a(f'v_mov_b32 v2, s6'); a('v_mov_b32 v3, 1'); a(f'v_mov_b32 v4, {LDS_MISC}')
    a('v_mov_b64 v[8:9], 0'); a('v_mov_b64 v[10:11], 0'); a('v_lshlrev_b32 v5, 4, v0'); a('s_lshl_b32 s7, s2, 6')
    a('s_waitcnt lgkmcnt(0)')
    if opt.get('team_only'):
        a('s_cmp_lg_u32 s3, 0'); a('s_cbranch_scc1 L_exit')
    a('s_mov_b32 s99, s4')
    a('s_cmp_lg_u32 s4, 0')
    a('s_cbranch_scc1 L_hint')
    a('s_mov_b64 exec, 1')
    a(f'buffer_atomic_add v3, v2, {srd(sDBG)}, 0 offen sc0')
    if not opt.get('dev'):
        a('s_mov_b64 exec, 15')
        a(f'buffer_store_dwordx4 v[8:11], v5, {srd(sWS)}, s7 offen sc1')
        a('s_mov_b64 exec, 1')
    a('s_barrier')
    a('s_waitcnt vmcnt(0)')
    a('ds_write_b32 v4, v3')
    a('s_waitcnt lgkmcnt(0)')
    a('s_mov_b64 exec, -1')
    a('s_branch L_tk')
    a.label('L_hint')
    a('v_and_b32 v12, 63, v0'); a('v_lshlrev_b32 v12, 7, v12'); a('s_lshr_b32 s40, s2, 3')
    a('s_barrier')
    a('s_cmp_lg_u32 s3, 0'); a('s_cbranch_scc1 L_h1')
    a('s_cmp_lg_u32 s4, 1'); a('s_cbranch_scc1 L_h2')
    a('s_and_b32 s41, s40, 7'); a('s_lshl_b32 s41, s41, 23'); a('v_lshlrev_b32 v13, 13, v12')
    a('s_mov_b64 exec, 0xff')
    a(f'buffer_load_dword v250, v13, {srd(sWS)}, s41 offen sc1')
    a('s_mov_b64 exec, -1')
    a('s_branch L_h2')
    a.label('L_h1')
    if opt.get('mall', True):
        a('s_lshl_b32 s41, s2, 14'); a('s_add_u32 s42, s41, 0x2000')
        a('s_cmp_eq_u32 s4, 1'); a('s_cbranch_scc1 L_m1')
        a('s_cmp_eq_u32 s4, 3'); a('s_cbranch_scc1 L_h2')
        a(f'buffer_load_dword v250, v12, {srd(sB)}, s41 offen'); a(f'buffer_load_dword v250, v12, {srd(sB)}, s42 offen')
        a('s_branch L_h2')
        a.label('L_m1')
        a(f'buffer_load_dword v250, v12, {srd(sA)}, s41 offen'); a(f'buffer_load_dword v250, v12, {srd(sA)}, s42 offen')
    a.label('L_h2')
    if opt.get('cpf', False):
        a('s_cmp_lg_u32 s4, 3'); a('s_cbranch_scc1 L_tk')
        if not opt.get('cpf0', 1): a('s_cmp_eq_u32 s3, 0'); a('s_cbranch_scc1 L_tk')
        a(f's_cmp_ge_u32 s40, NCHUNK'); a('s_cbranch_scc1 L_tk')
        a('s_getpc_b64 s[42:43]')
        a('s_and_b32 s42, s42, 0xffffff00')
        a('s_lshl_b32 s40, s40, 13'); a('v_add_u32 v12, s40, v12')
        a('global_load_dword v251, v12, s[42:43]')
    a.label('L_tk')
    a('s_barrier')
    a('ds_read_b32 v3, v4')
    a('v_readfirstlane_b32 s5, v3')
    a('s_cmp_ge_u32 s5, 32')
    a('s_cbranch_scc1 L_over')
    a.label('L_role')
    a('s_cmp_lg_u32 s3, 0')
    a('s_cbranch_scc1 L_worker')
    if opt.get('no_team'): a('s_endpgm')
    def wave0_inc(a, off):
        a(f's_mov_b32 s63, {off}'); a('s_cmp_eq_u32 s4, 0'); a(f's_cselect_b32 s63, s63, 0x7fffff00')
        a('v_mov_b32 v98, 1'); a('s_mov_b64 exec, 1')
        a(f'buffer_atomic_add v98, off, {srd(sDBG)}, s63'); a('s_mov_b64 exec, -1')
    def h0(a, tmp):
        TM.team_consts(a, tmp, opt.get('rs', REP_ST)); TM.team_init1(a, tmp); return 4
    def h1(a, tmp):
        TM.team_init2(a)
        return 1
    def h3(a, tmp):
        a(f's_mov_b32 s63, {DB_READY}'); a('s_cmp_eq_u32 s4, 0'); a('s_cselect_b32 s63, s63, 0x7fffff00')
        a('s_sub_u32 s62, 0x10001, s99')
        a('v_mov_b32 v98, s62'); a('s_mov_b64 exec, 1')
        a(f'buffer_atomic_add v98, off, {srd(sDBG)}, s63'); a('s_mov_b64 exec, -1')
        return 1
    def ask(a):
        TM.kv_issue(a, 89)
        a(f'buffer_load_dwordx4 v[92:95], off, {srd(sDBG)}, 0 sc1')
    def seen(a):
        a('v_readfirstlane_b32 s61, v92'); a('v_readfirstlane_b32 s63, v94')
        a('s_cmp_ge_u32 s63, %#x' % (0x200000 if opt.get('dev') else 0x200100)); a('s_cselect_b32 s60, 1, 0')
    def judge(a, tag):
        TM.kv_eval(a, 89)
        a(f's_cmp_ge_u32 s{TM.sAV}, 3'); a('s_cselect_b32 s62, s60, 0')
        seen(a)
        a('s_cmp_eq_u32 s62, 0'); a(f's_cbranch_scc1 {tag}')
        TM.team_first_issue(a, 88)
    def h5(a, tmp):
        TM.kv_addr(a, 89)
        a(f'buffer_load_dwordx4 v[92:95], off, {srd(sDBG)}, 0 sc1')
    def h6(a, tmp):
        seen(a); ask(a)
        wave0_inc(a, DB_TEAMLD)
        if opt.get('lpf', 1):
            a('s_getpc_b64 s[64:65]'); a('s_and_b32 s64, s64, 0xffffff80')
            a(f'v_lshlrev_b32 v96, 3, v{TM.L16}'); a('s_lshl_b32 s63, s4, 13'); a('v_add_u32 v96, s63, v96')
            a('global_load_dword v97, v96, s[64:65]')
            return 2
        return 1
    def h7(a, tmp):
        judge(a, 'L_h7n')
        a('s_branch L_h7e')
        a.label('L_h7n')
        ask(a)
        a.label('L_h7e')
        TM.team_warm(a, 100, False)
        return 0
    TM.team_setup(a, opt, {'pre': h0, 1: h1, 3: h3, ('b', 5): h5, 6: h6, 7: h7})
    if opt.get('timing') or opt.get('stamps'):
        a('s_memrealtime s[92:93]'); a('s_waitcnt lgkmcnt(0)'); a('s_lshl_b32 s91, s92, 1'); a('s_add_u32 s91, s91, s62')
    a('s_cmp_eq_u32 s62, 1'); a('s_cbranch_scc1 L_pre')
    a(f's_mov_b32 s{TM.sSPIN}, 0')
    a('s_branch L_st1')
    a.label('L_st0')
    ask(a)
    a(f's_add_u32 s{TM.sSPIN}, s{TM.sSPIN}, 1'); a(f's_cmp_ge_u32 s{TM.sSPIN}, {SPIN_MAX}'); a('s_cbranch_scc1 L_fail')
    a.label('L_st1')
    a('s_waitcnt vmcnt(0)')
    judge(a, 'L_st0')
    a.label('L_pre')
    TM.team_first_kv(a)
    if opt.get('force_slow'):
        TM.team(a, 'sc1', 'S', opt)
    else:
        a('s_cmp_lt_u32 s61, 32'); a('s_cbranch_scc1 L_tslow')
        TM.team(a, '', 'T', opt)
        a.label('L_tslow')
        if opt.get('noslow'): a('s_endpgm')
        else: TM.team(a, 'sc1', 'S', opt)
    a.label('L_over')
    a('s_barrier')
    a('s_cmp_lg_u32 s4, 0'); a('s_cbranch_scc1 L_ov1')
    a(f'v_mov_b32 v2, {DB_OVF}'); a('v_mov_b32 v3, 1'); a('s_mov_b64 exec, 1')
    a(f'buffer_atomic_add v3, v2, {srd(sDBG)}, 0 offen sc0')
    a('s_waitcnt vmcnt(0)')
    a('ds_write_b32 v4, v3'); a('s_waitcnt lgkmcnt(0)'); a('s_mov_b64 exec, -1')
    a.label('L_ov1')
    a('s_barrier')
    a('ds_read_b32 v3, v4')
    a('v_readfirstlane_b32 s7, v3')
    report(a, 7)
    spin_ready(a, 'L_ov2')
    a('s_mov_b32 s3, 0')
    a.label('L_ov3')
    cnt_off(a, 6, 3)
    a('v_mov_b32 v8, s6')
    a(f'buffer_load_dword v9, v8, {srd(sDBG)}, 0 offen sc1'); a('s_waitcnt vmcnt(0)')
    a('v_readfirstlane_b32 s5, v9')
    a('s_min_u32 s5, s5, 32'); a('s_add_u32 s5, s5, s7')
    a('s_cmp_lt_u32 s5, 32'); a('s_cbranch_scc1 L_role')
    a('s_sub_u32 s7, s5, 32')
    a('s_add_u32 s3, s3, 1'); a('s_cmp_lt_u32 s3, 8'); a('s_cbranch_scc1 L_ov3')
    a('s_branch L_fail')
    a.label('L_worker')
    a('s_sub_u32 s6, s3, 1'); a('s_lshl_b32 s6, s6, 5'); a('s_add_u32 s6, s6, s5')
    def ready_wait(a, tag):
        if not opt.get('dev'):
            a('s_cmp_lg_u32 s4, 0'); a(f's_cbranch_scc1 {tag}_e')
            spin_dbg(a, DB_READY, 256, tag, v=(8, 9), s=(60, 63), mask=0xffff, sleep=opt.get('rsl', 4))
            a.label(tag + '_e')
    WK.WST[0] = bool(opt.get('timing') or opt.get('stamps'))
    if WK.WST[0]:
        a('s_lshl_b32 s60, s6, 7'); a(f's_add_u32 s60, s60, {WS_DBG + 0x8000:#x}')
        a('v_mov_b32 v8, s90')
        a(f'buffer_store_dword v8, off, {srd(sWS)}, s60')
    def pause(a, tag):
        if opt.get('pause', True) and not opt.get('dev'):
            a('s_cmp_lg_u32 s4, 0'); a(f's_cbranch_scc1 {tag}_e')
            spin_dbg(a, DB_TEAMLD, 32, tag, v=(8, 9), sleep=8)
            a.label(tag + '_e')
            a('s_barrier')
    WK.PAUSE[0] = pause
    WK.REPORT[0] = report
    WK.OPT.clear(); WK.OPT.update(opt)
    if not opt.get('no_p1'): WK.phase1(a, ready_wait)
    cnt_off(a, 60, 3)
    a('v_mov_b32 v8, s60')
    a(f'buffer_load_dword v9, v8, {srd(sDBG)}, 0 offen sc1'); a('s_waitcnt vmcnt(0)')
    a('v_readfirstlane_b32 s7, v9')
    a('s_cmp_ge_u32 s7, 32'); a(f's_cselect_b32 s7, {0 if opt.get("force_slow") else 1}, 0')
    if not opt.get('no_p2'): WK.phase2(a, opt)
    WK.wstamp(a, 15)
    a('s_waitcnt vmcnt(0)')
    a('s_endpgm')
    a.label('L_fail')
    a('s_mov_b64 exec, 1')
    a(f'v_mov_b32 v1, {DB_ERR}'); a('v_mov_b32 v2, 1')
    a(f'buffer_atomic_add v2, v1, {srd(sDBG)}, 0 offen')
    a('s_waitcnt vmcnt(0)')
    a.label('L_exit')
    a('s_endpgm')
    body = pad(auto_lgkm(resolve_waitv(a.lines)), verbose=opt.get('verbose', False))
    n_ins = sum(1 for l in body if l.startswith('    '))
    nchunk = 2 if opt.get('noslow') else opt.get('nchunk', 9)
    body = [l.replace('NCHUNK', str(nchunk)) for l in body]
    hdr = [f'; @launch grid=(256,1,1) block=(256,1,1) lds=163840',
           '.amdgcn_target "amdgcn-amd-amdhsa--gfx950"', '.text', f'.globl {kn}', '.p2align 8', f'.type {kn},@function', f'{kn}:']
    ftr = ['.section .rodata,"a"', '.p2align 6', f'.amdhsa_kernel {kn}', '  .amdhsa_next_free_vgpr 512', '  .amdhsa_next_free_sgpr 100',
           '  .amdhsa_accum_offset 256', '  .amdhsa_group_segment_fixed_size 0', '  .amdhsa_kernarg_size 120', '  .amdhsa_user_sgpr_count 2',
           '  .amdhsa_user_sgpr_kernarg_segment_ptr 1', '  .amdhsa_system_sgpr_workgroup_id_x 1', '  .amdhsa_float_denorm_mode_32 3', '.end_amdhsa_kernel']
    return '\n'.join(hdr + body + ftr) + '\n'

if __name__ == '__main__':
    opt = eval(sys.argv[2]) if len(sys.argv) > 2 else {}
    open(sys.argv[1], 'w').write(build(opt))
```

```python
from asmlib import *
from common import *
import math
L_WO, L_K0 = 0, 131072
L_K1 = L_K0 + 8192 + 64
L_QX = L_K1 + 8192 + 64
XS = 288; XSZ = 2304
L_V = L_QX + 3*XSZ
assert L_V + 8192 <= LDS_MISC and L_V % 16 == 0
L16, IDX, POI4 = 0, 1, 2
PST, PUB, XW, QR, OR_, WOB, V4 = range(6, 13)
VMP = V4+2
SELA, ONES, VB, MEMF, KX, ACQ, ACK, ACV = 16, 20, 24, 40, 72, 104, 112, 120
KMR = VB+2
QF = KX
WV = 128
sHALF, sEVEN, sPOI, sPLO, sPHI, sSCL = 32, 34, 36, 37, 38, 39
sSTEP, sSLOT, sSLOTN, sSLOTP, sINB, sINBO, sKV, sKM, sMK, sSPIN, sT0, sT1, sT2, sKS, sTF, sM0, sINB2, sMV, sW2, sHO = range(40, 60)
sKB, sP1, sKD = sTF, sW2, sHO
sI1, sI2 = 37, 38
sPEX = 88
sFO = 6
sACC = 16
def db(b): return 32*(b >> 2) + 8*(b & 1) + 2*((b >> 1) & 1)
def smf(d, A, B, f='v'): return f'v_smfmac_f32_16x16x64_bf16 {vr(d,4)}, {vr(A,4)}, {vr(B,8,f)}, v{IDX}'
def mf(d, A, B, C='0'): return f'v_mfma_f32_16x16x32_bf16 {vr(d,4)}, {vr(A,4)}, {vr(B,4)}, {C}'
def z2(r): return f'v_mov_b64 {vr(r,2)}, 0'

def slots(a, mfl, plan):
    for i, m in enumerate(mfl):
        a(m)
        fl = plan.pop(i, [])
        for x in fl:
            if not x.startswith('v_') and not x.startswith('>'): a(x)
        for x in fl:
            if x.startswith('v_'): a(x)
        for x in fl:
            if x.startswith('>'): a(x[1:])
    assert not plan, plan

HM = [0]
def heat(a, n, r):
    for i in range(n):
        if HM[0] == 1: a(smf(MEMF+28, KX, 8*(i % 32), 'a'))
        elif HM[0] == 2: a('s_nop 3')
        else: a(f'v_mov_b32 v{r}, v{r}'); a('s_nop 2')

def kx_addr(t0, t1):
    return [f'v_and_b32 v{t0}, 0x310, v{L16}', f'v_and_b32 v{t1}, 0x60, v{L16}', f'v_lshl_add_u32 v{t0}, v{t1}, 1, v{t0}',
            f'v_bfe_u32 v{t1}, v{L16}, 7, 1', f'v_mul_u32_u24 v{t1}, {4096+32}, v{t1}', f'v_add3_u32 v{t0}, v{t0}, v{t1}, s{sKB}']
def kv_reads(t0, MR):
    r = [f'ds_read_b128 {vr(KX+4*j,4)}, v{t0} offset:{(j&3)*1024 + (j>>2)*32}' for j in range(8)]
    r += [f'ds_read_b64 {vr(VB+8*t+4*u,2)}, v{MR} offset:{t*1024 + u*8}' for t in (0, 1) for u in (0, 1)]
    return r
def v_dma():
    WS = srd(sWS)
    return [[f's_mov_b32 m0, s{sMV}', f's_add_u32 s{sT2}, s{sKV}, {WS_VF - WS_KF:#x}'],
            [f'buffer_load_dwordx4 v{L16}, {WS}, s{sT2} offen sc1 lds'],
            [f'buffer_load_dwordx4 v{L16}, {WS}, s{sT2} offen offset:1024 sc1 lds ; vdma']]
def k_dma(adv=True):
    WS = srd(sWS)
    return [[f's_add_u32 m0, s{sMK}, s{sKD}', f's_add_u32 s{sKV}, s{sKV}, {32*8192 if adv else 0:#x}'],
            [f'buffer_load_dwordx4 v{L16}, {WS}, s{sKV} offen sc1 lds'],
            [f'buffer_load_dwordx4 v{L16}, {WS}, s{sKV} offen offset:1024 sc1 lds']]
def xa_set(): return [f's_add_u32 s{sP1}, s{sSLOT}, 0x1000']

DEFAULTS = dict(merge=True, nq=0, qa=(35,35,35,35,36,36,37), ka=(37,37,37,37,38,38,39), b2=43, b3=47, kp=33, vd=(34,36), nops=(33,), fp=41,
                lat=(-1,-1,-1,2,5,8), da=(13,14,18,21,22,26), zb=5, h4b=0, po=(24,30), stp=(11,23,35,47,55), pa0=(0,0,0,0,1,1,2), zin=(1,2,3,3,6,6,7,7))
def team(a, sf, tag, opt):
    opt = {**DEFAULTS, **opt}
    HM[0] = opt.get('hm', 0)
    if sf != '' or opt.get('shared'): return team1(a, sf, tag, opt, None)
    for w in range(3):
        a(f's_cmp_eq_u32 s4, {w}'); a(f's_cbranch_scc1 {tag}_full{w}')
    for w in (3, 0, 1, 2):
        if w < 3: a.label(f'{tag}_full{w}')
        o = dict(opt); o.update(opt.get('pw', {}).get(w, {}))
        for k, v in opt.get('stag', {}).items():
            base = o[k]
            o[k] = tuple(x + v*w for x in base) if isinstance(base, tuple) else base + v*w
        team1(a, sf, f'{tag}{w}', o, w)

def team1(a, sf, tag, opt, only):
    stamps = opt.get('stamps', False)
    nstep = opt.get('nstep', 64)
    NST = 14
    def st(i): return [f'{"s_memrealtime" if opt.get("raw") else "s_memtime"} s[{60+2*i}:{61+2*i}] ; nowait'] if stamps else []
    def stamp(i):
        for x in st(i): a(x)
    HT = VB+14
    def stamp_acc():
        if stamps and not opt.get('lacc'):
            a('s_waitcnt lgkmcnt(0)')
            for i in range(NST):
                prev = 98 if i == 0 else 60+2*(i-1)
                if opt.get('raw'):
                    a(f's_cmp_eq_u32 s{sSTEP}, {opt["raw"] + (1 if i < 2 else 0)}')
                    a(f's_cselect_b32 s{sACC+i}, s{60+2*i}, s{sACC+i}')
                else:
                    a(f's_sub_u32 s99, s{60+2*i}, s{prev}')
                    a(f's_add_u32 s{sACC+i}, s{sACC+i}, s99')
                if i % 2 == 0: a(f'v_mov_b32 v{HT}, v{HT}')
            a(f's_mov_b32 s98, s{60+2*(NST-1)}')
    T = lambda n: f'{tag}_{n}'
    WS = srd(sWS)
    IB = MEMF+8; RA = MEMF+16; IT = MEMF+20
    p2 = [f'buffer_load_dwordx4 {vr(MEMF,4)}, v{L16}, {WS}, s{sSLOT} offen sc1',
          f'buffer_load_dwordx4 {vr(MEMF+4,4)}, v{L16}, {WS}, s{sSLOT} offen offset:1024 sc1']
    p1 = [f'buffer_load_dwordx4 {vr(IB,4)}, v{L16}, {WS}, s{sINB2} offen sc1',
          f'buffer_load_dwordx4 {vr(IB+4,4)}, v{L16}, {WS}, s{sINB2} offen offset:1024 sc1']
    def check2():
        b, t = MEMF, VB+10
        a(f'v_max3_u32 v{t}, v{b}, v{b+1}, v{b+2}')
        a(f'v_max3_u32 v{t}, v{t}, v{b+3}, v{b+4}')
        a(f'v_max3_u32 v{t}, v{t}, v{b+5}, v{b+6}')
        a(f'v_max_u32 v{t}, v{t}, v{b+7}')
        a(f'v_cmp_eq_u32 vcc, s{sPOI}, v{t}')
    def redtail():
        for rot in (4, 8):
            for r in range(2): a(f'v_add_f32_dpp v{RA+r}, v{RA+r}, v{RA+r} row_ror:{rot} row_mask:0xf bank_mask:0xf')
        a(f'v_cvt_pk_bf16_f32 v{IT+4}, v{RA}, v{RA+1}')
    def check1():
        t = IT
        a(f'v_max3_u32 v{t}, v{IB}, v{IB+1}, v{IB+2}')
        a(f'v_max3_u32 v{t}, v{t}, v{IB+3}, v{IB+4}')
        a(mf(RA, SELA, IB))
        a(f'v_max3_u32 v{t}, v{t}, v{IB+5}, v{IB+6}')
        a(f'v_max_u32 v{t}, v{t}, v{IB+7}')
        a(mf(RA, SELA, IB+4, vr(RA,4)))
        a(f'v_cmp_eq_u32 vcc, s{sPOI}, v{t}')
        if opt.get('spec', 1): redtail()
    def sample(name, loads, chk, depth, cnt, fill, warm=None, extra=0):
        for i in range(depth - 1):
            for x in loads: a(x)
            fill(i)
        a(T(name) + ': ; keep')
        for x in loads: a(x)
        if warm: a(warm)
        if stamps: a(f's_add_u32 s{sACC+cnt}, s{sACC+cnt}, 1')
        a(f's_add_u32 s{sSPIN}, s{sSPIN}, 1')
        a(f's_cmp_ge_u32 s{sSPIN}, {SPIN_MAX}')
        a('s_cbranch_scc1 L_fail ; keep')
        a(f's_waitcnt vmcnt({len(loads)*(depth-1) + extra})')
        chk()
        a(f's_cbranch_vccnz {T(name)} ; keep')
        a(T(name + 'ok') + ': ; keep')
    if stamps or opt.get('timing', False):
        for i in range(16): a(f's_mov_b32 s{sACC+i}, 0')
        a('s_memtime s[92:93]'); a('s_memrealtime s[94:95]'); a('s_waitcnt lgkmcnt(0)'); a('s_mov_b32 s98, s92')
        for i in range(14 if stamps else 0): a(f's_mov_b32 s{60+2*i}, s92')
    a(f's_mov_b32 s{sSPIN}, 0')
    for x in p2: a(x)
    for x in xa_set(): a(x)
    a('s_waitcnt vmcnt(0)')
    a(T('p2ok') + ': ; keep')
    eb = opt.get('eb', 2)
    Q = lambda k, t: smf(ACQ+4*t, MEMF+4*k, (k*2+t)*8, 'a')
    K = lambda k, t: smf(ACK+4*t, MEMF+4*k, 128+(k*2+t)*8, 'a')
    V = lambda k, t: smf(ACV+4*t, MEMF+4*k, WV+(k*2+t)*8)
    own = [Q(0,0), Q(0,1), Q(1,0), Q(1,1), K(0,0), K(0,1), K(1,0), K(1,1), V(0,0), V(0,1), V(1,0), V(1,1)]
    nq = opt.get('nq', 0)
    qk_ = [f(k, t) for k in range(2, 8-nq) for f in (Q, K) for t in (0, 1)] + [f(k, t) for f in (Q, K) for k in range(8-nq, 8) for t in (0, 1)]
    first = {k: 12 + qk_.index(Q(k, 0)) for k in range(2, 8)}
    vr_ = [V(k, t) for k in range(2, 8) for t in (0, 1)]
    S0, S1, SM, P = ACQ, ACQ+4, ACK, ACK+4
    xs = []
    for j in range(4):
        xs.append(mf(S0, KX+4*j, MEMF+4*j, '0' if j == 0 else vr(S0,4)))
        xs.append(mf(S1, KX+16+4*j, MEMF+4*j, '0' if j == 0 else vr(S1,4)))
    ms = [mf(SM, MEMF+16+4*j, MEMF+4*j, '0' if j == 0 else vr(SM,4)) for j in range(4)]
    M = own + qk_ + vr_ + xs + ms
    mld = lambda k: f'buffer_load_dwordx4 {vr(MEMF+4*k,4)}, v{L16}, {WS}, s{sP1 if k >= 4 else sSLOT} offen offset:{(k&3)*1024} sc1'
    def pk(ac): return [f'v_add_f32 v{ac}, v{ac}, v{ac+2}', f'v_add_f32 v{ac+1}, v{ac+1}, v{ac+3}',
                        f'v_add_f32 v{ac+4}, v{ac+4}, v{ac+6}', f'v_add_f32 v{ac+5}, v{ac+5}, v{ac+7}',
                        f'v_cvt_pk_bf16_f32 v{ac+2}, v{ac}, v{ac+4}', f'v_cvt_pk_bf16_f32 v{ac+3}, v{ac+1}, v{ac+5}']
    def xw(ac, off): return [f'ds_write_b32 v{XW}, v{ac+2} offset:{off}', f'ds_write_b32 v{XW}, v{ac+3} offset:{off+XS}']
    plan = {}
    def put(i, *xs_): plan.setdefault(i, []).extend(xs_)
    lat = opt.get('lat', (-1, -1, 0, 3, 6, 9))
    for k in range(2, 2+eb): a(mld(k))
    a(T('p2go') + ': ; keep')
    stamp(0)
    for k in range(2+eb, 8):
        if lat[k-2] < 0: a(mld(k))
        else: put(lat[k-2], mld(k))
    a('s_waitcnt lgkmcnt(1)')
    put(1, 's_waitcnt lgkmcnt(0)')
    da = opt.get('da', (13, 14, 16, 17, 18, 20)); po = opt.get('po', (24, 30)); kp = opt.get('kp', 46); fp = opt.get('fp', 27)
    CT = VB+10
    for k in range(2, 8):
        u = first[k] - 1
        put(u, f'waitv v{MEMF+4*k}')
        b = MEMF+4*k
        put(u+1, f'v_max_u32 v{CT}, v{b}, v{b+1}' if k == 2 else f'v_max3_u32 v{CT}, v{CT}, v{b}, v{b+1}')
        put(u+2, f'v_max3_u32 v{CT}, v{CT}, v{b+2}, v{b+3}')
    vd = opt.get('vd', (34, 36))
    assert vd[0] > first[7] + 1
    put(vd[0], f'v_cmp_eq_u32 vcc, s{sPOI}, v{CT}')
    put(vd[1], f's_cbranch_vccnz {T("redo")} ; keep')
    put(opt['stp'][0], *['>'+x for x in st(1)])
    kput = f'buffer_store_dwordx4 {vr(V4,4)}, v{L16}, {WS}, s{sKM} offen sc1'
    put(6, f'v_mov_b32 v{KMR}, v{QR}')
    put(7, f'v_mov_b32_dpp v{KMR}, v{QR} row_shl:4 row_mask:0xf bank_mask:0x2')
    put(9, f'v_mov_b32_dpp v{KMR}, v{QR} row_shr:4 row_mask:0xf bank_mask:0x4')
    put(0, f's_xor_b32 s{sINBO}, s{sINB2}, 0x40000')
    put(3, f's_add_u32 s{sI1}, s{sINB}, 0x1000')
    kd = k_dma()
    kd[0][1] = f's_add_u32 s{sI2}, s{sKV}, {32*8192:#x}'
    kd = [[x.replace(f's{sKV} offen', f's{sI2} offen') for x in g] for g in kd]
    put(42, f's_mov_b32 s{sKV}, s{sI2}')
    for n, xs_ in enumerate(v_dma() + kd): put(da[n], *xs_)
    assert (da[5] < da[0] or da[3] > da[2])
    pst = [f'buffer_store_dwordx4 {vr(POI4,4)}, v{L16}, {WS}, s{sINBO} offen offset:{o} {sf}' for o in (0, 1024)]
    for n in range(2):
        if po[n] < 60: put(po[n], pst[n])
    put(fp, f'buffer_store_dword v{POI4}, v{PUB}, {WS}, s{sSLOTP} offen {sf}')
    put(kp, kput)
    for i in opt.get('lwm', ()): put(i, f'ds_read_b32 v{VB+2}, v{XW} ; nowait')
    put(opt['stp'][1], *['>'+x for x in st(2)])
    put(opt['stp'][2], *['>'+x for x in st(3)])
    qa = opt.get('qa', (35, 35, 36, 36, 37, 37, 38))
    for n, x in enumerate(pk(ACQ)): put(qa[n], x)
    put(qa[6], *xw(ACQ, 0))
    for i in opt.get('nops', (27, 28, 35)): put(i, 's_nop 1')
    assert qa[6] >= vd[1]
    b2 = opt.get('b2', 42)
    if not opt.get('merge'): put(b2, 's_waitcnt lgkmcnt(0)', 's_barrier')
    qrd = [f'ds_read_b128 {vr(MEMF+4*j,4)}, v{QR} offset:{j*64}' for j in range(4)]
    k0 = opt.get('k0', 39)
    ka = opt.get('ka', tuple(k0+n for n in range(7)))
    pkk = pk(ACK)[:4] + [f'v_cvt_pk_bf16_f32 v{V4}, v{ACK}, v{ACK+4}', f'v_cvt_pk_bf16_f32 v{V4+1}, v{ACK+1}, v{ACK+5}']
    for n, x in enumerate(pkk): put(ka[n], x)
    put(ka[6], *xw(V4-2, XSZ))
    assert kp < ka[4]
    if opt.get('merge'): put(b2, 's_waitcnt lgkmcnt(0)', 's_barrier')
    put(b2, qrd[0]); put(b2+1, qrd[1], qrd[2]); put(b2+2, qrd[3])
    put(opt['stp'][3], *['>'+x for x in st(4)])
    b3 = opt.get('b3', 49)
    if not opt.get('merge'): put(b3, 's_waitcnt lgkmcnt(0)', 's_barrier')
    kmr = [f'ds_read_b128 {vr(MEMF+16+4*j,4)}, v{KMR} offset:{XSZ + j*64}' for j in range(4)]
    put(b3, kmr[0]); put(b3+1, kmr[1], kmr[2]); put(b3+2, kmr[3])
    ac = ACV
    fv = [f'v_add_f32 v{ac}, v{ac}, v{ac+2}', f'v_add_f32 v{ac+1}, v{ac+1}, v{ac+3}',
          f'v_add_f32 v{ac+4}, v{ac+4}, v{ac+6}', f'v_add_f32 v{ac+5}, v{ac+5}, v{ac+7}',
          f'v_cvt_pk_bf16_f32 v{VMP}, v{ac}, v{ac+1}', f'v_cvt_pk_bf16_f32 v{VMP+1}, v{ac+4}, v{ac+5}',
          f'v_cndmask_b32 v{VB+2}, 0, v{VMP}, s[{sEVEN}:{sEVEN+1}]', f'v_cndmask_b32 v{VB+6}, v{VMP}, 0, s[{sEVEN}:{sEVEN+1}]',
          f'v_cndmask_b32 v{VB+10}, 0, v{VMP+1}, s[{sEVEN}:{sEVEN+1}]', f'v_cndmask_b32 v{VB+14}, v{VMP+1}, 0, s[{sEVEN}:{sEVEN+1}]']
    fa = opt.get('fa', (50, 50, 51, 51, 52, 52, 53, 54, 55, 55))
    for x, i in zip(fv, fa): put(i, x)
    put(opt['stp'][4], *['>'+x for x in st(5)])
    order = [(2*ph + t, ks2) for ph in range(4) for ks2 in (0, 1) for t in (0, 1)]
    bufs = ([KX+8*b for b in range(4)] + [MEMF+8*b for b in range(4)]) * 2
    def word(n):
        return [f'ds_read_b128 {vr(bufs[n]+4*hf,4)}, v{WOB} offset:{wo_off(order[n][0], order[n][1], hf)}' for hf in range(2)]
    w2, w3, w4, w5 = word(0), word(1), word(2), word(3)
    put(52, w2[0]); put(53, w4[0]); put(54, w2[1]); put(55, w4[1]); put(56, w3[0]); put(57, w5[0]); put(58, w3[1]); put(59, w5[1])
    put(55, 's_waitcnt lgkmcnt(3)')
    put(56, z2(ACV), z2(ACV+2)); put(57, z2(ACV+4), z2(ACV+6))
    put(58, f'v_max3_f32 v{P}, v{S0}, v{S0+1}, v{S0+2}', f'v_max3_f32 v{P+1}, v{S1}, v{S1+1}, v{S1+2}')
    put(46, f's_cmp_eq_u32 s{sSTEP}, {nstep-1}')
    put(49, 's_waitcnt lgkmcnt(4)')
    fin_at = 54
    put(max(fa[4], fa[5]) + 1, f's_cbranch_scc1 {T("fin")} ; keep')
    akv = opt.get('akv', 1) and only == 1
    if akv:
        fs = opt.get('fs', 28)
        put(fs-1, f's_mov_b32 m0, {L_FL}', f'v_lshrrev_b32 v{VB+6}, 2, v{L16}')
        put(fs, f'buffer_load_dword v{VB+6}, {WS}, s{sFO} offen sc1 lds ; fdma')
        assert fs - 1 > max(da)
    if stamps and opt.get('lacc'):
        seq = list(range(2, 14)) + [0, 1]
        put(12, 's_waitcnt lgkmcnt(0)')
        for n, i in enumerate(seq):
            prev = 98 if n == 0 else 60+2*seq[n-1]
            if opt.get('raw'): put(13 + n*10//14, f's_cmp_eq_u32 s{sSTEP}, {opt["raw"]}', f's_cselect_b32 s{sACC+i}, s{60+2*i}, s{sACC+i}')
            else: put(13 + n*10//14, f's_sub_u32 s99, s{60+2*i}, s{prev}', f's_add_u32 s{sACC+i}, s{sACC+i}, s99')
        put(23, f's_mov_b32 s98, s62')
    drop = opt.get('drop', [])
    for i, m in enumerate(M):
        slots(a, [m], {0: [x for x in plan.pop(i, []) if not any(d in x for d in drop)]})
    assert not plan
    pre = word(4) + word(5) + word(6) + word(7)
    M0, M1 = SM+2, SM+3
    LS, O = SM, ACV
    ex = [S0, S0+1, S0+2, S0+3, SM, SM+1]
    sm = [f'v_max3_f32 v{P}, v{P}, v{S0+3}, v{S1+3}', f'v_max_f32 v{P}, v{P}, v{P+1}']
    sm += [f'v_cndmask_b32 v{S0+r}, v{S0+r}, v{S1+r}, s[{sHALF}:{sHALF+1}]' for r in range(4)]
    sm += [f'v_max3_f32 v{M0}, v{P}, v{SM}, v{SM+1}', f'v_max3_f32 v{M1}, v{P}, v{SM}, v{SM+1}',
           f'v_permlane32_swap_b32 v{M0}, v{M1}', f'v_max_f32 v{P}, v{M0}, v{M1}', f'v_max_f32 v{P+1}, v{M0}, v{M1}',
           f'v_permlane16_swap_b32 v{P}, v{P+1}', f'v_max_f32 v{M0}, v{P}, v{P+1}', f'v_mul_f32 v{M0}, s{sSCL}, v{M0}']
    sm += [f'v_fma_f32 v{r}, v{r}, s{sSCL}, -v{M0}' for r in ex]
    sm += [f'v_exp_f32 v{r}, v{r}' for r in ex]
    sm += [f'v_cvt_pk_bf16_f32 v{P}, v{S0}, v{S0+1}', f'v_cvt_pk_bf16_f32 v{P+2}, v{S0+2}, v{S0+3}',
           f'v_cvt_pk_bf16_f32 v{P+1}, v{SM}, v{SM+1}', f'v_cvt_pk_bf16_f32 v{P+3}, v{SM}, v{SM+1}']
    sm += [mf(LS, P, ONES), smf(O, P, VB), smf(O+4, P, VB+8)]
    sm += [f'v_add_f32 v{LS}, v{LS}, v{LS+2}', f'v_add_f32 v{LS+1}, v{LS+1}, v{LS+3}', f'v_rcp_f32 v{LS}, v{LS}', f'v_rcp_f32 v{LS+1}, v{LS+1}',
           f'v_pk_add_f32 {vr(O,2)}, {vr(O,2)}, {vr(O+2,2)}', f'v_pk_add_f32 {vr(O+4,2)}, {vr(O+4,2)}, {vr(O+6,2)}',
           f'v_pk_mul_f32 {vr(O,2)}, {vr(O,2)}, {vr(LS,2)}', f'v_pk_mul_f32 {vr(O+4,2)}, {vr(O+4,2)}, {vr(LS,2)}',
           f'v_cvt_pk_bf16_f32 v{O+2}, v{O}, v{O+4}', f'v_cvt_pk_bf16_f32 v{O+3}, v{O+1}, v{O+5}']
    pp = list(opt.get('pp', (7, 10, 29, 30, 31, 31, 32, 32)))
    bp = opt.get('bp', 42)
    n99 = pp.count(99)
    def sm_emit(lo, hi):
        for n in range(lo, hi):
            if n == 6: stamp(6)
            if n == 30: stamp(7)
            a(sm[n])
            for r, q in zip(pre, pp):
                if q == n: a(r)
    sm_emit(0, bp+1)
    def sm_rest():
        sm_emit(bp+1, len(sm))
        for x in xw(O, 2*XSZ): a(x)
        for r, q in zip(pre, pp):
            if q == 99: a(r)
        stamp(8)
    PW = opt.get('pw', {})
    DEF = [dict(er=(14,), n1=2, g1=5, d2=0, n2=3, g2=4), dict(d1=0, n1=2, g1=1, pre=2), dict(d1=0, n1=2, g1=7, pre=1), dict(d1=3, n1=2, g1=7, pre=1)]
    def tailcode(w, gopt):
        nonlocal plan
        opt = dict(gopt); opt.update(DEF[w]); opt.update(PW.get(w, {}))
        if bp < len(sm) - 1 and w < 3: a.nop(max(0, opt.get('bn', 4) - 2*w))
        sm_rest()
        PA = [VB, VB+8, ACQ, ACK]
        if po[0] == 60: a(pst[0])
        zb = opt.get('zb', 4)
        zin = opt.get('zin', (0, 0, 1, 1, 2, 2, 3, 3))
        zs = [z2(VB+2*z) for z in range(4)] + [z2(ACK+2*z) for z in range(4)] + [z2(VB+8+2*z) for z in range(4)] + [z2(ACQ+2*z) for z in range(4)]
        zi = zs[16-len(zin):]; zs = zs[:16-len(zin)]
        for x in zs[:zb]: a(x)
        a(f's_waitcnt lgkmcnt({n99})')
        a('s_barrier')
        OA = ACV
        a(f'ds_read_b128 {vr(OA,4)}, v{OR_} offset:{2*XSZ}')
        a(f'ds_read_b128 {vr(OA+4,4)}, v{OR_} offset:{2*XSZ+128}')
        for r, q in zip(pre, pp):
            if q == 100: a(r)
        if po[1] == 61: a(pst[1])
        for x in zs[zb:]: a(x)
        heat(a, opt.get('h4b', 1), VB)
        if opt.get('s9') is None: stamp(9)
        W = [smf(PA[n >> 2]+4*(order[n][0] & 1), OA+4*order[n][1], bufs[n]) for n in range(16)]
        plan = {}
        for x, i in zip(zi, zin): put(i, x)
        if opt.get('s9') is not None: put(opt['s9'], *['>'+x for x in st(9)])
        rd = [x for n in range(8, 16) for x in word(n)]
        at = opt.get('at', [0, 0, 1, 1, 2, 3, 3, 4, 5, 5, 6, 7, 8, 8, 9, 10])
        for n, (x, i) in enumerate(zip(rd, at)):
            assert i >= n // 2
            put(i, x)
        pstore = lambda ph: f'buffer_store_dwordx2 {vr(PA[ph]+2,2)}, v{PST}, {WS}, s{sI1 if ph >= 2 else sINB} offen offset:{(ph&1)*2048} {sf}'
        er = opt.get('er', ())
        for e in er:
            if e < 16: put(e, *[x + f' ; r{e}' for x in p1])
        pa = opt.get('pa', (0, 1, 1, 2, 3, 3, 4))
        pa0 = opt.get('pa0', pa)
        tail = []
        for ph in range(3):
            for x, r in zip(pk(PA[ph]) + [pstore(ph)], pa0 if ph == 0 else pa):
                if 4*(ph+1) + r <= 15: put(4*(ph+1) + r, x)
                else: tail.append(x)
        for i in opt.get('ww', (7, 9, 11, 13)):
            need_n = 2*(i+2-8) + 2
            issued = sum(1 for x in at if x <= i)
            put(i, f's_waitcnt lgkmcnt({issued - need_n})')
        put(0, f's_waitcnt lgkmcnt({sum(1 for x in at if x == 0) + pp.count(100)})')
        slots(a, W, plan)
        if 16 in er:
            for x in p1: a(x + ' ; r16')
        late = [x for x in tail if opt.get('l2') and x.startswith('buffer_store')]
        for x in tail:
            if x not in late: a(x)
        if 17 in er:
            for x in p1: a(x + ' ; r17')
        p = PA[3]
        a(f'v_pk_add_f32 {vr(p,2)}, {vr(p,2)}, {vr(p+2,2)}'); a(f'v_pk_add_f32 {vr(p+4,2)}, {vr(p+4,2)}, {vr(p+6,2)}')
        for x in pk(p)[4:]: a(x)
        if 18 in er:
            for x in p1: a(x + ' ; r18')
        a.nop(opt.get('l2n', 0))
        for x in late: a(x)
        a(pstore(3))
        stamp(10)
        kvr = kv_reads(IT+1, IT+3)
        work = kx_addr(IT+1, IT+2)
        zv = [f'v_add_u32 v{IT+3}, s{sMV}, v{L16}'] + [f'v_mov_b32 v{r}, 0' for r in (VB+3, VB+7, VB+11, VB+15)]
        for z in range(12): work += [kvr[z], z2(ACQ+2*z)] if z < 8 else [z2(ACQ+2*z)]
        nb = opt.get('w0', 12) if er else opt.get('w1', 26)
        sc = [f's_add_u32 s{sSTEP}, s{sSTEP}, 1', f's_xor_b32 s{sT0}, s{sSLOTN}, {2*SLOT_ST:#x}',
              f's_mov_b32 s{sSLOTN}, s{sSLOTP}', f's_mov_b32 s{sSLOTP}, s{sT0}', f's_xor_b32 s{sINB}, s{sINB}, 0x40000',
              f's_add_u32 s{sKM}, s{sKM}, {32*4096:#x}', f's_mov_b32 s{sSPIN}, 0',
              f's_mov_b32 s{sKD}, s{sKB}', f's_sub_u32 s{sKB}, {L_K0 + L_K1}, s{sKB}'] + xa_set()
        a(f's_mov_b32 s{sSLOT}, s{sSLOTN}')
        def part_a():
            for x in work[nb:]: a(x)
            for x in zv: a(x)
            a('waitm vdma' if only is not None else 's_waitcnt vmcnt(4)')
            for x in kvr[8:]: a(x)
        def part_b():
            a(f'v_add_u32 v{HT}, {L_QX + 2*XSZ}, v{L16}')
            for x in sc: a(x)
            a(f's_add_u32 s{sT1}, s{sSTEP}, 2')
            if not opt.get('pre', 0): kvc()
        def kvc():
            if w != 1: return
            if akv:
                t = MEMF+26
                kv_lane(a, t)
                a(f'v_add_u32 v{t}, {L_FL}, v{t}')
                a(f'ds_read_b32 v{t+1}, v{t}')
                kv_eval(a, t)
            a(f's_cmp_ge_u32 s{sT1}, s{sAV}')
            a(f's_cbranch_scc1 {T("kvw%d" % w)} ; keep')
            a(T('kvo%d' % w) + ': ; keep')
        pre_ = opt.get('pre', 0)
        stamp(11)
        if er:
            def fill(i):
                if i == 0:
                    for x in work[:nb]: a(x)
                if i == opt['n1'] - 2:
                    for e in er[opt.get('ec', 0):]:
                        a(f'waitm r{e}')
                        check1()
                        a(f's_cbranch_vccz {T("s1w%dok" % w)} ; keep')
                elif i: heat(a, opt['g1'], IT)
        else:
            for x in work[:nb]: a(x)
            if pre_ == 1: part_a(); part_b()
            heat(a, opt.get('d1', 0), IT)
            def fill(i):
                if pre_ == 2 and i == 0: part_a(); part_b()
                heat(a, opt['g1'], IT)
        sample('s1w%d' % w, p1, check1, opt['n1'], 14, fill)
        if not opt.get('spec', 1): redtail()
        a(f'buffer_store_dword v{IT+4}, v{PUB}, {WS}, s{sSLOT} offen {sf}')
        a(f's_xor_b32 s{sINB2}, s{sINB2}, 0x40000')
        if pre_: kvc()
        stamp(12)
        if not opt.get('s13'): stamp(13)
        dl = opt.get('dl', 0)
        if w == 0:
            if dl: a(f's_mov_b32 m0, {L_QX + 2*XSZ}')
            parts = [part_a, part_b, stamp_acc]
            pre_n = opt.get('pn', 1)
            for f in parts[:pre_n]: f()
            parts = parts[pre_n:]
            heat(a, opt.get('d2', 0), VB+6)
            def fill2(i):
                if parts and (parts[0] is not stamp_acc or stamps): parts.pop(0)()
                else: heat(a, opt['g2'], VB+6)
                if i == opt['n2'] - 2:
                    while parts: parts.pop(0)()
                    if dl: a('s_waitcnt lgkmcnt(0)')
            if dl:
                p2d = p2 + [f'buffer_load_dwordx4 v{L16}, {WS}, s{sSLOT} offen offset:{o} sc1 lds' for o in (0, 1024)]
                def chk2():
                    check2()
                    a(f's_waitcnt vmcnt({4*(opt["n2"]-1)})')
                sample('s2', p2d, chk2, opt['n2'], 15, fill2, extra=2)
                a('s_barrier')
                for k in range(2, 2+eb): a(mld(k))
            else:
                def chk2():
                    check2()
                    if opt.get('spec2', 0):
                        a(f'ds_write_b128 v{HT}, {vr(MEMF,4)}')
                        a(f'ds_write_b128 v{HT}, {vr(MEMF+4,4)} offset:1024')
                sample('s2', p2, chk2, opt['n2'], 15, fill2)
                if opt.get('s13'): stamp(13)
                if eb: a('s_barrier')
                if not opt.get('spec2', 0):
                    a(f'ds_write_b128 v{HT}, {vr(MEMF,4)}')
                    a(f'ds_write_b128 v{HT}, {vr(MEMF+4,4)} offset:1024')
                for k in range(2, 2+eb): a(mld(k))
                a('s_waitcnt lgkmcnt(0)')
                a('s_barrier')
        else:
            if not pre_: part_a(); part_b()
            stamp_acc()
            if opt.get('series') and w == 1:
                a('s_memrealtime s[60:61]'); a(f's_lshl_b32 s62, s5, 8'); a(f's_lshl_b32 s63, s{sSTEP}, 2'); a('s_add_u32 s62, s62, s63'); a(f's_add_u32 s62, s62, {WS_DBG+0x10000:#x}')
                a(f'v_mov_b32 v{VB+6}, s60'); a(f'buffer_store_dword v{VB+6}, off, {WS}, s62')
            a('s_waitcnt lgkmcnt(0)')
            if opt.get('s13'): stamp(13)
            if eb and not dl:
                a('s_barrier')
                for k in range(2, 2+eb): a(mld(k))
            a('s_barrier')
            a(f'ds_read_b128 {vr(MEMF,4)}, v{HT}')
            a(f'ds_read_b128 {vr(MEMF+4,4)}, v{HT} offset:1024')
            if dl:
                for k in range(2, 2+eb): a(mld(k))
        a(f's_branch {T("p2go")} ; keep')
        a('s_waitcnt lgkmcnt(0)')
        if w == 1:
            a.label(T('kvw%d' % w))
            kv_wait(a, T('kvl%d' % w), sT1, MEMF+26)
            a(f's_branch {T("kvo%d" % w)}')
    if only is not None:
        tailcode(only, opt)
    else:
        for w in range(3):
            a(f's_cmp_eq_u32 s4, {w}'); a(f's_cbranch_scc1 {T("w%d" % w)} ; keep')
        tailcode(3, opt)
        for w in range(3):
            a('s_waitcnt lgkmcnt(0)')
            a.label(T('w%d' % w)); tailcode(w, opt)
    a('s_waitcnt lgkmcnt(0)')
    a.label(T('redo'))
    if stamps: a(f's_add_u32 s{sACC+15}, s{sACC+15}, 0x10000')
    a(f's_add_u32 s{sSPIN}, s{sSPIN}, 1'); a(f's_cmp_ge_u32 s{sSPIN}, {SPIN_MAX}'); a('s_cbranch_scc1 L_fail')
    a('s_nop 7')
    for z in range(12): a(z2(ACQ+2*z))
    a(f's_branch {T("p2ok")}')
    a.label(T('fin'))
    a('s_waitcnt lgkmcnt(0)')
    a(f's_add_u32 s{sKM}, s{sKM}, {32*4096:#x}')
    a(kput)
    if opt.get('dbgt'):
        DBGT(a, 6, VB)
        a(f'v_mov_b32 v{VB+1}, s96'); a('s_mov_b64 exec, 1'); a(f'buffer_atomic_umax v{VB+1}, off, {srd(sDBG)}, 0 offset:20')
    if stamps or opt.get('timing', False):
        a('s_memtime s[60:61]'); a('s_memrealtime s[96:97]'); a('s_waitcnt lgkmcnt(0)')
        a('s_sub_u32 s92, s60, s92'); a('s_sub_u32 s93, s96, s94')
        a(f's_lshl_b32 s{sT0}, s5, 2'); a(f's_add_u32 s{sT0}, s{sT0}, s4'); a(f's_lshl_b32 s{sT0}, s{sT0}, 7'); a(f's_add_u32 s{sT0}, s{sT0}, {WS_DBG:#x}')
        vals = [92, 93, 94, 96, 90] + [sACC+i for i in range(16)] + [91] + ([70+2*i for i in range(9)] if opt.get('ustamp') else [])
        for i, s in enumerate(vals):
            a(f'v_mov_b32 v{VB}, s{s}')
            a(f'buffer_store_dword v{VB}, off, {WS}, s{sT0} offset:{4*i}')
    a('s_waitcnt vmcnt(0)')
    a('s_endpgm')

def wo_off(Tt, ks2, hf): return (Tt >> 2)*32768 + (ks2*2 + hf)*4096 + (Tt & 3)*1024

def team_setup(a, opt, hooks):
    if opt.get('ustamp'): a('s_memrealtime s[70:71]')
    load_srd(a, sA, 'Wq'); load_srd(a, sB, 'Wk'); load_srd(a, sC, 'Wv'); load_srd(a, sD, 'Wo')
    lane, c, g, t0, t1, va, vo, rA, rB, r8 = 100, 101, 102, 103, 104, 105, 106, 107, 109, 110
    a(f'v_and_b32 v{lane}, 63, v0')
    a(f'v_bfe_u32 v{t0}, v{lane}, 4, 1'); a(f'v_lshlrev_b32 v{vo}, 4, v{t0}')
    a(f'v_bfe_u32 v{t0}, v{lane}, 3, 1'); a(f'v_lshl_add_u32 v{vo}, v{t0}, 2, v{vo}')
    a(f'v_lshrrev_b32 v{t0}, 5, v{lane}'); a(f'v_add_u32 v{vo}, v{vo}, v{t0}')
    a(f'v_and_b32 v{t1}, 7, v{lane}'); a(f'v_lshlrev_b32 v{t1}, 4, v{t1}')
    if opt.get('swz', 1): a(f'v_and_b32 v{t0}, 8, v{lane}'); a(f'v_lshlrev_b32 v{t0}, 3, v{t0}'); a(f'v_xor_b32 v{t1}, v{t1}, v{t0}')
    a(f's_lshr_b32 s{sT2}, s4, 1'); a(f's_lshl_b32 s{sT0}, s5, 8'); a(f's_lshl_b32 s{sT1}, s{sT2}, 7'); a(f's_add_u32 s{sT0}, s{sT0}, s{sT1}')
    a(f'v_lshl_add_u32 v{va}, v{vo}, 13, v{t1}'); a(f'v_add_u32 v{va}, s{sT0}, v{va}')
    a(f's_lshl_b32 s{sW2}, s4, 20'); a(f's_and_b32 s{sW2}, s{sW2}, 0x100000')
    a(f's_lshl_b32 s{sTF}, s{sT2}, 16'); a(f's_and_b32 s{sT2}, s4, 1'); a(f's_lshl_b32 s{sT1}, s{sT2}, 14'); a(f's_add_u32 s{sTF}, s{sTF}, s{sT1}')
    a('s_waitcnt lgkmcnt(0)')
    units = []
    B0 = 24
    def qkv(S, dstf):
        for U in range(2):
            h = (len(units) & 1)*32768
            iss, rd, tr = [], [], []
            for j in range(2):
                for b in range(8):
                    iss += [f's_add_u32 m0, s{sTF}, {h + (j*8+b)*1024}', f's_xor_b32 s{sT1}, s{sW2}, {((4*U+j) << 19) + db(b)*8192:#x}',
                            f'buffer_load_dwordx4 v{va}, {srd(S)}, s{sT1} offen {opt.get("wf", "")} lds']
            for jj in range(4):
                for b in range(8):
                    r = B0 + (jj*8+b)*2; o = (h + ((jj & 1)*8+b)*1024) // 256
                    rd.append(f'ds_read2st64_b32 {vr(r,2)}, v{rB if jj >= 2 else rA} offset0:{o} offset1:{o+2}')
                    for t, sel in ((0, sPLO), (1, sPHI)):
                        kind, d = dstf(4*U+jj, t, b)
                        if kind == 'v': tr.append(f'v_perm_b32 v{d}, v{r+1}, v{r}, s{sel}')
                        else: tr += [f'v_perm_b32 v{124+t}, v{r+1}, v{r}, s{sel}', f'v_accvgpr_write_b32 a{d}, v{124+t}']
            units.append((iss, rd, tr))
    OUT = 112
    def wo():
        for cq in range(2):
            assert (len(units) & 1) == cq
            h = cq*32768
            iss, rd, tr = [], [], []
            for ks2 in range(2):
                for b in range(8):
                    sl = ks2*8 + b
                    iss += [f's_add_u32 m0, s{sTF}, {h + sl*1024}', f's_add_u32 s{sT1}, s{sHO}, {(64*ks2 + db(b))*1024 + cq*512:#x}',
                            f'buffer_load_dwordx4 v{vo}, {srd(sD)}, s{sT1} offen {opt.get("wf", "")} lds']
                    r = B0 + sl*4; o = (h + sl*1024) // 256
                    rd += [f'ds_read2st64_b32 {vr(r+2*pl,2)}, v{r8+pl} offset0:{o} offset1:{o+2}' for pl in range(2)]
                    ob = OUT if sl < 4 else B0 + (sl//4 - 1)*16
                    tr += [f'v_perm_b32 v{ob+4*i+(b&3)}, v{r+2*(i>>1)+1}, v{r+2*(i>>1)}, s{sPHI if i&1 else sPLO}' for i in range(4)]
                    if (b & 3) == 3:
                        tr += [f'ds_write_b128 v{WOB}, {vr(ob+4*i,4)} offset:{wo_off(4*cq+i, ks2, b >> 2)}' for i in range(4)]
            tr += ['s_waitcnt lgkmcnt(0)']
            units.append((iss, rd, tr))
    for ch in opt.get('worder', 'qkv'):
        if ch == 'q': qkv(sA, lambda k, t, b: ('a', (k*2+t)*8+b))
        if ch == 'k': qkv(sB, lambda k, t, b: ('a', 128+(k*2+t)*8+b))
        if ch == 'v': qkv(sC, lambda k, t, b: ('v', WV+(k*2+t)*8+b))
    wo()
    for U in range(2):
        for x in units[U][0]: a(x)
    a(f'v_and_b32 v{c}, 15, v{lane}'); a(f'v_lshrrev_b32 v{g}, 4, v{lane}'); a(f'v_lshlrev_b32 v{L16}, 4, v{lane}')
    a(f's_mov_b32 s{sPLO}, 0x05040100'); a(f's_mov_b32 s{sPHI}, 0x07060302')
    a(f's_lshl_b32 s{sHO}, s5, 17')
    a(f'v_add_u32 v{WOB}, s{sTF}, v{L16}')
    a(f'v_lshlrev_b32 v{rA}, 7, v{g}'); a(f'v_lshl_add_u32 v{rA}, v{c}, 2, v{rA}'); a(f's_lshl_b32 s{sT1}, s{sT2}, 6'); a(f's_add_u32 s{sT1}, s{sT1}, s{sTF}')
    a(f's_and_b32 s{sT1}, s{sT1}, 0xffffbfff')
    a(f'v_add_u32 v{rA}, s{sT1}, v{rA}')
    if opt.get('swz', 1): a(f'v_and_b32 v{t0}, 1, v{g}'); a(f'v_lshlrev_b32 v{t0}, 6, v{t0}'); a(f'v_xor_b32 v{rA}, v{rA}, v{t0}')
    a(f'v_add_u32 v{rB}, 0x4000, v{rA}')
    a(f'v_and_b32 v{r8}, 0xffffffe3, v{rA}'); a(f'v_and_b32 v{t0}, 1, v{c}'); a(f'v_lshl_add_u32 v{r8}, v{t0}, 4, v{r8}')
    a(f'v_and_b32 v{t0}, 6, v{c}'); a(f'v_lshl_add_u32 v{r8}, v{t0}, 1, v{r8}'); a(f'v_add_u32 v{r8+1}, 0x4000, v{r8}')
    a(f'v_lshl_add_u32 v{vo}, v{vo}, 10, v{t1}'); a(f's_lshl_b32 s{sT0}, s{sT2}, 8'); a(f's_lshr_b32 s{sT1}, s4, 1'); a(f's_lshl_b32 s{sT1}, s{sT1}, 7')
    a(f's_add_u32 s{sT0}, s{sT0}, s{sT1}'); a(f'v_add_u32 v{vo}, s{sT0}, v{vo}')
    tmp = (lane, c, g, t0, t1)
    young = hooks['pre'](a, tmp)
    for U in range(8):
        a(f's_waitcnt vmcnt({(16 if U < 7 else 0) + young})')
        if opt.get('ustamp'): a(f's_memrealtime s[{72+2*U}:{73+2*U}]')
        a('s_barrier')
        for x in units[U][1]: a(x)
        a('s_waitcnt lgkmcnt(0)')
        a('s_barrier')
        if ('b', U) in hooks: hooks[('b', U)](a, tmp)
        if U + 2 < 8:
            for x in units[U+2][0]: a(x)
        young = hooks[U](a, tmp) if U in hooks else 0
        for x in units[U][2]: a(x)

def stream(a, items, RING0, RN, maxload=60, older=0, hooks={}):
    n = len(items)
    pos = []; head = 0
    issued = 0; consumed = 0
    used = 0; infl = 0
    alloc = {}
    while consumed < n:
        while issued < n:
            iss, nl, nr, con = items[issued]
            h = head
            waste = 0
            if h + nr > RN: waste = RN - h; h = 0
            if used + waste + nr > RN or infl + nl > (maxload - older if consumed == 0 else maxload): break
            alloc[issued] = (h, waste + nr)
            for x in iss(RING0 + h): a(x)
            head = h + nr; used += waste + nr; infl += nl; issued += 1
        if consumed in hooks: hooks[consumed](a)
        iss, nl, nr, con = items[consumed]
        infl -= nl
        a(f's_waitcnt vmcnt({infl})')
        for x in con(RING0 + alloc[consumed][0]): a(x)
        used -= alloc[consumed][1]
        consumed += 1

def team_consts(a, tmp, RS=REP_ST):
    lane, c, g, t0, t1 = tmp
    a(f's_mov_b32 s{sPOI}, {POISON:#x}')
    scl = (128 ** -0.5) * math.log2(math.e)
    import struct
    a(f's_mov_b32 s{sSCL}, {struct.unpack("<I", struct.pack("<f", scl))[0]:#x}')
    a(f's_mov_b32 s{sHALF}, 0xcccccccc'); a(f's_mov_b32 s{sHALF+1}, 0xcccccccc')
    a(f's_mov_b32 s{sPEX}, 0x000f000f'); a(f's_mov_b32 s{sPEX+1}, 0x000f000f')
    a(f's_lshr_b32 s{sFO}, s5, 1'); a(f's_lshl_b32 s{sFO}, s{sFO}, 6'); a(f's_add_u32 s{sFO}, s{sFO}, {WS_PF}')
    a(f's_mov_b32 s{sEVEN}, 0x0000ffff'); a(f's_mov_b32 s{sEVEN+1}, 0x0000ffff')
    a(f'v_mov_b32 v{t0}, 0x4444'); a(f'v_mov_b32 v{t1}, 0xeeee')
    a(f'v_cndmask_b32 v{IDX}, v{t0}, v{t1}, s[{sHALF}:{sHALF+1}]')
    a(f's_lshl_b32 s{sM0}, s4, 11')
    a(f's_lshl_b32 s{sKS}, s4, 6')
    for r in range(4): a(f'v_mov_b32 v{POI4+r}, s{sPOI}')
    a(f's_lshl_b32 s{sT0}, s4, 16'); a(f's_lshl_b32 s{sT1}, s5, 6'); a(f's_add_u32 s{sT0}, s{sT0}, s{sT1}')
    a(f'v_lshrrev_b32 v{t0}, 3, v{lane}'); a(f'v_lshlrev_b32 v{t0}, 13, v{t0}')
    a(f'v_and_b32 v{t1}, 7, v{c}'); a(f'v_lshl_add_u32 v{t0}, v{t1}, 3, v{t0}'); a(f'v_add_u32 v{PST}, s{sT0}, v{t0}')
    a(f's_lshr_b32 s{sT0}, s5, 3'); a(f's_lshl_b32 s{sT0}, s{sT0}, 9'); a(f's_add_u32 s{sT0}, s{sT0}, s{sM0}')
    a(f's_and_b32 s{sT1}, s5, 1'); a(f's_lshl_b32 s{sT1}, s{sT1}, 8'); a(f's_add_u32 s{sT0}, s{sT0}, s{sT1}')
    a(f's_and_b32 s{sT1}, s5, 6'); a(f's_lshl_b32 s{sT1}, s{sT1}, 5'); a(f's_add_u32 s{sT0}, s{sT0}, s{sT1}')
    a(f'v_and_b32 v{t0}, 3, v{c}'); a(f'v_lshlrev_b32 v{t0}, 2, v{t0}'); a(f'v_lshl_add_u32 v{t0}, v{g}, 4, v{t0}'); a(f'v_add_u32 v{t0}, s{sT0}, v{t0}')
    a(f'v_and_b32 v{t1}, 1, v{c}')
    if RS: a(f'v_lshrrev_b32 v{PUB}, 2, v{c}'); a(f'v_mul_u32_u24 v{PUB}, {RS}, v{PUB}'); a(f'v_add_u32 v{PUB}, v{PUB}, v{t0}')
    else: a(f'v_mov_b32 v{PUB}, 0x7fffff00'); a(f'v_cmp_gt_u32 vcc, 4, v{c}'); a(f'v_cndmask_b32 v{PUB}, v{PUB}, v{t0}, vcc')
    a(f'v_mul_u32_u24 v{t0}, {2*XS}, v{g}'); a(f'v_lshl_add_u32 v{t0}, v{c}, 2, v{t0}'); a(f'v_add_u32 v{t0}, s{sKS}, v{t0}')
    a(f'v_add_u32 v{XW}, {L_QX}, v{t0}')
    mm = 108
    a(f'v_lshrrev_b32 v{mm}, 2, v{c}'); a(f'v_lshl_add_u32 v{mm}, v{mm}, 1, v{t1}')
    a(f'v_mul_u32_u24 v{t0}, {XS}, v{mm}'); a(f'v_add_u32 v{t0}, {L_QX}, v{t0}')
    a(f'v_lshl_add_u32 v{QR}, v{g}, 4, v{t0}')
    a(f'v_lshl_add_u32 v{OR_}, v{g}, 5, v{t0}'); a(f'v_and_b32 v{mm}, 2, v{c}'); a(f'v_lshl_add_u32 v{OR_}, v{mm}, 3, v{OR_}')
    a(f'v_mov_b32 v{t0}, 0x3f80'); a(f'v_lshlrev_b32 v{mm}, 4, v{t1}'); a(f'v_lshlrev_b32 v{t0}, v{mm}, v{t0}')
    a(f'v_lshrrev_b32 v{mm}, 1, v{c}')
    for r in range(4):
        a(f'v_cmp_eq_u32 vcc, {2*r}, v{mm}'); a(f'v_cndmask_b32 v{SELA+r}, 0, v{t0}, vcc')
    a(f'v_mov_b32 v{ONES}, 0x3f803f80'); a(f'v_mov_b32 v{ONES+1}, 0x3e803e80'); a(f'v_mov_b32 v{ONES+2}, 0x3f803f80'); a(f'v_mov_b32 v{ONES+3}, 0x3e803e80')
    a(f's_mov_b32 s{sSTEP}, 0')
    a(f's_mov_b32 s{sSLOT}, {WS_SLOT:#x}'); a(f's_mov_b32 s{sSLOTN}, {WS_SLOT+SLOT_ST:#x}'); a(f's_mov_b32 s{sSLOTP}, {WS_SLOT+2*SLOT_ST:#x}')
    a(f's_mov_b32 s{sINB}, {WS_INB:#x}')
    a(f's_lshl_b32 s{sINB2}, s5, 13'); a(f's_add_u32 s{sINB2}, s{sINB2}, s{sM0}'); a(f's_add_u32 s{sINB2}, s{sINB2}, {WS_INB:#x}')
    a(f's_lshl_b32 s{sKV}, s5, 13'); a(f's_add_u32 s{sKV}, s{sKV}, {WS_KF:#x}')
    a(f's_lshl_b32 s{sKM}, s5, 12'); a(f's_lshl_b32 s{sT0}, s4, 10'); a(f's_add_u32 s{sKM}, s{sKM}, s{sT0}'); a(f's_add_u32 s{sKM}, s{sKM}, {WS_KM - 32*4096:#x}')
    a(f's_add_u32 s{sKV}, s{sKV}, s{sM0}')
    a(f's_lshr_b32 s{sT0}, s4, 1'); a(f's_lshl_b32 s{sT0}, s{sT0}, 5'); a(f's_add_u32 s{sMK}, s{sM0}, s{sT0}')
    a(f's_add_u32 s{sMV}, s{sM0}, {L_V}')

def team_init1(a, tmp):
    lane, c, g, t0, t1 = tmp
    WS = srd(sWS)
    load_srd(a, 64, 'mem0')
    for o in (0, 1024):
        a(f'buffer_store_dwordx4 {vr(POI4,4)}, v{L16}, {WS}, s{sINB2} offen offset:{o} sc1')
    a(f's_and_b32 s{sT0}, s5, 6'); a(f's_lshl_b32 s{sT0}, s{sT0}, 10'); a(f's_lshr_b32 s{sT1}, s5, 3'); a(f's_lshl_b32 s{sT1}, s{sT1}, 6')
    a(f's_add_u32 s{sT0}, s{sT0}, s{sT1}'); a(f's_lshl_b32 s{sT1}, s4, 8'); a(f's_add_u32 s{sT0}, s{sT0}, s{sT1}')
    a(f's_and_b32 s{sT1}, s5, 1'); a(f's_lshl_b32 s{sT1}, s{sT1}, 5'); a(f's_add_u32 s{sT0}, s{sT0}, s{sT1}')
    a(f'v_and_b32 v{t0}, 1, v{g}'); a(f'v_lshlrev_b32 v{t0}, 10, v{t0}'); a(f'v_and_b32 v{t1}, 3, v{c}'); a(f'v_lshl_add_u32 v{t0}, v{t1}, 2, v{t0}')
    a(f'v_lshrrev_b32 v{t1}, 1, v{g}'); a(f'v_lshl_add_u32 v{t0}, v{t1}, 4, v{t0}')
    a('s_waitcnt lgkmcnt(0)')
    a(f'buffer_load_dword v99, v{t0}, {srd(64)}, s{sT0} offen')
    a(f'buffer_store_dword v{POI4}, v{PUB}, {WS}, s{sSLOTN} offen sc1')
def team_init2(a):
    a(f's_mov_b32 s{sT0}, {WS_SLOT:#x}')
    a(f'buffer_store_dword v99, v{PUB}, {srd(sWS)}, s{sT0} offen sc1')

sAV = 7
L_FL = L_V + 8192
assert L_FL + 256 <= LDS_MISC
def kv_lane(a, t):
    a(f'v_bfe_u32 v{t+2}, v{L16}, 4, 3'); a(f'v_min_u32 v{t+2}, 6, v{t+2}')
    a(f'v_bfe_u32 v{t}, v{L16}, 7, 1'); a(f'v_lshl_add_u32 v{t}, v{t}, 3, v{t+2}'); a(f'v_lshlrev_b32 v{t}, 2, v{t}')
def kv_addr(a, t): kv_lane(a, t)
def kv_issue(a, t): a(f'buffer_load_dword v{t+1}, v{t}, {srd(sWS)}, s{sFO} offen sc1')
def kv_eval(a, t):
    a(f'v_mad_u32_u24 v{t+1}, v{t+1}, 7, v{t+2}')
    for rot in (8, 4, 2, 1): a(f'v_min_u32_dpp v{t+1}, v{t+1}, v{t+1} row_ror:{rot} row_mask:0xf bank_mask:0xf')
    a(f'v_readfirstlane_b32 s{sAV}, v{t+1}')
def kv_wait(a, tag, need_s, t):
    kv_addr(a, t)
    a(f's_mov_b32 s{sSPIN}, 0')
    a.label(tag)
    kv_issue(a, t)
    a('s_waitcnt vmcnt(0)')
    kv_eval(a, t)
    a(f's_add_u32 s{sSPIN}, s{sSPIN}, 1'); a(f's_cmp_ge_u32 s{sSPIN}, {SPIN_MAX}'); a('s_cbranch_scc1 L_fail')
    a(f's_cmp_ge_u32 s{need_s}, s{sAV}')
    a(f's_cbranch_scc1 {tag}')
    a(f's_mov_b32 s{sSPIN}, 0')

def team_first_issue(a, d):
    a(f's_mov_b32 s{sKB}, {L_K0}'); a(f's_mov_b32 s{sKD}, {L_K0}')
    for g in k_dma(False) + v_dma() + [[f's_mov_b32 s{sKD}, {L_K1}']] + k_dma():
        for x in g: a(x)

def team_warm(a, d, tlb=True):
    if tlb:
        a(f'v_lshlrev_b32 v{d+1}, 16, v{L16}'); a(f's_mov_b32 s{sT2}, 0x600000')
        a(f'buffer_load_dword v{d}, v{d+1}, {srd(sWS)}, s{sT2} offen sc1')
    a(f's_and_b32 s{sT2}, s5, 3'); a(f's_lshl_b32 s{sT2}, s{sT2}, 11'); a(f's_mul_i32 s{sT0}, s4, {SLOT_ST:#x}'); a(f's_add_u32 s{sT2}, s{sT2}, s{sT0}'); a(f's_add_u32 s{sT2}, s{sT2}, {WS_SLOT:#x}')
    a(f's_xor_b32 s{sT0}, s{sINB2}, 0x40000')
    for so in (sT2, sINB2, sT0):
        for o in (0, 1024): a(f'buffer_load_dwordx4 {vr(d,4)}, v{L16}, {srd(sWS)}, s{so} offen offset:{o} sc1')

def team_first_kv(a):
    for x in kx_addr(MEMF+21, MEMF+22): a(x)
    for z in range(12): a(z2(ACQ+2*z))
    a('s_waitcnt vmcnt(0)')
    a('s_barrier')
    a(f'v_add_u32 v{MEMF+23}, s{sMV}, v{L16}')
    for r in (VB+3, VB+7, VB+11, VB+15): a(f'v_mov_b32 v{r}, 0')
    for x in kv_reads(MEMF+21, MEMF+23): a(x)
    a(f's_mov_b32 s{sKB}, {L_K1}'); a(f's_mov_b32 s{sKD}, {L_K0}')
    a('s_waitcnt lgkmcnt(0)')
```

```python
from asmlib import *
from common import *
from team import stream
import math, struct
def fbits(x): return struct.unpack("<I", struct.pack("<f", x))[0]
L16 = 0
sIDX = 6
sPLO, sPHI = 37, 38
XST = 1056; XT = 32*XST
def mfm(d, A, B, C, fa='v', fb='v'): return f'v_mfma_f32_16x16x32_bf16 {vr(d,4)}, {vr(A,4,fa)}, {vr(B,4,fb)}, {C}'

def wload_items(S0, S1, va0, va1, stride, nk, dst, kbase_s, sT, imm1=0):
    items = []
    for kk in range(nk):
        for j in range(4):
            def iss(r, kk=kk, j=j):
                off = (32*kk + 2*j)*stride
                o = [f's_add_u32 s{sT}, s{kbase_s}, {off:#x}',
                     f'buffer_load_dword v{r}, v{va0}, {srd(S0)}, s{sT} offen',
                     f'buffer_load_dword v{r+1}, v{va0+1}, {srd(S0)}, s{sT} offen']
                if S1 is not None:
                    o += [f'buffer_load_dword v{r+2}, v{va1}, {srd(S1)}, s{sT} offen offset:{imm1}',
                          f'buffer_load_dword v{r+3}, v{va1+1}, {srd(S1)}, s{sT} offen offset:{imm1}']
                return o
            def con(r, kk=kk, j=j):
                o = []
                for T in range(4 if S1 is not None else 2):
                    b = r + 2*(T >> 1); sel = sPHI if T & 1 else sPLO
                    f, d = dst(kk, T, j)
                    if f == 'v': o.append(f'v_perm_b32 v{d}, v{b+1}, v{b}, s{sel}')
                    else: o += [f'v_perm_b32 v{8+(T&1)}, v{b+1}, v{b}, s{sel}', f'v_accvgpr_write_b32 a{d}, v{8+(T&1)}']
                return o
            n = 4 if S1 is not None else 2
            items.append((iss, n, n, con))
    return items

vC, vG, vA0, vA1, vRD = 1, 2, 4, 6, 3
ACC = 16
FR = 48
EP = 72
RING, RN = 104, 128
sTILE, sSTR, sBUF, sDST, sT0, sT1, sT2, sKB, sCNT, sW8, sNB, sDM = range(40, 52)
sCOL = 55

WST = [False]
PAUSE = [None]
REPORT = [None]
OPT = {}
def wstamp(a, i):
    if WST[0]:
        a('s_memrealtime s[92:93]'); a('s_memtime s[94:95]'); a('s_waitcnt lgkmcnt(0)')
        a('s_lshl_b32 s60, s6, 7'); a(f's_add_u32 s60, s60, {WS_DBG + 0x8000:#x}')
        if i < 0:
            a('s_min_u32 s61, s54, 2'); a('s_mul_i32 s61, s61, 12'); a('s_add_u32 s60, s60, s61'); i = -i - 1
        a('v_mov_b32 v20, s92'); a('v_mov_b32 v21, s94')
        a(f'buffer_store_dword v20, off, {srd(sWS)}, s60 offset:{4*i}')
        a(f'buffer_store_dword v21, off, {srd(sWS)}, s60 offset:{64+4*i}')
        a('s_waitcnt vmcnt(0)')

def touch(a, srds, stride, col_s, blk_s, t=10):
    a(f'v_lshrrev_b32 v{t}, 4, v{L16}'); a(f'v_mul_u32_u24 v{t}, {stride}, v{t}'); a(f'v_add_u32 v{t}, s{col_s}, v{t}')
    a(f's_mul_i32 s{sT2}, s{blk_s}, {64*stride:#x}')
    a(f's_mov_b32 s{sT1}, {7*64*stride:#x}')
    for S in srds:
        a(f'buffer_load_dword v{t+1}, v{t}, {srd(S)}, s{sT2} offen')
        a(f'buffer_load_dword v{t+1}, v{t}, {srd(S)}, s{sT1} offen')

def x_dma(a, tile_s, buf_s):
    a(f's_lshl_b32 s{sT0}, s{tile_s}, 15')
    a(f's_lshl_b32 s{sT1}, s4, 13'); a(f's_add_u32 s{sT0}, s{sT0}, s{sT1}')
    a(f's_add_u32 s{sT1}, s{buf_s}, s{sW8}')
    for r in range(8):
        a(f's_add_u32 m0, s{sT1}, {r*XST}')
        if r: a(f's_add_u32 s{sT0}, s{sT0}, 1024')
        a(f'buffer_load_dwordx4 v{L16}, {srd(sC)}, s{sT0} offen lds')

def wload_dma(a, S, NS=24):
    va, r0, t = vA0, vA1, 10
    a(f'v_lshrrev_b32 v{t}, 9, v{L16}'); a(f'v_bfe_u32 v{va}, v{L16}, 7, 2'); a(f'v_lshl_add_u32 v{va}, v{va}, 3, v{t}')
    a(f'v_and_b32 v{t}, 0x70, v{L16}'); a(f'v_lshl_add_u32 v{va}, v{va}, 13, v{t}'); a(f'v_add_u32 v{va}, s{sCOL}, v{va}')
    a(f's_mul_i32 s{sCNT}, s4, {NS*1024}'); a(f's_add_u32 s{sCNT}, s{sCNT}, {XT}')
    def iss(n): return [f's_add_u32 m0, s{sCNT}, {(n % NS)*1024}', f's_mov_b32 s{sT2}, {(32*(n >> 2) + 2*(n & 3))*8192:#x}',
                        f'buffer_load_dwordx4 v{va}, {srd(S)}, s{sT2} offen lds']
    for n in range(NS):
        for x in iss(n): a(x)
    REPORT[0](a, 11)
    a(f'v_lshlrev_b32 v{r0}, 7, v{vG}'); a(f'v_lshl_add_u32 v{r0}, v{vC}, 2, v{r0}'); a(f'v_add_u32 v{r0}, s{sCNT}, v{r0}'); a(f'v_add_u32 v{r0+1}, 64, v{r0}')
    def reads(kk):
        R = RING + (kk & 1)*16
        for j in range(4):
            o = ((4*kk+j) % NS)*4
            for pl in range(2): a(f'ds_read2st64_b32 {vr(R+4*j+2*pl,2)}, v{r0+pl} offset0:{o} offset1:{o+2}')
    a(f's_waitcnt vmcnt({NS - 4})')
    reads(0)
    for kk in range(16):
        n0 = 4*kk
        a(f's_waitcnt vmcnt({max(0, min(64, n0+NS) - (n0+8))}) lgkmcnt(0)')
        if kk < 15: reads(kk+1)
        R = RING + (kk & 1)*16
        nxt = list(range(n0+NS, min(64, n0+NS+4)))
        for j in range(4):
            if j < len(nxt):
                for x in iss(nxt[j]): a(x)
            for T in range(4):
                b = R + 4*j + 2*(T >> 1)
                a(f'v_perm_b32 v{8+(T&1)}, v{b+1}, v{b}, s{sPHI if T & 1 else sPLO}'); a(f'v_accvgpr_write_b32 a{(kk*4+T)*4+j}, v{8+(T&1)}')

def gemm(a, kind, tag, pre_loop):
    T_ = lambda n: f'{tag}_{n}'
    WS = srd(sWS)
    stride = 2752 if kind == 'F' else 8192
    if kind == 'F' or OPT.get('wt', 0): touch(a, [sA, sB] if kind == 'F' else [sA], stride, sCOL, sTILE)
    a('s_barrier')
    a(f's_mov_b32 s{sNB}, s{sTILE}')
    def xpre(bs):
        for b in bs:
            a(f's_mov_b32 s{sBUF}, {b*XT}')
            x_dma(a, sNB, sBUF)
            a(f's_add_u32 s{sNB}, s{sNB}, s{sSTR}')
    nst = {'F': 2, 'V': 5, 'K': 7}[kind]
    a('s_mov_b32 s57, 0')
    if kind == 'F':
        xpre((0, 1, 2))
        items = wload_items(sA, sB, vA0, vA1, stride, 16, lambda kk, T, j: ('a', (kk*4+T)*4+j), sKB, sT2, imm1=0)
        stream(a, items, RING, RN, maxload=60, older=28)
        wstamp(a, -2)
        a(f's_mov_b32 s{sBUF}, 0')
    else:
        xpre((0,))
        wload_dma(a, sA)
        wstamp(a, -2)
        a('s_barrier')
        xpre((1, 2))
        a(f's_mov_b32 s{sBUF}, 0')
        a(f's_branch {T_("in")}')
    a.label(T_('loop'))
    if kind != 'F':
        a('s_cmp_lg_u32 s57, s54')
        a(f's_cbranch_scc1 {T_("nd")}')
        a('s_waitcnt vmcnt(0)')
        pre_loop(a)
        a.label(T_('nd'))
    a(f's_waitcnt vmcnt({8 + nst})')
    a('s_barrier')
    if kind != 'F':
        a('s_sub_u32 s59, s57, 1'); a(f's_min_i32 s{sT0}, s57, 1'); a(f's_max_i32 s59, s59, s{sT0}')
        a(f'v_mov_b32 v8, s59')
        a(f'buffer_store_dword v8, off, {WS}, s56 sc1')
        a.label(T_('in'))
        a('s_add_u32 s57, s57, 1')
    a(f'v_add_u32 v{EP}, s{sBUF}, v{vRD}')
    def rd(kk, rt): return f'ds_read_b128 {vr(FR+((kk%3)*2+rt)*4,4)}, v{EP} offset:{rt*16*XST + kk*64}'
    for kk in (0, 1):
        a(rd(kk, 0)); a(rd(kk, 1))
    a(f's_add_u32 s{sT2}, s{sBUF}, {3*XT}'); a(f's_cmp_ge_u32 s{sT2}, {4*XT}'); a(f's_cselect_b32 s{sCNT}, {4*XT}, 0'); a(f's_sub_u32 s{sT2}, s{sT2}, s{sCNT}')
    x_dma(a, sNB, sT2)
    a(f's_add_u32 s{sNB}, s{sNB}, s{sSTR}')
    for kk in range(16):
        n = 0
        for rt in range(2):
            for T in range(4):
                d = ACC + (rt*4+T)*4; x = FR + ((kk % 3)*2+rt)*4; w = (kk*4+T)*4
                C = '0' if kk == 0 else vr(d, 4)
                a(mfm(d, x, w, C, 'v', 'a') if kind == 'V' else mfm(d, w, x, C, 'a', 'v'))
                if kk + 2 < 16 and n in (1, 3): a(rd(kk+2, n >> 1))
                n += 1
    if kind != 'F':
        a('s_cmp_lg_u32 s57, s98')
        a(f's_cbranch_scc1 {T_("np")}')
        PAUSE[0](a, T_('pz'))
        a.label(T_('np'))
    a(f's_mul_i32 s{sT0}, s{sTILE}, s{sDM}'); a(f's_add_u32 s{sT0}, s{sT0}, s{sDST}')
    ac = lambda rt, T, r: ACC + (rt*4+T)*4 + r
    if kind == 'K':
        a(f's_lshl_b32 s{sT1}, s{sTILE}, 17'); a(f's_add_u32 s{sT1}, s{sT1}, s58')
        for o in (0, 1024): a(f'buffer_store_dwordx4 v[12:15], v{L16}, {WS}, s{sT1} offen offset:{o} sc1')
        a(f's_add_u32 s{sT1}, s{sT0}, 4096')
        for rt in range(2):
            for u in range(2):
                e = EP + 4 + (rt*2+u)*4
                for r in range(4): a(f'v_cvt_pk_bf16_f32 v{e+r}, v{ac(rt,2*u,r)}, v{ac(rt,2*u+1,r)}')
                a(f'buffer_store_dwordx4 {vr(e,4)}, v{L16}, {WS}, s{sT1 if rt else sT0} offen offset:{u*1024} sc1')
    elif kind == 'V':
        for T in range(4):
            e = EP + 4 + T*4
            for rt in range(2):
                for p in range(2): a(f'v_cvt_pk_bf16_f32 v{e+rt*2+p}, v{ac(rt,T,2*p)}, v{ac(rt,T,2*p+1)}')
            a(f'buffer_store_dwordx4 {vr(e,4)}, v{L16}, {WS}, s{sT0} offen offset:{T*1024} sc1')
    else:
        a(f's_add_u32 s{sT1}, s{sT0}, {43*1024}')
        a(f's_mov_b32 s{sT2}, {fbits(-math.log2(math.e)):#x}')
        for rt in range(2):
            e = EP + 4 + rt*4; t = EP + 12
            G = [ac(rt, tt, r) for r in range(4) for tt in range(2)]
            U = [ac(rt, 2+tt, r) for r in range(4) for tt in range(2)]
            def rnd(L):
                for r in range(4): a(f'v_cvt_pk_bf16_f32 v{t+8+r}, v{L[2*r]}, v{L[2*r+1]}')
                for r in range(4):
                    a(f'v_lshlrev_b32 v{L[2*r]}, 16, v{t+8+r}'); a(f'v_and_b32 v{L[2*r+1]}, 0xffff0000, v{t+8+r}')
            rnd(G); rnd(U)
            for i in range(8): a(f'v_mul_f32 v{t+i}, s{sT2}, v{G[i]}')
            for i in range(8): a(f'v_exp_f32 v{t+i}, v{t+i}')
            for i in range(8): a(f'v_add_f32 v{t+i}, 1.0, v{t+i}')
            for i in range(8): a(f'v_rcp_f32 v{t+i}, v{t+i}')
            for i in range(8): a(f'v_mul_f32 v{G[i]}, v{G[i]}, v{t+i}')
            rnd(G)
            for i in range(8): a(f'v_mul_f32 v{G[i]}, v{G[i]}, v{U[i]}')
            for r in range(4): a(f'v_cvt_pk_bf16_f32 v{e+r}, v{G[2*r]}, v{G[2*r+1]}')
            a(f'buffer_store_dwordx4 {vr(e,4)}, v{L16}, {WS}, s{sT1 if rt else sT0} offen sc1')
    a(f's_add_u32 s{sBUF}, s{sBUF}, {XT}'); a(f's_cmp_ge_u32 s{sBUF}, {4*XT}'); a(f's_cselect_b32 s{sBUF}, 0, s{sBUF}')
    a(f's_add_u32 s{sTILE}, s{sTILE}, s{sSTR}')
    a(f's_cmp_lt_u32 s{sTILE}, 64')
    a(f's_cbranch_scc1 {T_("loop")}')

def set_flag(a, val, base, tag):
    a('s_waitcnt vmcnt(0)')
    a('s_barrier')
    a('s_cmp_lg_u32 s4, 0')
    a(f's_cbranch_scc1 {tag}')
    a(f's_lshl_b32 s{sT0}, s{sIDX}, 2')
    a(f'v_mov_b32 v8, {val}')
    a(f'buffer_store_dword v8, off, {srd(sWS)}, s{sT0} offset:{base} sc1')
    a.label(tag)

def worker_lane_consts(a):
    a('v_and_b32 v3, 63, v0')
    a(f'v_and_b32 v{vC}, 15, v3'); a(f'v_lshrrev_b32 v{vG}, 4, v3'); a(f'v_lshlrev_b32 v{L16}, 4, v3')
    a(f'v_mul_u32_u24 v{vRD}, {XST}, v{vC}'); a(f'v_lshl_add_u32 v{vRD}, v{vG}, 4, v{vRD}')
    a(f's_mov_b32 s{sPLO}, 0x05040100'); a(f's_mov_b32 s{sPHI}, 0x07060302')
    a(f's_mul_i32 s{sW8}, s4, {8*XST}')
    a(f's_mov_b32 s{sKB}, 0')
    for r in range(4): a(f'v_mov_b32 v{12+r}, {POISON:#x}')

def waddr(a, stride, col_s):
    a(f's_mov_b32 s{sCOL}, s{col_s}')
    a(f'v_mul_u32_u24 v{vA0}, {8*stride}, v{vG}'); a(f'v_lshl_add_u32 v{vA0}, v{vC}, 2, v{vA0}'); a(f'v_add_u32 v{vA0}, s{col_s}, v{vA0}')
    a(f'v_add_u32 v{vA0+1}, {stride}, v{vA0}')
    a(f'v_mov_b32 v{vA1}, v{vA0}'); a(f'v_mov_b32 v{vA1+1}, v{vA0+1}')

def qkv_setup(a, hp_s, wname, base):
    load_srd(a, sA, wname); load_srd(a, sB, wname)
    a(f's_lshl_b32 s{sT0}, s{hp_s}, 9'); a(f's_lshl_b32 s{sT1}, s4, 7'); a(f's_add_u32 s{sT0}, s{sT0}, s{sT1}')
    waddr(a, 8192, sT0)
    a(f's_lshl_b32 s{sDST}, s{hp_s}, 14'); a(f's_lshr_b32 s{sT1}, s4, 1'); a(f's_lshl_b32 s{sT1}, s{sT1}, 13'); a(f's_add_u32 s{sDST}, s{sDST}, s{sT1}')
    a(f's_and_b32 s{sT1}, s4, 1'); a(f's_lshl_b32 s{sT1}, s{sT1}, {12 if wname == "Wv" else 11}'); a(f's_add_u32 s{sDST}, s{sDST}, s{sT1}')
    a(f's_add_u32 s{sDST}, s{sDST}, {base:#x}')
    a(f's_mov_b32 s{sDM}, {32*8192:#x}')
    a('s_waitcnt lgkmcnt(0)')

def phase1(a, ready_wait):
    worker_lane_consts(a)
    wstamp(a, 1)
    load_srd(a, sC, 'x')
    sSL = 52
    a(f's_mul_hi_u32 s{sSL}, s{sIDX}, {-(-(1 << 32)//7):#x}'); a(f's_mul_i32 s{sT0}, s{sSL}, 7'); a(f's_sub_u32 s{sTILE}, s{sIDX}, s{sT0}')
    a(f's_mov_b32 s{sSTR}, 7')
    a(f's_and_b32 s53, s{sSL}, 15')
    a(f's_mov_b32 s54, 1')
    a('s_lshl_b32 s56, s53, 4'); a(f's_lshr_b32 s{sT0}, s{sSL}, 4'); a(f's_lshl_b32 s{sT0}, s{sT0}, 3'); a(f's_add_u32 s56, s56, s{sT0}'); a(f's_add_u32 s56, s56, s{sTILE}')
    a('s_lshl_b32 s56, s56, 2'); a(f's_add_u32 s56, s56, {WS_PF}'); a('s_cmp_eq_u32 s4, 0'); a('s_cselect_b32 s56, s56, 0x7fffff00')
    a(f's_cmp_ge_u32 s{sTILE}, {OPT.get("rgl", 4)}'); a('s_cselect_b32 s98, 1, 2')
    a(f's_cmp_ge_u32 s{sSL}, 16')
    a('s_waitcnt lgkmcnt(0)')
    a('s_cbranch_scc1 W_v')
    qkv_setup(a, 53, 'Wk', WS_KF)
    a('s_lshl_b32 s58, s53, 13'); a(f's_lshl_b32 s{sT0}, s4, 11'); a(f's_add_u32 s58, s58, s{sT0}'); a(f's_add_u32 s58, s58, {WS_KM:#x}')
    a.label('W_kq')
    gemm(a, 'K', 'GK', lambda a: ready_wait(a, 'W_rdy1'))
    a('s_cmp_eq_u32 s54, 99')
    a('s_cbranch_scc1 W_r2done')
    a('s_branch W_r1done')
    a.label('W_v')
    qkv_setup(a, 53, 'Wv', WS_VF)
    gemm(a, 'V', 'GV', lambda a: ready_wait(a, 'W_rdy2'))
    a.label('W_r1done')
    a('s_waitcnt vmcnt(0)'); a('s_barrier'); a('v_mov_b32 v8, 100'); a(f'buffer_store_dword v8, off, {srd(sWS)}, s56 sc1')
    a('s_mov_b32 s98, -1')
    a('s_mov_b32 s56, 0x7fffff00'); a('s_mov_b32 s58, 0x70000000')
    wstamp(a, 5)
    a(f's_lshr_b32 s{sSL}, s{sIDX}, 3'); a(f's_and_b32 s{sTILE}, s{sIDX}, 7'); a(f's_mov_b32 s{sSTR}, 8')
    a('s_mov_b32 s54, 99')
    a(f's_cmp_ge_u32 s{sSL}, 27'); a('s_cbranch_scc1 W_gate')
    a(f's_cmp_ge_u32 s{sSL}, 16'); a('s_cbranch_scc1 W_ffn')
    qkv_setup(a, sSL, 'Wq', WS_QF)
    a('s_branch W_kq')
    a.label('W_ffn')
    load_srd(a, sA, 'Wg'); load_srd(a, sB, 'Wu')
    a(f's_sub_u32 s53, s{sSL}, 16'); a('s_lshl_b32 s53, s53, 2'); a('s_add_u32 s53, s53, s4'); a('s_min_u32 s53, s53, 42')
    a(f's_lshl_b32 s{sT0}, s53, 6')
    waddr(a, 2752, sT0)
    a(f's_lshl_b32 s{sDST}, s53, 10'); a(f's_add_u32 s{sDST}, s{sDST}, {WS_HF:#x}')
    a(f's_mov_b32 s{sDM}, {2*43*1024:#x}')
    a('s_waitcnt lgkmcnt(0)')
    gemm(a, 'F', 'GF', lambda a: None)
    a('s_branch W_r2done')
    a.label('W_gate')
    gate(a)
    a.label('W_r2done')
    set_flag(a, 1, WS_PF2, 'W_f2')
    wstamp(a, 8)

def gate(a):
    load_srd(a, sA, 'gw')
    a(f's_sub_u32 s{sT0}, s{sIDX}, 216'); a(f's_lshl_b32 s{sT0}, s{sT0}, 2'); a(f's_add_u32 s{sT0}, s{sT0}, s4')
    a(f's_lshl_b32 s{sT1}, s{sT0}, 16')
    a(f's_lshl_b32 s{sDST}, s{sT0}, 8'); a(f's_add_u32 s{sDST}, s{sDST}, {WS_G:#x}')
    a('s_waitcnt lgkmcnt(0)')
    GW, X, R, RES, LN = 12, 16, 80, 10, 11
    a(f'buffer_load_dwordx4 {vr(GW,4)}, v{L16}, {srd(sA)}, 0 offen')
    a(f'v_lshrrev_b32 v{LN}, 4, v{L16}')
    a(f'v_mov_b32 v{RES}, 0')
    a(f's_mov_b32 s{sCNT}, 0')
    a.label('WG_loop')
    for i in range(16):
        a(f'buffer_load_dwordx4 {vr(X+4*i,4)}, v{L16}, {srd(sC)}, s{sT1} offen')
        a(f's_add_u32 s{sT1}, s{sT1}, 1024')
    a('s_waitcnt vmcnt(0)')
    for i in range(16): a(f'v_dot2_f32_bf16 v{R+i}, v{X+4*i}, v{GW}, 0')
    for k in range(1, 4):
        for i in range(16): a(f'v_dot2_f32_bf16 v{R+i}, v{X+4*i+k}, v{GW+k}, v{R+i}')
    a('s_nop 3')
    for rot in (8, 4, 2, 1):
        for i in range(16): a(f'v_add_f32_dpp v{R+i}, v{R+i}, v{R+i} row_ror:{rot} row_mask:0xf bank_mask:0xf')
    for sw in ('v_permlane16_swap_b32', 'v_permlane32_swap_b32'):
        for i in range(16): a(f'v_mov_b32 v{X+i}, v{R+i}')
        for i in range(16): a(f'{sw} v{R+i}, v{X+i}')
        for i in range(16): a(f'v_add_f32 v{R+i}, v{R+i}, v{X+i}')
    for i in range(16):
        a(f's_add_u32 s{sT2}, s{sCNT}, {i}')
        a(f'v_cmp_eq_u32 vcc, s{sT2}, v{LN}')
        a(f'v_cndmask_b32 v{RES}, v{RES}, v{R+i}, vcc')
    a(f's_add_u32 s{sCNT}, s{sCNT}, 16'); a(f's_cmp_lt_u32 s{sCNT}, 64'); a('s_cbranch_scc1 WG_loop')
    a(f'v_cvt_pk_bf16_f32 v{RES}, v{RES}, v{RES}'); a(f'v_and_b32 v{RES}, 0xffff0000, v{RES}')
    a(f'v_mul_f32 v{RES}, {fbits(-math.log2(math.e)):#x}, v{RES}')
    a(f'v_exp_f32 v{RES}, v{RES}'); a(f'v_add_f32 v{RES}, 1.0, v{RES}'); a(f'v_rcp_f32 v{RES}, v{RES}')
    a(f'v_cvt_pk_bf16_f32 v{RES}, v{RES}, v{RES}'); a(f'v_and_b32 v{RES}, 0xffff0000, v{RES}')
    a(f'v_lshlrev_b32 v{LN}, 2, v{LN}')
    a(f'buffer_store_dword v{RES}, v{LN}, {srd(sWS)}, s{sDST} offen sc1')

def spin_ge(a, tag, load, nreg, dst, thr, lanes_ok=None, sleep=1):
    a('s_mov_b32 s62, 0')
    a.label(tag)
    a(load)
    a('s_waitcnt vmcnt(0)')
    if nreg == 4:
        a(f'v_min3_i32 v{dst}, v{dst}, v{dst+1}, v{dst+2}'); a(f'v_min_i32 v{dst}, v{dst}, v{dst+3}')
    a(f'v_cmp_gt_i32 vcc, {thr}, v{dst}')
    a(f's_cbranch_vccz {tag}_ok')
    if sleep: a(f's_sleep {sleep}')
    a('s_add_u32 s62, s62, 1')
    a(f's_cmp_lt_u32 s62, {SPIN_MAX}')
    a(f's_cbranch_scc1 {tag}')
    a('s_branch L_fail')
    a.label(tag + '_ok')

def phase2(a, opt):
    WS = srd(sWS)
    if opt.get('no_p1'): worker_lane_consts(a)
    sGI, sCU, sUN, sRND, sHD, sRH, sGF, sSCL, sEH, sQO, sOB, sPOI = range(63, 75)
    WD = 168
    load_srd(a, sA, 'Wo'); load_srd(a, sB, 'Wd'); load_srd(a, sD, 'out')
    a(f's_lshr_b32 s{sGI}, s{sIDX}, 4'); a(f's_and_b32 s{sCU}, s{sIDX}, 15')
    a(f's_lshl_b32 s{sT0}, s{sCU}, 6')
    waddr(a, 1024, sT0)
    a(f's_lshl_b32 s{sKB}, s4, 20')
    a(f's_mul_i32 s{sNB}, s4, {11*32*1024:#x}')
    a('s_waitcnt lgkmcnt(0)')
    items = wload_items(sA, None, vA0, None, 1024, 32, lambda kk, T, j: ('a', (kk*2+T)*4+j), sKB, sT2)
    items += wload_items(sB, None, vA0, None, 1024, 11, lambda kk, T, j: ('v', WD+(kk*2+T)*4+j), sNB, sT2)
    stream(a, items, 100, 64, maxload=60, older=2)
    wstamp(a, 9)
    MSK, KW, KR, RW, RR, OA_, FL = 4, 12, 13, 14, 15, 3, 17
    a(f's_lshr_b32 s{sT0}, s4, 1'); a(f's_lshl_b32 s{sHD}, s{sCU}, 1'); a(f's_add_u32 s{sHD}, s{sHD}, s{sT0}')
    a(f's_and_b32 s{sRH}, s{sGI}, 1'); a(f's_and_b32 s{sEH}, s4, 1')
    a(f's_mov_b32 s{sSCL}, {fbits((128 ** -0.5) * math.log2(math.e)):#x}')
    a(f's_mov_b32 s{sPOI}, {POISON:#x}')
    a(f's_lshl_b32 s{sT0}, s{sRH}, 4'); a(f'v_add_u32 v18, s{sT0}, v{vC}'); a(f'v_lshlrev_b32 v19, 2, v{vG}'); a('v_sub_u32 v18, v18, v19')
    a(f'v_mov_b32 v19, {fbits(-1e30):#x}')
    for t in range(2):
        for r in range(4):
            a(f'v_cmp_gt_i32 vcc, {16*t+r}, v18'); a(f'v_cndmask_b32 v{MSK+4*t+r}, 0, v19, vcc')
    L_KM, L_RED = 0, 16384
    a(f's_mul_i32 s{sT0}, s4, 2304')
    a(f'v_mul_u32_u24 v{KW}, 576, v{vG}'); a(f'v_lshl_add_u32 v{KW}, v{vC}, 2, v{KW}'); a(f'v_add_u32 v{KW}, s{sT0}, v{KW}')
    a(f's_lshl_b32 s{sT1}, s{sEH}, 7'); a(f'v_add_u32 v16, s{sT1}, v{KW}')
    a(f's_xor_b32 s{sT1}, s{sT1}, 128'); a(f'v_add_u32 v{KW}, s{sT1}, v{KW}')
    a(f'v_lshrrev_b32 v18, 2, v{vC}'); a(f'v_and_b32 v19, 1, v{vC}'); a('v_lshl_add_u32 v18, v18, 1, v19')
    a(f'v_mul_u32_u24 v{KR}, 288, v18'); a(f'v_lshl_add_u32 v{KR}, v{vG}, 4, v{KR}'); a(f'v_add_u32 v{KR}, s{sT0}, v{KR}')
    a(f's_lshl_b32 s{sT0}, s4, 11'); a(f's_add_u32 s{sT0}, s{sT0}, {L_RED}'); a(f'v_add_u32 v{RW}, s{sT0}, v{L16}')
    a(f's_lshl_b32 s{sT2}, s4, 2'); a(f's_add_u32 s{sT1}, s{sT2}, {L_RED}'); a(f'v_add_u32 v{RR}, s{sT1}, v{L16}')
    a(f's_lshl_b32 s{sT1}, s{sCU}, 6'); a(f's_add_u32 s{sT1}, s{sT1}, s{sT2}')
    a(f'v_lshlrev_b32 v{OA_}, 10, v{vC}'); a(f'v_lshl_add_u32 v{OA_}, v{vG}, 4, v{OA_}'); a(f'v_add_u32 v{OA_}, s{sT1}, v{OA_}')
    a(f'v_lshlrev_b32 v{FL}, 2, v{vC}')
    a(f's_lshl_b32 s{sGF}, s{sGI}, 8'); a(f's_add_u32 s{sGF}, s{sGF}, {WS_GF:#x}')
    a(f's_lshl_b32 s{sOB}, s{sGI}, 18'); a(f's_add_u32 s{sOB}, s{sOB}, {WS_OF:#x}')
    a(f's_mov_b32 s{sUN}, s{sGI}'); a(f's_mov_b32 s{sRND}, 1')
    a(f'v_min_u32 v18, {55*16}, v{L16}')
    spin_ge(a, 'P2_pf', f'buffer_load_dwordx4 v[20:23], v18, {WS}, 0 offen offset:{WS_PF2} sc1', 4, 20, 1, sleep=8)
    wstamp(a, 10)
    AC, QQ, KK, VV, KVM, HH, S0, SM = 24, 32, 48, 80, 96, 112, 156, 164
    PX, PM, KMF, OC, OP = 112, 116, 120, 136, 48
    GG, BB = 18, 22
    def both(plain, tag):
        a(f's_cbranch_scc1 {tag}f')
        for x in plain: a(x + ' sc1')
        a(f's_branch {tag}e')
        a.label(tag + 'f')
        for x in plain: a(x)
        a.label(tag + 'e')
    a.label('P2_loop')
    a(f's_mul_i32 s{sT0}, s{sUN}, {43*1024:#x}'); a(f's_add_u32 s{sT0}, s{sT0}, {WS_HF:#x}')
    a(f's_mul_i32 s{sT1}, s4, 11')
    for i in range(11):
        a(f's_add_u32 s{sT2}, s{sT1}, {i}'); a(f's_min_u32 s{sT2}, s{sT2}, 42'); a(f's_lshl_b32 s{sT2}, s{sT2}, 10'); a(f's_add_u32 s{sT2}, s{sT2}, s{sT0}')
        a(f'buffer_load_dwordx4 {vr(HH+4*i,4)}, v{L16}, {WS}, s{sT2} offen sc1')
    a(f's_lshl_b32 s{sT0}, s{sUN}, 6'); a(f's_add_u32 s{sT0}, s{sT0}, {WS_G:#x}')
    a(f'buffer_load_dword v{GG}, v{FL}, {WS}, s{sT0} offen sc1')
    a(f's_lshr_b32 s{sT0}, s{sUN}, 1'); a(f's_lshl_b32 s{sT0}, s{sT0}, 5'); a(f's_add_u32 s{sT0}, s{sT0}, s{sHD}'); a(f's_lshl_b32 s{sQO}, s{sT0}, 13')
    a(f's_lshl_b32 s{sT0}, s{sRH}, 12'); a(f's_add_u32 s{sT0}, s{sT0}, s{sQO}'); a(f's_add_u32 s{sT0}, s{sT0}, {WS_QF:#x}')
    for j in range(4): a(f'buffer_load_dwordx4 {vr(QQ+4*j,4)}, v{L16}, {WS}, s{sT0} offen offset:{j*1024} sc1')
    a(f's_add_u32 s{sT0}, s{sQO}, {WS_KF:#x}'); a(f's_add_u32 s{sT1}, s{sT0}, 4096')
    for j in range(8): a(f'buffer_load_dwordx4 {vr(KK+4*j,4)}, v{L16}, {WS}, s{sT1 if j >= 4 else sT0} offen offset:{(j&3)*1024} sc1')
    a(f's_lshl_b32 s{sT0}, s{sEH}, 12'); a(f's_add_u32 s{sT0}, s{sT0}, s{sQO}'); a(f's_add_u32 s{sT0}, s{sT0}, {WS_VF:#x}')
    for j in range(4): a(f'buffer_load_dwordx4 {vr(VV+4*j,4)}, v{L16}, {WS}, s{sT0} offen offset:{j*1024} sc1')
    sK0, sK1 = 75, 76
    a(f's_lshr_b32 s{sK0}, s{sQO}, 1'); a(f's_add_u32 s{sK0}, s{sK0}, {WS_KM:#x}'); a(f's_lshl_b32 s{sT0}, s{sEH}, 11'); a(f's_add_u32 s{sK0}, s{sK0}, s{sT0}'); a(f's_xor_b32 s{sK1}, s{sK0}, 2048')
    kvl = [f'buffer_load_dwordx4 {vr(KVM+4*j,4)}, v{L16}, {WS}, s{sK1 if j >= 2 else sK0} offen offset:{(j&1)*1024} sc1' for j in range(4)]
    for x in kvl: a(x)
    for i in range(11):
        a(f's_waitcnt vmcnt({10 - i + 21})')
        for t in range(2): a(mfm(AC+4*t, WD+(i*2+t)*4, HH+4*i, '0' if i == 0 else vr(AC+4*t,4)))
    def reduce(dst, first):
        o = 0 if first else 8192
        for q in range(2): a(f'ds_write_b128 v{RW}, {vr(AC+4*q,4)} offset:{o + q*1024}')
        a('s_waitcnt lgkmcnt(0)')
        a('s_barrier')
        for w in range(4):
            for t in range(2): a(f'ds_read_b32 v{AC+2*w+t}, v{RR} offset:{o + w*2048 + t*1024}')
        a(f'v_pk_add_f32 {vr(AC,2)}, {vr(AC,2)}, {vr(AC+2,2)}'); a(f'v_pk_add_f32 {vr(AC+4,2)}, {vr(AC+4,2)}, {vr(AC+6,2)}')
        a(f'v_pk_add_f32 {vr(AC,2)}, {vr(AC,2)}, {vr(AC+4,2)}')
        rnd2(AC, dst)
    def rnd2(r, dst):
        a(f'v_cvt_pk_bf16_f32 v{AC+6}, v{r}, v{r+1}')
        a(f'v_lshlrev_b32 v{dst}, 16, v{AC+6}'); a(f'v_and_b32 v{dst+1}, 0xffff0000, v{AC+6}')
    reduce(BB, True)
    a('s_waitcnt vmcnt(8)')
    a(f'v_sub_f32 v19, 1.0, v{GG}'); a('v_cvt_pk_bf16_f32 v19, v19, v19'); a('v_and_b32 v19, 0xffff0000, v19')
    for j in range(4):
        for t in range(2): a(mfm(S0+4*t, KK+16*t+4*j, QQ+4*j, vr(MSK+4*t,4) if j == 0 else vr(S0+4*t,4)))
    for k in range(2): a(f'v_mul_f32 v{BB+k}, v19, v{BB+k}')
    rnd2(BB, BB)
    a(f'v_mov_b32 v{PM+1}, 0'); a(f'v_mov_b32 v{PM+2}, 0')
    a(f'v_max3_f32 v19, v{S0}, v{S0+1}, v{S0+2}'); a(f'v_max3_f32 v21, v{S0+4}, v{S0+5}, v{S0+6}'); a(f'v_max3_f32 v19, v19, v{S0+3}, v{S0+7}'); a('v_max_f32 v19, v19, v21')
    a('s_mov_b32 s62, 0')
    a.label('P2_kc')
    a('s_waitcnt vmcnt(0)')
    a(f'v_max3_u32 v20, v{KVM}, v{KVM+1}, v{KVM+2}')
    for k in range(3, 15, 2): a(f'v_max3_u32 v20, v20, v{KVM+k}, v{KVM+k+1}')
    a(f'v_max_u32 v20, v20, v{KVM+15}')
    a(f'v_cmp_eq_u32 vcc, s{sPOI}, v20')
    a('s_cbranch_vccz P2_kok')
    a(f's_sleep {opt.get("tfsleep", 2)}')
    for x in kvl: a(x)
    a('s_add_u32 s62, s62, 1'); a(f's_cmp_lt_u32 s62, {SPIN_MAX}'); a('s_cbranch_scc1 P2_kc')
    a('s_branch L_fail')
    a.label('P2_kok')
    for j in range(4):
        kw = KW if j >= 2 else 16
        a(f'ds_write_b32 v{kw}, v{KVM+4*j} offset:{L_KM + (j&1)*64}'); a(f'ds_write_b32 v{kw}, v{KVM+4*j+1} offset:{L_KM + (j&1)*64 + 288}')
    for j in range(4): a(f'ds_read_b128 {vr(KMF+4*j,4)}, v{KR} offset:{L_KM + j*64}')
    for j in range(4): a(mfm(SM, KMF+4*j, QQ+4*j, '0' if j == 0 else vr(SM,4)))
    t0, t1, t2, t3 = AC, AC+1, AC+2, AC+3
    a(f'v_max3_f32 v{t1}, v19, v{SM}, v{SM+1}'); a(f'v_max3_f32 v{t2}, v19, v{SM}, v{SM+1}')
    a(f'v_permlane32_swap_b32 v{t1}, v{t2}'); a(f'v_max_f32 v{t0}, v{t1}, v{t2}'); a(f'v_max_f32 v{t3}, v{t1}, v{t2}')
    a(f'v_permlane16_swap_b32 v{t0}, v{t3}'); a(f'v_max_f32 v{t0}, v{t0}, v{t3}'); a(f'v_mul_f32 v{t0}, s{sSCL}, v{t0}')
    ex = [S0+i for i in range(8)] + [SM, SM+1]
    for r in ex: a(f'v_fma_f32 v{r}, v{r}, s{sSCL}, -v{t0}')
    for r in ex: a(f'v_exp_f32 v{r}, v{r}')
    a(f'v_pk_add_f32 {vr(t0,2)}, {vr(S0,2)}, {vr(S0+2,2)}'); a(f'v_pk_add_f32 {vr(t2,2)}, {vr(S0+4,2)}, {vr(S0+6,2)}')
    a(f'v_pk_add_f32 {vr(t0,2)}, {vr(t0,2)}, {vr(SM,2)}'); a(f'v_pk_add_f32 {vr(t0,2)}, {vr(t0,2)}, {vr(t2,2)}')
    a(f'v_add_f32 v{t2}, v{t0}, v{t1}'); a(f'v_add_f32 v{t3}, v{t0}, v{t1}')
    a(f'v_permlane32_swap_b32 v{t2}, v{t3}'); a(f'v_add_f32 v{t0}, v{t2}, v{t3}'); a(f'v_add_f32 v{t1}, v{t2}, v{t3}')
    a(f'v_permlane16_swap_b32 v{t0}, v{t1}'); a(f'v_add_f32 v{t0}, v{t0}, v{t1}'); a(f'v_rcp_f32 v{t0}, v{t0}')
    for r in ex: a(f'v_mul_f32 v{r}, v{r}, v{t0}')
    for k in range(4): a(f'v_cvt_pk_bf16_f32 v{PX+k}, v{S0+2*k}, v{S0+2*k+1}')
    a(f'v_cvt_pk_bf16_f32 v{PM}, v{SM}, v{SM+1}'); a(f'v_cvt_pk_bf16_f32 v{PM+3}, v{SM}, v{SM+1}')
    for et in range(4): a(mfm(OC+4*et, VV+4*et, PX, '0'))
    for et in range(4):
        a(f'v_mfma_f32_16x16x16_bf16 {vr(OC+4*et,4)}, {vr(KVM+4*(et>>1)+2,2)}, {vr(PM+2*(et&1),2)}, {vr(OC+4*et,4)}')
    a(f's_lshl_b32 s{sT0}, s{sHD}, 12'); a(f's_lshl_b32 s{sT1}, s{sEH}, 11'); a(f's_add_u32 s{sT0}, s{sT0}, s{sT1}'); a(f's_add_u32 s{sT0}, s{sT0}, s{sOB}')
    a(f's_lshl_b32 s{sT1}, s{sCU}, 4'); a(f's_lshl_b32 s{sT2}, s4, 2'); a(f's_add_u32 s{sT1}, s{sT1}, s{sT2}'); a(f's_add_u32 s{sT1}, s{sT1}, s{sGF}')
    a(f'v_mov_b32 v20, s{sRND}')
    for ep in range(2):
        for r in range(4): a(f'v_cvt_pk_bf16_f32 v{OP+4*ep+r}, v{OC+8*ep+r}, v{OC+8*ep+4+r}')
    a('s_cmp_eq_u32 s7, 1')
    both([f'buffer_store_dwordx4 {vr(OP+4*ep,4)}, v{L16}, {WS}, s{sT0} offen offset:{ep*1024}' for ep in range(2)], 'P2_so')
    a('s_waitcnt vmcnt(0)')
    both([f'buffer_store_dword v20, off, {WS}, s{sT1}'], 'P2_sf')
    a(f's_lshl_b32 s{sT0}, s4, 6'); a(f's_add_u32 s{sT0}, s{sT0}, s{sGF}')
    spin_ge(a, 'P2_gf', f'buffer_load_dword v20, v{FL}, {WS}, s{sT0} offen sc1', 1, 20, f's{sRND}', sleep=opt.get('gfsleep', 0))
    a(f's_lshl_b32 s{sT1}, s4, 15'); a(f's_add_u32 s{sT0}, s{sOB}, s{sT1}')
    R0 = 32
    for n in range(32):
        if n % 4 == 0 and n: a(f's_add_u32 s{sT0}, s{sT0}, 4096')
        a(f'buffer_load_dwordx4 {vr(R0+4*n,4)}, v{L16}, {WS}, s{sT0} offen offset:{(n&3)*1024} sc1')
    for n in range(32):
        a(f's_waitcnt vmcnt({31-n})')
        for t in range(2): a(mfm(AC+4*t, (n*2+t)*4, R0+4*n, '0' if n == 0 else vr(AC+4*t,4), 'a', 'v'))
    AA = 20
    reduce(AA, False)
    for k in range(2): a(f'v_mul_f32 v{AA+k}, v{GG}, v{AA+k}')
    rnd2(AA, AA)
    a(f'v_pk_add_f32 {vr(AA,2)}, {vr(AA,2)}, {vr(BB,2)}')
    a(f'v_cvt_pk_bf16_f32 v{AA}, v{AA}, v{AA+1}')
    a(f's_lshl_b32 s{sT0}, s{sUN}, 14')
    a(f'buffer_store_dword v{AA}, v{OA_}, {srd(sD)}, s{sT0} offen')
    a(f's_xor_b32 s{sOB}, s{sOB}, 0x20000')
    a(f's_add_u32 s{sUN}, s{sUN}, 14'); a(f's_add_u32 s{sRND}, s{sRND}, 1')
    a(f's_cmp_lt_u32 s{sUN}, 128')
    a('s_cbranch_scc1 P2_loop')
```

```python
import sys
from asmlib import *
from common import *
import team as TM
import worker as WK
TM.DBGT = lambda a, i, v: dbgt(a, i, v)
NAME = 'gated_mix__memory_aug_recurrent_mem_tr__swiglu_ffn__prompt'

def spin_dbg(a, off, target, label, v=(60, 61), s=(60, 61), sleep=0, mask=None):
    a(f'v_mov_b32 v{v[0]}, {off}')
    a(f's_mov_b32 s{s[0]}, 0')
    a.label(label)
    if sleep: a(f's_sleep {sleep}')
    a(f'buffer_load_dword v{v[1]}, v{v[0]}, {srd(sDBG)}, 0 offen sc1')
    a('s_waitcnt vmcnt(0)')
    a(f'v_readfirstlane_b32 s{s[1]}, v{v[1]}')
    if mask: a(f's_and_b32 s{s[1]}, s{s[1]}, {mask:#x}')
    a(f's_add_u32 s{s[0]}, s{s[0]}, 1')
    a(f's_cmp_ge_u32 s{s[0]}, {SPIN_MAX}')
    a('s_cbranch_scc1 L_fail')
    a(f's_cmp_lt_u32 s{s[1]}, {target}')
    a(f's_cbranch_scc1 {label}')

def spin_ready(a, label, v=(8, 9)): spin_dbg(a, DB_READY, 256, label, v=v, s=(60, 63), mask=0xffff)

def dbgt(a, idx, v, neg=False):
    a('s_memrealtime s[94:95]'); a('s_waitcnt lgkmcnt(0)')
    if neg: a('s_not_b32 s94, s94')
    a(f'v_mov_b32 v{v}, s94'); a('s_mov_b64 exec, 1')
    a(f'buffer_atomic_umax v{v}, off, {srd(sDBG)}, 0 offset:{4*idx}'); a('s_mov_b64 exec, -1')

def report(a, v):
    a(f's_mov_b32 s63, {DB_READY}'); a('s_cmp_eq_u32 s99, 0'); a('s_cselect_b32 s63, s63, 0x7fffff00'); a('s_mov_b32 s99, 1')
    a(f'v_mov_b32 v{v}, 1'); a('s_mov_b64 exec, 1')
    a(f'buffer_atomic_add v{v}, off, {srd(sDBG)}, s63'); a('s_mov_b64 exec, -1')

def wg_atomic_inc(a, off, tag, v=(60, 61)):
    a('s_waitcnt vmcnt(0)')
    a('s_barrier')
    a('s_cmp_lg_u32 s4, 0')
    a(f's_cbranch_scc1 {tag}')
    a(f'v_mov_b32 v{v[0]}, {off}'); a(f'v_mov_b32 v{v[1]}, 1')
    a('s_mov_b64 exec, 1')
    a(f'buffer_atomic_add v{v[1]}, v{v[0]}, {srd(sDBG)}, 0 offen')
    a('s_mov_b64 exec, -1')
    a.label(tag)

def build(opt):
    a = Asm()
    kn = opt.get('kname', NAME + '_kernel')
    a('s_cmp_ge_u32 s2, %d' % (0 if opt.get('empty') else 256))
    a('s_cbranch_scc1 L_exit')
    if opt.get('timing') or opt.get('stamps') or opt.get('dbgt'):
        a('s_memrealtime s[90:91]')
    load_srd(a, sWS, 'ws'); load_srd(a, sDBG, 'dbg'); load_srd(a, sA, 'Wq'); load_srd(a, sB, 'Wo')
    a('s_getreg_b32 s3, hwreg(HW_REG_XCC_ID, 0, 3)')
    a('v_lshrrev_b32 v1, 6, v0')
    a('v_readfirstlane_b32 s4, v1')
    if opt.get('fake_xcc'):
        a(f's_mul_hi_u32 s3, s2, {-(-(1 << 32)//31):#x}'); a('s_min_u32 s3, s3, 7')
    def cnt_off(a, d, x):
        a(f's_lshl_b32 s{d}, s{x}, 2'); a(f's_add_u32 s{d}, s{d}, 128'); a(f's_cmp_eq_u32 s{x}, 0'); a(f's_cselect_b32 s{d}, 0, s{d}')
    cnt_off(a, 6, 3)
    a(f'v_mov_b32 v2, s6'); a('v_mov_b32 v3, 1'); a(f'v_mov_b32 v4, {LDS_MISC}')
    a('v_mov_b64 v[8:9], 0'); a('v_mov_b64 v[10:11], 0'); a('v_lshlrev_b32 v5, 4, v0'); a('s_lshl_b32 s7, s2, 6')
    a('s_waitcnt lgkmcnt(0)')
    if opt.get('team_only'):
        a('s_cmp_lg_u32 s3, 0'); a('s_cbranch_scc1 L_exit')
    a('s_mov_b32 s99, s4')
    a('s_cmp_lg_u32 s4, 0')
    a('s_cbranch_scc1 L_hint')
    a('s_mov_b64 exec, 1')
    a(f'buffer_atomic_add v3, v2, {srd(sDBG)}, 0 offen sc0')
    if not opt.get('dev'):
        a('s_mov_b64 exec, 15')
        a(f'buffer_store_dwordx4 v[8:11], v5, {srd(sWS)}, s7 offen sc1')
        a('s_mov_b64 exec, 1')
    a('s_barrier')
    a('s_waitcnt vmcnt(0)')
    a('ds_write_b32 v4, v3')
    a('s_waitcnt lgkmcnt(0)')
    a('s_mov_b64 exec, -1')
    a('s_branch L_tk')
    a.label('L_hint')
    a('v_and_b32 v12, 63, v0'); a('v_lshlrev_b32 v12, 7, v12'); a('s_lshr_b32 s40, s2, 3')
    a('s_barrier')
    a('s_cmp_lg_u32 s3, 0'); a('s_cbranch_scc1 L_h1')
    a('s_cmp_lg_u32 s4, 1'); a('s_cbranch_scc1 L_h2')
    a('s_and_b32 s41, s40, 7'); a('s_lshl_b32 s41, s41, 23'); a('v_lshlrev_b32 v13, 13, v12')
    a('s_mov_b64 exec, 0xff')
    a(f'buffer_load_dword v250, v13, {srd(sWS)}, s41 offen sc1')
    a('s_mov_b64 exec, -1')
    a('s_branch L_h2')
    a.label('L_h1')
    if opt.get('mall', True):
        a('s_lshl_b32 s41, s2, 14'); a('s_add_u32 s42, s41, 0x2000')
        a('s_cmp_eq_u32 s4, 1'); a('s_cbranch_scc1 L_m1')
        a('s_cmp_eq_u32 s4, 3'); a('s_cbranch_scc1 L_h2')
        a(f'buffer_load_dword v250, v12, {srd(sB)}, s41 offen'); a(f'buffer_load_dword v250, v12, {srd(sB)}, s42 offen')
        a('s_branch L_h2')
        a.label('L_m1')
        a(f'buffer_load_dword v250, v12, {srd(sA)}, s41 offen'); a(f'buffer_load_dword v250, v12, {srd(sA)}, s42 offen')
    a.label('L_h2')
    if opt.get('cpf', False):
        a('s_cmp_lg_u32 s4, 3'); a('s_cbranch_scc1 L_tk')
        if not opt.get('cpf0', 1): a('s_cmp_eq_u32 s3, 0'); a('s_cbranch_scc1 L_tk')
        a(f's_cmp_ge_u32 s40, NCHUNK'); a('s_cbranch_scc1 L_tk')
        a('s_getpc_b64 s[42:43]')
        a('s_and_b32 s42, s42, 0xffffff00')
        a('s_lshl_b32 s40, s40, 13'); a('v_add_u32 v12, s40, v12')
        a('global_load_dword v251, v12, s[42:43]')
    a.label('L_tk')
    a('s_barrier')
    a('ds_read_b32 v3, v4')
    a('v_readfirstlane_b32 s5, v3')
    a('s_cmp_ge_u32 s5, 32')
    a('s_cbranch_scc1 L_over')
    a.label('L_role')
    a('s_cmp_lg_u32 s3, 0')
    a('s_cbranch_scc1 L_worker')
    if opt.get('no_team'): a('s_endpgm')
    def wave0_inc(a, off):
        a(f's_mov_b32 s63, {off}'); a('s_cmp_eq_u32 s4, 0'); a(f's_cselect_b32 s63, s63, 0x7fffff00')
        a('v_mov_b32 v98, 1'); a('s_mov_b64 exec, 1')
        a(f'buffer_atomic_add v98, off, {srd(sDBG)}, s63'); a('s_mov_b64 exec, -1')
    def h0(a, tmp):
        TM.team_consts(a, tmp, opt.get('rs', REP_ST)); TM.team_init1(a, tmp); return 4
    def h1(a, tmp):
        TM.team_init2(a)
        return 1
    def h3(a, tmp):
        a(f's_mov_b32 s63, {DB_READY}'); a('s_cmp_eq_u32 s4, 0'); a('s_cselect_b32 s63, s63, 0x7fffff00')
        a('s_sub_u32 s62, 0x10001, s99')
        a('v_mov_b32 v98, s62'); a('s_mov_b64 exec, 1')
        a(f'buffer_atomic_add v98, off, {srd(sDBG)}, s63'); a('s_mov_b64 exec, -1')
        return 1
    def ask(a):
        TM.kv_issue(a, 89)
        a(f'buffer_load_dwordx4 v[92:95], off, {srd(sDBG)}, 0 sc1')
    def seen(a):
        a('v_readfirstlane_b32 s61, v92'); a('v_readfirstlane_b32 s63, v94')
        a('s_cmp_ge_u32 s63, %#x' % (0x200000 if opt.get('dev') else 0x200100)); a('s_cselect_b32 s60, 1, 0')
    def judge(a, tag):
        TM.kv_eval(a, 89)
        a(f's_cmp_ge_u32 s{TM.sAV}, 3'); a('s_cselect_b32 s62, s60, 0')
        seen(a)
        a('s_cmp_eq_u32 s62, 0'); a(f's_cbranch_scc1 {tag}')
        TM.team_first_issue(a, 88)
    def h5(a, tmp):
        TM.kv_addr(a, 89)
        a(f'buffer_load_dwordx4 v[92:95], off, {srd(sDBG)}, 0 sc1')
    def h6(a, tmp):
        seen(a); ask(a)
        wave0_inc(a, DB_TEAMLD)
        if opt.get('lpf', 1):
            a('s_getpc_b64 s[64:65]'); a('s_and_b32 s64, s64, 0xffffff80')
            a(f'v_lshlrev_b32 v96, 3, v{TM.L16}'); a('s_lshl_b32 s63, s4, 13'); a('v_add_u32 v96, s63, v96')
            a('global_load_dword v97, v96, s[64:65]')
            return 2
        return 1
    def h7(a, tmp):
        judge(a, 'L_h7n')
        a('s_branch L_h7e')
        a.label('L_h7n')
        ask(a)
        a.label('L_h7e')
        TM.team_warm(a, 100, False)
        return 0
    TM.team_setup(a, opt, {'pre': h0, 1: h1, 3: h3, ('b', 5): h5, 6: h6, 7: h7})
    if opt.get('timing') or opt.get('stamps'):
        a('s_memrealtime s[92:93]'); a('s_waitcnt lgkmcnt(0)'); a('s_lshl_b32 s91, s92, 1'); a('s_add_u32 s91, s91, s62')
    a('s_cmp_eq_u32 s62, 1'); a('s_cbranch_scc1 L_pre')
    a(f's_mov_b32 s{TM.sSPIN}, 0')
    a('s_branch L_st1')
    a.label('L_st0')
    ask(a)
    a(f's_add_u32 s{TM.sSPIN}, s{TM.sSPIN}, 1'); a(f's_cmp_ge_u32 s{TM.sSPIN}, {SPIN_MAX}'); a('s_cbranch_scc1 L_fail')
    a.label('L_st1')
    a('s_waitcnt vmcnt(0)')
    judge(a, 'L_st0')
    a.label('L_pre')
    TM.team_first_kv(a)
    if opt.get('dbgt'): a('s_memrealtime s[96:97]'); a('s_waitcnt lgkmcnt(0)')
    if opt.get('force_slow'):
        TM.team(a, 'sc1', 'S', opt)
    else:
        a('s_cmp_lt_u32 s61, 32'); a('s_cbranch_scc1 L_tslow')
        TM.team(a, '', 'T', opt)
        a.label('L_tslow')
        if opt.get('noslow'): a('s_endpgm')
        else: TM.team(a, 'sc1', 'S', opt)
    a.label('L_over')
    a('s_barrier')
    a('s_cmp_lg_u32 s4, 0'); a('s_cbranch_scc1 L_ov1')
    a(f'v_mov_b32 v2, {DB_OVF}'); a('v_mov_b32 v3, 1'); a('s_mov_b64 exec, 1')
    a(f'buffer_atomic_add v3, v2, {srd(sDBG)}, 0 offen sc0')
    a('s_waitcnt vmcnt(0)')
    a('ds_write_b32 v4, v3'); a('s_waitcnt lgkmcnt(0)'); a('s_mov_b64 exec, -1')
    a.label('L_ov1')
    a('s_barrier')
    a('ds_read_b32 v3, v4')
    a('v_readfirstlane_b32 s7, v3')
    report(a, 7)
    spin_ready(a, 'L_ov2')
    a('s_mov_b32 s3, 0')
    a.label('L_ov3')
    cnt_off(a, 6, 3)
    a('v_mov_b32 v8, s6')
    a(f'buffer_load_dword v9, v8, {srd(sDBG)}, 0 offen sc1'); a('s_waitcnt vmcnt(0)')
    a('v_readfirstlane_b32 s5, v9')
    a('s_min_u32 s5, s5, 32'); a('s_add_u32 s5, s5, s7')
    a('s_cmp_lt_u32 s5, 32'); a('s_cbranch_scc1 L_role')
    a('s_sub_u32 s7, s5, 32')
    a('s_add_u32 s3, s3, 1'); a('s_cmp_lt_u32 s3, 8'); a('s_cbranch_scc1 L_ov3')
    a('s_branch L_fail')
    a.label('L_worker')
    a('s_sub_u32 s6, s3, 1'); a('s_lshl_b32 s6, s6, 5'); a('s_add_u32 s6, s6, s5')
    def ready_wait(a, tag):
        if not opt.get('dev'):
            a('s_cmp_lg_u32 s4, 0'); a(f's_cbranch_scc1 {tag}_e')
            spin_dbg(a, DB_READY, 256, tag, v=(8, 9), s=(60, 63), mask=0xffff, sleep=opt.get('rsl', 4))
            a.label(tag + '_e')
    WK.WST[0] = bool(opt.get('timing') or opt.get('stamps'))
    if WK.WST[0]:
        a('s_lshl_b32 s60, s6, 7'); a(f's_add_u32 s60, s60, {WS_DBG + 0x8000:#x}')
        a('v_mov_b32 v8, s90')
        a(f'buffer_store_dword v8, off, {srd(sWS)}, s60')
    def pause(a, tag):
        if opt.get('pause', True) and not opt.get('dev'):
            a('s_cmp_lg_u32 s4, 0'); a(f's_cbranch_scc1 {tag}_e')
            spin_dbg(a, DB_TEAMLD, 32, tag, v=(8, 9), sleep=8)
            a.label(tag + '_e')
            a('s_barrier')
    WK.PAUSE[0] = pause
    WK.REPORT[0] = report
    WK.OPT.clear(); WK.OPT.update(opt)
    if not opt.get('no_p1'): WK.phase1(a, ready_wait)
    cnt_off(a, 60, 3)
    a('v_mov_b32 v8, s60')
    a(f'buffer_load_dword v9, v8, {srd(sDBG)}, 0 offen sc1'); a('s_waitcnt vmcnt(0)')
    a('v_readfirstlane_b32 s7, v9')
    a('s_cmp_ge_u32 s7, 32'); a(f's_cselect_b32 s7, {0 if opt.get("force_slow") else 1}, 0')
    if not opt.get('no_p2'): WK.phase2(a, opt)
    WK.wstamp(a, 15)
    if opt.get('dbgt'):
        dbgt(a, 7, 20)
        a('s_not_b32 s90, s90'); a('v_mov_b32 v21, s90'); a('s_mov_b64 exec, 1'); a(f'buffer_atomic_umax v21, off, {srd(sDBG)}, 0 offset:16')
    a('s_waitcnt vmcnt(0)')
    a('s_endpgm')
    a.label('L_fail')
    a('s_mov_b64 exec, 1')
    a(f'v_mov_b32 v1, {DB_ERR}'); a('v_mov_b32 v2, 1')
    a(f'buffer_atomic_add v2, v1, {srd(sDBG)}, 0 offen')
    a('s_waitcnt vmcnt(0)')
    a.label('L_exit')
    a('s_endpgm')
    body = pad(auto_lgkm(resolve_waitv(a.lines)), verbose=opt.get('verbose', False))
    n_ins = sum(1 for l in body if l.startswith('    '))
    nchunk = 2 if opt.get('noslow') else opt.get('nchunk', 9)
    body = [l.replace('NCHUNK', str(nchunk)) for l in body]
    hdr = [f'; @launch grid=(256,1,1) block=(256,1,1) lds=163840',
           '.amdgcn_target "amdgcn-amd-amdhsa--gfx950"', '.text', f'.globl {kn}', '.p2align 8', f'.type {kn},@function', f'{kn}:']
    ftr = ['.section .rodata,"a"', '.p2align 6', f'.amdhsa_kernel {kn}', '  .amdhsa_next_free_vgpr 512', '  .amdhsa_next_free_sgpr 100',
           '  .amdhsa_accum_offset 256', '  .amdhsa_group_segment_fixed_size 0', '  .amdhsa_kernarg_size 120', '  .amdhsa_user_sgpr_count 2',
           '  .amdhsa_user_sgpr_kernarg_segment_ptr 1', '  .amdhsa_system_sgpr_workgroup_id_x 1', '  .amdhsa_float_denorm_mode_32 3', '.end_amdhsa_kernel']
    return '\n'.join(hdr + body + ftr) + '\n'

if __name__ == '__main__':
    opt = eval(sys.argv[2]) if len(sys.argv) > 2 else {}
    open(sys.argv[1], 'w').write(build(opt))
```

```python
from asmlib import *
from common import *
from team import stream
import math, struct
def fbits(x): return struct.unpack("<I", struct.pack("<f", x))[0]
L16 = 0
sIDX = 6
sPLO, sPHI = 37, 38
XST = 1056; XT = 32*XST
def mfm(d, A, B, C, fa='v', fb='v'): return f'v_mfma_f32_16x16x32_bf16 {vr(d,4)}, {vr(A,4,fa)}, {vr(B,4,fb)}, {C}'

def wload_items(S0, S1, va0, va1, stride, nk, dst, kbase_s, sT, imm1=0):
    items = []
    for kk in range(nk):
        for j in range(4):
            def iss(r, kk=kk, j=j):
                off = (32*kk + 2*j)*stride
                o = [f's_add_u32 s{sT}, s{kbase_s}, {off:#x}',
                     f'buffer_load_dword v{r}, v{va0}, {srd(S0)}, s{sT} offen',
                     f'buffer_load_dword v{r+1}, v{va0+1}, {srd(S0)}, s{sT} offen']
                if S1 is not None:
                    o += [f'buffer_load_dword v{r+2}, v{va1}, {srd(S1)}, s{sT} offen offset:{imm1}',
                          f'buffer_load_dword v{r+3}, v{va1+1}, {srd(S1)}, s{sT} offen offset:{imm1}']
                return o
            def con(r, kk=kk, j=j):
                o = []
                for T in range(4 if S1 is not None else 2):
                    b = r + 2*(T >> 1); sel = sPHI if T & 1 else sPLO
                    f, d = dst(kk, T, j)
                    if f == 'v': o.append(f'v_perm_b32 v{d}, v{b+1}, v{b}, s{sel}')
                    else: o += [f'v_perm_b32 v{8+(T&1)}, v{b+1}, v{b}, s{sel}', f'v_accvgpr_write_b32 a{d}, v{8+(T&1)}']
                return o
            n = 4 if S1 is not None else 2
            items.append((iss, n, n, con))
    return items

vC, vG, vA0, vA1, vRD = 1, 2, 4, 6, 3
ACC = 16
FR = 48
EP = 72
RING, RN = 104, 128
sTILE, sSTR, sBUF, sDST, sT0, sT1, sT2, sKB, sCNT, sW8, sNB, sDM = range(40, 52)
sCOL = 55

WST = [False]
PAUSE = [None]
REPORT = [None]
OPT = {}
def wstamp(a, i):
    if WST[0]:
        a('s_memrealtime s[92:93]'); a('s_memtime s[94:95]'); a('s_waitcnt lgkmcnt(0)')
        a('s_lshl_b32 s60, s6, 7'); a(f's_add_u32 s60, s60, {WS_DBG + 0x8000:#x}')
        if i < 0:
            a('s_min_u32 s61, s54, 2'); a('s_mul_i32 s61, s61, 12'); a('s_add_u32 s60, s60, s61'); i = -i - 1
        a('v_mov_b32 v20, s92'); a('v_mov_b32 v21, s94')
        a(f'buffer_store_dword v20, off, {srd(sWS)}, s60 offset:{4*i}')
        a(f'buffer_store_dword v21, off, {srd(sWS)}, s60 offset:{64+4*i}')
        a('s_waitcnt vmcnt(0)')

def touch(a, srds, stride, col_s, blk_s, t=10):
    a(f'v_lshrrev_b32 v{t}, 4, v{L16}'); a(f'v_mul_u32_u24 v{t}, {stride}, v{t}'); a(f'v_add_u32 v{t}, s{col_s}, v{t}')
    a(f's_mul_i32 s{sT2}, s{blk_s}, {64*stride:#x}')
    a(f's_mov_b32 s{sT1}, {7*64*stride:#x}')
    for S in srds:
        a(f'buffer_load_dword v{t+1}, v{t}, {srd(S)}, s{sT2} offen')
        a(f'buffer_load_dword v{t+1}, v{t}, {srd(S)}, s{sT1} offen')

def x_dma(a, tile_s, buf_s):
    a(f's_lshl_b32 s{sT0}, s{tile_s}, 15')
    a(f's_lshl_b32 s{sT1}, s4, 13'); a(f's_add_u32 s{sT0}, s{sT0}, s{sT1}')
    a(f's_add_u32 s{sT1}, s{buf_s}, s{sW8}')
    for r in range(8):
        a(f's_add_u32 m0, s{sT1}, {r*XST}')
        if r: a(f's_add_u32 s{sT0}, s{sT0}, 1024')
        a(f'buffer_load_dwordx4 v{L16}, {srd(sC)}, s{sT0} offen lds')

def wload_dma(a, S, NS=24):
    va, r0, t = vA0, vA1, 10
    a(f'v_lshrrev_b32 v{t}, 9, v{L16}'); a(f'v_bfe_u32 v{va}, v{L16}, 7, 2'); a(f'v_lshl_add_u32 v{va}, v{va}, 3, v{t}')
    a(f'v_and_b32 v{t}, 0x70, v{L16}'); a(f'v_lshl_add_u32 v{va}, v{va}, 13, v{t}'); a(f'v_add_u32 v{va}, s{sCOL}, v{va}')
    a(f's_mul_i32 s{sCNT}, s4, {NS*1024}'); a(f's_add_u32 s{sCNT}, s{sCNT}, {XT}')
    def iss(n): return [f's_add_u32 m0, s{sCNT}, {(n % NS)*1024}', f's_mov_b32 s{sT2}, {(32*(n >> 2) + 2*(n & 3))*8192:#x}',
                        f'buffer_load_dwordx4 v{va}, {srd(S)}, s{sT2} offen lds']
    for n in range(NS):
        for x in iss(n): a(x)
    REPORT[0](a, 11)
    a(f'v_lshlrev_b32 v{r0}, 7, v{vG}'); a(f'v_lshl_add_u32 v{r0}, v{vC}, 2, v{r0}'); a(f'v_add_u32 v{r0}, s{sCNT}, v{r0}'); a(f'v_add_u32 v{r0+1}, 64, v{r0}')
    def reads(kk):
        R = RING + (kk & 1)*16
        for j in range(4):
            o = ((4*kk+j) % NS)*4
            for pl in range(2): a(f'ds_read2st64_b32 {vr(R+4*j+2*pl,2)}, v{r0+pl} offset0:{o} offset1:{o+2}')
    a(f's_waitcnt vmcnt({NS - 4})')
    reads(0)
    for kk in range(16):
        n0 = 4*kk
        a(f's_waitcnt vmcnt({max(0, min(64, n0+NS) - (n0+8))}) lgkmcnt(0)')
        if kk < 15: reads(kk+1)
        R = RING + (kk & 1)*16
        nxt = list(range(n0+NS, min(64, n0+NS+4)))
        for j in range(4):
            if j < len(nxt):
                for x in iss(nxt[j]): a(x)
            for T in range(4):
                b = R + 4*j + 2*(T >> 1)
                a(f'v_perm_b32 v{8+(T&1)}, v{b+1}, v{b}, s{sPHI if T & 1 else sPLO}'); a(f'v_accvgpr_write_b32 a{(kk*4+T)*4+j}, v{8+(T&1)}')

def gemm(a, kind, tag, pre_loop):
    T_ = lambda n: f'{tag}_{n}'
    WS = srd(sWS)
    stride = 2752 if kind == 'F' else 8192
    if kind == 'F' or OPT.get('wt', 0): touch(a, [sA, sB] if kind == 'F' else [sA], stride, sCOL, sTILE)
    a('s_barrier')
    a(f's_mov_b32 s{sNB}, s{sTILE}')
    def xpre(bs):
        for b in bs:
            a(f's_mov_b32 s{sBUF}, {b*XT}')
            x_dma(a, sNB, sBUF)
            a(f's_add_u32 s{sNB}, s{sNB}, s{sSTR}')
    nst = {'F': 2, 'V': 5, 'K': 7}[kind]
    a('s_mov_b32 s57, 0')
    if kind == 'F':
        xpre((0, 1, 2))
        items = wload_items(sA, sB, vA0, vA1, stride, 16, lambda kk, T, j: ('a', (kk*4+T)*4+j), sKB, sT2, imm1=0)
        stream(a, items, RING, RN, maxload=60, older=28)
        wstamp(a, -2)
        a(f's_mov_b32 s{sBUF}, 0')
    else:
        xpre((0,))
        wload_dma(a, sA)
        wstamp(a, -2)
        a('s_barrier')
        xpre((1, 2))
        a(f's_mov_b32 s{sBUF}, 0')
        a(f's_branch {T_("in")}')
    a.label(T_('loop'))
    if kind != 'F':
        a('s_cmp_lg_u32 s57, s54')
        a(f's_cbranch_scc1 {T_("nd")}')
        a('s_waitcnt vmcnt(0)')
        pre_loop(a)
        a.label(T_('nd'))
    a(f's_waitcnt vmcnt({8 + nst})')
    a('s_barrier')
    if kind != 'F':
        a('s_sub_u32 s59, s57, 1'); a(f's_min_i32 s{sT0}, s57, 1'); a(f's_max_i32 s59, s59, s{sT0}')
        a(f'v_mov_b32 v8, s59')
        a(f'buffer_store_dword v8, off, {WS}, s56 sc1')
        a.label(T_('in'))
        a('s_add_u32 s57, s57, 1')
    a(f'v_add_u32 v{EP}, s{sBUF}, v{vRD}')
    def rd(kk, rt): return f'ds_read_b128 {vr(FR+((kk%3)*2+rt)*4,4)}, v{EP} offset:{rt*16*XST + kk*64}'
    for kk in (0, 1):
        a(rd(kk, 0)); a(rd(kk, 1))
    a(f's_add_u32 s{sT2}, s{sBUF}, {3*XT}'); a(f's_cmp_ge_u32 s{sT2}, {4*XT}'); a(f's_cselect_b32 s{sCNT}, {4*XT}, 0'); a(f's_sub_u32 s{sT2}, s{sT2}, s{sCNT}')
    x_dma(a, sNB, sT2)
    a(f's_add_u32 s{sNB}, s{sNB}, s{sSTR}')
    for kk in range(16):
        n = 0
        for rt in range(2):
            for T in range(4):
                d = ACC + (rt*4+T)*4; x = FR + ((kk % 3)*2+rt)*4; w = (kk*4+T)*4
                C = '0' if kk == 0 else vr(d, 4)
                a(mfm(d, x, w, C, 'v', 'a') if kind == 'V' else mfm(d, w, x, C, 'a', 'v'))
                if kk + 2 < 16 and n in (1, 3): a(rd(kk+2, n >> 1))
                n += 1
    if kind != 'F':
        a('s_cmp_lg_u32 s57, s98')
        a(f's_cbranch_scc1 {T_("np")}')
        PAUSE[0](a, T_('pz'))
        a.label(T_('np'))
    a(f's_mul_i32 s{sT0}, s{sTILE}, s{sDM}'); a(f's_add_u32 s{sT0}, s{sT0}, s{sDST}')
    ac = lambda rt, T, r: ACC + (rt*4+T)*4 + r
    if kind == 'K':
        a(f's_lshl_b32 s{sT1}, s{sTILE}, 17'); a(f's_add_u32 s{sT1}, s{sT1}, s58')
        for o in (0, 1024): a(f'buffer_store_dwordx4 v[12:15], v{L16}, {WS}, s{sT1} offen offset:{o} sc1')
        a(f's_add_u32 s{sT1}, s{sT0}, 4096')
        for rt in range(2):
            for u in range(2):
                e = EP + 4 + (rt*2+u)*4
                for r in range(4): a(f'v_cvt_pk_bf16_f32 v{e+r}, v{ac(rt,2*u,r)}, v{ac(rt,2*u+1,r)}')
                a(f'buffer_store_dwordx4 {vr(e,4)}, v{L16}, {WS}, s{sT1 if rt else sT0} offen offset:{u*1024} sc1')
    elif kind == 'V':
        for T in range(4):
            e = EP + 4 + T*4
            for rt in range(2):
                for p in range(2): a(f'v_cvt_pk_bf16_f32 v{e+rt*2+p}, v{ac(rt,T,2*p)}, v{ac(rt,T,2*p+1)}')
            a(f'buffer_store_dwordx4 {vr(e,4)}, v{L16}, {WS}, s{sT0} offen offset:{T*1024} sc1')
    else:
        a(f's_add_u32 s{sT1}, s{sT0}, {43*1024}')
        a(f's_mov_b32 s{sT2}, {fbits(-math.log2(math.e)):#x}')
        for rt in range(2):
            e = EP + 4 + rt*4; t = EP + 12
            G = [ac(rt, tt, r) for r in range(4) for tt in range(2)]
            U = [ac(rt, 2+tt, r) for r in range(4) for tt in range(2)]
            def rnd(L):
                for r in range(4): a(f'v_cvt_pk_bf16_f32 v{t+8+r}, v{L[2*r]}, v{L[2*r+1]}')
                for r in range(4):
                    a(f'v_lshlrev_b32 v{L[2*r]}, 16, v{t+8+r}'); a(f'v_and_b32 v{L[2*r+1]}, 0xffff0000, v{t+8+r}')
            rnd(G); rnd(U)
            for i in range(8): a(f'v_mul_f32 v{t+i}, s{sT2}, v{G[i]}')
            for i in range(8): a(f'v_exp_f32 v{t+i}, v{t+i}')
            for i in range(8): a(f'v_add_f32 v{t+i}, 1.0, v{t+i}')
            for i in range(8): a(f'v_rcp_f32 v{t+i}, v{t+i}')
            for i in range(8): a(f'v_mul_f32 v{G[i]}, v{G[i]}, v{t+i}')
            rnd(G)
            for i in range(8): a(f'v_mul_f32 v{G[i]}, v{G[i]}, v{U[i]}')
            for r in range(4): a(f'v_cvt_pk_bf16_f32 v{e+r}, v{G[2*r]}, v{G[2*r+1]}')
            a(f'buffer_store_dwordx4 {vr(e,4)}, v{L16}, {WS}, s{sT1 if rt else sT0} offen sc1')
    a(f's_add_u32 s{sBUF}, s{sBUF}, {XT}'); a(f's_cmp_ge_u32 s{sBUF}, {4*XT}'); a(f's_cselect_b32 s{sBUF}, 0, s{sBUF}')
    a(f's_add_u32 s{sTILE}, s{sTILE}, s{sSTR}')
    a(f's_cmp_lt_u32 s{sTILE}, 64')
    a(f's_cbranch_scc1 {T_("loop")}')

def set_flag(a, val, base, tag):
    a('s_waitcnt vmcnt(0)')
    a('s_barrier')
    a('s_cmp_lg_u32 s4, 0')
    a(f's_cbranch_scc1 {tag}')
    a(f's_lshl_b32 s{sT0}, s{sIDX}, 2')
    a(f'v_mov_b32 v8, {val}')
    a(f'buffer_store_dword v8, off, {srd(sWS)}, s{sT0} offset:{base} sc1')
    a.label(tag)

def worker_lane_consts(a):
    a('v_and_b32 v3, 63, v0')
    a(f'v_and_b32 v{vC}, 15, v3'); a(f'v_lshrrev_b32 v{vG}, 4, v3'); a(f'v_lshlrev_b32 v{L16}, 4, v3')
    a(f'v_mul_u32_u24 v{vRD}, {XST}, v{vC}'); a(f'v_lshl_add_u32 v{vRD}, v{vG}, 4, v{vRD}')
    a(f's_mov_b32 s{sPLO}, 0x05040100'); a(f's_mov_b32 s{sPHI}, 0x07060302')
    a(f's_mul_i32 s{sW8}, s4, {8*XST}')
    a(f's_mov_b32 s{sKB}, 0')
    for r in range(4): a(f'v_mov_b32 v{12+r}, {POISON:#x}')

def waddr(a, stride, col_s):
    a(f's_mov_b32 s{sCOL}, s{col_s}')
    a(f'v_mul_u32_u24 v{vA0}, {8*stride}, v{vG}'); a(f'v_lshl_add_u32 v{vA0}, v{vC}, 2, v{vA0}'); a(f'v_add_u32 v{vA0}, s{col_s}, v{vA0}')
    a(f'v_add_u32 v{vA0+1}, {stride}, v{vA0}')
    a(f'v_mov_b32 v{vA1}, v{vA0}'); a(f'v_mov_b32 v{vA1+1}, v{vA0+1}')

def qkv_setup(a, hp_s, wname, base):
    load_srd(a, sA, wname); load_srd(a, sB, wname)
    a(f's_lshl_b32 s{sT0}, s{hp_s}, 9'); a(f's_lshl_b32 s{sT1}, s4, 7'); a(f's_add_u32 s{sT0}, s{sT0}, s{sT1}')
    waddr(a, 8192, sT0)
    a(f's_lshl_b32 s{sDST}, s{hp_s}, 14'); a(f's_lshr_b32 s{sT1}, s4, 1'); a(f's_lshl_b32 s{sT1}, s{sT1}, 13'); a(f's_add_u32 s{sDST}, s{sDST}, s{sT1}')
    a(f's_and_b32 s{sT1}, s4, 1'); a(f's_lshl_b32 s{sT1}, s{sT1}, {12 if wname == "Wv" else 11}'); a(f's_add_u32 s{sDST}, s{sDST}, s{sT1}')
    a(f's_add_u32 s{sDST}, s{sDST}, {base:#x}')
    a(f's_mov_b32 s{sDM}, {32*8192:#x}')
    a('s_waitcnt lgkmcnt(0)')

def phase1(a, ready_wait):
    worker_lane_consts(a)
    wstamp(a, 1)
    load_srd(a, sC, 'x')
    sSL = 52
    a(f's_mul_hi_u32 s{sSL}, s{sIDX}, {-(-(1 << 32)//7):#x}'); a(f's_mul_i32 s{sT0}, s{sSL}, 7'); a(f's_sub_u32 s{sTILE}, s{sIDX}, s{sT0}')
    a(f's_mov_b32 s{sSTR}, 7')
    a(f's_and_b32 s53, s{sSL}, 15')
    a(f's_mov_b32 s54, 1')
    a('s_lshl_b32 s56, s53, 4'); a(f's_lshr_b32 s{sT0}, s{sSL}, 4'); a(f's_lshl_b32 s{sT0}, s{sT0}, 3'); a(f's_add_u32 s56, s56, s{sT0}'); a(f's_add_u32 s56, s56, s{sTILE}')
    a('s_lshl_b32 s56, s56, 2'); a(f's_add_u32 s56, s56, {WS_PF}'); a('s_cmp_eq_u32 s4, 0'); a('s_cselect_b32 s56, s56, 0x7fffff00')
    a(f's_cmp_ge_u32 s{sTILE}, {OPT.get("rgl", 4)}'); a('s_cselect_b32 s98, 1, 2')
    a(f's_cmp_ge_u32 s{sSL}, 16')
    a('s_waitcnt lgkmcnt(0)')
    a('s_cbranch_scc1 W_v')
    qkv_setup(a, 53, 'Wk', WS_KF)
    a('s_lshl_b32 s58, s53, 13'); a(f's_lshl_b32 s{sT0}, s4, 11'); a(f's_add_u32 s58, s58, s{sT0}'); a(f's_add_u32 s58, s58, {WS_KM:#x}')
    a.label('W_kq')
    gemm(a, 'K', 'GK', lambda a: ready_wait(a, 'W_rdy1'))
    a('s_cmp_eq_u32 s54, 99')
    a('s_cbranch_scc1 W_r2done')
    a('s_branch W_r1done')
    a.label('W_v')
    qkv_setup(a, 53, 'Wv', WS_VF)
    gemm(a, 'V', 'GV', lambda a: ready_wait(a, 'W_rdy2'))
    a.label('W_r1done')
    a('s_waitcnt vmcnt(0)'); a('s_barrier'); a('v_mov_b32 v8, 100'); a(f'buffer_store_dword v8, off, {srd(sWS)}, s56 sc1')
    a('s_mov_b32 s98, -1')
    a('s_mov_b32 s56, 0x7fffff00'); a('s_mov_b32 s58, 0x70000000')
    wstamp(a, 5)
    a(f's_lshr_b32 s{sSL}, s{sIDX}, 3'); a(f's_and_b32 s{sTILE}, s{sIDX}, 7'); a(f's_mov_b32 s{sSTR}, 8')
    a('s_mov_b32 s54, 99')
    a(f's_cmp_ge_u32 s{sSL}, 27'); a('s_cbranch_scc1 W_gate')
    a(f's_cmp_ge_u32 s{sSL}, 16'); a('s_cbranch_scc1 W_ffn')
    qkv_setup(a, sSL, 'Wq', WS_QF)
    a('s_branch W_kq')
    a.label('W_ffn')
    load_srd(a, sA, 'Wg'); load_srd(a, sB, 'Wu')
    a(f's_sub_u32 s53, s{sSL}, 16'); a('s_lshl_b32 s53, s53, 2'); a('s_add_u32 s53, s53, s4'); a('s_min_u32 s53, s53, 42')
    a(f's_lshl_b32 s{sT0}, s53, 6')
    waddr(a, 2752, sT0)
    a(f's_lshl_b32 s{sDST}, s53, 10'); a(f's_add_u32 s{sDST}, s{sDST}, {WS_HF:#x}')
    a(f's_mov_b32 s{sDM}, {2*43*1024:#x}')
    a('s_waitcnt lgkmcnt(0)')
    gemm(a, 'F', 'GF', lambda a: None)
    a('s_branch W_r2done')
    a.label('W_gate')
    gate(a)
    a.label('W_r2done')
    set_flag(a, 1, WS_PF2, 'W_f2')
    wstamp(a, 8)

def gate(a):
    load_srd(a, sA, 'gw')
    a(f's_sub_u32 s{sT0}, s{sIDX}, 216'); a(f's_lshl_b32 s{sT0}, s{sT0}, 2'); a(f's_add_u32 s{sT0}, s{sT0}, s4')
    a(f's_lshl_b32 s{sT1}, s{sT0}, 16')
    a(f's_lshl_b32 s{sDST}, s{sT0}, 8'); a(f's_add_u32 s{sDST}, s{sDST}, {WS_G:#x}')
    a('s_waitcnt lgkmcnt(0)')
    GW, X, R, RES, LN = 12, 16, 80, 10, 11
    a(f'buffer_load_dwordx4 {vr(GW,4)}, v{L16}, {srd(sA)}, 0 offen')
    a(f'v_lshrrev_b32 v{LN}, 4, v{L16}')
    a(f'v_mov_b32 v{RES}, 0')
    a(f's_mov_b32 s{sCNT}, 0')
    a.label('WG_loop')
    for i in range(16):
        a(f'buffer_load_dwordx4 {vr(X+4*i,4)}, v{L16}, {srd(sC)}, s{sT1} offen')
        a(f's_add_u32 s{sT1}, s{sT1}, 1024')
    a('s_waitcnt vmcnt(0)')
    for i in range(16): a(f'v_dot2_f32_bf16 v{R+i}, v{X+4*i}, v{GW}, 0')
    for k in range(1, 4):
        for i in range(16): a(f'v_dot2_f32_bf16 v{R+i}, v{X+4*i+k}, v{GW+k}, v{R+i}')
    a('s_nop 3')
    for rot in (8, 4, 2, 1):
        for i in range(16): a(f'v_add_f32_dpp v{R+i}, v{R+i}, v{R+i} row_ror:{rot} row_mask:0xf bank_mask:0xf')
    for sw in ('v_permlane16_swap_b32', 'v_permlane32_swap_b32'):
        for i in range(16): a(f'v_mov_b32 v{X+i}, v{R+i}')
        for i in range(16): a(f'{sw} v{R+i}, v{X+i}')
        for i in range(16): a(f'v_add_f32 v{R+i}, v{R+i}, v{X+i}')
    for i in range(16):
        a(f's_add_u32 s{sT2}, s{sCNT}, {i}')
        a(f'v_cmp_eq_u32 vcc, s{sT2}, v{LN}')
        a(f'v_cndmask_b32 v{RES}, v{RES}, v{R+i}, vcc')
    a(f's_add_u32 s{sCNT}, s{sCNT}, 16'); a(f's_cmp_lt_u32 s{sCNT}, 64'); a('s_cbranch_scc1 WG_loop')
    a(f'v_cvt_pk_bf16_f32 v{RES}, v{RES}, v{RES}'); a(f'v_and_b32 v{RES}, 0xffff0000, v{RES}')
    a(f'v_mul_f32 v{RES}, {fbits(-math.log2(math.e)):#x}, v{RES}')
    a(f'v_exp_f32 v{RES}, v{RES}'); a(f'v_add_f32 v{RES}, 1.0, v{RES}'); a(f'v_rcp_f32 v{RES}, v{RES}')
    a(f'v_cvt_pk_bf16_f32 v{RES}, v{RES}, v{RES}'); a(f'v_and_b32 v{RES}, 0xffff0000, v{RES}')
    a(f'v_lshlrev_b32 v{LN}, 2, v{LN}')
    a(f'buffer_store_dword v{RES}, v{LN}, {srd(sWS)}, s{sDST} offen sc1')

def spin_ge(a, tag, load, nreg, dst, thr, lanes_ok=None, sleep=1):
    a('s_mov_b32 s62, 0')
    a.label(tag)
    a(load)
    a('s_waitcnt vmcnt(0)')
    if nreg == 4:
        a(f'v_min3_i32 v{dst}, v{dst}, v{dst+1}, v{dst+2}'); a(f'v_min_i32 v{dst}, v{dst}, v{dst+3}')
    a(f'v_cmp_gt_i32 vcc, {thr}, v{dst}')
    a(f's_cbranch_vccz {tag}_ok')
    if sleep: a(f's_sleep {sleep}')
    a('s_add_u32 s62, s62, 1')
    a(f's_cmp_lt_u32 s62, {SPIN_MAX}')
    a(f's_cbranch_scc1 {tag}')
    a('s_branch L_fail')
    a.label(tag + '_ok')

def phase2(a, opt):
    WS = srd(sWS)
    if opt.get('no_p1'): worker_lane_consts(a)
    sGI, sCU, sUN, sRND, sHD, sRH, sGF, sSCL, sEH, sQO, sOB, sPOI = range(63, 75)
    WD = 168
    load_srd(a, sA, 'Wo'); load_srd(a, sB, 'Wd'); load_srd(a, sD, 'out')
    a(f's_lshr_b32 s{sGI}, s{sIDX}, 4'); a(f's_and_b32 s{sCU}, s{sIDX}, 15')
    a(f's_lshl_b32 s{sT0}, s{sCU}, 6')
    waddr(a, 1024, sT0)
    a(f's_lshl_b32 s{sKB}, s4, 20')
    a(f's_mul_i32 s{sNB}, s4, {11*32*1024:#x}')
    a('s_waitcnt lgkmcnt(0)')
    items = wload_items(sA, None, vA0, None, 1024, 32, lambda kk, T, j: ('a', (kk*2+T)*4+j), sKB, sT2)
    items += wload_items(sB, None, vA0, None, 1024, 11, lambda kk, T, j: ('v', WD+(kk*2+T)*4+j), sNB, sT2)
    stream(a, items, 100, 64, maxload=60, older=2)
    wstamp(a, 9)
    MSK, KW, KR, RW, RR, OA_, FL = 4, 12, 13, 14, 15, 3, 17
    a(f's_lshr_b32 s{sT0}, s4, 1'); a(f's_lshl_b32 s{sHD}, s{sCU}, 1'); a(f's_add_u32 s{sHD}, s{sHD}, s{sT0}')
    a(f's_and_b32 s{sRH}, s{sGI}, 1'); a(f's_and_b32 s{sEH}, s4, 1')
    a(f's_mov_b32 s{sSCL}, {fbits((128 ** -0.5) * math.log2(math.e)):#x}')
    a(f's_mov_b32 s{sPOI}, {POISON:#x}')
    a(f's_lshl_b32 s{sT0}, s{sRH}, 4'); a(f'v_add_u32 v18, s{sT0}, v{vC}'); a(f'v_lshlrev_b32 v19, 2, v{vG}'); a('v_sub_u32 v18, v18, v19')
    a(f'v_mov_b32 v19, {fbits(-1e30):#x}')
    for t in range(2):
        for r in range(4):
            a(f'v_cmp_gt_i32 vcc, {16*t+r}, v18'); a(f'v_cndmask_b32 v{MSK+4*t+r}, 0, v19, vcc')
    L_KM, L_RED = 0, 16384
    a(f's_mul_i32 s{sT0}, s4, 2304')
    a(f'v_mul_u32_u24 v{KW}, 576, v{vG}'); a(f'v_lshl_add_u32 v{KW}, v{vC}, 2, v{KW}'); a(f'v_add_u32 v{KW}, s{sT0}, v{KW}')
    a(f's_lshl_b32 s{sT1}, s{sEH}, 7'); a(f'v_add_u32 v16, s{sT1}, v{KW}')
    a(f's_xor_b32 s{sT1}, s{sT1}, 128'); a(f'v_add_u32 v{KW}, s{sT1}, v{KW}')
    a(f'v_lshrrev_b32 v18, 2, v{vC}'); a(f'v_and_b32 v19, 1, v{vC}'); a('v_lshl_add_u32 v18, v18, 1, v19')
    a(f'v_mul_u32_u24 v{KR}, 288, v18'); a(f'v_lshl_add_u32 v{KR}, v{vG}, 4, v{KR}'); a(f'v_add_u32 v{KR}, s{sT0}, v{KR}')
    a(f's_lshl_b32 s{sT0}, s4, 11'); a(f's_add_u32 s{sT0}, s{sT0}, {L_RED}'); a(f'v_add_u32 v{RW}, s{sT0}, v{L16}')
    a(f's_lshl_b32 s{sT2}, s4, 2'); a(f's_add_u32 s{sT1}, s{sT2}, {L_RED}'); a(f'v_add_u32 v{RR}, s{sT1}, v{L16}')
    a(f's_lshl_b32 s{sT1}, s{sCU}, 6'); a(f's_add_u32 s{sT1}, s{sT1}, s{sT2}')
    a(f'v_lshlrev_b32 v{OA_}, 10, v{vC}'); a(f'v_lshl_add_u32 v{OA_}, v{vG}, 4, v{OA_}'); a(f'v_add_u32 v{OA_}, s{sT1}, v{OA_}')
    a(f'v_lshlrev_b32 v{FL}, 2, v{vC}')
    a(f's_lshl_b32 s{sGF}, s{sGI}, 8'); a(f's_add_u32 s{sGF}, s{sGF}, {WS_GF:#x}')
    a(f's_lshl_b32 s{sOB}, s{sGI}, 18'); a(f's_add_u32 s{sOB}, s{sOB}, {WS_OF:#x}')
    a(f's_mov_b32 s{sUN}, s{sGI}'); a(f's_mov_b32 s{sRND}, 1')
    a(f'v_min_u32 v18, {55*16}, v{L16}')
    spin_ge(a, 'P2_pf', f'buffer_load_dwordx4 v[20:23], v18, {WS}, 0 offen offset:{WS_PF2} sc1', 4, 20, 1, sleep=8)
    wstamp(a, 10)
    AC, QQ, KK, VV, KVM, HH, S0, SM = 24, 32, 48, 80, 96, 112, 156, 164
    PX, PM, KMF, OC, OP = 112, 116, 120, 136, 48
    GG, BB = 18, 22
    def both(plain, tag):
        a(f's_cbranch_scc1 {tag}f')
        for x in plain: a(x + ' sc1')
        a(f's_branch {tag}e')
        a.label(tag + 'f')
        for x in plain: a(x)
        a.label(tag + 'e')
    a.label('P2_loop')
    a(f's_mul_i32 s{sT0}, s{sUN}, {43*1024:#x}'); a(f's_add_u32 s{sT0}, s{sT0}, {WS_HF:#x}')
    a(f's_mul_i32 s{sT1}, s4, 11')
    for i in range(11):
        a(f's_add_u32 s{sT2}, s{sT1}, {i}'); a(f's_min_u32 s{sT2}, s{sT2}, 42'); a(f's_lshl_b32 s{sT2}, s{sT2}, 10'); a(f's_add_u32 s{sT2}, s{sT2}, s{sT0}')
        a(f'buffer_load_dwordx4 {vr(HH+4*i,4)}, v{L16}, {WS}, s{sT2} offen sc1')
    a(f's_lshl_b32 s{sT0}, s{sUN}, 6'); a(f's_add_u32 s{sT0}, s{sT0}, {WS_G:#x}')
    a(f'buffer_load_dword v{GG}, v{FL}, {WS}, s{sT0} offen sc1')
    a(f's_lshr_b32 s{sT0}, s{sUN}, 1'); a(f's_lshl_b32 s{sT0}, s{sT0}, 5'); a(f's_add_u32 s{sT0}, s{sT0}, s{sHD}'); a(f's_lshl_b32 s{sQO}, s{sT0}, 13')
    a(f's_lshl_b32 s{sT0}, s{sRH}, 12'); a(f's_add_u32 s{sT0}, s{sT0}, s{sQO}'); a(f's_add_u32 s{sT0}, s{sT0}, {WS_QF:#x}')
    for j in range(4): a(f'buffer_load_dwordx4 {vr(QQ+4*j,4)}, v{L16}, {WS}, s{sT0} offen offset:{j*1024} sc1')
    a(f's_add_u32 s{sT0}, s{sQO}, {WS_KF:#x}'); a(f's_add_u32 s{sT1}, s{sT0}, 4096')
    for j in range(8): a(f'buffer_load_dwordx4 {vr(KK+4*j,4)}, v{L16}, {WS}, s{sT1 if j >= 4 else sT0} offen offset:{(j&3)*1024} sc1')
    a(f's_lshl_b32 s{sT0}, s{sEH}, 12'); a(f's_add_u32 s{sT0}, s{sT0}, s{sQO}'); a(f's_add_u32 s{sT0}, s{sT0}, {WS_VF:#x}')
    for j in range(4): a(f'buffer_load_dwordx4 {vr(VV+4*j,4)}, v{L16}, {WS}, s{sT0} offen offset:{j*1024} sc1')
    sK0, sK1 = 75, 76
    a(f's_lshr_b32 s{sK0}, s{sQO}, 1'); a(f's_add_u32 s{sK0}, s{sK0}, {WS_KM:#x}'); a(f's_lshl_b32 s{sT0}, s{sEH}, 11'); a(f's_add_u32 s{sK0}, s{sK0}, s{sT0}'); a(f's_xor_b32 s{sK1}, s{sK0}, 2048')
    kvl = [f'buffer_load_dwordx4 {vr(KVM+4*j,4)}, v{L16}, {WS}, s{sK1 if j >= 2 else sK0} offen offset:{(j&1)*1024} sc1' for j in range(4)]
    for x in kvl: a(x)
    for i in range(11):
        a(f's_waitcnt vmcnt({10 - i + 21})')
        for t in range(2): a(mfm(AC+4*t, WD+(i*2+t)*4, HH+4*i, '0' if i == 0 else vr(AC+4*t,4)))
    def reduce(dst, first):
        o = 0 if first else 8192
        for q in range(2): a(f'ds_write_b128 v{RW}, {vr(AC+4*q,4)} offset:{o + q*1024}')
        a('s_waitcnt lgkmcnt(0)')
        a('s_barrier')
        for w in range(4):
            for t in range(2): a(f'ds_read_b32 v{AC+2*w+t}, v{RR} offset:{o + w*2048 + t*1024}')
        a(f'v_pk_add_f32 {vr(AC,2)}, {vr(AC,2)}, {vr(AC+2,2)}'); a(f'v_pk_add_f32 {vr(AC+4,2)}, {vr(AC+4,2)}, {vr(AC+6,2)}')
        a(f'v_pk_add_f32 {vr(AC,2)}, {vr(AC,2)}, {vr(AC+4,2)}')
        rnd2(AC, dst)
    def rnd2(r, dst):
        a(f'v_cvt_pk_bf16_f32 v{AC+6}, v{r}, v{r+1}')
        a(f'v_lshlrev_b32 v{dst}, 16, v{AC+6}'); a(f'v_and_b32 v{dst+1}, 0xffff0000, v{AC+6}')
    reduce(BB, True)
    a('s_waitcnt vmcnt(8)')
    a(f'v_sub_f32 v19, 1.0, v{GG}'); a('v_cvt_pk_bf16_f32 v19, v19, v19'); a('v_and_b32 v19, 0xffff0000, v19')
    for j in range(4):
        for t in range(2): a(mfm(S0+4*t, KK+16*t+4*j, QQ+4*j, vr(MSK+4*t,4) if j == 0 else vr(S0+4*t,4)))
    for k in range(2): a(f'v_mul_f32 v{BB+k}, v19, v{BB+k}')
    rnd2(BB, BB)
    a(f'v_mov_b32 v{PM+1}, 0'); a(f'v_mov_b32 v{PM+2}, 0')
    a(f'v_max3_f32 v19, v{S0}, v{S0+1}, v{S0+2}'); a(f'v_max3_f32 v21, v{S0+4}, v{S0+5}, v{S0+6}'); a(f'v_max3_f32 v19, v19, v{S0+3}, v{S0+7}'); a('v_max_f32 v19, v19, v21')
    a('s_mov_b32 s62, 0')
    a.label('P2_kc')
    a('s_waitcnt vmcnt(0)')
    a(f'v_max3_u32 v20, v{KVM}, v{KVM+1}, v{KVM+2}')
    for k in range(3, 15, 2): a(f'v_max3_u32 v20, v20, v{KVM+k}, v{KVM+k+1}')
    a(f'v_max_u32 v20, v20, v{KVM+15}')
    a(f'v_cmp_eq_u32 vcc, s{sPOI}, v20')
    a('s_cbranch_vccz P2_kok')
    a(f's_sleep {opt.get("tfsleep", 2)}')
    for x in kvl: a(x)
    a('s_add_u32 s62, s62, 1'); a(f's_cmp_lt_u32 s62, {SPIN_MAX}'); a('s_cbranch_scc1 P2_kc')
    a('s_branch L_fail')
    a.label('P2_kok')
    for j in range(4):
        kw = KW if j >= 2 else 16
        a(f'ds_write_b32 v{kw}, v{KVM+4*j} offset:{L_KM + (j&1)*64}'); a(f'ds_write_b32 v{kw}, v{KVM+4*j+1} offset:{L_KM + (j&1)*64 + 288}')
    for j in range(4): a(f'ds_read_b128 {vr(KMF+4*j,4)}, v{KR} offset:{L_KM + j*64}')
    for j in range(4): a(mfm(SM, KMF+4*j, QQ+4*j, '0' if j == 0 else vr(SM,4)))
    t0, t1, t2, t3 = AC, AC+1, AC+2, AC+3
    a(f'v_max3_f32 v{t1}, v19, v{SM}, v{SM+1}'); a(f'v_max3_f32 v{t2}, v19, v{SM}, v{SM+1}')
    a(f'v_permlane32_swap_b32 v{t1}, v{t2}'); a(f'v_max_f32 v{t0}, v{t1}, v{t2}'); a(f'v_max_f32 v{t3}, v{t1}, v{t2}')
    a(f'v_permlane16_swap_b32 v{t0}, v{t3}'); a(f'v_max_f32 v{t0}, v{t0}, v{t3}'); a(f'v_mul_f32 v{t0}, s{sSCL}, v{t0}')
    ex = [S0+i for i in range(8)] + [SM, SM+1]
    for r in ex: a(f'v_fma_f32 v{r}, v{r}, s{sSCL}, -v{t0}')
    for r in ex: a(f'v_exp_f32 v{r}, v{r}')
    a(f'v_pk_add_f32 {vr(t0,2)}, {vr(S0,2)}, {vr(S0+2,2)}'); a(f'v_pk_add_f32 {vr(t2,2)}, {vr(S0+4,2)}, {vr(S0+6,2)}')
    a(f'v_pk_add_f32 {vr(t0,2)}, {vr(t0,2)}, {vr(SM,2)}'); a(f'v_pk_add_f32 {vr(t0,2)}, {vr(t0,2)}, {vr(t2,2)}')
    a(f'v_add_f32 v{t2}, v{t0}, v{t1}'); a(f'v_add_f32 v{t3}, v{t0}, v{t1}')
    a(f'v_permlane32_swap_b32 v{t2}, v{t3}'); a(f'v_add_f32 v{t0}, v{t2}, v{t3}'); a(f'v_add_f32 v{t1}, v{t2}, v{t3}')
    a(f'v_permlane16_swap_b32 v{t0}, v{t1}'); a(f'v_add_f32 v{t0}, v{t0}, v{t1}'); a(f'v_rcp_f32 v{t0}, v{t0}')
    for r in ex: a(f'v_mul_f32 v{r}, v{r}, v{t0}')
    for k in range(4): a(f'v_cvt_pk_bf16_f32 v{PX+k}, v{S0+2*k}, v{S0+2*k+1}')
    a(f'v_cvt_pk_bf16_f32 v{PM}, v{SM}, v{SM+1}'); a(f'v_cvt_pk_bf16_f32 v{PM+3}, v{SM}, v{SM+1}')
    for et in range(4): a(mfm(OC+4*et, VV+4*et, PX, '0'))
    for et in range(4):
        a(f'v_mfma_f32_16x16x16_bf16 {vr(OC+4*et,4)}, {vr(KVM+4*(et>>1)+2,2)}, {vr(PM+2*(et&1),2)}, {vr(OC+4*et,4)}')
    a(f's_lshl_b32 s{sT0}, s{sHD}, 12'); a(f's_lshl_b32 s{sT1}, s{sEH}, 11'); a(f's_add_u32 s{sT0}, s{sT0}, s{sT1}'); a(f's_add_u32 s{sT0}, s{sT0}, s{sOB}')
    a(f's_lshl_b32 s{sT1}, s{sCU}, 4'); a(f's_lshl_b32 s{sT2}, s4, 2'); a(f's_add_u32 s{sT1}, s{sT1}, s{sT2}'); a(f's_add_u32 s{sT1}, s{sT1}, s{sGF}')
    a(f'v_mov_b32 v20, s{sRND}')
    for ep in range(2):
        for r in range(4): a(f'v_cvt_pk_bf16_f32 v{OP+4*ep+r}, v{OC+8*ep+r}, v{OC+8*ep+4+r}')
    a('s_cmp_eq_u32 s7, 1')
    both([f'buffer_store_dwordx4 {vr(OP+4*ep,4)}, v{L16}, {WS}, s{sT0} offen offset:{ep*1024}' for ep in range(2)], 'P2_so')
    a('s_waitcnt vmcnt(0)')
    both([f'buffer_store_dword v20, off, {WS}, s{sT1}'], 'P2_sf')
    a(f's_lshl_b32 s{sT0}, s4, 6'); a(f's_add_u32 s{sT0}, s{sT0}, s{sGF}')
    spin_ge(a, 'P2_gf', f'buffer_load_dword v20, v{FL}, {WS}, s{sT0} offen sc1', 1, 20, f's{sRND}', sleep=opt.get('gfsleep', 0))
    a(f's_lshl_b32 s{sT1}, s4, 15'); a(f's_add_u32 s{sT0}, s{sOB}, s{sT1}')
    R0 = 32
    for n in range(32):
        if n % 4 == 0 and n: a(f's_add_u32 s{sT0}, s{sT0}, 4096')
        a(f'buffer_load_dwordx4 {vr(R0+4*n,4)}, v{L16}, {WS}, s{sT0} offen offset:{(n&3)*1024} sc1')
    for n in range(32):
        a(f's_waitcnt vmcnt({31-n})')
        for t in range(2): a(mfm(AC+4*t, (n*2+t)*4, R0+4*n, '0' if n == 0 else vr(AC+4*t,4), 'a', 'v'))
    AA = 20
    reduce(AA, False)
    for k in range(2): a(f'v_mul_f32 v{AA+k}, v{GG}, v{AA+k}')
    rnd2(AA, AA)
    a(f'v_pk_add_f32 {vr(AA,2)}, {vr(AA,2)}, {vr(BB,2)}')
    a(f'v_cvt_pk_bf16_f32 v{AA}, v{AA}, v{AA+1}')
    a(f's_lshl_b32 s{sT0}, s{sUN}, 14')
    a(f'buffer_store_dword v{AA}, v{OA_}, {srd(sD)}, s{sT0} offen {opt.get("outf", "")}')
    if opt.get('wb'):
        a(f's_and_b32 s{sT0}, s{sIDX}, 15'); a(f's_or_b32 s{sT0}, s{sT0}, s4'); a(f's_cmp_lg_u32 s{sT0}, 0'); a('s_cbranch_scc1 P2_nwb')
        a(f's_cmp_ge_u32 s{sUN}, {opt["wb"]}'); a('s_cbranch_scc1 P2_nwb')
        a('buffer_wbl2 sc1')
        a.label('P2_nwb')
    a(f's_xor_b32 s{sOB}, s{sOB}, 0x20000')
    a(f's_add_u32 s{sUN}, s{sUN}, 14'); a(f's_add_u32 s{sRND}, s{sRND}, 1')
    a(f's_cmp_lt_u32 s{sUN}, 128')
    a('s_cbranch_scc1 P2_loop')
```

```python
import sys
from asmlib import *
from common import *
import team as TM
import worker as WK
TM.DBGT = lambda a, i, v: dbgt(a, i, v)
NAME = 'gated_mix__memory_aug_recurrent_mem_tr__swiglu_ffn__prompt'

def spin_dbg(a, off, target, label, v=(60, 61), s=(60, 61), sleep=0, mask=None):
    a(f'v_mov_b32 v{v[0]}, {off}')
    a(f's_mov_b32 s{s[0]}, 0')
    a.label(label)
    if sleep: a(f's_sleep {sleep}')
    a(f'buffer_load_dword v{v[1]}, v{v[0]}, {srd(sDBG)}, 0 offen sc1')
    a('s_waitcnt vmcnt(0)')
    a(f'v_readfirstlane_b32 s{s[1]}, v{v[1]}')
    if mask: a(f's_and_b32 s{s[1]}, s{s[1]}, {mask:#x}')
    a(f's_add_u32 s{s[0]}, s{s[0]}, 1')
    a(f's_cmp_ge_u32 s{s[0]}, {SPIN_MAX}')
    a('s_cbranch_scc1 L_fail')
    a(f's_cmp_lt_u32 s{s[1]}, {target}')
    a(f's_cbranch_scc1 {label}')

def spin_ready(a, label, v=(8, 9)): spin_dbg(a, DB_READY, 256, label, v=v, s=(60, 63), mask=0xffff)

def dbgt(a, idx, v, neg=False):
    a('s_memrealtime s[94:95]'); a('s_waitcnt lgkmcnt(0)')
    if neg: a('s_not_b32 s94, s94')
    a(f'v_mov_b32 v{v}, s94'); a('s_mov_b64 exec, 1')
    a(f'buffer_atomic_umax v{v}, off, {srd(sDBG)}, 0 offset:{4*idx}'); a('s_mov_b64 exec, -1')

def report(a, v):
    a(f's_mov_b32 s63, {DB_READY}'); a('s_cmp_eq_u32 s99, 0'); a('s_cselect_b32 s63, s63, 0x7fffff00'); a('s_mov_b32 s99, 1')
    a(f'v_mov_b32 v{v}, 1'); a('s_mov_b64 exec, 1')
    a(f'buffer_atomic_add v{v}, off, {srd(sDBG)}, s63'); a('s_mov_b64 exec, -1')

def wg_atomic_inc(a, off, tag, v=(60, 61)):
    a('s_waitcnt vmcnt(0)')
    a('s_barrier')
    a('s_cmp_lg_u32 s4, 0')
    a(f's_cbranch_scc1 {tag}')
    a(f'v_mov_b32 v{v[0]}, {off}'); a(f'v_mov_b32 v{v[1]}, 1')
    a('s_mov_b64 exec, 1')
    a(f'buffer_atomic_add v{v[1]}, v{v[0]}, {srd(sDBG)}, 0 offen')
    a('s_mov_b64 exec, -1')
    a.label(tag)

def build(opt):
    a = Asm()
    kn = opt.get('kname', NAME + '_kernel')
    a('s_cmp_ge_u32 s2, %d' % (0 if opt.get('empty') else 256))
    a('s_cbranch_scc1 L_exit')
    if opt.get('timing') or opt.get('stamps') or opt.get('dbgt'):
        a('s_memrealtime s[90:91]')
    load_srd(a, sWS, 'ws'); load_srd(a, sDBG, 'dbg'); load_srd(a, sA, 'Wq'); load_srd(a, sB, 'Wo')
    a('s_getreg_b32 s3, hwreg(HW_REG_XCC_ID, 0, 3)')
    a('v_lshrrev_b32 v1, 6, v0')
    a('v_readfirstlane_b32 s4, v1')
    if opt.get('fake_xcc'):
        a(f's_mul_hi_u32 s3, s2, {-(-(1 << 32)//31):#x}'); a('s_min_u32 s3, s3, 7')
    def cnt_off(a, d, x):
        a(f's_lshl_b32 s{d}, s{x}, 2'); a(f's_add_u32 s{d}, s{d}, 128'); a(f's_cmp_eq_u32 s{x}, 0'); a(f's_cselect_b32 s{d}, 0, s{d}')
    cnt_off(a, 6, 3)
    a(f'v_mov_b32 v2, s6'); a('v_mov_b32 v3, 1'); a(f'v_mov_b32 v4, {LDS_MISC}')
    a('v_mov_b64 v[8:9], 0'); a('v_mov_b64 v[10:11], 0'); a('v_lshlrev_b32 v5, 4, v0'); a('s_lshl_b32 s7, s2, 6')
    a('s_waitcnt lgkmcnt(0)')
    if opt.get('team_only'):
        a('s_cmp_lg_u32 s3, 0'); a('s_cbranch_scc1 L_exit')
    a('s_mov_b32 s99, s4')
    a('s_cmp_lg_u32 s4, 0')
    a('s_cbranch_scc1 L_hint')
    a('s_mov_b64 exec, 1')
    a(f'buffer_atomic_add v3, v2, {srd(sDBG)}, 0 offen sc0')
    if not opt.get('dev'):
        a('s_mov_b64 exec, 15')
        a(f'buffer_store_dwordx4 v[8:11], v5, {srd(sWS)}, s7 offen sc1')
        a('s_mov_b64 exec, 1')
    a('s_barrier')
    a('s_waitcnt vmcnt(0)')
    a('ds_write_b32 v4, v3')
    a('s_waitcnt lgkmcnt(0)')
    a('s_mov_b64 exec, -1')
    a('s_branch L_tk')
    a.label('L_hint')
    a('v_and_b32 v12, 63, v0'); a('v_lshlrev_b32 v12, 7, v12'); a('s_lshr_b32 s40, s2, 3')
    a('s_barrier')
    a('s_cmp_lg_u32 s3, 0'); a('s_cbranch_scc1 L_h1')
    a('s_cmp_lg_u32 s4, 1'); a('s_cbranch_scc1 L_h2')
    a('s_and_b32 s41, s40, 7'); a('s_lshl_b32 s41, s41, 23'); a('v_lshlrev_b32 v13, 13, v12')
    a('s_mov_b64 exec, 0xff')
    a(f'buffer_load_dword v250, v13, {srd(sWS)}, s41 offen sc1')
    a('s_mov_b64 exec, -1')
    a('s_branch L_h2')
    a.label('L_h1')
    if opt.get('mall', True):
        a('s_lshl_b32 s41, s2, 14'); a('s_add_u32 s42, s41, 0x2000')
        a('s_cmp_eq_u32 s4, 1'); a('s_cbranch_scc1 L_m1')
        a('s_cmp_eq_u32 s4, 3'); a('s_cbranch_scc1 L_h2')
        a(f'buffer_load_dword v250, v12, {srd(sB)}, s41 offen'); a(f'buffer_load_dword v250, v12, {srd(sB)}, s42 offen')
        a('s_branch L_h2')
        a.label('L_m1')
        a(f'buffer_load_dword v250, v12, {srd(sA)}, s41 offen'); a(f'buffer_load_dword v250, v12, {srd(sA)}, s42 offen')
    a.label('L_h2')
    if opt.get('cpf', False):
        a('s_cmp_lg_u32 s4, 3'); a('s_cbranch_scc1 L_tk')
        if not opt.get('cpf0', 1): a('s_cmp_eq_u32 s3, 0'); a('s_cbranch_scc1 L_tk')
        a(f's_cmp_ge_u32 s40, NCHUNK'); a('s_cbranch_scc1 L_tk')
        a('s_getpc_b64 s[42:43]')
        a('s_and_b32 s42, s42, 0xffffff00')
        a('s_lshl_b32 s40, s40, 13'); a('v_add_u32 v12, s40, v12')
        a('global_load_dword v251, v12, s[42:43]')
    a.label('L_tk')
    a('s_barrier')
    a('ds_read_b32 v3, v4')
    a('v_readfirstlane_b32 s5, v3')
    a('s_cmp_ge_u32 s5, 32')
    a('s_cbranch_scc1 L_over')
    a.label('L_role')
    a('s_cmp_lg_u32 s3, 0')
    a('s_cbranch_scc1 L_worker')
    if opt.get('no_team'): a('s_endpgm')
    def wave0_inc(a, off):
        a(f's_mov_b32 s63, {off}'); a('s_cmp_eq_u32 s4, 0'); a(f's_cselect_b32 s63, s63, 0x7fffff00')
        a('v_mov_b32 v98, 1'); a('s_mov_b64 exec, 1')
        a(f'buffer_atomic_add v98, off, {srd(sDBG)}, s63'); a('s_mov_b64 exec, -1')
    def h0(a, tmp):
        TM.team_consts(a, tmp, opt.get('rs', REP_ST)); TM.team_init1(a, tmp); return 4
    def h1(a, tmp):
        TM.team_init2(a)
        return 1
    def h3(a, tmp):
        a(f's_mov_b32 s63, {DB_READY}'); a('s_cmp_eq_u32 s4, 0'); a('s_cselect_b32 s63, s63, 0x7fffff00')
        a('s_sub_u32 s62, 0x10001, s99')
        a('v_mov_b32 v98, s62'); a('s_mov_b64 exec, 1')
        a(f'buffer_atomic_add v98, off, {srd(sDBG)}, s63'); a('s_mov_b64 exec, -1')
        return 1
    def ask(a):
        TM.kv_issue(a, 89)
        a(f'buffer_load_dwordx4 v[92:95], off, {srd(sDBG)}, 0 sc1')
    def seen(a):
        a('v_readfirstlane_b32 s61, v92'); a('v_readfirstlane_b32 s63, v94')
        a('s_cmp_ge_u32 s63, %#x' % (0x200000 if opt.get('dev') else 0x200100)); a('s_cselect_b32 s60, 1, 0')
    def judge(a, tag):
        TM.kv_eval(a, 89)
        a(f's_cmp_ge_u32 s{TM.sAV}, 3'); a('s_cselect_b32 s62, s60, 0')
        seen(a)
        a('s_cmp_eq_u32 s62, 0'); a(f's_cbranch_scc1 {tag}')
        TM.team_first_issue(a, 88)
    def h5(a, tmp):
        TM.kv_addr(a, 89)
        a(f'buffer_load_dwordx4 v[92:95], off, {srd(sDBG)}, 0 sc1')
    def h6(a, tmp):
        seen(a); ask(a)
        if opt.get('lpf', 1):
            a('s_getpc_b64 s[64:65]'); a('s_and_b32 s64, s64, 0xffffff80')
            a(f'v_lshlrev_b32 v96, 3, v{TM.L16}'); a('s_lshl_b32 s63, s4, 13'); a('v_add_u32 v96, s63, v96')
            a('global_load_dword v97, v96, s[64:65]')
            return 1
        return 0
    def h7(a, tmp):
        judge(a, 'L_h7n')
        a('s_branch L_h7e')
        a.label('L_h7n')
        ask(a)
        a.label('L_h7e')
        TM.team_warm(a, 100, False)
        return 0
    TM.team_setup(a, opt, {'pre': h0, 1: h1, 3: h3, ('b', 5): h5, 6: h6, 7: h7})
    if opt.get('timing') or opt.get('stamps'):
        a('s_memrealtime s[92:93]'); a('s_waitcnt lgkmcnt(0)'); a('s_lshl_b32 s91, s92, 1'); a('s_add_u32 s91, s91, s62')
    a('s_cmp_eq_u32 s62, 1'); a('s_cbranch_scc1 L_pre')
    a(f's_mov_b32 s{TM.sSPIN}, 0')
    a('s_branch L_st1')
    a.label('L_st0')
    ask(a)
    a(f's_add_u32 s{TM.sSPIN}, s{TM.sSPIN}, 1'); a(f's_cmp_ge_u32 s{TM.sSPIN}, {SPIN_MAX}'); a('s_cbranch_scc1 L_fail')
    a.label('L_st1')
    a('s_waitcnt vmcnt(0)')
    judge(a, 'L_st0')
    a.label('L_pre')
    TM.team_first_kv(a)
    if opt.get('dbgt'): a('s_memrealtime s[96:97]'); a('s_waitcnt lgkmcnt(0)')
    if opt.get('force_slow'):
        TM.team(a, 'sc1', 'S', opt)
    else:
        a('s_cmp_lt_u32 s61, 32'); a('s_cbranch_scc1 L_tslow')
        TM.team(a, '', 'T', opt)
        a.label('L_tslow')
        if opt.get('noslow'): a('s_endpgm')
        else: TM.team(a, 'sc1', 'S', opt)
    a.label('L_over')
    a('s_barrier')
    a('s_cmp_lg_u32 s4, 0'); a('s_cbranch_scc1 L_ov1')
    a(f'v_mov_b32 v2, {DB_OVF}'); a('v_mov_b32 v3, 1'); a('s_mov_b64 exec, 1')
    a(f'buffer_atomic_add v3, v2, {srd(sDBG)}, 0 offen sc0')
    a('s_waitcnt vmcnt(0)')
    a('ds_write_b32 v4, v3'); a('s_waitcnt lgkmcnt(0)'); a('s_mov_b64 exec, -1')
    a.label('L_ov1')
    a('s_barrier')
    a('ds_read_b32 v3, v4')
    a('v_readfirstlane_b32 s7, v3')
    report(a, 7)
    spin_ready(a, 'L_ov2')
    a('s_mov_b32 s3, 0')
    a.label('L_ov3')
    cnt_off(a, 6, 3)
    a('v_mov_b32 v8, s6')
    a(f'buffer_load_dword v9, v8, {srd(sDBG)}, 0 offen sc1'); a('s_waitcnt vmcnt(0)')
    a('v_readfirstlane_b32 s5, v9')
    a('s_min_u32 s5, s5, 32'); a('s_add_u32 s5, s5, s7')
    a('s_cmp_lt_u32 s5, 32'); a('s_cbranch_scc1 L_role')
    a('s_sub_u32 s7, s5, 32')
    a('s_add_u32 s3, s3, 1'); a('s_cmp_lt_u32 s3, 8'); a('s_cbranch_scc1 L_ov3')
    a('s_branch L_fail')
    a.label('L_worker')
    a('s_sub_u32 s6, s3, 1'); a('s_lshl_b32 s6, s6, 5'); a('s_add_u32 s6, s6, s5')
    def ready_wait(a, tag):
        if not opt.get('dev'):
            a('s_cmp_lg_u32 s4, 0'); a(f's_cbranch_scc1 {tag}_e')
            spin_dbg(a, DB_READY, 256, tag, v=(8, 9), s=(60, 63), mask=0xffff, sleep=opt.get('rsl', 4))
            a.label(tag + '_e')
    WK.WST[0] = bool(opt.get('timing') or opt.get('stamps'))
    if WK.WST[0]:
        a('s_lshl_b32 s60, s6, 7'); a(f's_add_u32 s60, s60, {WS_DBG + 0x8000:#x}')
        a('v_mov_b32 v8, s90')
        a(f'buffer_store_dword v8, off, {srd(sWS)}, s60')
    def pause(a, tag):
        if opt.get('pause', True) and not opt.get('dev'):
            a('s_cmp_lg_u32 s4, 0'); a(f's_cbranch_scc1 {tag}_e')
            a('v_and_b32 v8, 0x1f0, v0'); a('v_lshrrev_b32 v8, 2, v8')
            WK.spin_ge(a, tag, f'buffer_load_dword v9, v8, {srd(sWS)}, 0 offen offset:{WS_TL} sc1', 1, 9, 1, sleep=8)
            a.label(tag + '_e')
            a('s_barrier')
    WK.PAUSE[0] = pause
    WK.REPORT[0] = report
    WK.OPT.clear(); WK.OPT.update(opt)
    if not opt.get('no_p1'): WK.phase1(a, ready_wait)
    cnt_off(a, 60, 3)
    a('v_mov_b32 v8, s60')
    a(f'buffer_load_dword v9, v8, {srd(sDBG)}, 0 offen sc1'); a('s_waitcnt vmcnt(0)')
    a('v_readfirstlane_b32 s7, v9')
    a('s_cmp_ge_u32 s7, 32'); a(f's_cselect_b32 s7, {0 if opt.get("force_slow") else 1}, 0')
    if not opt.get('no_p2'): WK.phase2(a, opt)
    WK.wstamp(a, 15)
    if opt.get('dbgt'):
        dbgt(a, 7, 20)
        a('s_not_b32 s90, s90'); a('v_mov_b32 v21, s90'); a('s_mov_b64 exec, 1'); a(f'buffer_atomic_umax v21, off, {srd(sDBG)}, 0 offset:16')
    a('s_waitcnt vmcnt(0)')
    a('s_endpgm')
    a.label('L_fail')
    a('s_mov_b64 exec, 1')
    a(f'v_mov_b32 v1, {DB_ERR}'); a('v_mov_b32 v2, 1')
    a(f'buffer_atomic_add v2, v1, {srd(sDBG)}, 0 offen')
    a('s_waitcnt vmcnt(0)')
    a.label('L_exit')
    a('s_endpgm')
    body = pad(auto_lgkm(resolve_waitv(a.lines)), verbose=opt.get('verbose', False))
    n_ins = sum(1 for l in body if l.startswith('    '))
    nchunk = 2 if opt.get('noslow') else opt.get('nchunk', 9)
    body = [l.replace('NCHUNK', str(nchunk)) for l in body]
    hdr = [f'; @launch grid=(256,1,1) block=(256,1,1) lds=163840',
           '.amdgcn_target "amdgcn-amd-amdhsa--gfx950"', '.text', f'.globl {kn}', '.p2align 8', f'.type {kn},@function', f'{kn}:']
    ftr = ['.section .rodata,"a"', '.p2align 6', f'.amdhsa_kernel {kn}', '  .amdhsa_next_free_vgpr 512', '  .amdhsa_next_free_sgpr 100',
           '  .amdhsa_accum_offset 256', '  .amdhsa_group_segment_fixed_size 0', '  .amdhsa_kernarg_size 120', '  .amdhsa_user_sgpr_count 2',
           '  .amdhsa_user_sgpr_kernarg_segment_ptr 1', '  .amdhsa_system_sgpr_workgroup_id_x 1', '  .amdhsa_float_denorm_mode_32 3', '.end_amdhsa_kernel']
    return '\n'.join(hdr + body + ftr) + '\n'

if __name__ == '__main__':
    opt = eval(sys.argv[2]) if len(sys.argv) > 2 else {}
    open(sys.argv[1], 'w').write(build(opt))
```

```python
from asmlib import *
from common import *
import math
L_WO, L_K0 = 0, 131072
L_K1 = L_K0 + 8192 + 64
L_QX = L_K1 + 8192 + 64
XS = 288; XSZ = 2304
L_V = L_QX + 3*XSZ
assert L_V + 8192 <= LDS_MISC and L_V % 16 == 0
L16, IDX, POI4 = 0, 1, 2
PST, PUB, XW, QR, OR_, WOB, V4 = range(6, 13)
VMP = V4+2
SELA, ONES, VB, MEMF, KX, ACQ, ACK, ACV = 16, 20, 24, 40, 72, 104, 112, 120
KMR = VB+2
QF = KX
WV = 128
sHALF, sEVEN, sPOI, sPLO, sPHI, sSCL = 32, 34, 36, 37, 38, 39
sSTEP, sSLOT, sSLOTN, sSLOTP, sINB, sINBO, sKV, sKM, sMK, sSPIN, sT0, sT1, sT2, sKS, sTF, sM0, sINB2, sMV, sW2, sHO = range(40, 60)
sKB, sP1, sKD = sTF, sW2, sHO
sI1, sI2 = 37, 38
sPEX = 88
sTL = 53
sFO = 6
sACC = 16
def db(b): return 32*(b >> 2) + 8*(b & 1) + 2*((b >> 1) & 1)
def smf(d, A, B, f='v'): return f'v_smfmac_f32_16x16x64_bf16 {vr(d,4)}, {vr(A,4)}, {vr(B,8,f)}, v{IDX}'
def mf(d, A, B, C='0'): return f'v_mfma_f32_16x16x32_bf16 {vr(d,4)}, {vr(A,4)}, {vr(B,4)}, {C}'
def z2(r): return f'v_mov_b64 {vr(r,2)}, 0'

def slots(a, mfl, plan):
    for i, m in enumerate(mfl):
        a(m)
        fl = plan.pop(i, [])
        for x in fl:
            if not x.startswith('v_') and not x.startswith('>'): a(x)
        for x in fl:
            if x.startswith('v_'): a(x)
        for x in fl:
            if x.startswith('>'): a(x[1:])
    assert not plan, plan

HM = [0]
def heat(a, n, r):
    if HM[0] == 3:
        if n >= 3: a(f's_sleep {(n+1)//4}')
        elif n: a(f's_nop {4*n-1}')
        return
    for i in range(n):
        if HM[0] == 1: a(smf(MEMF+28, KX, 8*(i % 32), 'a'))
        elif HM[0] == 2: a('s_nop 3')
        else: a(f'v_mov_b32 v{r}, v{r}'); a('s_nop 2')

def kx_addr(t0, t1):
    return [f'v_and_b32 v{t0}, 0x310, v{L16}', f'v_and_b32 v{t1}, 0x60, v{L16}', f'v_lshl_add_u32 v{t0}, v{t1}, 1, v{t0}',
            f'v_bfe_u32 v{t1}, v{L16}, 7, 1', f'v_mul_u32_u24 v{t1}, {4096+32}, v{t1}', f'v_add3_u32 v{t0}, v{t0}, v{t1}, s{sKB}']
def kv_reads(t0, MR):
    r = [f'ds_read_b128 {vr(KX+4*j,4)}, v{t0} offset:{(j&3)*1024 + (j>>2)*32}' for j in range(8)]
    r += [f'ds_read_b64 {vr(VB+8*t+4*u,2)}, v{MR} offset:{t*1024 + u*8}' for t in (0, 1) for u in (0, 1)]
    return r
def v_dma():
    WS = srd(sWS)
    return [[f's_mov_b32 m0, s{sMV}', f's_add_u32 s{sT2}, s{sKV}, {WS_VF - WS_KF:#x}'],
            [f'buffer_load_dwordx4 v{L16}, {WS}, s{sT2} offen sc1 lds'],
            [f'buffer_load_dwordx4 v{L16}, {WS}, s{sT2} offen offset:1024 sc1 lds ; vdma']]
def k_dma(adv=True):
    WS = srd(sWS)
    return [[f's_add_u32 m0, s{sMK}, s{sKD}', f's_add_u32 s{sKV}, s{sKV}, {32*8192 if adv else 0:#x}'],
            [f'buffer_load_dwordx4 v{L16}, {WS}, s{sKV} offen sc1 lds'],
            [f'buffer_load_dwordx4 v{L16}, {WS}, s{sKV} offen offset:1024 sc1 lds']]
def xa_set(): return [f's_add_u32 s{sP1}, s{sSLOT}, 0x1000']

DEFAULTS = dict(merge=True, nq=0, qa=(35,35,35,35,36,36,37), ka=(37,37,37,37,38,38,39), b2=43, b3=47, kp=33, vd=(34,36), nops=(33,), fp=41,
                lat=(-1,-1,-1,2,5,8), da=(13,14,18,21,22,26), zb=5, h4b=0, po=(24,30), stp=(11,23,35,47,55), pa0=(0,0,0,0,1,1,2), zin=(1,2,3,3,6,6,7,7), hs=2)
def team(a, sf, tag, opt):
    opt = {**DEFAULTS, **opt}
    HM[0] = opt.get('hm', 0)
    if sf != '' or opt.get('shared'): return team1(a, sf, tag, opt, None)
    for w in range(3):
        a(f's_cmp_eq_u32 s4, {w}'); a(f's_cbranch_scc1 {tag}_full{w}')
    for w in (3, 0, 1, 2):
        if w < 3: a.label(f'{tag}_full{w}')
        o = dict(opt); o.update(opt.get('pw', {}).get(w, {}))
        for k, v in opt.get('stag', {}).items():
            base = o[k]
            o[k] = tuple(x + v*w for x in base) if isinstance(base, tuple) else base + v*w
        team1(a, sf, f'{tag}{w}', o, w)

def team1(a, sf, tag, opt, only):
    stamps = opt.get('stamps', False)
    nstep = opt.get('nstep', 64)
    NST = 14
    def st(i): return [f'{"s_memrealtime" if opt.get("raw") else "s_memtime"} s[{60+2*i}:{61+2*i}] ; nowait'] if stamps else []
    def stamp(i):
        for x in st(i): a(x)
    HT = VB+14
    def stamp_acc():
        if stamps and not opt.get('lacc'):
            a('s_waitcnt lgkmcnt(0)')
            for i in range(NST):
                prev = 98 if i == 0 else 60+2*(i-1)
                if opt.get('raw'):
                    a(f's_cmp_eq_u32 s{sSTEP}, {opt["raw"] + (1 if i < 2 else 0)}')
                    a(f's_cselect_b32 s{sACC+i}, s{60+2*i}, s{sACC+i}')
                else:
                    a(f's_sub_u32 s99, s{60+2*i}, s{prev}')
                    a(f's_add_u32 s{sACC+i}, s{sACC+i}, s99')
                if i % 2 == 0: a(f'v_mov_b32 v{HT}, v{HT}')
            a(f's_mov_b32 s98, s{60+2*(NST-1)}')
    T = lambda n: f'{tag}_{n}'
    WS = srd(sWS)
    IB = MEMF+8; RA = MEMF+16; IT = MEMF+20
    p2 = [f'buffer_load_dwordx4 {vr(MEMF,4)}, v{L16}, {WS}, s{sSLOT} offen sc1',
          f'buffer_load_dwordx4 {vr(MEMF+4,4)}, v{L16}, {WS}, s{sSLOT} offen offset:1024 sc1']
    p1 = [f'buffer_load_dwordx4 {vr(IB,4)}, v{L16}, {WS}, s{sINB2} offen sc1',
          f'buffer_load_dwordx4 {vr(IB+4,4)}, v{L16}, {WS}, s{sINB2} offen offset:1024 sc1']
    def check2():
        b, t = MEMF, VB+10
        a(f'v_max3_u32 v{t}, v{b}, v{b+1}, v{b+2}')
        a(f'v_max3_u32 v{t}, v{t}, v{b+3}, v{b+4}')
        a(f'v_max3_u32 v{t}, v{t}, v{b+5}, v{b+6}')
        a(f'v_max_u32 v{t}, v{t}, v{b+7}')
        a(f'v_cmp_eq_u32 vcc, s{sPOI}, v{t}')
    def redtail():
        for rot in (4, 8):
            for r in range(2): a(f'v_add_f32_dpp v{RA+r}, v{RA+r}, v{RA+r} row_ror:{rot} row_mask:0xf bank_mask:0xf')
        a(f'v_cvt_pk_bf16_f32 v{IT+4}, v{RA}, v{RA+1}')
    def check1():
        t = IT
        a(f'v_max3_u32 v{t}, v{IB}, v{IB+1}, v{IB+2}')
        a(f'v_max3_u32 v{t}, v{t}, v{IB+3}, v{IB+4}')
        a(mf(RA, SELA, IB))
        a(f'v_max3_u32 v{t}, v{t}, v{IB+5}, v{IB+6}')
        a(f'v_max_u32 v{t}, v{t}, v{IB+7}')
        a(mf(RA, SELA, IB+4, vr(RA,4)))
        a(f'v_cmp_eq_u32 vcc, s{sPOI}, v{t}')
        if opt.get('spec', 1): redtail()
    def sample(name, loads, chk, depth, cnt, fill, warm=None, extra=0):
        for i in range(depth - 1):
            for x in loads: a(x)
            fill(i)
        a(T(name) + ': ; keep')
        for x in loads: a(x)
        if warm: a(warm)
        if stamps: a(f's_add_u32 s{sACC+cnt}, s{sACC+cnt}, 1')
        a(f's_add_u32 s{sSPIN}, s{sSPIN}, 1')
        a(f's_cmp_ge_u32 s{sSPIN}, {SPIN_MAX}')
        a('s_cbranch_scc1 L_fail ; keep')
        a(f's_waitcnt vmcnt({len(loads)*(depth-1) + extra})')
        chk()
        a(f's_cbranch_vccnz {T(name)} ; keep')
        a(T(name + 'ok') + ': ; keep')
    if stamps or opt.get('timing', False):
        for i in range(16): a(f's_mov_b32 s{sACC+i}, 0')
        a('s_memtime s[92:93]'); a('s_memrealtime s[94:95]'); a('s_waitcnt lgkmcnt(0)'); a('s_mov_b32 s98, s92')
        for i in range(14 if stamps else 0): a(f's_mov_b32 s{60+2*i}, s92')
    a(f's_mov_b32 s{sSPIN}, 0')
    for x in p2: a(x)
    for x in xa_set(): a(x)
    a('s_waitcnt vmcnt(0)')
    a(T('p2ok') + ': ; keep')
    eb = opt.get('eb', 2)
    Q = lambda k, t: smf(ACQ+4*t, MEMF+4*k, (k*2+t)*8, 'a')
    K = lambda k, t: smf(ACK+4*t, MEMF+4*k, 128+(k*2+t)*8, 'a')
    V = lambda k, t: smf(ACV+4*t, MEMF+4*k, WV+(k*2+t)*8)
    vf = opt.get('vf', 2)
    own = [Q(0,0), Q(0,1), Q(1,0), Q(1,1), K(0,0), K(0,1), K(1,0), K(1,1)] + [V(k, t) for k in range(vf) for t in (0, 1)]
    nq = opt.get('nq', 0)
    qk_ = [f(k, t) for k in range(2, 8-nq) for f in (Q, K) for t in (0, 1)] + [f(k, t) for f in (Q, K) for k in range(8-nq, 8) for t in (0, 1)]
    first = {k: len(own) + qk_.index(Q(k, 0)) for k in range(2, 8)}
    vr_ = [V(k, t) for k in range(vf, 8) for t in (0, 1)]
    S0, S1, SM, P = ACQ, ACQ+4, ACK, ACK+4
    xs = []
    for j in range(4):
        xs.append(mf(S0, KX+4*j, MEMF+4*j, '0' if j == 0 else vr(S0,4)))
        xs.append(mf(S1, KX+16+4*j, MEMF+4*j, '0' if j == 0 else vr(S1,4)))
    ms = [mf(SM, MEMF+16+4*j, MEMF+4*j, '0' if j == 0 else vr(SM,4)) for j in range(4)]
    M = own + qk_ + vr_ + xs + ms
    mld = lambda k: f'buffer_load_dwordx4 {vr(MEMF+4*k,4)}, v{L16}, {WS}, s{sP1 if k >= 4 else sSLOT} offen offset:{(k&3)*1024} sc1'
    def pk(ac): return [f'v_add_f32 v{ac}, v{ac}, v{ac+2}', f'v_add_f32 v{ac+1}, v{ac+1}, v{ac+3}',
                        f'v_add_f32 v{ac+4}, v{ac+4}, v{ac+6}', f'v_add_f32 v{ac+5}, v{ac+5}, v{ac+7}',
                        f'v_cvt_pk_bf16_f32 v{ac+2}, v{ac}, v{ac+4}', f'v_cvt_pk_bf16_f32 v{ac+3}, v{ac+1}, v{ac+5}']
    def xw(ac, off): return [f'ds_write_b32 v{XW}, v{ac+2} offset:{off}', f'ds_write_b32 v{XW}, v{ac+3} offset:{off+XS}']
    plan = {}
    def put(i, *xs_): plan.setdefault(i, []).extend(xs_)
    lat = opt.get('lat', (-1, -1, 0, 3, 6, 9))
    for k in range(2, 2+eb): a(mld(k))
    a(T('p2go') + ': ; keep')
    head0 = len(a.lines)
    hs = opt.get('hs', 0) if only == 0 else 0
    stamp(0)
    for k in range(2+eb, 8):
        if lat[k-2] < 0: a(mld(k))
        else: put(lat[k-2], mld(k))
    a('s_waitcnt lgkmcnt(1)')
    put(1, 's_waitcnt lgkmcnt(0)')
    da = opt.get('da', (13, 14, 16, 17, 18, 20)); po = opt.get('po', (24, 30)); kp = opt.get('kp', 46); fp = opt.get('fp', 27)
    CT = VB+10
    for k in range(2, 8):
        u = first[k] - 1
        put(u, f'waitv v{MEMF+4*k}')
        b = MEMF+4*k
        put(u+1, f'v_max_u32 v{CT}, v{b}, v{b+1}' if k == 2 else f'v_max3_u32 v{CT}, v{CT}, v{b}, v{b+1}')
        put(u+2, f'v_max3_u32 v{CT}, v{CT}, v{b+2}, v{b+3}')
    vd = opt.get('vd', (34, 36))
    assert vd[0] > first[7] + 1
    put(vd[0], f'v_cmp_eq_u32 vcc, s{sPOI}, v{CT}')
    put(vd[1], f's_cbranch_vccnz {T("redo")} ; keep')
    put(opt['stp'][0], *['>'+x for x in st(1)])
    kput = f'buffer_store_dwordx4 {vr(V4,4)}, v{L16}, {WS}, s{sKM} offen sc1'
    put(3, f'v_mov_b32 v{KMR}, v{QR}')
    put(5, f'v_mov_b32_dpp v{KMR}, v{QR} row_shl:4 row_mask:0xf bank_mask:0x2')
    put(7, f'v_mov_b32_dpp v{KMR}, v{QR} row_shr:4 row_mask:0xf bank_mask:0x4')
    put(0, f's_xor_b32 s{sINBO}, s{sINB2}, 0x40000')
    put(3, f's_add_u32 s{sI1}, s{sINB}, 0x1000')
    kd = k_dma()
    kd[0][1] = f's_add_u32 s{sI2}, s{sKV}, {32*8192:#x}'
    kd = [[x.replace(f's{sKV} offen', f's{sI2} offen') for x in g] for g in kd]
    put(42, f's_mov_b32 s{sKV}, s{sI2}')
    for n, xs_ in enumerate(v_dma() + kd): put(da[n], *xs_)
    assert (da[5] < da[0] or da[3] > da[2])
    pst = [f'buffer_store_dwordx4 {vr(POI4,4)}, v{L16}, {WS}, s{sINBO} offen offset:{o} {sf}' for o in (0, 1024)]
    p0 = opt.get('p0') if only is not None else None
    if p0:
        po = (99, 99)
        if only == 0:
            put(1, f's_add_u32 s{sT1}, s{sINBO}, 0x1000')
            for n, i in enumerate(p0):
                put(i, f'buffer_store_dwordx4 {vr(POI4,4)}, v{L16}, {WS}, s{sT1 if n >= 4 else sINBO} offen offset:{(n & 3)*1024} {sf}' + (' ; plast' if n == 7 else ''))
    for n in range(2):
        if po[n] < 60: put(po[n], pst[n])
    put(fp, f'buffer_store_dword v{POI4}, v{PUB}, {WS}, s{sSLOTP} offen {sf}')
    put(kp, kput)
    for i in opt.get('lwm', ()): put(i, f'ds_read_b32 v{VB+2}, v{XW} ; nowait')
    put(opt['stp'][1], *['>'+x for x in st(2)])
    put(opt['stp'][2], *['>'+x for x in st(3)])
    qa = opt.get('qa', (35, 35, 36, 36, 37, 37, 38))
    for n, x in enumerate(pk(ACQ)): put(qa[n], x)
    put(qa[6], *xw(ACQ, 0))
    for i in opt.get('nops', (27, 28, 35)): put(i, 's_nop 1')
    assert qa[6] >= vd[1]
    b2 = opt.get('b2', 42)
    if not opt.get('merge'): put(b2, 's_waitcnt lgkmcnt(0)', 's_barrier')
    qrd = [f'ds_read_b128 {vr(MEMF+4*j,4)}, v{QR} offset:{j*64}' for j in range(4)]
    k0 = opt.get('k0', 39)
    ka = opt.get('ka', tuple(k0+n for n in range(7)))
    pkk = pk(ACK)[:4] + [f'v_cvt_pk_bf16_f32 v{V4}, v{ACK}, v{ACK+4}', f'v_cvt_pk_bf16_f32 v{V4+1}, v{ACK+1}, v{ACK+5}']
    for n, x in enumerate(pkk): put(ka[n], x)
    put(ka[6], *xw(V4-2, XSZ))
    assert kp < ka[4]
    if opt.get('merge'): put(b2, 's_waitcnt lgkmcnt(0)', 's_barrier')
    put(b2, qrd[0]); put(b2+1, qrd[1], qrd[2]); put(b2+2, qrd[3])
    put(opt['stp'][3], *['>'+x for x in st(4)])
    b3 = opt.get('b3', 49)
    if not opt.get('merge'): put(b3, 's_waitcnt lgkmcnt(0)', 's_barrier')
    kmr = [f'ds_read_b128 {vr(MEMF+16+4*j,4)}, v{KMR} offset:{XSZ + j*64}' for j in range(4)]
    put(b3, kmr[0]); put(b3+1, kmr[1], kmr[2]); put(b3+2, kmr[3])
    ac = ACV
    fv = [f'v_add_f32 v{ac}, v{ac}, v{ac+2}', f'v_add_f32 v{ac+1}, v{ac+1}, v{ac+3}',
          f'v_add_f32 v{ac+4}, v{ac+4}, v{ac+6}', f'v_add_f32 v{ac+5}, v{ac+5}, v{ac+7}',
          f'v_cvt_pk_bf16_f32 v{VMP}, v{ac}, v{ac+1}', f'v_cvt_pk_bf16_f32 v{VMP+1}, v{ac+4}, v{ac+5}',
          f'v_cndmask_b32 v{VB+2}, 0, v{VMP}, s[{sEVEN}:{sEVEN+1}]', f'v_cndmask_b32 v{VB+6}, v{VMP}, 0, s[{sEVEN}:{sEVEN+1}]',
          f'v_cndmask_b32 v{VB+10}, 0, v{VMP+1}, s[{sEVEN}:{sEVEN+1}]', f'v_cndmask_b32 v{VB+14}, v{VMP+1}, 0, s[{sEVEN}:{sEVEN+1}]']
    fa = opt.get('fa', (50, 50, 51, 51, 52, 52, 53, 54, 55, 55))
    for x, i in zip(fv, fa): put(i, x)
    put(opt['stp'][4], *['>'+x for x in st(5)])
    order = [(2*ph + t, ks2) for ph in range(4) for ks2 in (0, 1) for t in (0, 1)]
    bufs = ([KX+8*b for b in range(4)] + [MEMF+8*b for b in range(4)]) * 2
    def word(n):
        return [f'ds_read_b128 {vr(bufs[n]+4*hf,4)}, v{WOB} offset:{wo_off(order[n][0], order[n][1], hf)}' for hf in range(2)]
    w2, w3, w4, w5 = word(0), word(1), word(2), word(3)
    put(52, w2[0]); put(53, w4[0]); put(54, w2[1]); put(55, w4[1]); put(56, w3[0]); put(57, w5[0]); put(58, w3[1]); put(59, w5[1])
    put(55, 's_waitcnt lgkmcnt(3)')
    put(56, z2(ACV), z2(ACV+2)); put(57, z2(ACV+4), z2(ACV+6))
    put(58, f'v_max3_f32 v{P}, v{S0}, v{S0+1}, v{S0+2}', f'v_max3_f32 v{P+1}, v{S1}, v{S1+1}, v{S1+2}')
    put(46, f's_cmp_eq_u32 s{sSTEP}, {nstep-1}')
    put(49, 's_waitcnt lgkmcnt(4)')
    fin_at = 54
    put(max(fa[4], fa[5]) + 1, f's_cbranch_scc1 {T("fin")} ; keep')
    if only == 2 or only is None:
        put(opt.get('ts', 28), f'buffer_store_dword v{IDX}, off, {WS}, s{sTL} sc1', f's_mov_b32 s{sTL}, 0x7fffff00')
    akv = opt.get('akv', 1) and only == 1
    if akv:
        fs = opt.get('fs', 28)
        put(fs-1, f's_mov_b32 m0, {L_FL}', f'v_lshrrev_b32 v{VB+6}, 2, v{L16}')
        put(fs, f'buffer_load_dword v{VB+6}, {WS}, s{sFO} offen sc1 lds ; fdma')
        assert fs - 1 > max(da)
    if stamps and opt.get('lacc'):
        seq = list(range(2, 14)) + [0, 1]
        put(12, 's_waitcnt lgkmcnt(0)')
        for n, i in enumerate(seq):
            prev = 98 if n == 0 else 60+2*seq[n-1]
            if opt.get('raw'): put(13 + n*10//14, f's_cmp_eq_u32 s{sSTEP}, {opt["raw"]}', f's_cselect_b32 s{sACC+i}, s{60+2*i}, s{sACC+i}')
            else: put(13 + n*10//14, f's_sub_u32 s99, s{60+2*i}, s{prev}', f's_add_u32 s{sACC+i}, s{sACC+i}, s99')
        put(23, f's_mov_b32 s98, s62')
    drop = opt.get('drop', [])
    for i, m in enumerate(M):
        slots(a, [m], {0: [x for x in plan.pop(i, []) if not any(d in x for d in drop)]})
        if hs and i == hs - 1:
            head = [x for x in a.lines[head0:] if 'lgkmcnt' not in x]
            a(T('mid') + ': ; keep')
    assert not plan
    pre = word(4) + word(5) + word(6) + word(7)
    M0, M1 = SM+2, SM+3
    LS, O = SM, ACV
    ex = [S0, S0+1, S0+2, S0+3, SM, SM+1]
    sm = [f'v_max3_f32 v{P}, v{P}, v{S0+3}, v{S1+3}', f'v_max_f32 v{P}, v{P}, v{P+1}']
    sm += [f'v_cndmask_b32 v{S0+r}, v{S0+r}, v{S1+r}, s[{sHALF}:{sHALF+1}]' for r in range(4)]
    sm += [f'v_max3_f32 v{M0}, v{P}, v{SM}, v{SM+1}', f'v_max3_f32 v{M1}, v{P}, v{SM}, v{SM+1}',
           f'v_permlane32_swap_b32 v{M0}, v{M1}', f'v_max_f32 v{P}, v{M0}, v{M1}', f'v_max_f32 v{P+1}, v{M0}, v{M1}',
           f'v_permlane16_swap_b32 v{P}, v{P+1}', f'v_max_f32 v{M0}, v{P}, v{P+1}', f'v_mul_f32 v{M0}, s{sSCL}, v{M0}']
    sm += [f'v_fma_f32 v{r}, v{r}, s{sSCL}, -v{M0}' for r in ex]
    sm += [f'v_exp_f32 v{r}, v{r}' for r in ex]
    sm += [f'v_cvt_pk_bf16_f32 v{P}, v{S0}, v{S0+1}', f'v_cvt_pk_bf16_f32 v{P+2}, v{S0+2}, v{S0+3}',
           f'v_cvt_pk_bf16_f32 v{P+1}, v{SM}, v{SM+1}', f'v_cvt_pk_bf16_f32 v{P+3}, v{SM}, v{SM+1}']
    sm += [mf(LS, P, ONES), smf(O, P, VB), smf(O+4, P, VB+8)]
    sm += [f'v_add_f32 v{LS}, v{LS}, v{LS+2}', f'v_add_f32 v{LS+1}, v{LS+1}, v{LS+3}', f'v_rcp_f32 v{LS}, v{LS}', f'v_rcp_f32 v{LS+1}, v{LS+1}',
           f'v_pk_add_f32 {vr(O,2)}, {vr(O,2)}, {vr(O+2,2)}', f'v_pk_add_f32 {vr(O+4,2)}, {vr(O+4,2)}, {vr(O+6,2)}',
           f'v_pk_mul_f32 {vr(O,2)}, {vr(O,2)}, {vr(LS,2)}', f'v_pk_mul_f32 {vr(O+4,2)}, {vr(O+4,2)}, {vr(LS,2)}',
           f'v_cvt_pk_bf16_f32 v{O+2}, v{O}, v{O+4}', f'v_cvt_pk_bf16_f32 v{O+3}, v{O+1}, v{O+5}']
    pp = list(opt.get('pp', (7, 10, 29, 30, 31, 31, 32, 32)))
    bp = opt.get('bp', 42)
    n99 = pp.count(99)
    def sm_emit(lo, hi):
        for n in range(lo, hi):
            if n == 6: stamp(6)
            if n == 30: stamp(7)
            a(sm[n])
            for r, q in zip(pre, pp):
                if q == n: a(r)
    sm_emit(0, bp+1)
    def sm_rest():
        sm_emit(bp+1, len(sm))
        for x in xw(O, 2*XSZ): a(x)
        for r, q in zip(pre, pp):
            if q == 99: a(r)
        stamp(8)
    PW = opt.get('pw', {})
    DEF = [dict(er=(14,), n1=2, g1=5, d2=0, n2=3, g2=4), dict(d1=0, n1=2, g1=1, pre=2), dict(d1=0, n1=2, g1=7, pre=1), dict(d1=3, n1=2, g1=7, pre=1)]
    def tailcode(w, gopt):
        nonlocal plan
        opt = dict(gopt); opt.update(DEF[w]); opt.update(PW.get(w, {}))
        if bp < len(sm) - 1 and w < 3: a.nop(max(0, opt.get('bn', 4) - 2*w))
        sm_rest()
        PA = [VB, VB+8, ACQ, ACK]
        if po[0] == 60: a(pst[0])
        zb = opt.get('zb', 4)
        zin = opt.get('zin', (0, 0, 1, 1, 2, 2, 3, 3))
        zs = [z2(VB+2*z) for z in range(4)] + [z2(ACK+2*z) for z in range(4)] + [z2(VB+8+2*z) for z in range(4)] + [z2(ACQ+2*z) for z in range(4)]
        zi = zs[16-len(zin):]; zs = zs[:16-len(zin)]
        for x in zs[:zb]: a(x)
        if p0 and only == 0: a('waitm plast')
        a(f's_waitcnt lgkmcnt({n99})')
        a('s_barrier')
        OA = ACV
        a(f'ds_read_b128 {vr(OA,4)}, v{OR_} offset:{2*XSZ}')
        a(f'ds_read_b128 {vr(OA+4,4)}, v{OR_} offset:{2*XSZ+128}')
        for r, q in zip(pre, pp):
            if q == 100: a(r)
        if po[1] == 61: a(pst[1])
        for x in zs[zb:]: a(x)
        heat(a, opt.get('h4b', 1), VB)
        if opt.get('s9') is None: stamp(9)
        W = [smf(PA[n >> 2]+4*(order[n][0] & 1), OA+4*order[n][1], bufs[n]) for n in range(16)]
        plan = {}
        for x, i in zip(zi, zin): put(i, x)
        if opt.get('s9') is not None: put(opt['s9'], *['>'+x for x in st(9)])
        rd = [x for n in range(8, 16) for x in word(n)]
        at = opt.get('at', [0, 0, 1, 1, 2, 3, 3, 4, 5, 5, 6, 7, 8, 8, 9, 10])
        for n, (x, i) in enumerate(zip(rd, at)):
            assert i >= n // 2
            put(i, x)
        pstore = lambda ph: f'buffer_store_dwordx2 {vr(PA[ph]+2,2)}, v{PST}, {WS}, s{sI1 if ph >= 2 else sINB} offen offset:{(ph&1)*2048} {sf}'
        er = opt.get('er', ())
        for e in er:
            if e < 16: put(e, *[x + f' ; r{e}' for x in p1])
        pa = opt.get('pa', (0, 1, 1, 2, 3, 3, 4))
        pa0 = opt.get('pa0', pa)
        tail = []
        for ph in range(3):
            for x, r in zip(pk(PA[ph]) + [pstore(ph)], pa0 if ph == 0 else pa):
                if 4*(ph+1) + r <= 15: put(4*(ph+1) + r, x)
                else: tail.append(x)
        for i in opt.get('ww', (7, 9, 11, 13)):
            need_n = 2*(i+2-8) + 2
            issued = sum(1 for x in at if x <= i)
            put(i, f's_waitcnt lgkmcnt({issued - need_n})')
        put(0, f's_waitcnt lgkmcnt({sum(1 for x in at if x == 0) + pp.count(100)})')
        slots(a, W, plan)
        if 16 in er:
            for x in p1: a(x + ' ; r16')
        late = [x for x in tail if opt.get('l2') and x.startswith('buffer_store')]
        for x in tail:
            if x not in late: a(x)
        if 17 in er:
            for x in p1: a(x + ' ; r17')
        p = PA[3]
        a(f'v_pk_add_f32 {vr(p,2)}, {vr(p,2)}, {vr(p+2,2)}'); a(f'v_pk_add_f32 {vr(p+4,2)}, {vr(p+4,2)}, {vr(p+6,2)}')
        for x in pk(p)[4:]: a(x)
        if 18 in er:
            for x in p1: a(x + ' ; r18')
        a.nop(opt.get('l2n', 0))
        for x in late: a(x)
        a(pstore(3))
        stamp(10)
        kvr = kv_reads(IT+1, IT+3)
        work = kx_addr(IT+1, IT+2)
        zv = [f'v_add_u32 v{IT+3}, s{sMV}, v{L16}'] + [f'v_mov_b32 v{r}, 0' for r in (VB+3, VB+7, VB+11, VB+15)]
        for z in range(12): work += [kvr[z], z2(ACQ+2*z)] if z < 8 else [z2(ACQ+2*z)]
        nb = opt.get('w0', 12) if er else opt.get('w1', 26)
        sc = [f's_add_u32 s{sSTEP}, s{sSTEP}, 1', f's_xor_b32 s{sT0}, s{sSLOTN}, {2*SLOT_ST:#x}',
              f's_mov_b32 s{sSLOTN}, s{sSLOTP}', f's_mov_b32 s{sSLOTP}, s{sT0}', f's_xor_b32 s{sINB}, s{sINB}, 0x40000',
              f's_add_u32 s{sKM}, s{sKM}, {32*4096:#x}', f's_mov_b32 s{sSPIN}, 0',
              f's_mov_b32 s{sKD}, s{sKB}', f's_sub_u32 s{sKB}, {L_K0 + L_K1}, s{sKB}'] + xa_set()
        a(f's_mov_b32 s{sSLOT}, s{sSLOTN}')
        def part_a():
            for x in work[nb:]: a(x)
            for x in zv: a(x)
            a('waitm vdma' if only is not None else 's_waitcnt vmcnt(4)')
            for x in kvr[8:]: a(x)
        def part_b():
            a(f'v_add_u32 v{HT}, {L_QX + 2*XSZ}, v{L16}')
            for x in sc: a(x)
            a(f's_add_u32 s{sT1}, s{sSTEP}, 2')
            if not opt.get('pre', 0): kvc()
        def kvc():
            if w != 1: return
            if akv:
                t = MEMF+26
                kv_lane(a, t)
                a(f'v_add_u32 v{t}, {L_FL}, v{t}')
                a(f'ds_read_b32 v{t+1}, v{t}')
                kv_eval(a, t)
            a(f's_cmp_ge_u32 s{sT1}, s{sAV}')
            a(f's_cbranch_scc1 {T("kvw%d" % w)} ; keep')
            a(T('kvo%d' % w) + ': ; keep')
        pre_ = opt.get('pre', 0)
        stamp(11)
        if er:
            def fill(i):
                if i == 0:
                    for x in work[:nb]: a(x)
                if i == opt['n1'] - 2:
                    for e in er[opt.get('ec', 0):]:
                        a(f'waitm r{e}')
                        check1()
                        a(f's_cbranch_vccz {T("s1w%dok" % w)} ; keep')
                elif i: heat(a, opt['g1'], IT)
        else:
            for x in work[:nb]: a(x)
            if pre_ == 1: part_a(); part_b()
            heat(a, opt.get('d1', 0), IT)
            def fill(i):
                if pre_ == 2 and i == 0: part_a(); part_b()
                heat(a, opt['g1'], IT)
        sample('s1w%d' % w, p1, check1, opt['n1'], 14, fill)
        if not opt.get('spec', 1): redtail()
        a(f'buffer_store_dword v{IT+4}, v{PUB}, {WS}, s{sSLOT} offen {sf}')
        a(f's_xor_b32 s{sINB2}, s{sINB2}, 0x40000')
        if pre_: kvc()
        stamp(12)
        if not opt.get('s13'): stamp(13)
        dl = opt.get('dl', 0)
        if w == 0:
            if dl: a(f's_mov_b32 m0, {L_QX + 2*XSZ}')
            parts = [part_a, part_b, stamp_acc]
            pre_n = opt.get('pn', 1)
            for f in parts[:pre_n]: f()
            parts = parts[pre_n:]
            heat(a, opt.get('d2', 0), VB+6)
            def fill2(i):
                if parts and (parts[0] is not stamp_acc or stamps): parts.pop(0)()
                else: heat(a, opt['g2'], VB+6)
                if i == opt['n2'] - 2:
                    while parts: parts.pop(0)()
                    if dl: a('s_waitcnt lgkmcnt(0)')
            if dl:
                p2d = p2 + [f'buffer_load_dwordx4 v{L16}, {WS}, s{sSLOT} offen offset:{o} sc1 lds' for o in (0, 1024)]
                def chk2():
                    check2()
                    a(f's_waitcnt vmcnt({4*(opt["n2"]-1)})')
                sample('s2', p2d, chk2, opt['n2'], 15, fill2, extra=2)
                a('s_barrier')
                for k in range(2, 2+eb): a(mld(k))
            else:
                def chk2():
                    check2()
                    if opt.get('spec2', 0):
                        a(f'ds_write_b128 v{HT}, {vr(MEMF,4)}')
                        a(f'ds_write_b128 v{HT}, {vr(MEMF+4,4)} offset:1024')
                sample('s2', p2, chk2, opt['n2'], 15, fill2)
                if opt.get('s13'): stamp(13)
                if eb: a('s_barrier')
                if not opt.get('spec2', 0):
                    a(f'ds_write_b128 v{HT}, {vr(MEMF,4)}')
                    a(f'ds_write_b128 v{HT}, {vr(MEMF+4,4)} offset:1024')
                for k in range(2, 2+eb): a(mld(k))
                if hs:
                    for x in head: a(x)
                a('s_waitcnt lgkmcnt(0)')
                a('s_barrier')
                if hs: a(f's_branch {T("mid")} ; keep')
        else:
            if not pre_: part_a(); part_b()
            stamp_acc()
            if opt.get('series') and w == 1:
                a('s_memrealtime s[60:61]'); a(f's_lshl_b32 s62, s5, 8'); a(f's_lshl_b32 s63, s{sSTEP}, 2'); a('s_add_u32 s62, s62, s63'); a(f's_add_u32 s62, s62, {WS_DBG+0x10000:#x}')
                a(f'v_mov_b32 v{VB+6}, s60'); a(f'buffer_store_dword v{VB+6}, off, {WS}, s62')
            a('s_waitcnt lgkmcnt(0)')
            if opt.get('s13'): stamp(13)
            if eb and not dl:
                a('s_barrier')
                for k in range(2, 2+eb): a(mld(k))
            a('s_barrier')
            a(f'ds_read_b128 {vr(MEMF,4)}, v{HT}')
            a(f'ds_read_b128 {vr(MEMF+4,4)}, v{HT} offset:1024')
            if dl:
                for k in range(2, 2+eb): a(mld(k))
        a(f's_branch {T("p2go")} ; keep')
        a('s_waitcnt lgkmcnt(0)')
        if w == 1:
            a.label(T('kvw%d' % w))
            kv_wait(a, T('kvl%d' % w), sT1, MEMF+26)
            a(f's_branch {T("kvo%d" % w)}')
    if only is not None:
        tailcode(only, opt)
    else:
        for w in range(3):
            a(f's_cmp_eq_u32 s4, {w}'); a(f's_cbranch_scc1 {T("w%d" % w)} ; keep')
        tailcode(3, opt)
        for w in range(3):
            a('s_waitcnt lgkmcnt(0)')
            a.label(T('w%d' % w)); tailcode(w, opt)
    a('s_waitcnt lgkmcnt(0)')
    a.label(T('redo'))
    if stamps: a(f's_add_u32 s{sACC+15}, s{sACC+15}, 0x10000')
    a(f's_add_u32 s{sSPIN}, s{sSPIN}, 1'); a(f's_cmp_ge_u32 s{sSPIN}, {SPIN_MAX}'); a('s_cbranch_scc1 L_fail')
    a('s_nop 7')
    for z in range(12): a(z2(ACQ+2*z))
    a(f's_branch {T("p2ok")}')
    a.label(T('fin'))
    a('s_waitcnt lgkmcnt(0)')
    a(f's_add_u32 s{sKM}, s{sKM}, {32*4096:#x}')
    a(kput)
    if opt.get('dbgt'):
        DBGT(a, 6, VB)
        a(f'v_mov_b32 v{VB+1}, s96'); a('s_mov_b64 exec, 1'); a(f'buffer_atomic_umax v{VB+1}, off, {srd(sDBG)}, 0 offset:20')
    if stamps or opt.get('timing', False):
        a('s_memtime s[60:61]'); a('s_memrealtime s[96:97]'); a('s_waitcnt lgkmcnt(0)')
        a('s_sub_u32 s92, s60, s92'); a('s_sub_u32 s93, s96, s94')
        a(f's_lshl_b32 s{sT0}, s5, 2'); a(f's_add_u32 s{sT0}, s{sT0}, s4'); a(f's_lshl_b32 s{sT0}, s{sT0}, 7'); a(f's_add_u32 s{sT0}, s{sT0}, {WS_DBG:#x}')
        vals = [92, 93, 94, 96, 90] + [sACC+i for i in range(16)] + [91] + ([70+2*i for i in range(9)] if opt.get('ustamp') else [])
        for i, s in enumerate(vals):
            a(f'v_mov_b32 v{VB}, s{s}')
            a(f'buffer_store_dword v{VB}, off, {WS}, s{sT0} offset:{4*i}')
    a('s_waitcnt vmcnt(0)')
    a('s_endpgm')

def wo_off(Tt, ks2, hf): return (Tt >> 2)*32768 + (ks2*2 + hf)*4096 + (Tt & 3)*1024

def team_setup(a, opt, hooks):
    if opt.get('ustamp'): a('s_memrealtime s[70:71]')
    load_srd(a, sA, 'Wq'); load_srd(a, sB, 'Wk'); load_srd(a, sC, 'Wv'); load_srd(a, sD, 'Wo')
    lane, c, g, t0, t1, va, vo, rA, rB, r8 = 100, 101, 102, 103, 104, 105, 106, 107, 109, 110
    a(f'v_and_b32 v{lane}, 63, v0')
    a(f'v_bfe_u32 v{t0}, v{lane}, 4, 1'); a(f'v_lshlrev_b32 v{vo}, 4, v{t0}')
    a(f'v_bfe_u32 v{t0}, v{lane}, 3, 1'); a(f'v_lshl_add_u32 v{vo}, v{t0}, 2, v{vo}')
    a(f'v_lshrrev_b32 v{t0}, 5, v{lane}'); a(f'v_add_u32 v{vo}, v{vo}, v{t0}')
    a(f'v_and_b32 v{t1}, 7, v{lane}'); a(f'v_lshlrev_b32 v{t1}, 4, v{t1}')
    if opt.get('swz', 1): a(f'v_and_b32 v{t0}, 8, v{lane}'); a(f'v_lshlrev_b32 v{t0}, 3, v{t0}'); a(f'v_xor_b32 v{t1}, v{t1}, v{t0}')
    a(f's_lshr_b32 s{sT2}, s4, 1'); a(f's_lshl_b32 s{sT0}, s5, 8'); a(f's_lshl_b32 s{sT1}, s{sT2}, 7'); a(f's_add_u32 s{sT0}, s{sT0}, s{sT1}')
    a(f'v_lshl_add_u32 v{va}, v{vo}, 13, v{t1}'); a(f'v_add_u32 v{va}, s{sT0}, v{va}')
    a(f's_lshl_b32 s{sW2}, s4, 20'); a(f's_and_b32 s{sW2}, s{sW2}, 0x100000')
    a(f's_lshl_b32 s{sTF}, s{sT2}, 16'); a(f's_and_b32 s{sT2}, s4, 1'); a(f's_lshl_b32 s{sT1}, s{sT2}, 14'); a(f's_add_u32 s{sTF}, s{sTF}, s{sT1}')
    a('s_waitcnt lgkmcnt(0)')
    units = []
    B0 = 24
    def qkv(S, dstf):
        for U in range(2):
            h = (len(units) & 1)*32768
            iss, rd, tr = [], [], []
            for j in range(2):
                for b in range(8):
                    iss += [f's_add_u32 m0, s{sTF}, {h + (j*8+b)*1024}', f's_xor_b32 s{sT1}, s{sW2}, {((4*U+j) << 19) + db(b)*8192:#x}',
                            f'buffer_load_dwordx4 v{va}, {srd(S)}, s{sT1} offen {opt.get("wf", "")} lds']
            for jj in range(4):
                for b in range(8):
                    r = B0 + (jj*8+b)*2; o = (h + ((jj & 1)*8+b)*1024) // 256
                    rd.append(f'ds_read2st64_b32 {vr(r,2)}, v{rB if jj >= 2 else rA} offset0:{o} offset1:{o+2}')
                    for t, sel in ((0, sPLO), (1, sPHI)):
                        kind, d = dstf(4*U+jj, t, b)
                        if kind == 'v': tr.append(f'v_perm_b32 v{d}, v{r+1}, v{r}, s{sel}')
                        else: tr += [f'v_perm_b32 v{124+t}, v{r+1}, v{r}, s{sel}', f'v_accvgpr_write_b32 a{d}, v{124+t}']
            units.append((iss, rd, tr))
    OUT = 112
    def wo():
        for cq in range(2):
            assert (len(units) & 1) == cq
            h = cq*32768
            iss, rd, tr = [], [], []
            for ks2 in range(2):
                for b in range(8):
                    sl = ks2*8 + b
                    iss += [f's_add_u32 m0, s{sTF}, {h + sl*1024}', f's_add_u32 s{sT1}, s{sHO}, {(64*ks2 + db(b))*1024 + cq*512:#x}',
                            f'buffer_load_dwordx4 v{vo}, {srd(sD)}, s{sT1} offen {opt.get("wf", "")} lds']
                    r = B0 + sl*4; o = (h + sl*1024) // 256
                    rd += [f'ds_read2st64_b32 {vr(r+2*pl,2)}, v{r8+pl} offset0:{o} offset1:{o+2}' for pl in range(2)]
                    ob = OUT if sl < 4 else B0 + (sl//4 - 1)*16
                    tr += [f'v_perm_b32 v{ob+4*i+(b&3)}, v{r+2*(i>>1)+1}, v{r+2*(i>>1)}, s{sPHI if i&1 else sPLO}' for i in range(4)]
                    if (b & 3) == 3:
                        tr += [f'ds_write_b128 v{WOB}, {vr(ob+4*i,4)} offset:{wo_off(4*cq+i, ks2, b >> 2)}' for i in range(4)]
            tr += ['s_waitcnt lgkmcnt(0)']
            units.append((iss, rd, tr))
    for ch in opt.get('worder', 'qkv'):
        if ch == 'q': qkv(sA, lambda k, t, b: ('a', (k*2+t)*8+b))
        if ch == 'k': qkv(sB, lambda k, t, b: ('a', 128+(k*2+t)*8+b))
        if ch == 'v': qkv(sC, lambda k, t, b: ('v', WV+(k*2+t)*8+b))
    wo()
    for U in range(2):
        for x in units[U][0]: a(x)
    a(f'v_and_b32 v{c}, 15, v{lane}'); a(f'v_lshrrev_b32 v{g}, 4, v{lane}'); a(f'v_lshlrev_b32 v{L16}, 4, v{lane}')
    a(f's_mov_b32 s{sPLO}, 0x05040100'); a(f's_mov_b32 s{sPHI}, 0x07060302')
    a(f's_lshl_b32 s{sHO}, s5, 17')
    a(f'v_add_u32 v{WOB}, s{sTF}, v{L16}')
    a(f'v_lshlrev_b32 v{rA}, 7, v{g}'); a(f'v_lshl_add_u32 v{rA}, v{c}, 2, v{rA}'); a(f's_lshl_b32 s{sT1}, s{sT2}, 6'); a(f's_add_u32 s{sT1}, s{sT1}, s{sTF}')
    a(f's_and_b32 s{sT1}, s{sT1}, 0xffffbfff')
    a(f'v_add_u32 v{rA}, s{sT1}, v{rA}')
    if opt.get('swz', 1): a(f'v_and_b32 v{t0}, 1, v{g}'); a(f'v_lshlrev_b32 v{t0}, 6, v{t0}'); a(f'v_xor_b32 v{rA}, v{rA}, v{t0}')
    a(f'v_add_u32 v{rB}, 0x4000, v{rA}')
    a(f'v_and_b32 v{r8}, 0xffffffe3, v{rA}'); a(f'v_and_b32 v{t0}, 1, v{c}'); a(f'v_lshl_add_u32 v{r8}, v{t0}, 4, v{r8}')
    a(f'v_and_b32 v{t0}, 6, v{c}'); a(f'v_lshl_add_u32 v{r8}, v{t0}, 1, v{r8}'); a(f'v_add_u32 v{r8+1}, 0x4000, v{r8}')
    a(f'v_lshl_add_u32 v{vo}, v{vo}, 10, v{t1}'); a(f's_lshl_b32 s{sT0}, s{sT2}, 8'); a(f's_lshr_b32 s{sT1}, s4, 1'); a(f's_lshl_b32 s{sT1}, s{sT1}, 7')
    a(f's_add_u32 s{sT0}, s{sT0}, s{sT1}'); a(f'v_add_u32 v{vo}, s{sT0}, v{vo}')
    tmp = (lane, c, g, t0, t1)
    young = hooks['pre'](a, tmp)
    for U in range(8):
        a(f's_waitcnt vmcnt({(16 if U < 7 else 0) + young})')
        if opt.get('ustamp'): a(f's_memrealtime s[{72+2*U}:{73+2*U}]')
        a('s_barrier')
        for x in units[U][1]: a(x)
        a('s_waitcnt lgkmcnt(0)')
        a('s_barrier')
        if ('b', U) in hooks: hooks[('b', U)](a, tmp)
        if U + 2 < 8:
            for x in units[U+2][0]: a(x)
        young = hooks[U](a, tmp) if U in hooks else 0
        for x in units[U][2]: a(x)

def stream(a, items, RING0, RN, maxload=60, older=0, hooks={}):
    n = len(items)
    pos = []; head = 0
    issued = 0; consumed = 0
    used = 0; infl = 0
    alloc = {}
    while consumed < n:
        while issued < n:
            iss, nl, nr, con = items[issued]
            h = head
            waste = 0
            if h + nr > RN: waste = RN - h; h = 0
            if used + waste + nr > RN or infl + nl > (maxload - older if consumed == 0 else maxload): break
            alloc[issued] = (h, waste + nr)
            for x in iss(RING0 + h): a(x)
            head = h + nr; used += waste + nr; infl += nl; issued += 1
        if consumed in hooks: hooks[consumed](a)
        iss, nl, nr, con = items[consumed]
        infl -= nl
        a(f's_waitcnt vmcnt({infl})')
        for x in con(RING0 + alloc[consumed][0]): a(x)
        used -= alloc[consumed][1]
        consumed += 1

def team_consts(a, tmp, RS=REP_ST):
    lane, c, g, t0, t1 = tmp
    a(f's_mov_b32 s{sPOI}, {POISON:#x}')
    scl = (128 ** -0.5) * math.log2(math.e)
    import struct
    a(f's_mov_b32 s{sSCL}, {struct.unpack("<I", struct.pack("<f", scl))[0]:#x}')
    a(f's_mov_b32 s{sHALF}, 0xcccccccc'); a(f's_mov_b32 s{sHALF+1}, 0xcccccccc')
    a(f's_mov_b32 s{sPEX}, 0x000f000f'); a(f's_mov_b32 s{sPEX+1}, 0x000f000f')
    a(f's_lshr_b32 s{sFO}, s5, 1'); a(f's_lshl_b32 s{sFO}, s{sFO}, 6'); a(f's_add_u32 s{sFO}, s{sFO}, {WS_PF}')
    a(f's_mov_b32 s{sEVEN}, 0x0000ffff'); a(f's_mov_b32 s{sEVEN+1}, 0x0000ffff')
    a(f'v_mov_b32 v{t0}, 0x4444'); a(f'v_mov_b32 v{t1}, 0xeeee')
    a(f'v_cndmask_b32 v{IDX}, v{t0}, v{t1}, s[{sHALF}:{sHALF+1}]')
    a(f's_lshl_b32 s{sM0}, s4, 11')
    a(f's_lshl_b32 s{sKS}, s4, 6')
    for r in range(4): a(f'v_mov_b32 v{POI4+r}, s{sPOI}')
    a(f's_lshl_b32 s{sT0}, s4, 16'); a(f's_lshl_b32 s{sT1}, s5, 6'); a(f's_add_u32 s{sT0}, s{sT0}, s{sT1}')
    a(f'v_lshrrev_b32 v{t0}, 3, v{lane}'); a(f'v_lshlrev_b32 v{t0}, 13, v{t0}')
    a(f'v_and_b32 v{t1}, 7, v{c}'); a(f'v_lshl_add_u32 v{t0}, v{t1}, 3, v{t0}'); a(f'v_add_u32 v{PST}, s{sT0}, v{t0}')
    a(f's_lshr_b32 s{sT0}, s5, 3'); a(f's_lshl_b32 s{sT0}, s{sT0}, 9'); a(f's_add_u32 s{sT0}, s{sT0}, s{sM0}')
    a(f's_and_b32 s{sT1}, s5, 1'); a(f's_lshl_b32 s{sT1}, s{sT1}, 8'); a(f's_add_u32 s{sT0}, s{sT0}, s{sT1}')
    a(f's_and_b32 s{sT1}, s5, 6'); a(f's_lshl_b32 s{sT1}, s{sT1}, 5'); a(f's_add_u32 s{sT0}, s{sT0}, s{sT1}')
    a(f'v_and_b32 v{t0}, 3, v{c}'); a(f'v_lshlrev_b32 v{t0}, 2, v{t0}'); a(f'v_lshl_add_u32 v{t0}, v{g}, 4, v{t0}'); a(f'v_add_u32 v{t0}, s{sT0}, v{t0}')
    a(f'v_and_b32 v{t1}, 1, v{c}')
    if RS: a(f'v_lshrrev_b32 v{PUB}, 2, v{c}'); a(f'v_mul_u32_u24 v{PUB}, {RS}, v{PUB}'); a(f'v_add_u32 v{PUB}, v{PUB}, v{t0}')
    else: a(f'v_mov_b32 v{PUB}, 0x7fffff00'); a(f'v_cmp_gt_u32 vcc, 4, v{c}'); a(f'v_cndmask_b32 v{PUB}, v{PUB}, v{t0}, vcc')
    a(f'v_mul_u32_u24 v{t0}, {2*XS}, v{g}'); a(f'v_lshl_add_u32 v{t0}, v{c}, 2, v{t0}'); a(f'v_add_u32 v{t0}, s{sKS}, v{t0}')
    a(f'v_add_u32 v{XW}, {L_QX}, v{t0}')
    mm = 108
    a(f'v_lshrrev_b32 v{mm}, 2, v{c}'); a(f'v_lshl_add_u32 v{mm}, v{mm}, 1, v{t1}')
    a(f'v_mul_u32_u24 v{t0}, {XS}, v{mm}'); a(f'v_add_u32 v{t0}, {L_QX}, v{t0}')
    a(f'v_lshl_add_u32 v{QR}, v{g}, 4, v{t0}')
    a(f'v_lshl_add_u32 v{OR_}, v{g}, 5, v{t0}'); a(f'v_and_b32 v{mm}, 2, v{c}'); a(f'v_lshl_add_u32 v{OR_}, v{mm}, 3, v{OR_}')
    a(f'v_mov_b32 v{t0}, 0x3f80'); a(f'v_lshlrev_b32 v{mm}, 4, v{t1}'); a(f'v_lshlrev_b32 v{t0}, v{mm}, v{t0}')
    a(f'v_lshrrev_b32 v{mm}, 1, v{c}')
    for r in range(4):
        a(f'v_cmp_eq_u32 vcc, {2*r}, v{mm}'); a(f'v_cndmask_b32 v{SELA+r}, 0, v{t0}, vcc')
    a(f'v_mov_b32 v{ONES}, 0x3f803f80'); a(f'v_mov_b32 v{ONES+1}, 0x3e803e80'); a(f'v_mov_b32 v{ONES+2}, 0x3f803f80'); a(f'v_mov_b32 v{ONES+3}, 0x3e803e80')
    a(f's_mov_b32 s{sSTEP}, 0')
    a(f's_mov_b32 s{sSLOT}, {WS_SLOT:#x}'); a(f's_mov_b32 s{sSLOTN}, {WS_SLOT+SLOT_ST:#x}'); a(f's_mov_b32 s{sSLOTP}, {WS_SLOT+2*SLOT_ST:#x}')
    a(f's_mov_b32 s{sINB}, {WS_INB:#x}')
    a(f's_lshl_b32 s{sINB2}, s5, 13'); a(f's_add_u32 s{sINB2}, s{sINB2}, s{sM0}'); a(f's_add_u32 s{sINB2}, s{sINB2}, {WS_INB:#x}')
    a(f's_lshl_b32 s{sKV}, s5, 13'); a(f's_add_u32 s{sKV}, s{sKV}, {WS_KF:#x}')
    a(f's_lshl_b32 s{sKM}, s5, 12'); a(f's_lshl_b32 s{sT0}, s4, 10'); a(f's_add_u32 s{sKM}, s{sKM}, s{sT0}'); a(f's_add_u32 s{sKM}, s{sKM}, {WS_KM - 32*4096:#x}')
    a(f's_add_u32 s{sKV}, s{sKV}, s{sM0}')
    a(f's_lshr_b32 s{sT0}, s4, 1'); a(f's_lshl_b32 s{sT0}, s{sT0}, 5'); a(f's_add_u32 s{sMK}, s{sM0}, s{sT0}')
    a(f's_add_u32 s{sMV}, s{sM0}, {L_V}')

def team_init1(a, tmp):
    lane, c, g, t0, t1 = tmp
    WS = srd(sWS)
    load_srd(a, 64, 'mem0')
    for o in (0, 1024):
        a(f'buffer_store_dwordx4 {vr(POI4,4)}, v{L16}, {WS}, s{sINB2} offen offset:{o} sc1')
    a(f's_and_b32 s{sT0}, s5, 6'); a(f's_lshl_b32 s{sT0}, s{sT0}, 10'); a(f's_lshr_b32 s{sT1}, s5, 3'); a(f's_lshl_b32 s{sT1}, s{sT1}, 6')
    a(f's_add_u32 s{sT0}, s{sT0}, s{sT1}'); a(f's_lshl_b32 s{sT1}, s4, 8'); a(f's_add_u32 s{sT0}, s{sT0}, s{sT1}')
    a(f's_and_b32 s{sT1}, s5, 1'); a(f's_lshl_b32 s{sT1}, s{sT1}, 5'); a(f's_add_u32 s{sT0}, s{sT0}, s{sT1}')
    a(f'v_and_b32 v{t0}, 1, v{g}'); a(f'v_lshlrev_b32 v{t0}, 10, v{t0}'); a(f'v_and_b32 v{t1}, 3, v{c}'); a(f'v_lshl_add_u32 v{t0}, v{t1}, 2, v{t0}')
    a(f'v_lshrrev_b32 v{t1}, 1, v{g}'); a(f'v_lshl_add_u32 v{t0}, v{t1}, 4, v{t0}')
    a('s_waitcnt lgkmcnt(0)')
    a(f'buffer_load_dword v99, v{t0}, {srd(64)}, s{sT0} offen')
    a(f'buffer_store_dword v{POI4}, v{PUB}, {WS}, s{sSLOTN} offen sc1')
def team_init2(a):
    a(f's_mov_b32 s{sT0}, {WS_SLOT:#x}')
    a(f'buffer_store_dword v99, v{PUB}, {srd(sWS)}, s{sT0} offen sc1')

sAV = 7
L_FL = L_V + 8192
assert L_FL + 256 <= LDS_MISC
def kv_lane(a, t):
    a(f'v_bfe_u32 v{t+2}, v{L16}, 4, 3'); a(f'v_min_u32 v{t+2}, 6, v{t+2}')
    a(f'v_bfe_u32 v{t}, v{L16}, 7, 1'); a(f'v_lshl_add_u32 v{t}, v{t}, 3, v{t+2}'); a(f'v_lshlrev_b32 v{t}, 2, v{t}')
def kv_addr(a, t): kv_lane(a, t)
def kv_issue(a, t): a(f'buffer_load_dword v{t+1}, v{t}, {srd(sWS)}, s{sFO} offen sc1')
def kv_eval(a, t):
    a(f'v_mad_u32_u24 v{t+1}, v{t+1}, 7, v{t+2}')
    for rot in (8, 4, 2, 1): a(f'v_min_u32_dpp v{t+1}, v{t+1}, v{t+1} row_ror:{rot} row_mask:0xf bank_mask:0xf')
    a(f'v_readfirstlane_b32 s{sAV}, v{t+1}')
def kv_wait(a, tag, need_s, t):
    kv_addr(a, t)
    a(f's_mov_b32 s{sSPIN}, 0')
    a.label(tag)
    kv_issue(a, t)
    a('s_waitcnt vmcnt(0)')
    kv_eval(a, t)
    a(f's_add_u32 s{sSPIN}, s{sSPIN}, 1'); a(f's_cmp_ge_u32 s{sSPIN}, {SPIN_MAX}'); a('s_cbranch_scc1 L_fail')
    a(f's_cmp_ge_u32 s{need_s}, s{sAV}')
    a(f's_cbranch_scc1 {tag}')
    a(f's_mov_b32 s{sSPIN}, 0')

def team_first_issue(a, d):
    a(f's_mov_b32 s{sKB}, {L_K0}'); a(f's_mov_b32 s{sKD}, {L_K0}')
    for g in k_dma(False) + v_dma() + [[f's_mov_b32 s{sKD}, {L_K1}']] + k_dma():
        for x in g: a(x)

def team_warm(a, d, tlb=True):
    if tlb:
        a(f'v_lshlrev_b32 v{d+1}, 16, v{L16}'); a(f's_mov_b32 s{sT2}, 0x600000')
        a(f'buffer_load_dword v{d}, v{d+1}, {srd(sWS)}, s{sT2} offen sc1')
    a(f's_and_b32 s{sT2}, s5, 3'); a(f's_lshl_b32 s{sT2}, s{sT2}, 11'); a(f's_mul_i32 s{sT0}, s4, {SLOT_ST:#x}'); a(f's_add_u32 s{sT2}, s{sT2}, s{sT0}'); a(f's_add_u32 s{sT2}, s{sT2}, {WS_SLOT:#x}')
    a(f's_xor_b32 s{sT0}, s{sINB2}, 0x40000')
    for so in (sT2, sINB2, sT0):
        for o in (0, 1024): a(f'buffer_load_dwordx4 {vr(d,4)}, v{L16}, {srd(sWS)}, s{so} offen offset:{o} sc1')

def team_first_kv(a):
    a(f's_lshl_b32 s{sTL}, s5, 2'); a(f's_add_u32 s{sTL}, s{sTL}, {WS_TL}')
    for x in kx_addr(MEMF+21, MEMF+22): a(x)
    for z in range(12): a(z2(ACQ+2*z))
    a('s_waitcnt vmcnt(0)')
    a('s_barrier')
    a(f'v_add_u32 v{MEMF+23}, s{sMV}, v{L16}')
    for r in (VB+3, VB+7, VB+11, VB+15): a(f'v_mov_b32 v{r}, 0')
    for x in kv_reads(MEMF+21, MEMF+23): a(x)
    a(f's_mov_b32 s{sKB}, {L_K1}'); a(f's_mov_b32 s{sKD}, {L_K0}')
    a('s_waitcnt lgkmcnt(0)')
```

```python
from asmlib import *
from common import *
from team import stream
import math, struct
def fbits(x): return struct.unpack("<I", struct.pack("<f", x))[0]
L16 = 0
sIDX = 6
sPLO, sPHI = 37, 38
XST = 1056; XT = 32*XST
def mfm(d, A, B, C, fa='v', fb='v'): return f'v_mfma_f32_16x16x32_bf16 {vr(d,4)}, {vr(A,4,fa)}, {vr(B,4,fb)}, {C}'

def wload_items(S0, S1, va0, va1, stride, nk, dst, kbase_s, sT, imm1=0):
    items = []
    for kk in range(nk):
        for j in range(4):
            def iss(r, kk=kk, j=j):
                off = (32*kk + 2*j)*stride
                o = [f's_add_u32 s{sT}, s{kbase_s}, {off:#x}',
                     f'buffer_load_dword v{r}, v{va0}, {srd(S0)}, s{sT} offen',
                     f'buffer_load_dword v{r+1}, v{va0+1}, {srd(S0)}, s{sT} offen']
                if S1 is not None:
                    o += [f'buffer_load_dword v{r+2}, v{va1}, {srd(S1)}, s{sT} offen offset:{imm1}',
                          f'buffer_load_dword v{r+3}, v{va1+1}, {srd(S1)}, s{sT} offen offset:{imm1}']
                return o
            def con(r, kk=kk, j=j):
                o = []
                for T in range(4 if S1 is not None else 2):
                    b = r + 2*(T >> 1); sel = sPHI if T & 1 else sPLO
                    f, d = dst(kk, T, j)
                    if f == 'v': o.append(f'v_perm_b32 v{d}, v{b+1}, v{b}, s{sel}')
                    else: o += [f'v_perm_b32 v{8+(T&1)}, v{b+1}, v{b}, s{sel}', f'v_accvgpr_write_b32 a{d}, v{8+(T&1)}']
                return o
            n = 4 if S1 is not None else 2
            items.append((iss, n, n, con))
    return items

vC, vG, vA0, vA1, vRD = 1, 2, 4, 6, 3
ACC = 16
FR = 48
EP = 72
RING, RN = 104, 128
sTILE, sSTR, sBUF, sDST, sT0, sT1, sT2, sKB, sCNT, sW8, sNB, sDM = range(40, 52)
sCOL = 55

WST = [False]
PAUSE = [None]
REPORT = [None]
OPT = {}
def wstamp(a, i):
    if WST[0]:
        a('s_memrealtime s[92:93]'); a('s_memtime s[94:95]'); a('s_waitcnt lgkmcnt(0)')
        a('s_lshl_b32 s60, s6, 7'); a(f's_add_u32 s60, s60, {WS_DBG + 0x8000:#x}')
        if i < 0:
            a('s_min_u32 s61, s54, 2'); a('s_mul_i32 s61, s61, 12'); a('s_add_u32 s60, s60, s61'); i = -i - 1
        a('v_mov_b32 v20, s92'); a('v_mov_b32 v21, s94')
        a(f'buffer_store_dword v20, off, {srd(sWS)}, s60 offset:{4*i}')
        a(f'buffer_store_dword v21, off, {srd(sWS)}, s60 offset:{64+4*i}')
        a('s_waitcnt vmcnt(0)')

def touch(a, srds, stride, col_s, blk_s, t=10):
    a(f'v_lshrrev_b32 v{t}, 4, v{L16}'); a(f'v_mul_u32_u24 v{t}, {stride}, v{t}'); a(f'v_add_u32 v{t}, s{col_s}, v{t}')
    a(f's_mul_i32 s{sT2}, s{blk_s}, {64*stride:#x}')
    a(f's_mov_b32 s{sT1}, {7*64*stride:#x}')
    for S in srds:
        a(f'buffer_load_dword v{t+1}, v{t}, {srd(S)}, s{sT2} offen')
        a(f'buffer_load_dword v{t+1}, v{t}, {srd(S)}, s{sT1} offen')

def x_dma(a, tile_s, buf_s):
    a(f's_lshl_b32 s{sT0}, s{tile_s}, 15')
    a(f's_lshl_b32 s{sT1}, s4, 13'); a(f's_add_u32 s{sT0}, s{sT0}, s{sT1}')
    a(f's_add_u32 s{sT1}, s{buf_s}, s{sW8}')
    for r in range(8):
        a(f's_add_u32 m0, s{sT1}, {r*XST}')
        if r: a(f's_add_u32 s{sT0}, s{sT0}, 1024')
        a(f'buffer_load_dwordx4 v{L16}, {srd(sC)}, s{sT0} offen lds')

def wload_dma(a, S, NS=24):
    va, r0, t = vA0, vA1, 10
    a(f'v_lshrrev_b32 v{t}, 9, v{L16}'); a(f'v_bfe_u32 v{va}, v{L16}, 7, 2'); a(f'v_lshl_add_u32 v{va}, v{va}, 3, v{t}')
    a(f'v_and_b32 v{t}, 0x70, v{L16}'); a(f'v_lshl_add_u32 v{va}, v{va}, 13, v{t}'); a(f'v_add_u32 v{va}, s{sCOL}, v{va}')
    a(f's_mul_i32 s{sCNT}, s4, {NS*1024}'); a(f's_add_u32 s{sCNT}, s{sCNT}, {XT}')
    def iss(n): return [f's_add_u32 m0, s{sCNT}, {(n % NS)*1024}', f's_mov_b32 s{sT2}, {(32*(n >> 2) + 2*(n & 3))*8192:#x}',
                        f'buffer_load_dwordx4 v{va}, {srd(S)}, s{sT2} offen lds']
    for n in range(NS):
        for x in iss(n): a(x)
    REPORT[0](a, 11)
    a(f'v_lshlrev_b32 v{r0}, 7, v{vG}'); a(f'v_lshl_add_u32 v{r0}, v{vC}, 2, v{r0}'); a(f'v_add_u32 v{r0}, s{sCNT}, v{r0}'); a(f'v_add_u32 v{r0+1}, 64, v{r0}')
    def reads(kk):
        R = RING + (kk & 1)*16
        for j in range(4):
            o = ((4*kk+j) % NS)*4
            for pl in range(2): a(f'ds_read2st64_b32 {vr(R+4*j+2*pl,2)}, v{r0+pl} offset0:{o} offset1:{o+2}')
    a(f's_waitcnt vmcnt({NS - 4})')
    reads(0)
    for kk in range(16):
        n0 = 4*kk
        a(f's_waitcnt vmcnt({max(0, min(64, n0+NS) - (n0+8))}) lgkmcnt(0)')
        if kk < 15: reads(kk+1)
        R = RING + (kk & 1)*16
        nxt = list(range(n0+NS, min(64, n0+NS+4)))
        for j in range(4):
            if j < len(nxt):
                for x in iss(nxt[j]): a(x)
            for T in range(4):
                b = R + 4*j + 2*(T >> 1)
                a(f'v_perm_b32 v{8+(T&1)}, v{b+1}, v{b}, s{sPHI if T & 1 else sPLO}'); a(f'v_accvgpr_write_b32 a{(kk*4+T)*4+j}, v{8+(T&1)}')

def gemm(a, kind, tag, pre_loop):
    T_ = lambda n: f'{tag}_{n}'
    WS = srd(sWS)
    stride = 2752 if kind == 'F' else 8192
    if kind == 'F' or OPT.get('wt', 0): touch(a, [sA, sB] if kind == 'F' else [sA], stride, sCOL, sTILE)
    a('s_barrier')
    a(f's_mov_b32 s{sNB}, s{sTILE}')
    def xpre(bs):
        for b in bs:
            a(f's_mov_b32 s{sBUF}, {b*XT}')
            x_dma(a, sNB, sBUF)
            a(f's_add_u32 s{sNB}, s{sNB}, s{sSTR}')
    nst = {'F': 2, 'V': 5, 'K': 7}[kind]
    a('s_mov_b32 s57, 0')
    if kind == 'F':
        xpre((0, 1, 2))
        items = wload_items(sA, sB, vA0, vA1, stride, 16, lambda kk, T, j: ('a', (kk*4+T)*4+j), sKB, sT2, imm1=0)
        stream(a, items, RING, RN, maxload=60, older=28)
        wstamp(a, -2)
        a(f's_mov_b32 s{sBUF}, 0')
    else:
        xpre((0,))
        wload_dma(a, sA)
        wstamp(a, -2)
        a('s_barrier')
        xpre((1, 2))
        a(f's_mov_b32 s{sBUF}, 0')
        a(f's_branch {T_("in")}')
    a.label(T_('loop'))
    if kind != 'F':
        a('s_cmp_lg_u32 s57, s54')
        a(f's_cbranch_scc1 {T_("nd")}')
        a('s_waitcnt vmcnt(0)')
        pre_loop(a)
        a.label(T_('nd'))
    a(f's_waitcnt vmcnt({8 + nst})')
    a('s_barrier')
    if kind != 'F':
        a('s_sub_u32 s59, s57, 1'); a(f's_min_i32 s{sT0}, s57, 1'); a(f's_max_i32 s59, s59, s{sT0}')
        a(f'v_mov_b32 v8, s59')
        a(f'buffer_store_dword v8, off, {WS}, s56 sc1')
        a.label(T_('in'))
        a('s_add_u32 s57, s57, 1')
    a(f'v_add_u32 v{EP}, s{sBUF}, v{vRD}')
    def rd(kk, rt): return f'ds_read_b128 {vr(FR+((kk%3)*2+rt)*4,4)}, v{EP} offset:{rt*16*XST + kk*64}'
    for kk in (0, 1):
        a(rd(kk, 0)); a(rd(kk, 1))
    a(f's_add_u32 s{sT2}, s{sBUF}, {3*XT}'); a(f's_cmp_ge_u32 s{sT2}, {4*XT}'); a(f's_cselect_b32 s{sCNT}, {4*XT}, 0'); a(f's_sub_u32 s{sT2}, s{sT2}, s{sCNT}')
    x_dma(a, sNB, sT2)
    a(f's_add_u32 s{sNB}, s{sNB}, s{sSTR}')
    for kk in range(16):
        n = 0
        for rt in range(2):
            for T in range(4):
                d = ACC + (rt*4+T)*4; x = FR + ((kk % 3)*2+rt)*4; w = (kk*4+T)*4
                C = '0' if kk == 0 else vr(d, 4)
                a(mfm(d, x, w, C, 'v', 'a') if kind == 'V' else mfm(d, w, x, C, 'a', 'v'))
                if kk + 2 < 16 and n in (1, 3): a(rd(kk+2, n >> 1))
                n += 1
    if kind != 'F':
        a('s_cmp_lg_u32 s57, s98')
        a(f's_cbranch_scc1 {T_("np")}')
        PAUSE[0](a, T_('pz'))
        a.label(T_('np'))
    a(f's_mul_i32 s{sT0}, s{sTILE}, s{sDM}'); a(f's_add_u32 s{sT0}, s{sT0}, s{sDST}')
    ac = lambda rt, T, r: ACC + (rt*4+T)*4 + r
    if kind == 'K':
        a(f's_lshl_b32 s{sT1}, s{sTILE}, 17'); a(f's_add_u32 s{sT1}, s{sT1}, s58')
        for o in (0, 1024): a(f'buffer_store_dwordx4 v[12:15], v{L16}, {WS}, s{sT1} offen offset:{o} sc1')
        a(f's_add_u32 s{sT1}, s{sT0}, 4096')
        for rt in range(2):
            for u in range(2):
                e = EP + 4 + (rt*2+u)*4
                for r in range(4): a(f'v_cvt_pk_bf16_f32 v{e+r}, v{ac(rt,2*u,r)}, v{ac(rt,2*u+1,r)}')
                a(f'buffer_store_dwordx4 {vr(e,4)}, v{L16}, {WS}, s{sT1 if rt else sT0} offen offset:{u*1024} sc1')
    elif kind == 'V':
        for T in range(4):
            e = EP + 4 + T*4
            for rt in range(2):
                for p in range(2): a(f'v_cvt_pk_bf16_f32 v{e+rt*2+p}, v{ac(rt,T,2*p)}, v{ac(rt,T,2*p+1)}')
            a(f'buffer_store_dwordx4 {vr(e,4)}, v{L16}, {WS}, s{sT0} offen offset:{T*1024} sc1')
    else:
        a(f's_add_u32 s{sT1}, s{sT0}, {43*1024}')
        a(f's_mov_b32 s{sT2}, {fbits(-math.log2(math.e)):#x}')
        for rt in range(2):
            e = EP + 4 + rt*4; t = EP + 12
            G = [ac(rt, tt, r) for r in range(4) for tt in range(2)]
            U = [ac(rt, 2+tt, r) for r in range(4) for tt in range(2)]
            def rnd(L):
                for r in range(4): a(f'v_cvt_pk_bf16_f32 v{t+8+r}, v{L[2*r]}, v{L[2*r+1]}')
                for r in range(4):
                    a(f'v_lshlrev_b32 v{L[2*r]}, 16, v{t+8+r}'); a(f'v_and_b32 v{L[2*r+1]}, 0xffff0000, v{t+8+r}')
            rnd(G); rnd(U)
            for i in range(8): a(f'v_mul_f32 v{t+i}, s{sT2}, v{G[i]}')
            for i in range(8): a(f'v_exp_f32 v{t+i}, v{t+i}')
            for i in range(8): a(f'v_add_f32 v{t+i}, 1.0, v{t+i}')
            for i in range(8): a(f'v_rcp_f32 v{t+i}, v{t+i}')
            for i in range(8): a(f'v_mul_f32 v{G[i]}, v{G[i]}, v{t+i}')
            rnd(G)
            for i in range(8): a(f'v_mul_f32 v{G[i]}, v{G[i]}, v{U[i]}')
            for r in range(4): a(f'v_cvt_pk_bf16_f32 v{e+r}, v{G[2*r]}, v{G[2*r+1]}')
            a(f'buffer_store_dwordx4 {vr(e,4)}, v{L16}, {WS}, s{sT1 if rt else sT0} offen sc1')
    a(f's_add_u32 s{sBUF}, s{sBUF}, {XT}'); a(f's_cmp_ge_u32 s{sBUF}, {4*XT}'); a(f's_cselect_b32 s{sBUF}, 0, s{sBUF}')
    a(f's_add_u32 s{sTILE}, s{sTILE}, s{sSTR}')
    a(f's_cmp_lt_u32 s{sTILE}, 64')
    a(f's_cbranch_scc1 {T_("loop")}')

def set_flag(a, val, base, tag):
    a('s_waitcnt vmcnt(0)')
    a('s_barrier')
    a('s_cmp_lg_u32 s4, 0')
    a(f's_cbranch_scc1 {tag}')
    a(f's_lshl_b32 s{sT0}, s{sIDX}, 2')
    a(f'v_mov_b32 v8, {val}')
    a(f'buffer_store_dword v8, off, {srd(sWS)}, s{sT0} offset:{base} sc1')
    a.label(tag)

def worker_lane_consts(a):
    a('v_and_b32 v3, 63, v0')
    a(f'v_and_b32 v{vC}, 15, v3'); a(f'v_lshrrev_b32 v{vG}, 4, v3'); a(f'v_lshlrev_b32 v{L16}, 4, v3')
    a(f'v_mul_u32_u24 v{vRD}, {XST}, v{vC}'); a(f'v_lshl_add_u32 v{vRD}, v{vG}, 4, v{vRD}')
    a(f's_mov_b32 s{sPLO}, 0x05040100'); a(f's_mov_b32 s{sPHI}, 0x07060302')
    a(f's_mul_i32 s{sW8}, s4, {8*XST}')
    a(f's_mov_b32 s{sKB}, 0')
    for r in range(4): a(f'v_mov_b32 v{12+r}, {POISON:#x}')

def waddr(a, stride, col_s):
    a(f's_mov_b32 s{sCOL}, s{col_s}')
    a(f'v_mul_u32_u24 v{vA0}, {8*stride}, v{vG}'); a(f'v_lshl_add_u32 v{vA0}, v{vC}, 2, v{vA0}'); a(f'v_add_u32 v{vA0}, s{col_s}, v{vA0}')
    a(f'v_add_u32 v{vA0+1}, {stride}, v{vA0}')
    a(f'v_mov_b32 v{vA1}, v{vA0}'); a(f'v_mov_b32 v{vA1+1}, v{vA0+1}')

def qkv_setup(a, hp_s, wname, base):
    load_srd(a, sA, wname); load_srd(a, sB, wname)
    a(f's_lshl_b32 s{sT0}, s{hp_s}, 9'); a(f's_lshl_b32 s{sT1}, s4, 7'); a(f's_add_u32 s{sT0}, s{sT0}, s{sT1}')
    waddr(a, 8192, sT0)
    a(f's_lshl_b32 s{sDST}, s{hp_s}, 14'); a(f's_lshr_b32 s{sT1}, s4, 1'); a(f's_lshl_b32 s{sT1}, s{sT1}, 13'); a(f's_add_u32 s{sDST}, s{sDST}, s{sT1}')
    a(f's_and_b32 s{sT1}, s4, 1'); a(f's_lshl_b32 s{sT1}, s{sT1}, {12 if wname == "Wv" else 11}'); a(f's_add_u32 s{sDST}, s{sDST}, s{sT1}')
    a(f's_add_u32 s{sDST}, s{sDST}, {base:#x}')
    a(f's_mov_b32 s{sDM}, {32*8192:#x}')
    a('s_waitcnt lgkmcnt(0)')

def phase1(a, ready_wait):
    worker_lane_consts(a)
    wstamp(a, 1)
    load_srd(a, sC, 'x')
    sSL = 52
    a(f's_mul_hi_u32 s{sSL}, s{sIDX}, {-(-(1 << 32)//7):#x}'); a(f's_mul_i32 s{sT0}, s{sSL}, 7'); a(f's_sub_u32 s{sTILE}, s{sIDX}, s{sT0}')
    a(f's_mov_b32 s{sSTR}, 7')
    a(f's_and_b32 s53, s{sSL}, 15')
    a(f's_mov_b32 s54, 1')
    a('s_lshl_b32 s56, s53, 4'); a(f's_lshr_b32 s{sT0}, s{sSL}, 4'); a(f's_lshl_b32 s{sT0}, s{sT0}, 3'); a(f's_add_u32 s56, s56, s{sT0}'); a(f's_add_u32 s56, s56, s{sTILE}')
    a('s_lshl_b32 s56, s56, 2'); a(f's_add_u32 s56, s56, {WS_PF}'); a('s_cmp_eq_u32 s4, 0'); a('s_cselect_b32 s56, s56, 0x7fffff00')
    a(f's_cmp_ge_u32 s{sTILE}, {OPT.get("rgl", 7)}'); a('s_cselect_b32 s98, 1, 2')
    a(f's_cmp_ge_u32 s{sSL}, 16')
    a('s_waitcnt lgkmcnt(0)')
    a('s_cbranch_scc1 W_v')
    qkv_setup(a, 53, 'Wk', WS_KF)
    a('s_lshl_b32 s58, s53, 13'); a(f's_lshl_b32 s{sT0}, s4, 11'); a(f's_add_u32 s58, s58, s{sT0}'); a(f's_add_u32 s58, s58, {WS_KM:#x}')
    a.label('W_kq')
    gemm(a, 'K', 'GK', lambda a: ready_wait(a, 'W_rdy1'))
    a('s_cmp_eq_u32 s54, 99')
    a('s_cbranch_scc1 W_r2done')
    a('s_branch W_r1done')
    a.label('W_v')
    qkv_setup(a, 53, 'Wv', WS_VF)
    gemm(a, 'V', 'GV', lambda a: ready_wait(a, 'W_rdy2'))
    a.label('W_r1done')
    a('s_waitcnt vmcnt(0)'); a('s_barrier'); a('v_mov_b32 v8, 100'); a(f'buffer_store_dword v8, off, {srd(sWS)}, s56 sc1')
    a('s_mov_b32 s98, -1')
    a('s_mov_b32 s56, 0x7fffff00'); a('s_mov_b32 s58, 0x70000000')
    wstamp(a, 5)
    a(f's_lshr_b32 s{sSL}, s{sIDX}, 3'); a(f's_and_b32 s{sTILE}, s{sIDX}, 7'); a(f's_mov_b32 s{sSTR}, 8')
    a('s_mov_b32 s54, 99')
    a(f's_cmp_ge_u32 s{sSL}, 27'); a('s_cbranch_scc1 W_gate')
    a(f's_cmp_ge_u32 s{sSL}, 16'); a('s_cbranch_scc1 W_ffn')
    qkv_setup(a, sSL, 'Wq', WS_QF)
    a('s_branch W_kq')
    a.label('W_ffn')
    load_srd(a, sA, 'Wg'); load_srd(a, sB, 'Wu')
    a(f's_sub_u32 s53, s{sSL}, 16'); a('s_lshl_b32 s53, s53, 2'); a('s_add_u32 s53, s53, s4'); a('s_min_u32 s53, s53, 42')
    a(f's_lshl_b32 s{sT0}, s53, 6')
    waddr(a, 2752, sT0)
    a(f's_lshl_b32 s{sDST}, s53, 10'); a(f's_add_u32 s{sDST}, s{sDST}, {WS_HF:#x}')
    a(f's_mov_b32 s{sDM}, {2*43*1024:#x}')
    a('s_waitcnt lgkmcnt(0)')
    gemm(a, 'F', 'GF', lambda a: None)
    a('s_branch W_r2done')
    a.label('W_gate')
    gate(a)
    a.label('W_r2done')
    set_flag(a, 1, WS_PF2, 'W_f2')
    wstamp(a, 8)

def gate(a):
    load_srd(a, sA, 'gw')
    a(f's_sub_u32 s{sT0}, s{sIDX}, 216'); a(f's_lshl_b32 s{sT0}, s{sT0}, 2'); a(f's_add_u32 s{sT0}, s{sT0}, s4')
    a(f's_lshl_b32 s{sT1}, s{sT0}, 16')
    a(f's_lshl_b32 s{sDST}, s{sT0}, 8'); a(f's_add_u32 s{sDST}, s{sDST}, {WS_G:#x}')
    a('s_waitcnt lgkmcnt(0)')
    GW, X, R, RES, LN = 12, 16, 80, 10, 11
    a(f'buffer_load_dwordx4 {vr(GW,4)}, v{L16}, {srd(sA)}, 0 offen')
    a(f'v_lshrrev_b32 v{LN}, 4, v{L16}')
    a(f'v_mov_b32 v{RES}, 0')
    a(f's_mov_b32 s{sCNT}, 0')
    a.label('WG_loop')
    for i in range(16):
        a(f'buffer_load_dwordx4 {vr(X+4*i,4)}, v{L16}, {srd(sC)}, s{sT1} offen')
        a(f's_add_u32 s{sT1}, s{sT1}, 1024')
    a('s_waitcnt vmcnt(0)')
    for i in range(16): a(f'v_dot2_f32_bf16 v{R+i}, v{X+4*i}, v{GW}, 0')
    for k in range(1, 4):
        for i in range(16): a(f'v_dot2_f32_bf16 v{R+i}, v{X+4*i+k}, v{GW+k}, v{R+i}')
    a('s_nop 3')
    for rot in (8, 4, 2, 1):
        for i in range(16): a(f'v_add_f32_dpp v{R+i}, v{R+i}, v{R+i} row_ror:{rot} row_mask:0xf bank_mask:0xf')
    for sw in ('v_permlane16_swap_b32', 'v_permlane32_swap_b32'):
        for i in range(16): a(f'v_mov_b32 v{X+i}, v{R+i}')
        for i in range(16): a(f'{sw} v{R+i}, v{X+i}')
        for i in range(16): a(f'v_add_f32 v{R+i}, v{R+i}, v{X+i}')
    for i in range(16):
        a(f's_add_u32 s{sT2}, s{sCNT}, {i}')
        a(f'v_cmp_eq_u32 vcc, s{sT2}, v{LN}')
        a(f'v_cndmask_b32 v{RES}, v{RES}, v{R+i}, vcc')
    a(f's_add_u32 s{sCNT}, s{sCNT}, 16'); a(f's_cmp_lt_u32 s{sCNT}, 64'); a('s_cbranch_scc1 WG_loop')
    a(f'v_cvt_pk_bf16_f32 v{RES}, v{RES}, v{RES}'); a(f'v_and_b32 v{RES}, 0xffff0000, v{RES}')
    a(f'v_mul_f32 v{RES}, {fbits(-math.log2(math.e)):#x}, v{RES}')
    a(f'v_exp_f32 v{RES}, v{RES}'); a(f'v_add_f32 v{RES}, 1.0, v{RES}'); a(f'v_rcp_f32 v{RES}, v{RES}')
    a(f'v_cvt_pk_bf16_f32 v{RES}, v{RES}, v{RES}'); a(f'v_and_b32 v{RES}, 0xffff0000, v{RES}')
    a(f'v_lshlrev_b32 v{LN}, 2, v{LN}')
    a(f'buffer_store_dword v{RES}, v{LN}, {srd(sWS)}, s{sDST} offen sc1')

def spin_ge(a, tag, load, nreg, dst, thr, lanes_ok=None, sleep=1):
    a('s_mov_b32 s62, 0')
    a.label(tag)
    a(load)
    a('s_waitcnt vmcnt(0)')
    if nreg == 4:
        a(f'v_min3_i32 v{dst}, v{dst}, v{dst+1}, v{dst+2}'); a(f'v_min_i32 v{dst}, v{dst}, v{dst+3}')
    a(f'v_cmp_gt_i32 vcc, {thr}, v{dst}')
    a(f's_cbranch_vccz {tag}_ok')
    if sleep: a(f's_sleep {sleep}')
    a('s_add_u32 s62, s62, 1')
    a(f's_cmp_lt_u32 s62, {SPIN_MAX}')
    a(f's_cbranch_scc1 {tag}')
    a('s_branch L_fail')
    a.label(tag + '_ok')

def phase2(a, opt):
    WS = srd(sWS)
    if opt.get('no_p1'): worker_lane_consts(a)
    sGI, sCU, sUN, sRND, sHD, sRH, sGF, sSCL, sEH, sQO, sOB, sPOI = range(63, 75)
    WD = 168
    load_srd(a, sA, 'Wo'); load_srd(a, sB, 'Wd'); load_srd(a, sD, 'out')
    a(f's_lshr_b32 s{sGI}, s{sIDX}, 4'); a(f's_and_b32 s{sCU}, s{sIDX}, 15')
    a(f's_lshl_b32 s{sT0}, s{sCU}, 6')
    waddr(a, 1024, sT0)
    a(f's_lshl_b32 s{sKB}, s4, 20')
    a(f's_mul_i32 s{sNB}, s4, {11*32*1024:#x}')
    a('s_waitcnt lgkmcnt(0)')
    items = wload_items(sA, None, vA0, None, 1024, 32, lambda kk, T, j: ('a', (kk*2+T)*4+j), sKB, sT2)
    items += wload_items(sB, None, vA0, None, 1024, 11, lambda kk, T, j: ('v', WD+(kk*2+T)*4+j), sNB, sT2)
    stream(a, items, 100, 64, maxload=60, older=2)
    wstamp(a, 9)
    MSK, KW, KR, RW, RR, OA_, FL = 4, 12, 13, 14, 15, 3, 17
    a(f's_lshr_b32 s{sT0}, s4, 1'); a(f's_lshl_b32 s{sHD}, s{sCU}, 1'); a(f's_add_u32 s{sHD}, s{sHD}, s{sT0}')
    a(f's_and_b32 s{sRH}, s{sGI}, 1'); a(f's_and_b32 s{sEH}, s4, 1')
    a(f's_mov_b32 s{sSCL}, {fbits((128 ** -0.5) * math.log2(math.e)):#x}')
    a(f's_mov_b32 s{sPOI}, {POISON:#x}')
    a(f's_lshl_b32 s{sT0}, s{sRH}, 4'); a(f'v_add_u32 v18, s{sT0}, v{vC}'); a(f'v_lshlrev_b32 v19, 2, v{vG}'); a('v_sub_u32 v18, v18, v19')
    a(f'v_mov_b32 v19, {fbits(-1e30):#x}')
    for t in range(2):
        for r in range(4):
            a(f'v_cmp_gt_i32 vcc, {16*t+r}, v18'); a(f'v_cndmask_b32 v{MSK+4*t+r}, 0, v19, vcc')
    L_KM, L_RED = 0, 16384
    a(f's_mul_i32 s{sT0}, s4, 2304')
    a(f'v_mul_u32_u24 v{KW}, 576, v{vG}'); a(f'v_lshl_add_u32 v{KW}, v{vC}, 2, v{KW}'); a(f'v_add_u32 v{KW}, s{sT0}, v{KW}')
    a(f's_lshl_b32 s{sT1}, s{sEH}, 7'); a(f'v_add_u32 v16, s{sT1}, v{KW}')
    a(f's_xor_b32 s{sT1}, s{sT1}, 128'); a(f'v_add_u32 v{KW}, s{sT1}, v{KW}')
    a(f'v_lshrrev_b32 v18, 2, v{vC}'); a(f'v_and_b32 v19, 1, v{vC}'); a('v_lshl_add_u32 v18, v18, 1, v19')
    a(f'v_mul_u32_u24 v{KR}, 288, v18'); a(f'v_lshl_add_u32 v{KR}, v{vG}, 4, v{KR}'); a(f'v_add_u32 v{KR}, s{sT0}, v{KR}')
    a(f's_lshl_b32 s{sT0}, s4, 11'); a(f's_add_u32 s{sT0}, s{sT0}, {L_RED}'); a(f'v_add_u32 v{RW}, s{sT0}, v{L16}')
    a(f's_lshl_b32 s{sT2}, s4, 2'); a(f's_add_u32 s{sT1}, s{sT2}, {L_RED}'); a(f'v_add_u32 v{RR}, s{sT1}, v{L16}')
    a(f's_lshl_b32 s{sT1}, s{sCU}, 6'); a(f's_add_u32 s{sT1}, s{sT1}, s{sT2}')
    a(f'v_lshlrev_b32 v{OA_}, 10, v{vC}'); a(f'v_lshl_add_u32 v{OA_}, v{vG}, 4, v{OA_}'); a(f'v_add_u32 v{OA_}, s{sT1}, v{OA_}')
    a(f'v_lshlrev_b32 v{FL}, 2, v{vC}')
    a(f's_lshl_b32 s{sGF}, s{sGI}, 8'); a(f's_add_u32 s{sGF}, s{sGF}, {WS_GF:#x}')
    a(f's_lshl_b32 s{sOB}, s{sGI}, 18'); a(f's_add_u32 s{sOB}, s{sOB}, {WS_OF:#x}')
    a(f's_mov_b32 s{sUN}, s{sGI}'); a(f's_mov_b32 s{sRND}, 1')
    a(f'v_min_u32 v18, {55*16}, v{L16}')
    spin_ge(a, 'P2_pf', f'buffer_load_dwordx4 v[20:23], v18, {WS}, 0 offen offset:{WS_PF2} sc1', 4, 20, 1, sleep=8)
    wstamp(a, 10)
    AC, QQ, KK, VV, KVM, HH, S0, SM = 24, 32, 48, 80, 96, 112, 156, 164
    PX, PM, KMF, OC, OP = 112, 116, 120, 136, 48
    GG, BB = 18, 22
    def both(plain, tag):
        a(f's_cbranch_scc1 {tag}f')
        for x in plain: a(x + ' sc1')
        a(f's_branch {tag}e')
        a.label(tag + 'f')
        for x in plain: a(x)
        a.label(tag + 'e')
    a.label('P2_loop')
    a(f's_mul_i32 s{sT0}, s{sUN}, {43*1024:#x}'); a(f's_add_u32 s{sT0}, s{sT0}, {WS_HF:#x}')
    a(f's_mul_i32 s{sT1}, s4, 11')
    for i in range(11):
        a(f's_add_u32 s{sT2}, s{sT1}, {i}'); a(f's_min_u32 s{sT2}, s{sT2}, 42'); a(f's_lshl_b32 s{sT2}, s{sT2}, 10'); a(f's_add_u32 s{sT2}, s{sT2}, s{sT0}')
        a(f'buffer_load_dwordx4 {vr(HH+4*i,4)}, v{L16}, {WS}, s{sT2} offen sc1')
    a(f's_lshl_b32 s{sT0}, s{sUN}, 6'); a(f's_add_u32 s{sT0}, s{sT0}, {WS_G:#x}')
    a(f'buffer_load_dword v{GG}, v{FL}, {WS}, s{sT0} offen sc1')
    a(f's_lshr_b32 s{sT0}, s{sUN}, 1'); a(f's_lshl_b32 s{sT0}, s{sT0}, 5'); a(f's_add_u32 s{sT0}, s{sT0}, s{sHD}'); a(f's_lshl_b32 s{sQO}, s{sT0}, 13')
    a(f's_lshl_b32 s{sT0}, s{sRH}, 12'); a(f's_add_u32 s{sT0}, s{sT0}, s{sQO}'); a(f's_add_u32 s{sT0}, s{sT0}, {WS_QF:#x}')
    for j in range(4): a(f'buffer_load_dwordx4 {vr(QQ+4*j,4)}, v{L16}, {WS}, s{sT0} offen offset:{j*1024} sc1')
    a(f's_add_u32 s{sT0}, s{sQO}, {WS_KF:#x}'); a(f's_add_u32 s{sT1}, s{sT0}, 4096')
    for j in range(8): a(f'buffer_load_dwordx4 {vr(KK+4*j,4)}, v{L16}, {WS}, s{sT1 if j >= 4 else sT0} offen offset:{(j&3)*1024} sc1')
    a(f's_lshl_b32 s{sT0}, s{sEH}, 12'); a(f's_add_u32 s{sT0}, s{sT0}, s{sQO}'); a(f's_add_u32 s{sT0}, s{sT0}, {WS_VF:#x}')
    for j in range(4): a(f'buffer_load_dwordx4 {vr(VV+4*j,4)}, v{L16}, {WS}, s{sT0} offen offset:{j*1024} sc1')
    sK0, sK1 = 75, 76
    a(f's_lshr_b32 s{sK0}, s{sQO}, 1'); a(f's_add_u32 s{sK0}, s{sK0}, {WS_KM:#x}'); a(f's_lshl_b32 s{sT0}, s{sEH}, 11'); a(f's_add_u32 s{sK0}, s{sK0}, s{sT0}'); a(f's_xor_b32 s{sK1}, s{sK0}, 2048')
    kvl = [f'buffer_load_dwordx4 {vr(KVM+4*j,4)}, v{L16}, {WS}, s{sK1 if j >= 2 else sK0} offen offset:{(j&1)*1024} sc1' for j in range(4)]
    for x in kvl: a(x)
    for i in range(11):
        a(f's_waitcnt vmcnt({10 - i + 21})')
        for t in range(2): a(mfm(AC+4*t, WD+(i*2+t)*4, HH+4*i, '0' if i == 0 else vr(AC+4*t,4)))
    def reduce(dst, first):
        o = 0 if first else 8192
        for q in range(2): a(f'ds_write_b128 v{RW}, {vr(AC+4*q,4)} offset:{o + q*1024}')
        a('s_waitcnt lgkmcnt(0)')
        a('s_barrier')
        for w in range(4):
            for t in range(2): a(f'ds_read_b32 v{AC+2*w+t}, v{RR} offset:{o + w*2048 + t*1024}')
        a(f'v_pk_add_f32 {vr(AC,2)}, {vr(AC,2)}, {vr(AC+2,2)}'); a(f'v_pk_add_f32 {vr(AC+4,2)}, {vr(AC+4,2)}, {vr(AC+6,2)}')
        a(f'v_pk_add_f32 {vr(AC,2)}, {vr(AC,2)}, {vr(AC+4,2)}')
        rnd2(AC, dst)
    def rnd2(r, dst):
        a(f'v_cvt_pk_bf16_f32 v{AC+6}, v{r}, v{r+1}')
        a(f'v_lshlrev_b32 v{dst}, 16, v{AC+6}'); a(f'v_and_b32 v{dst+1}, 0xffff0000, v{AC+6}')
    reduce(BB, True)
    a('s_waitcnt vmcnt(8)')
    a(f'v_sub_f32 v19, 1.0, v{GG}'); a('v_cvt_pk_bf16_f32 v19, v19, v19'); a('v_and_b32 v19, 0xffff0000, v19')
    for j in range(4):
        for t in range(2): a(mfm(S0+4*t, KK+16*t+4*j, QQ+4*j, vr(MSK+4*t,4) if j == 0 else vr(S0+4*t,4)))
    for k in range(2): a(f'v_mul_f32 v{BB+k}, v19, v{BB+k}')
    rnd2(BB, BB)
    a(f'v_mov_b32 v{PM+1}, 0'); a(f'v_mov_b32 v{PM+2}, 0')
    a(f'v_max3_f32 v19, v{S0}, v{S0+1}, v{S0+2}'); a(f'v_max3_f32 v21, v{S0+4}, v{S0+5}, v{S0+6}'); a(f'v_max3_f32 v19, v19, v{S0+3}, v{S0+7}'); a('v_max_f32 v19, v19, v21')
    a('s_mov_b32 s62, 0')
    a.label('P2_kc')
    a('s_waitcnt vmcnt(0)')
    a(f'v_max3_u32 v20, v{KVM}, v{KVM+1}, v{KVM+2}')
    for k in range(3, 15, 2): a(f'v_max3_u32 v20, v20, v{KVM+k}, v{KVM+k+1}')
    a(f'v_max_u32 v20, v20, v{KVM+15}')
    a(f'v_cmp_eq_u32 vcc, s{sPOI}, v20')
    a('s_cbranch_vccz P2_kok')
    if opt.get('tfsleep', 2): a(f's_sleep {opt.get("tfsleep", 2)}')
    for x in kvl: a(x)
    a('s_add_u32 s62, s62, 1'); a(f's_cmp_lt_u32 s62, {SPIN_MAX}'); a('s_cbranch_scc1 P2_kc')
    a('s_branch L_fail')
    a.label('P2_kok')
    if opt.get('tst'): a('s_memrealtime s[78:79] ; nowait')
    for j in range(4):
        kw = KW if j >= 2 else 16
        a(f'ds_write_b32 v{kw}, v{KVM+4*j} offset:{L_KM + (j&1)*64}'); a(f'ds_write_b32 v{kw}, v{KVM+4*j+1} offset:{L_KM + (j&1)*64 + 288}')
    for j in range(4): a(f'ds_read_b128 {vr(KMF+4*j,4)}, v{KR} offset:{L_KM + j*64}')
    for j in range(4): a(mfm(SM, KMF+4*j, QQ+4*j, '0' if j == 0 else vr(SM,4)))
    t0, t1, t2, t3 = AC, AC+1, AC+2, AC+3
    a(f'v_max3_f32 v{t1}, v19, v{SM}, v{SM+1}'); a(f'v_max3_f32 v{t2}, v19, v{SM}, v{SM+1}')
    a(f'v_permlane32_swap_b32 v{t1}, v{t2}'); a(f'v_max_f32 v{t0}, v{t1}, v{t2}'); a(f'v_max_f32 v{t3}, v{t1}, v{t2}')
    a(f'v_permlane16_swap_b32 v{t0}, v{t3}'); a(f'v_max_f32 v{t0}, v{t0}, v{t3}'); a(f'v_mul_f32 v{t0}, s{sSCL}, v{t0}')
    ex = [S0+i for i in range(8)] + [SM, SM+1]
    for r in ex: a(f'v_fma_f32 v{r}, v{r}, s{sSCL}, -v{t0}')
    for r in ex: a(f'v_exp_f32 v{r}, v{r}')
    a(f'v_pk_add_f32 {vr(t0,2)}, {vr(S0,2)}, {vr(S0+2,2)}'); a(f'v_pk_add_f32 {vr(t2,2)}, {vr(S0+4,2)}, {vr(S0+6,2)}')
    a(f'v_pk_add_f32 {vr(t0,2)}, {vr(t0,2)}, {vr(SM,2)}'); a(f'v_pk_add_f32 {vr(t0,2)}, {vr(t0,2)}, {vr(t2,2)}')
    a(f'v_add_f32 v{t2}, v{t0}, v{t1}'); a(f'v_add_f32 v{t3}, v{t0}, v{t1}')
    a(f'v_permlane32_swap_b32 v{t2}, v{t3}'); a(f'v_add_f32 v{t0}, v{t2}, v{t3}'); a(f'v_add_f32 v{t1}, v{t2}, v{t3}')
    a(f'v_permlane16_swap_b32 v{t0}, v{t1}'); a(f'v_add_f32 v{t0}, v{t0}, v{t1}'); a(f'v_rcp_f32 v{t0}, v{t0}')
    for r in ex: a(f'v_mul_f32 v{r}, v{r}, v{t0}')
    for k in range(4): a(f'v_cvt_pk_bf16_f32 v{PX+k}, v{S0+2*k}, v{S0+2*k+1}')
    a(f'v_cvt_pk_bf16_f32 v{PM}, v{SM}, v{SM+1}'); a(f'v_cvt_pk_bf16_f32 v{PM+3}, v{SM}, v{SM+1}')
    for et in range(4): a(mfm(OC+4*et, VV+4*et, PX, '0'))
    for et in range(4):
        a(f'v_mfma_f32_16x16x16_bf16 {vr(OC+4*et,4)}, {vr(KVM+4*(et>>1)+2,2)}, {vr(PM+2*(et&1),2)}, {vr(OC+4*et,4)}')
    a(f's_lshl_b32 s{sT0}, s{sHD}, 12'); a(f's_lshl_b32 s{sT1}, s{sEH}, 11'); a(f's_add_u32 s{sT0}, s{sT0}, s{sT1}'); a(f's_add_u32 s{sT0}, s{sT0}, s{sOB}')
    a(f's_lshl_b32 s{sT1}, s{sCU}, 4'); a(f's_lshl_b32 s{sT2}, s4, 2'); a(f's_add_u32 s{sT1}, s{sT1}, s{sT2}'); a(f's_add_u32 s{sT1}, s{sT1}, s{sGF}')
    a(f'v_mov_b32 v20, s{sRND}')
    for ep in range(2):
        for r in range(4): a(f'v_cvt_pk_bf16_f32 v{OP+4*ep+r}, v{OC+8*ep+r}, v{OC+8*ep+4+r}')
    a('s_cmp_eq_u32 s7, 1')
    if opt.get('tst'): a('s_memrealtime s[80:81] ; nowait')
    both([f'buffer_store_dwordx4 {vr(OP+4*ep,4)}, v{L16}, {WS}, s{sT0} offen offset:{ep*1024}' for ep in range(2)], 'P2_so')
    a('s_waitcnt vmcnt(0)')
    both([f'buffer_store_dword v20, off, {WS}, s{sT1}'], 'P2_sf')
    if opt.get('tst'): a('s_memrealtime s[82:83] ; nowait')
    a(f's_lshl_b32 s{sT0}, s4, 6'); a(f's_add_u32 s{sT0}, s{sT0}, s{sGF}')
    spin_ge(a, 'P2_gf', f'buffer_load_dword v20, v{FL}, {WS}, s{sT0} offen sc1', 1, 20, f's{sRND}', sleep=opt.get('gfsleep', 0))
    a(f's_lshl_b32 s{sT1}, s4, 15'); a(f's_add_u32 s{sT0}, s{sOB}, s{sT1}')
    if opt.get('tst'): a('s_memrealtime s[84:85] ; nowait')
    R0 = 32
    for n in range(32):
        if n % 4 == 0 and n: a(f's_add_u32 s{sT0}, s{sT0}, 4096')
        a(f'buffer_load_dwordx4 {vr(R0+4*n,4)}, v{L16}, {WS}, s{sT0} offen offset:{(n&3)*1024} sc1')
    for n in range(32):
        a(f's_waitcnt vmcnt({31-n})')
        for t in range(2): a(mfm(AC+4*t, (n*2+t)*4, R0+4*n, '0' if n == 0 else vr(AC+4*t,4), 'a', 'v'))
    AA = 20
    if opt.get('tst'): a('s_memrealtime s[86:87] ; nowait')
    reduce(AA, False)
    for k in range(2): a(f'v_mul_f32 v{AA+k}, v{GG}, v{AA+k}')
    rnd2(AA, AA)
    a(f'v_pk_add_f32 {vr(AA,2)}, {vr(AA,2)}, {vr(BB,2)}')
    a(f'v_cvt_pk_bf16_f32 v{AA}, v{AA}, v{AA+1}')
    a(f's_lshl_b32 s{sT0}, s{sUN}, 14')
    a(f'buffer_store_dword v{AA}, v{OA_}, {srd(sD)}, s{sT0} offen {opt.get("outf", "")}')
    if opt.get('wb'):
        a(f's_and_b32 s{sT0}, s{sIDX}, 15'); a(f's_or_b32 s{sT0}, s{sT0}, s4'); a(f's_cmp_lg_u32 s{sT0}, 0'); a('s_cbranch_scc1 P2_nwb')
        a(f's_cmp_ge_u32 s{sUN}, {opt["wb"]}'); a('s_cbranch_scc1 P2_nwb')
        a('buffer_wbl2 sc1')
        a.label('P2_nwb')
    a(f's_xor_b32 s{sOB}, s{sOB}, 0x20000')
    a(f's_add_u32 s{sUN}, s{sUN}, 14'); a(f's_add_u32 s{sRND}, s{sRND}, 1')
    a(f's_cmp_lt_u32 s{sUN}, 128')
    a('s_cbranch_scc1 P2_loop')
    if opt.get('tst'):
        a('s_waitcnt lgkmcnt(0)')
        a('s_lshl_b32 s60, s6, 7'); a(f's_add_u32 s60, s60, {WS_DBG + 0x8000:#x}')
        for n in range(5):
            a(f'v_mov_b32 v20, s{78+2*n}'); a(f'buffer_store_dword v20, off, {WS}, s60 offset:{(108+4*n) if n < 4 else 44}')
```

```python
import sys
from asmlib import *
from common import *
import team as TM
import worker as WK
TM.DBGT = lambda a, i, v: dbgt(a, i, v)
NAME = 'gated_mix__memory_aug_recurrent_mem_tr__swiglu_ffn__prompt'

def spin_dbg(a, off, target, label, v=(60, 61), s=(60, 61), sleep=0, mask=None):
    a(f'v_mov_b32 v{v[0]}, {off}')
    a(f's_mov_b32 s{s[0]}, 0')
    a.label(label)
    if sleep: a(f's_sleep {sleep}')
    a(f'buffer_load_dword v{v[1]}, v{v[0]}, {srd(sDBG)}, 0 offen sc1')
    a('s_waitcnt vmcnt(0)')
    a(f'v_readfirstlane_b32 s{s[1]}, v{v[1]}')
    if mask: a(f's_and_b32 s{s[1]}, s{s[1]}, {mask:#x}')
    a(f's_add_u32 s{s[0]}, s{s[0]}, 1')
    a(f's_cmp_ge_u32 s{s[0]}, {SPIN_MAX}')
    a('s_cbranch_scc1 L_fail')
    a(f's_cmp_lt_u32 s{s[1]}, {target}')
    a(f's_cbranch_scc1 {label}')

def spin_ready(a, label, v=(8, 9)): spin_dbg(a, DB_READY, 256, label, v=v, s=(60, 63))

def dbgt(a, idx, v, neg=False):
    a('s_memrealtime s[94:95]'); a('s_waitcnt lgkmcnt(0)')
    if neg: a('s_not_b32 s94, s94')
    a(f'v_mov_b32 v{v}, s94'); a('s_mov_b64 exec, 1')
    a(f'buffer_atomic_umax v{v}, off, {srd(sDBG)}, 0 offset:{4*idx}'); a('s_mov_b64 exec, -1')

def report(a, v):
    a(f's_mov_b32 s63, {DB_READY}'); a('s_cmp_eq_u32 s99, 0'); a('s_cselect_b32 s63, s63, 0x7fffff00'); a('s_mov_b32 s99, 1')
    a(f'v_mov_b32 v{v}, 1'); a('s_mov_b64 exec, 1')
    a(f'buffer_atomic_add v{v}, off, {srd(sDBG)}, s63'); a('s_mov_b64 exec, -1')

def wg_atomic_inc(a, off, tag, v=(60, 61)):
    a('s_waitcnt vmcnt(0)')
    a('s_barrier')
    a('s_cmp_lg_u32 s4, 0')
    a(f's_cbranch_scc1 {tag}')
    a(f'v_mov_b32 v{v[0]}, {off}'); a(f'v_mov_b32 v{v[1]}, 1')
    a('s_mov_b64 exec, 1')
    a(f'buffer_atomic_add v{v[1]}, v{v[0]}, {srd(sDBG)}, 0 offen')
    a('s_mov_b64 exec, -1')
    a.label(tag)

def build(opt):
    a = Asm()
    kn = opt.get('kname', NAME + '_kernel')
    a('s_cmp_ge_u32 s2, %d' % (0 if opt.get('empty') else 256))
    a('s_cbranch_scc1 L_exit')
    if opt.get('timing') or opt.get('stamps') or opt.get('dbgt') or opt.get('diag'):
        a('s_memrealtime s[90:91]')
    load_srd(a, sWS, 'ws'); load_srd(a, sDBG, 'dbg'); load_srd(a, sA, 'Wq'); load_srd(a, sB, 'Wo')
    a('s_getreg_b32 s3, hwreg(HW_REG_XCC_ID, 0, 3)')
    a('v_lshrrev_b32 v1, 6, v0')
    a('v_readfirstlane_b32 s4, v1')
    if opt.get('fake_xcc'):
        a(f's_mul_hi_u32 s3, s2, {-(-(1 << 32)//31):#x}'); a('s_min_u32 s3, s3, 7')
    def cnt_off(a, d, x):
        a(f's_lshl_b32 s{d}, s{x}, 2'); a(f's_add_u32 s{d}, s{d}, 128'); a(f's_cmp_eq_u32 s{x}, 0'); a(f's_cselect_b32 s{d}, 0, s{d}')
    cnt_off(a, 6, 3)
    a(f'v_mov_b32 v2, s6'); a('v_mov_b32 v3, 1'); a(f'v_mov_b32 v4, {LDS_MISC}')
    a('v_mov_b64 v[8:9], 0'); a('v_mov_b64 v[10:11], 0'); a('v_lshlrev_b32 v5, 4, v0'); a('s_lshl_b32 s7, s2, 6')
    a('s_waitcnt lgkmcnt(0)')
    if opt.get('team_only'):
        a('s_cmp_lg_u32 s3, 0'); a('s_cbranch_scc1 L_exit')
    a('s_mov_b32 s99, s4')
    a('s_cmp_lg_u32 s4, 0')
    a('s_cbranch_scc1 L_hint')
    a('s_mov_b64 exec, 1')
    a(f'buffer_atomic_add v3, v2, {srd(sDBG)}, 0 offen sc0')
    if not opt.get('dev'):
        a('s_mov_b64 exec, 15')
        a(f'buffer_store_dwordx4 v[8:11], v5, {srd(sWS)}, s7 offen sc1')
        a('s_mov_b64 exec, 1')
    a('s_barrier')
    a('s_waitcnt vmcnt(0)')
    a('ds_write_b32 v4, v3')
    a('s_waitcnt lgkmcnt(0)')
    a('s_mov_b64 exec, -1')
    a('s_branch L_tk')
    a.label('L_hint')
    a('v_and_b32 v12, 63, v0'); a('v_lshlrev_b32 v12, 7, v12'); a('s_lshr_b32 s40, s2, 3')
    a('s_barrier')
    a('s_cmp_lg_u32 s3, 0'); a('s_cbranch_scc1 L_h1')
    a('s_cmp_lg_u32 s4, 1'); a('s_cbranch_scc1 L_h2')
    a('s_and_b32 s41, s40, 7'); a('s_lshl_b32 s41, s41, 23'); a('v_lshlrev_b32 v13, 13, v12')
    a('s_mov_b64 exec, 0xff')
    a(f'buffer_load_dword v250, v13, {srd(sWS)}, s41 offen sc1')
    a('s_mov_b64 exec, -1')
    a('s_branch L_h2')
    a.label('L_h1')
    if opt.get('mall', True):
        a('s_lshl_b32 s41, s2, 14'); a('s_add_u32 s42, s41, 0x2000')
        a('s_cmp_eq_u32 s4, 1'); a('s_cbranch_scc1 L_m1')
        a('s_cmp_eq_u32 s4, 3'); a('s_cbranch_scc1 L_h2')
        a(f'buffer_load_dword v250, v12, {srd(sB)}, s41 offen'); a(f'buffer_load_dword v250, v12, {srd(sB)}, s42 offen')
        a('s_branch L_h2')
        a.label('L_m1')
        a(f'buffer_load_dword v250, v12, {srd(sA)}, s41 offen'); a(f'buffer_load_dword v250, v12, {srd(sA)}, s42 offen')
    a.label('L_h2')
    if opt.get('cpf', False):
        a('s_cmp_lg_u32 s4, 3'); a('s_cbranch_scc1 L_tk')
        if not opt.get('cpf0', 1): a('s_cmp_eq_u32 s3, 0'); a('s_cbranch_scc1 L_tk')
        a(f's_cmp_ge_u32 s40, NCHUNK'); a('s_cbranch_scc1 L_tk')
        a('s_getpc_b64 s[42:43]')
        a('s_and_b32 s42, s42, 0xffffff00')
        a('s_lshl_b32 s40, s40, 13'); a('v_add_u32 v12, s40, v12')
        a('global_load_dword v251, v12, s[42:43]')
    a.label('L_tk')
    a('s_barrier')
    a('ds_read_b32 v3, v4')
    a('v_readfirstlane_b32 s5, v3')
    a('s_cmp_ge_u32 s5, 32')
    a('s_cbranch_scc1 L_over')
    a.label('L_role')
    a('s_cmp_lg_u32 s3, 0')
    a('s_cbranch_scc1 L_worker')
    if opt.get('no_team'): a('s_endpgm')
    def wave0_inc(a, off):
        a(f's_mov_b32 s63, {off}'); a('s_cmp_eq_u32 s4, 0'); a(f's_cselect_b32 s63, s63, 0x7fffff00')
        a('v_mov_b32 v98, 1'); a('s_mov_b64 exec, 1')
        a(f'buffer_atomic_add v98, off, {srd(sDBG)}, s63'); a('s_mov_b64 exec, -1')
    def h0(a, tmp):
        TM.team_consts(a, tmp, opt.get('rs', REP_ST)); TM.team_init1(a, tmp); report(a, 98); return 5
    def h1(a, tmp):
        TM.team_init2(a)
        return 1
    def h3(a, tmp):
        a(f's_add_u32 s63, s5, {DB_TR}'); a('s_cmp_eq_u32 s4, 0'); a('s_cselect_b32 s63, s63, 0x7fffff00')
        a('v_mov_b32 v98, 1'); a('s_mov_b64 exec, 1')
        a(f'buffer_store_byte v98, off, {srd(sDBG)}, s63 sc1'); a('s_mov_b64 exec, -1')
        return 1
    def dbg_ld(a): a(f'buffer_load_dword v92, v93, {srd(sDBG)}, 0 offen sc1')
    def ask(a):
        TM.kv_issue(a, 89); dbg_ld(a)
    def seen(a):
        a('v_readlane_b32 s61, v92, 9'); a('v_readlane_b32 s63, v92, 8')
        a('v_cmp_ne_u32 vcc, 0x01010101, v92')
        a('s_cmp_ge_u32 s63, %d' % (0 if opt.get('dev') else 256)); a('s_cselect_b32 s60, 1, 0')
        a('s_and_b32 s63, vcc_lo, 0xff'); a('s_cselect_b32 s60, 0, s60')
    def judge(a, tag):
        TM.kv_eval(a, 89)
        a(f's_cmp_ge_u32 s{TM.sAV}, 3'); a('s_cselect_b32 s62, s60, 0')
        seen(a)
        a('s_cmp_eq_u32 s62, 0'); a(f's_cbranch_scc1 {tag}')
        TM.team_first_issue(a, 88)
    def h5(a, tmp):
        TM.kv_addr(a, 89)
        assert DB_TR + 32 == DB_READY
        a(f'v_lshrrev_b32 v93, 2, v{TM.L16}'); a(f'v_add_u32 v93, {DB_TR}, v93'); a(f'v_cmp_ge_u32 vcc, {DB_READY}, v93'); a('v_cndmask_b32 v93, 0, v93, vcc')
        dbg_ld(a)
    def h6(a, tmp):
        seen(a); ask(a)
        if opt.get('lpf', 1):
            a('s_getpc_b64 s[64:65]'); a('s_and_b32 s64, s64, 0xffffff80')
            a(f'v_lshlrev_b32 v96, 3, v{TM.L16}'); a('s_lshl_b32 s63, s4, 13'); a('v_add_u32 v96, s63, v96')
            a('global_load_dword v97, v96, s[64:65]')
            return 1
        return 0
    def h7(a, tmp):
        judge(a, 'L_h7n')
        a('s_branch L_h7e')
        a.label('L_h7n')
        ask(a)
        a.label('L_h7e')
        TM.team_warm(a, 100, False)
        return 0
    TM.team_setup(a, opt, {'pre': h0, 1: h1, 3: h3, ('b', 5): h5, 6: h6, 7: h7, 'n6': 3 if opt.get('lpf', 1) else 2})
    if opt.get('timing') or opt.get('stamps'):
        a('s_memrealtime s[92:93]'); a('s_waitcnt lgkmcnt(0)'); a('s_lshl_b32 s91, s92, 1'); a('s_add_u32 s91, s91, s62')
    a('s_cmp_eq_u32 s62, 1'); a('s_cbranch_scc1 L_pre')
    a(f's_mov_b32 s{TM.sSPIN}, 0')
    a('s_branch L_st1')
    a.label('L_st0')
    ask(a)
    a(f's_add_u32 s{TM.sSPIN}, s{TM.sSPIN}, 1'); a(f's_cmp_ge_u32 s{TM.sSPIN}, {SPIN_MAX}'); a('s_cbranch_scc1 L_fail')
    a.label('L_st1')
    a('s_waitcnt vmcnt(0)')
    judge(a, 'L_st0')
    a.label('L_pre')
    TM.team_first_kv(a)
    if opt.get('dbgt') or opt.get('diag'): a('s_memrealtime s[96:97]'); a('s_waitcnt lgkmcnt(0)')
    if opt.get('force_slow'):
        TM.team(a, 'sc1', 'S', opt)
    else:
        a('s_cmp_lt_u32 s61, 32'); a('s_cbranch_scc1 L_tslow')
        TM.team(a, '', 'T', opt)
        a.label('L_tslow')
        if opt.get('noslow'): a('s_endpgm')
        else: TM.team(a, 'sc1', 'S', opt)
    a.label('L_over')
    a('s_barrier')
    a('s_cmp_lg_u32 s4, 0'); a('s_cbranch_scc1 L_ov1')
    a(f'v_mov_b32 v2, {DB_OVF}'); a('v_mov_b32 v3, 1'); a('s_mov_b64 exec, 1')
    a(f'buffer_atomic_add v3, v2, {srd(sDBG)}, 0 offen sc0')
    a('s_waitcnt vmcnt(0)')
    a('ds_write_b32 v4, v3'); a('s_waitcnt lgkmcnt(0)'); a('s_mov_b64 exec, -1')
    a.label('L_ov1')
    a('s_barrier')
    a('ds_read_b32 v3, v4')
    a('v_readfirstlane_b32 s7, v3')
    report(a, 7)
    spin_ready(a, 'L_ov2')
    a('s_mov_b32 s3, 0')
    a.label('L_ov3')
    cnt_off(a, 6, 3)
    a('v_mov_b32 v8, s6')
    a(f'buffer_load_dword v9, v8, {srd(sDBG)}, 0 offen sc1'); a('s_waitcnt vmcnt(0)')
    a('v_readfirstlane_b32 s5, v9')
    a('s_min_u32 s5, s5, 32'); a('s_add_u32 s5, s5, s7')
    a('s_cmp_lt_u32 s5, 32'); a('s_cbranch_scc1 L_role')
    a('s_sub_u32 s7, s5, 32')
    a('s_add_u32 s3, s3, 1'); a('s_cmp_lt_u32 s3, 8'); a('s_cbranch_scc1 L_ov3')
    a('s_branch L_fail')
    a.label('L_worker')
    a('s_sub_u32 s6, s3, 1'); a('s_lshl_b32 s6, s6, 5'); a('s_add_u32 s6, s6, s5')
    def ready_wait(a, tag):
        if not opt.get('dev'):
            a('s_cmp_lg_u32 s4, 0'); a(f's_cbranch_scc1 {tag}_e')
            spin_dbg(a, DB_READY, 256, tag, v=(8, 9), s=(60, 63), sleep=opt.get('rsl', 4))
            a.label(tag + '_e')
    WK.WST[0] = bool(opt.get('timing') or opt.get('stamps'))
    if WK.WST[0]:
        a('s_lshl_b32 s60, s6, 7'); a(f's_add_u32 s60, s60, {WS_DBG + 0x8000:#x}')
        a('v_mov_b32 v8, s90')
        a(f'buffer_store_dword v8, off, {srd(sWS)}, s60')
    def pause(a, tag):
        if opt.get('pause', True) and not opt.get('dev'):
            a('s_cmp_lg_u32 s4, 0'); a(f's_cbranch_scc1 {tag}_e')
            a('v_and_b32 v8, 0x1f0, v0'); a('v_lshrrev_b32 v8, 2, v8')
            WK.spin_ge(a, tag, f'buffer_load_dword v9, v8, {srd(sWS)}, 0 offen offset:{WS_TL} sc1', 1, 9, 1, sleep=8)
            a.label(tag + '_e')
            a('s_barrier')
    WK.PAUSE[0] = pause
    WK.REPORT[0] = report
    WK.OPT.clear(); WK.OPT.update(opt)
    if not opt.get('no_p1'): WK.phase1(a, ready_wait)
    cnt_off(a, 60, 3)
    a('v_mov_b32 v8, s60')
    a(f'buffer_load_dword v9, v8, {srd(sDBG)}, 0 offen sc1'); a('s_waitcnt vmcnt(0)')
    a('v_readfirstlane_b32 s7, v9')
    a('s_cmp_ge_u32 s7, 32'); a(f's_cselect_b32 s7, {0 if opt.get("force_slow") else 1}, 0')
    if not opt.get('no_p2'): WK.phase2(a, opt)
    WK.wstamp(a, 15)
    if opt.get('dbgt'):
        dbgt(a, 7, 20)
        a('s_not_b32 s90, s90'); a('v_mov_b32 v21, s90'); a('s_mov_b64 exec, 1'); a(f'buffer_atomic_umax v21, off, {srd(sDBG)}, 0 offset:16')
    a('s_waitcnt vmcnt(0)')
    a('s_endpgm')
    a.label('L_fail')
    a('s_mov_b64 exec, 1')
    a(f'v_mov_b32 v1, {DB_ERR}'); a('v_mov_b32 v2, 1')
    a(f'buffer_atomic_add v2, v1, {srd(sDBG)}, 0 offen')
    a('s_waitcnt vmcnt(0)')
    a.label('L_exit')
    a('s_endpgm')
    body = pad(auto_lgkm(resolve_waitv(a.lines)), verbose=opt.get('verbose', False))
    if opt.get('a8'):
        body, mis = align8(body, r'T\d_p2ok:', r'T\d_(kvw|redo)', nops=opt['a8'] > 1)
        if opt.get('verbose'): print('misaligned left', mis)
    n_ins = sum(1 for l in body if l.startswith('    '))
    nchunk = 2 if opt.get('noslow') else opt.get('nchunk', 9)
    body = [l.replace('NCHUNK', str(nchunk)) for l in body]
    hdr = [f'; @launch grid=(256,1,1) block=(256,1,1) lds=163840',
           '.amdgcn_target "amdgcn-amd-amdhsa--gfx950"', '.text', f'.globl {kn}', '.p2align 8', f'.type {kn},@function', f'{kn}:']
    ftr = ['.section .rodata,"a"', '.p2align 6', f'.amdhsa_kernel {kn}', '  .amdhsa_next_free_vgpr 512', '  .amdhsa_next_free_sgpr 100',
           '  .amdhsa_accum_offset 256', '  .amdhsa_group_segment_fixed_size 0', '  .amdhsa_kernarg_size 120', '  .amdhsa_user_sgpr_count 2',
           '  .amdhsa_user_sgpr_kernarg_segment_ptr 1', '  .amdhsa_system_sgpr_workgroup_id_x 1', '  .amdhsa_float_denorm_mode_32 3', '.end_amdhsa_kernel']
    return '\n'.join(hdr + body + ftr) + '\n'

if __name__ == '__main__':
    opt = eval(sys.argv[2]) if len(sys.argv) > 2 else {}
    open(sys.argv[1], 'w').write(build(opt))
```

```python
from asmlib import *
from common import *
import math
L_WO, L_K0 = 0, 131072
L_K1 = L_K0 + 8192 + 64
L_QX = L_K1 + 8192 + 64
XS = 288; XSZ = 2304
L_V = L_QX + 3*XSZ
assert L_V + 8192 <= LDS_MISC and L_V % 16 == 0
L16, IDX, POI4 = 0, 1, 2
PST, PUB, XW, QR, OR_, WOB, V4 = range(6, 13)
VMP = V4+2
SELA, ONES, VB, MEMF, KX, ACQ, ACK, ACV = 16, 20, 24, 40, 72, 104, 112, 120
KMR = VB+2
QF = KX
WV = 128
sHALF, sEVEN, sPOI, sPLO, sPHI, sSCL = 32, 34, 36, 37, 38, 39
sSTEP, sSLOT, sSLOTN, sSLOTP, sINB, sINBO, sKV, sKM, sMK, sSPIN, sT0, sT1, sT2, sKS, sTF, sM0, sINB2, sMV, sW2, sHO = range(40, 60)
sKB, sP1, sKD = sTF, sW2, sHO
sI1, sI2 = 37, 38
sPEX = 88
sTL = 53
sFO = 6
sACC = 16
def db(b): return 32*(b >> 2) + 8*(b & 1) + 2*((b >> 1) & 1)
def smf(d, A, B, f='v'): return f'v_smfmac_f32_16x16x64_bf16 {vr(d,4)}, {vr(A,4)}, {vr(B,8,f)}, v{IDX}'
def mf(d, A, B, C='0'): return f'v_mfma_f32_16x16x32_bf16 {vr(d,4)}, {vr(A,4)}, {vr(B,4)}, {C}'
def z2(r): return f'v_mov_b64 {vr(r,2)}, 0'

def slots(a, mfl, plan):
    for i, m in enumerate(mfl):
        a(m)
        fl = plan.pop(i, [])
        for x in fl:
            if not x.startswith('v_') and not x.startswith('>'): a(x)
        for x in fl:
            if x.startswith('v_'): a(x)
        for x in fl:
            if x.startswith('>'): a(x[1:])
    assert not plan, plan

HM = [0]
def heat(a, n, r):
    if HM[0] == 3:
        if n >= 3: a(f's_sleep {(n+1)//4}')
        elif n: a(f's_nop {4*n-1}')
        return
    for i in range(n):
        if HM[0] == 1: a(smf(MEMF+28, KX, 8*(i % 32), 'a'))
        elif HM[0] == 2: a('s_nop 3')
        else: a(f'v_mov_b32 v{r}, v{r}'); a('s_nop 2')

def kx_addr(t0, t1):
    return [f'v_and_b32 v{t0}, 0x310, v{L16}', f'v_and_b32 v{t1}, 0x60, v{L16}', f'v_lshl_add_u32 v{t0}, v{t1}, 1, v{t0}',
            f'v_bfe_u32 v{t1}, v{L16}, 7, 1', f'v_mul_u32_u24 v{t1}, {4096+32}, v{t1}', f'v_add3_u32 v{t0}, v{t0}, v{t1}, s{sKB}']
def kv_reads(t0, MR):
    r = [f'ds_read_b128 {vr(KX+4*j,4)}, v{t0} offset:{(j&3)*1024 + (j>>2)*32}' for j in range(8)]
    r += [f'ds_read_b64 {vr(VB+8*t+4*u,2)}, v{MR} offset:{t*1024 + u*8}' for t in (0, 1) for u in (0, 1)]
    return r
def v_dma():
    WS = srd(sWS)
    return [[f's_mov_b32 m0, s{sMV}', f's_add_u32 s{sT2}, s{sKV}, {WS_VF - WS_KF:#x}'],
            [f'buffer_load_dwordx4 v{L16}, {WS}, s{sT2} offen sc1 lds'],
            [f'buffer_load_dwordx4 v{L16}, {WS}, s{sT2} offen offset:1024 sc1 lds ; vdma']]
def k_dma(adv=True):
    WS = srd(sWS)
    return [[f's_add_u32 m0, s{sMK}, s{sKD}', f's_add_u32 s{sKV}, s{sKV}, {32*8192 if adv else 0:#x}'],
            [f'buffer_load_dwordx4 v{L16}, {WS}, s{sKV} offen sc1 lds'],
            [f'buffer_load_dwordx4 v{L16}, {WS}, s{sKV} offen offset:1024 sc1 lds']]
def xa_set(): return [f's_add_u32 s{sP1}, s{sSLOT}, 0x1000']

DEFAULTS = dict(merge=True, nq=0, qa=(35,35,35,35,36,36,37), ka=(37,37,37,37,38,38,39), b2=43, b3=47, kp=33, vd=(34,36), nops=(33,), fp=41,
                lat=(-1,-1,-1,2,5,8), da=(13,14,18,21,22,26), zb=5, h4b=0, po=(24,30), stp=(11,23,35,47,55), pa0=(0,0,0,0,1,1,2), zin=(1,2,3,3,6,6,7,7), hs=2)
def team(a, sf, tag, opt):
    opt = {**DEFAULTS, **opt}
    HM[0] = opt.get('hm', 0)
    if sf != '' or opt.get('shared'): return team1(a, sf, tag, opt, None)
    for w in range(3):
        a(f's_cmp_eq_u32 s4, {w}'); a(f's_cbranch_scc1 {tag}_full{w}')
    for w in (3, 0, 1, 2):
        if w < 3: a.label(f'{tag}_full{w}')
        o = dict(opt); o.update(opt.get('pw', {}).get(w, {}))
        for k, v in opt.get('stag', {}).items():
            base = o[k]
            o[k] = tuple(x + v*w for x in base) if isinstance(base, tuple) else base + v*w
        team1(a, sf, f'{tag}{w}', o, w)

def team1(a, sf, tag, opt, only):
    stamps = opt.get('stamps', False)
    nstep = opt.get('nstep', 64)
    NST = 14
    def st(i): return [f'{"s_memrealtime" if opt.get("raw") else "s_memtime"} s[{60+2*i}:{61+2*i}] ; nowait'] if stamps else []
    def stamp(i):
        for x in st(i): a(x)
    HT = VB+14
    def stamp_acc():
        if stamps and not opt.get('lacc'):
            a('s_waitcnt lgkmcnt(0)')
            for i in range(NST):
                prev = 98 if i == 0 else 60+2*(i-1)
                if opt.get('raw'):
                    a(f's_cmp_eq_u32 s{sSTEP}, {opt["raw"] + (1 if i < 2 else 0)}')
                    a(f's_cselect_b32 s{sACC+i}, s{60+2*i}, s{sACC+i}')
                else:
                    a(f's_sub_u32 s99, s{60+2*i}, s{prev}')
                    a(f's_add_u32 s{sACC+i}, s{sACC+i}, s99')
                if i % 2 == 0: a(f'v_mov_b32 v{HT}, v{HT}')
            a(f's_mov_b32 s98, s{60+2*(NST-1)}')
    T = lambda n: f'{tag}_{n}'
    WS = srd(sWS)
    IB = MEMF+8; RA = MEMF+16; IT = MEMF+20
    p2 = [f'buffer_load_dwordx4 {vr(MEMF,4)}, v{L16}, {WS}, s{sSLOT} offen sc1',
          f'buffer_load_dwordx4 {vr(MEMF+4,4)}, v{L16}, {WS}, s{sSLOT} offen offset:1024 sc1']
    p1 = [f'buffer_load_dwordx4 {vr(IB,4)}, v{L16}, {WS}, s{sINB2} offen sc1',
          f'buffer_load_dwordx4 {vr(IB+4,4)}, v{L16}, {WS}, s{sINB2} offen offset:1024 sc1']
    def check2():
        b, t = MEMF, VB+10
        a(f'v_max3_u32 v{t}, v{b}, v{b+1}, v{b+2}')
        a(f'v_max3_u32 v{t}, v{t}, v{b+3}, v{b+4}')
        a(f'v_max3_u32 v{t}, v{t}, v{b+5}, v{b+6}')
        a(f'v_max_u32 v{t}, v{t}, v{b+7}')
        a(f'v_cmp_eq_u32 vcc, s{sPOI}, v{t}')
    def redtail():
        for rot in (4, 8):
            for r in range(2): a(f'v_add_f32_dpp v{RA+r}, v{RA+r}, v{RA+r} row_ror:{rot} row_mask:0xf bank_mask:0xf')
        a(f'v_cvt_pk_bf16_f32 v{IT+4}, v{RA}, v{RA+1}')
    def check1():
        t = IT
        a(f'v_max3_u32 v{t}, v{IB}, v{IB+1}, v{IB+2}')
        a(f'v_max3_u32 v{t}, v{t}, v{IB+3}, v{IB+4}')
        a(mf(RA, SELA, IB))
        a(f'v_max3_u32 v{t}, v{t}, v{IB+5}, v{IB+6}')
        a(f'v_max_u32 v{t}, v{t}, v{IB+7}')
        a(mf(RA, SELA, IB+4, vr(RA,4)))
        a(f'v_cmp_eq_u32 vcc, s{sPOI}, v{t}')
        if opt.get('spec', 1): redtail()
    def sample(name, loads, chk, depth, cnt, fill, warm=None, extra=0):
        for i in range(depth - 1):
            for x in loads: a(x)
            fill(i)
        a(T(name) + ': ; keep')
        for x in loads: a(x)
        if warm: a(warm)
        if stamps: a(f's_add_u32 s{sACC+cnt}, s{sACC+cnt}, 1')
        a(f's_add_u32 s{sSPIN}, s{sSPIN}, 1')
        a(f's_cmp_ge_u32 s{sSPIN}, {SPIN_MAX}')
        a('s_cbranch_scc1 L_fail ; keep')
        a(f's_waitcnt vmcnt({len(loads)*(depth-1) + extra})')
        chk()
        a(f's_cbranch_vccnz {T(name)} ; keep')
        a(T(name + 'ok') + ': ; keep')
    if stamps or opt.get('timing', False):
        for i in range(16): a(f's_mov_b32 s{sACC+i}, 0')
        a('s_memtime s[92:93]'); a('s_memrealtime s[94:95]'); a('s_waitcnt lgkmcnt(0)'); a('s_mov_b32 s98, s92')
        for i in range(14 if stamps else 0): a(f's_mov_b32 s{60+2*i}, s92')
    a(f's_mov_b32 s{sSPIN}, 0')
    for x in p2: a(x)
    for x in xa_set(): a(x)
    a('s_waitcnt vmcnt(0)')
    a(T('p2ok') + ': ; keep')
    eb = opt.get('eb', 2)
    Q = lambda k, t: smf(ACQ+4*t, MEMF+4*k, (k*2+t)*8, 'a')
    K = lambda k, t: smf(ACK+4*t, MEMF+4*k, 128+(k*2+t)*8, 'a')
    V = lambda k, t: smf(ACV+4*t, MEMF+4*k, WV+(k*2+t)*8)
    vf = opt.get('vf', 2)
    own = [Q(0,0), Q(0,1), Q(1,0), Q(1,1), K(0,0), K(0,1), K(1,0), K(1,1)] + [V(k, t) for k in range(vf) for t in (0, 1)]
    nq = opt.get('nq', 0)
    qk_ = [f(k, t) for k in range(2, 8-nq) for f in (Q, K) for t in (0, 1)] + [f(k, t) for f in (Q, K) for k in range(8-nq, 8) for t in (0, 1)]
    first = {k: len(own) + qk_.index(Q(k, 0)) for k in range(2, 8)}
    vr_ = [V(k, t) for k in range(vf, 8) for t in (0, 1)]
    S0, S1, SM, P = ACQ, ACQ+4, ACK, ACK+4
    xs = []
    for j in range(4):
        xs.append(mf(S0, KX+4*j, MEMF+4*j, '0' if j == 0 else vr(S0,4)))
        xs.append(mf(S1, KX+16+4*j, MEMF+4*j, '0' if j == 0 else vr(S1,4)))
    ms = [mf(SM, MEMF+16+4*j, MEMF+4*j, '0' if j == 0 else vr(SM,4)) for j in range(4)]
    M = own + qk_ + vr_ + xs + ms
    mld = lambda k: f'buffer_load_dwordx4 {vr(MEMF+4*k,4)}, v{L16}, {WS}, s{sP1 if k >= 4 else sSLOT} offen offset:{(k&3)*1024} sc1'
    def pk(ac): return [f'v_add_f32 v{ac}, v{ac}, v{ac+2}', f'v_add_f32 v{ac+1}, v{ac+1}, v{ac+3}',
                        f'v_add_f32 v{ac+4}, v{ac+4}, v{ac+6}', f'v_add_f32 v{ac+5}, v{ac+5}, v{ac+7}',
                        f'v_cvt_pk_bf16_f32 v{ac+2}, v{ac}, v{ac+4}', f'v_cvt_pk_bf16_f32 v{ac+3}, v{ac+1}, v{ac+5}']
    def xw(ac, off): return [f'ds_write_b32 v{XW}, v{ac+2} offset:{off}', f'ds_write_b32 v{XW}, v{ac+3} offset:{off+XS}']
    plan = {}
    def put(i, *xs_): plan.setdefault(i, []).extend(xs_)
    lat = opt.get('lat', (-1, -1, 0, 3, 6, 9))
    for k in range(2, 2+eb): a(mld(k))
    a(T('p2go') + ': ; keep')
    head0 = len(a.lines)
    hs = opt.get('hs', 0) if only == 0 else 0
    stamp(0)
    for k in range(2+eb, 8):
        if lat[k-2] < 0: a(mld(k))
        else: put(lat[k-2], mld(k))
    a('s_waitcnt lgkmcnt(1)')
    put(1, 's_waitcnt lgkmcnt(0)')
    da = opt.get('da', (13, 14, 16, 17, 18, 20)); po = opt.get('po', (24, 30)); kp = opt.get('kp', 46); fp = opt.get('fp', 27)
    CT = VB+10
    for k in range(2, 8):
        u = first[k] - 1
        put(u, f'waitv v{MEMF+4*k}')
        b = MEMF+4*k
        put(u+1, f'v_max_u32 v{CT}, v{b}, v{b+1}' if k == 2 else f'v_max3_u32 v{CT}, v{CT}, v{b}, v{b+1}')
        put(u+2, f'v_max3_u32 v{CT}, v{CT}, v{b+2}, v{b+3}')
    vd = opt.get('vd', (34, 36))
    assert vd[0] > first[7] + 1
    put(vd[0], f'v_cmp_eq_u32 vcc, s{sPOI}, v{CT}')
    put(vd[1], f's_cbranch_vccnz {T("redo")} ; keep')
    put(opt['stp'][0], *['>'+x for x in st(1)])
    kput = f'buffer_store_dwordx4 {vr(V4,4)}, v{L16}, {WS}, s{sKM} offen sc1'
    put(3, f'v_mov_b32 v{KMR}, v{QR}')
    put(5, f'v_mov_b32_dpp v{KMR}, v{QR} row_shl:4 row_mask:0xf bank_mask:0x2')
    put(7, f'v_mov_b32_dpp v{KMR}, v{QR} row_shr:4 row_mask:0xf bank_mask:0x4')
    put(0, f's_xor_b32 s{sINBO}, s{sINB2}, 0x40000')
    put(3, f's_add_u32 s{sI1}, s{sINB}, 0x1000')
    kd = k_dma()
    kd[0][1] = f's_add_u32 s{sI2}, s{sKV}, {32*8192:#x}'
    kd = [[x.replace(f's{sKV} offen', f's{sI2} offen') for x in g] for g in kd]
    put(42, f's_mov_b32 s{sKV}, s{sI2}')
    for n, xs_ in enumerate(v_dma() + kd): put(da[n], *xs_)
    assert (da[5] < da[0] or da[3] > da[2])
    pst = [f'buffer_store_dwordx4 {vr(POI4,4)}, v{L16}, {WS}, s{sINBO} offen offset:{o} {sf}' for o in (0, 1024)]
    p0 = opt.get('p0') if only is not None else None
    if p0:
        po = (99, 99)
        if only == 0:
            put(1, f's_add_u32 s{sT1}, s{sINBO}, 0x1000')
            for n, i in enumerate(p0):
                put(i, f'buffer_store_dwordx4 {vr(POI4,4)}, v{L16}, {WS}, s{sT1 if n >= 4 else sINBO} offen offset:{(n & 3)*1024} {sf}' + (' ; plast' if n == 7 else ''))
    for n in range(2):
        if po[n] < 60: put(po[n], pst[n])
    put(fp, f'buffer_store_dword v{POI4}, v{PUB}, {WS}, s{sSLOTP} offen {sf}')
    put(kp, kput)
    for i in opt.get('lwm', ()): put(i, f'ds_read_b32 v{VB+2}, v{XW} ; nowait')
    put(opt['stp'][1], *['>'+x for x in st(2)])
    put(opt['stp'][2], *['>'+x for x in st(3)])
    qa = opt.get('qa', (35, 35, 36, 36, 37, 37, 38))
    for n, x in enumerate(pk(ACQ)): put(qa[n], x)
    put(qa[6], *xw(ACQ, 0))
    for i in opt.get('nops', (27, 28, 35)): put(i, 's_nop 1')
    assert qa[6] >= vd[1]
    b2 = opt.get('b2', 42)
    if not opt.get('merge'): put(b2, 's_waitcnt lgkmcnt(0)', 's_barrier')
    qrd = [f'ds_read_b128 {vr(MEMF+4*j,4)}, v{QR} offset:{j*64}' for j in range(4)]
    k0 = opt.get('k0', 39)
    ka = opt.get('ka', tuple(k0+n for n in range(7)))
    pkk = pk(ACK)[:4] + [f'v_cvt_pk_bf16_f32 v{V4}, v{ACK}, v{ACK+4}', f'v_cvt_pk_bf16_f32 v{V4+1}, v{ACK+1}, v{ACK+5}']
    for n, x in enumerate(pkk): put(ka[n], x)
    put(ka[6], *xw(V4-2, XSZ))
    assert kp < ka[4]
    if opt.get('merge'): put(b2, 's_waitcnt lgkmcnt(0)', 's_barrier')
    put(b2, qrd[0]); put(b2+1, qrd[1], qrd[2]); put(b2+2, qrd[3])
    put(opt['stp'][3], *['>'+x for x in st(4)])
    b3 = opt.get('b3', 49)
    if not opt.get('merge'): put(b3, 's_waitcnt lgkmcnt(0)', 's_barrier')
    kmr = [f'ds_read_b128 {vr(MEMF+16+4*j,4)}, v{KMR} offset:{XSZ + j*64}' for j in range(4)]
    put(b3, kmr[0]); put(b3+1, kmr[1], kmr[2]); put(b3+2, kmr[3])
    ac = ACV
    fv = [f'v_add_f32 v{ac}, v{ac}, v{ac+2}', f'v_add_f32 v{ac+1}, v{ac+1}, v{ac+3}',
          f'v_add_f32 v{ac+4}, v{ac+4}, v{ac+6}', f'v_add_f32 v{ac+5}, v{ac+5}, v{ac+7}',
          f'v_cvt_pk_bf16_f32 v{VMP}, v{ac}, v{ac+1}', f'v_cvt_pk_bf16_f32 v{VMP+1}, v{ac+4}, v{ac+5}',
          f'v_cndmask_b32 v{VB+2}, 0, v{VMP}, s[{sEVEN}:{sEVEN+1}]', f'v_cndmask_b32 v{VB+6}, v{VMP}, 0, s[{sEVEN}:{sEVEN+1}]',
          f'v_cndmask_b32 v{VB+10}, 0, v{VMP+1}, s[{sEVEN}:{sEVEN+1}]', f'v_cndmask_b32 v{VB+14}, v{VMP+1}, 0, s[{sEVEN}:{sEVEN+1}]']
    fa = opt.get('fa', (50, 50, 51, 51, 52, 52, 53, 54, 55, 55))
    for x, i in zip(fv, fa): put(i, x)
    put(opt['stp'][4], *['>'+x for x in st(5)])
    order = [(2*ph + t, ks2) for ph in range(4) for ks2 in (0, 1) for t in (0, 1)]
    bufs = ([KX+8*b for b in range(4)] + [MEMF+8*b for b in range(4)]) * 2
    def word(n):
        return [f'ds_read_b128 {vr(bufs[n]+4*hf,4)}, v{WOB} offset:{wo_off(order[n][0], order[n][1], hf)}' for hf in range(2)]
    w2, w3, w4, w5 = word(0), word(1), word(2), word(3)
    put(52, w2[0]); put(53, w4[0]); put(54, w2[1]); put(55, w4[1]); put(56, w3[0]); put(57, w5[0]); put(58, w3[1]); put(59, w5[1])
    put(55, 's_waitcnt lgkmcnt(3)')
    put(56, z2(ACV), z2(ACV+2)); put(57, z2(ACV+4), z2(ACV+6))
    put(58, f'v_max3_f32 v{P}, v{S0}, v{S0+1}, v{S0+2}', f'v_max3_f32 v{P+1}, v{S1}, v{S1+1}, v{S1+2}')
    put(46, f's_cmp_eq_u32 s{sSTEP}, {nstep-1}')
    put(49, 's_waitcnt lgkmcnt(4)')
    fin_at = 54
    put(max(fa[4], fa[5]) + 1, f's_cbranch_scc1 {T("fin")} ; keep')
    if only == 2 or only is None:
        put(opt.get('ts', 28), f'buffer_store_dword v{IDX}, off, {WS}, s{sTL} sc1', f's_mov_b32 s{sTL}, 0x7fffff00')
    akv = opt.get('akv', 1) and only == 1
    if akv:
        fs = opt.get('fs', 28)
        put(fs-1, f's_mov_b32 m0, {L_FL}', f'v_lshrrev_b32 v{VB+6}, 2, v{L16}')
        put(fs, f'buffer_load_dword v{VB+6}, {WS}, s{sFO} offen sc1 lds ; fdma')
        assert fs - 1 > max(da)
    if stamps and opt.get('lacc'):
        seq = list(range(2, 14)) + [0, 1]
        put(12, 's_waitcnt lgkmcnt(0)')
        for n, i in enumerate(seq):
            prev = 98 if n == 0 else 60+2*seq[n-1]
            if opt.get('raw'): put(13 + n*10//14, f's_cmp_eq_u32 s{sSTEP}, {opt["raw"]}', f's_cselect_b32 s{sACC+i}, s{60+2*i}, s{sACC+i}')
            else: put(13 + n*10//14, f's_sub_u32 s99, s{60+2*i}, s{prev}', f's_add_u32 s{sACC+i}, s{sACC+i}, s99')
        put(23, f's_mov_b32 s98, s62')
    drop = opt.get('drop', [])
    for i, m in enumerate(M):
        slots(a, [m], {0: [x for x in plan.pop(i, []) if not any(d in x for d in drop)]})
        if hs and i == hs - 1:
            head = [x for x in a.lines[head0:] if 'lgkmcnt' not in x]
            a(T('mid') + ': ; keep')
    assert not plan
    pre = word(4) + word(5) + word(6) + word(7)
    M0, M1 = SM+2, SM+3
    LS, O = SM, ACV
    ex = [S0, S0+1, S0+2, S0+3, SM, SM+1]
    sm = [f'v_max3_f32 v{P}, v{P}, v{S0+3}, v{S1+3}', f'v_max_f32 v{P}, v{P}, v{P+1}']
    sm += [f'v_cndmask_b32 v{S0+r}, v{S0+r}, v{S1+r}, s[{sHALF}:{sHALF+1}]' for r in range(4)]
    sm += [f'v_max3_f32 v{M0}, v{P}, v{SM}, v{SM+1}', f'v_max3_f32 v{M1}, v{P}, v{SM}, v{SM+1}',
           f'v_permlane32_swap_b32 v{M0}, v{M1}', f'v_max_f32 v{P}, v{M0}, v{M1}', f'v_max_f32 v{P+1}, v{M0}, v{M1}',
           f'v_permlane16_swap_b32 v{P}, v{P+1}', f'v_max_f32 v{M0}, v{P}, v{P+1}', f'v_mul_f32 v{M0}, s{sSCL}, v{M0}']
    sm += [f'v_fma_f32 v{r}, v{r}, s{sSCL}, -v{M0}' for r in ex]
    sm += [f'v_exp_f32 v{r}, v{r}' for r in ex]
    sm += [f'v_cvt_pk_bf16_f32 v{P}, v{S0}, v{S0+1}', f'v_cvt_pk_bf16_f32 v{P+2}, v{S0+2}, v{S0+3}',
           f'v_cvt_pk_bf16_f32 v{P+1}, v{SM}, v{SM+1}', f'v_cvt_pk_bf16_f32 v{P+3}, v{SM}, v{SM+1}']
    sm += [mf(LS, P, ONES), smf(O, P, VB), smf(O+4, P, VB+8)]
    sm += [f'v_add_f32 v{LS}, v{LS}, v{LS+2}', f'v_add_f32 v{LS+1}, v{LS+1}, v{LS+3}', f'v_rcp_f32 v{LS}, v{LS}', f'v_rcp_f32 v{LS+1}, v{LS+1}',
           f'v_pk_add_f32 {vr(O,2)}, {vr(O,2)}, {vr(O+2,2)}', f'v_pk_add_f32 {vr(O+4,2)}, {vr(O+4,2)}, {vr(O+6,2)}',
           f'v_pk_mul_f32 {vr(O,2)}, {vr(O,2)}, {vr(LS,2)}', f'v_pk_mul_f32 {vr(O+4,2)}, {vr(O+4,2)}, {vr(LS,2)}',
           f'v_cvt_pk_bf16_f32 v{O+2}, v{O}, v{O+4}', f'v_cvt_pk_bf16_f32 v{O+3}, v{O+1}, v{O+5}']
    pp = list(opt.get('pp', (7, 10, 29, 30, 31, 31, 32, 32)))
    bp = opt.get('bp', 42)
    n99 = pp.count(99)
    def sm_emit(lo, hi):
        for n in range(lo, hi):
            if n == 6: stamp(6)
            if n == 30: stamp(7)
            a(sm[n])
            for r, q in zip(pre, pp):
                if q == n: a(r)
    sm_emit(0, bp+1)
    def sm_rest():
        sm_emit(bp+1, len(sm))
        for x in xw(O, 2*XSZ): a(x)
        for r, q in zip(pre, pp):
            if q == 99: a(r)
        stamp(8)
    PW = opt.get('pw', {})
    DEF = [dict(er=(14,), n1=2, g1=5, d2=0, n2=3, g2=4), dict(d1=0, n1=2, g1=1, pre=2), dict(d1=0, n1=2, g1=7, pre=1), dict(d1=3, n1=2, g1=7, pre=1)]
    def tailcode(w, gopt):
        nonlocal plan
        opt = dict(gopt); opt.update(DEF[w]); opt.update(PW.get(w, {}))
        if bp < len(sm) - 1 and w < 3: a.nop(max(0, opt.get('bn', 4) - 2*w))
        sm_rest()
        PA = [VB, VB+8, ACQ, ACK]
        if po[0] == 60: a(pst[0])
        zb = opt.get('zb', 4)
        zin = opt.get('zin', (0, 0, 1, 1, 2, 2, 3, 3))
        zs = [z2(VB+2*z) for z in range(4)] + [z2(ACK+2*z) for z in range(4)] + [z2(VB+8+2*z) for z in range(4)] + [z2(ACQ+2*z) for z in range(4)]
        zi = zs[16-len(zin):]; zs = zs[:16-len(zin)]
        for x in zs[:zb]: a(x)
        if p0 and only == 0: a('waitm plast')
        a(f's_waitcnt lgkmcnt({n99})')
        a('s_barrier')
        OA = ACV
        a(f'ds_read_b128 {vr(OA,4)}, v{OR_} offset:{2*XSZ}')
        a(f'ds_read_b128 {vr(OA+4,4)}, v{OR_} offset:{2*XSZ+128}')
        for r, q in zip(pre, pp):
            if q == 100: a(r)
        if po[1] == 61: a(pst[1])
        for x in zs[zb:]: a(x)
        heat(a, opt.get('h4b', 1), VB)
        if opt.get('s9') is None: stamp(9)
        W = [smf(PA[n >> 2]+4*(order[n][0] & 1), OA+4*order[n][1], bufs[n]) for n in range(16)]
        plan = {}
        for x, i in zip(zi, zin): put(i, x)
        if opt.get('s9') is not None: put(opt['s9'], *['>'+x for x in st(9)])
        rd = [x for n in range(8, 16) for x in word(n)]
        at = opt.get('at', [0, 0, 1, 1, 2, 3, 3, 4, 5, 5, 6, 7, 8, 8, 9, 10])
        for n, (x, i) in enumerate(zip(rd, at)):
            assert i >= n // 2
            put(i, x)
        pstore = lambda ph: f'buffer_store_dwordx2 {vr(PA[ph]+2,2)}, v{PST}, {WS}, s{sI1 if ph >= 2 else sINB} offen offset:{(ph&1)*2048} {sf}'
        er = opt.get('er', ())
        for e in er:
            if e < 16: put(e, *[x + f' ; r{e}' for x in p1])
        pa = opt.get('pa', (0, 1, 1, 2, 3, 3, 4))
        pa0 = opt.get('pa0', pa)
        tail = []
        for ph in range(3):
            for x, r in zip(pk(PA[ph]) + [pstore(ph)], pa0 if ph == 0 else pa):
                if 4*(ph+1) + r <= 15: put(4*(ph+1) + r, x)
                else: tail.append(x)
        for i in opt.get('ww', (7, 9, 11, 13)):
            need_n = 2*(i+2-8) + 2
            issued = sum(1 for x in at if x <= i)
            put(i, f's_waitcnt lgkmcnt({issued - need_n})')
        put(0, f's_waitcnt lgkmcnt({sum(1 for x in at if x == 0) + pp.count(100)})')
        slots(a, W, plan)
        if 16 in er:
            for x in p1: a(x + ' ; r16')
        late = [x for x in tail if opt.get('l2') and x.startswith('buffer_store')]
        for x in tail:
            if x not in late: a(x)
        if 17 in er:
            for x in p1: a(x + ' ; r17')
        p = PA[3]
        a(f'v_pk_add_f32 {vr(p,2)}, {vr(p,2)}, {vr(p+2,2)}'); a(f'v_pk_add_f32 {vr(p+4,2)}, {vr(p+4,2)}, {vr(p+6,2)}')
        for x in pk(p)[4:]: a(x)
        if 18 in er:
            for x in p1: a(x + ' ; r18')
        a.nop(opt.get('l2n', 0))
        for x in late: a(x)
        a(pstore(3))
        stamp(10)
        kvr = kv_reads(IT+1, IT+3)
        work = kx_addr(IT+1, IT+2)
        zv = [f'v_add_u32 v{IT+3}, s{sMV}, v{L16}'] + [f'v_mov_b32 v{r}, 0' for r in (VB+3, VB+7, VB+11, VB+15)]
        for z in range(12): work += [kvr[z], z2(ACQ+2*z)] if z < 8 else [z2(ACQ+2*z)]
        nb = opt.get('w0', 12) if er else opt.get('w1', 26)
        sc = [f's_add_u32 s{sSTEP}, s{sSTEP}, 1', f's_xor_b32 s{sT0}, s{sSLOTN}, {2*SLOT_ST:#x}',
              f's_mov_b32 s{sSLOTN}, s{sSLOTP}', f's_mov_b32 s{sSLOTP}, s{sT0}', f's_xor_b32 s{sINB}, s{sINB}, 0x40000',
              f's_add_u32 s{sKM}, s{sKM}, {32*4096:#x}', f's_mov_b32 s{sSPIN}, 0',
              f's_mov_b32 s{sKD}, s{sKB}', f's_sub_u32 s{sKB}, {L_K0 + L_K1}, s{sKB}'] + xa_set()
        a(f's_mov_b32 s{sSLOT}, s{sSLOTN}')
        def part_a():
            for x in work[nb:]: a(x)
            for x in zv: a(x)
            a('waitm vdma' if only is not None else 's_waitcnt vmcnt(4)')
            for x in kvr[8:]: a(x)
        def part_b():
            a(f'v_add_u32 v{HT}, {L_QX + 2*XSZ}, v{L16}')
            for x in sc: a(x)
            a(f's_add_u32 s{sT1}, s{sSTEP}, 2')
            if not opt.get('pre', 0): kvc()
        def kvc():
            if w != 1: return
            if akv:
                t = MEMF+26
                kv_lane(a, t)
                a(f'v_add_u32 v{t}, {L_FL}, v{t}')
                a(f'ds_read_b32 v{t+1}, v{t}')
                kv_eval(a, t)
            a(f's_cmp_ge_u32 s{sT1}, s{sAV}')
            a(f's_cbranch_scc1 {T("kvw%d" % w)} ; keep')
            a(T('kvo%d' % w) + ': ; keep')
        pre_ = opt.get('pre', 0)
        stamp(11)
        if er:
            def fill(i):
                if i == 0:
                    for x in work[:nb]: a(x)
                if i == opt['n1'] - 2:
                    for e in er[opt.get('ec', 0):]:
                        a(f'waitm r{e}')
                        check1()
                        a(f's_cbranch_vccz {T("s1w%dok" % w)} ; keep')
                elif i: heat(a, opt['g1'], IT)
        else:
            for x in work[:nb]: a(x)
            if pre_ == 1: part_a(); part_b()
            heat(a, opt.get('d1', 0), IT)
            def fill(i):
                if pre_ == 2 and i == 0: part_a(); part_b()
                heat(a, opt['g1'], IT)
        sample('s1w%d' % w, p1, check1, opt['n1'], 14, fill)
        if not opt.get('spec', 1): redtail()
        a(f'buffer_store_dword v{IT+4}, v{PUB}, {WS}, s{sSLOT} offen {sf}')
        a(f's_xor_b32 s{sINB2}, s{sINB2}, 0x40000')
        if pre_: kvc()
        stamp(12)
        if not opt.get('s13'): stamp(13)
        dl = opt.get('dl', 0)
        if w == 0:
            if dl: a(f's_mov_b32 m0, {L_QX + 2*XSZ}')
            parts = [part_a, part_b, stamp_acc]
            pre_n = opt.get('pn', 1)
            for f in parts[:pre_n]: f()
            parts = parts[pre_n:]
            heat(a, opt.get('d2', 0), VB+6)
            def fill2(i):
                if parts and (parts[0] is not stamp_acc or stamps): parts.pop(0)()
                else: heat(a, opt['g2'], VB+6)
                if i == opt['n2'] - 2:
                    while parts: parts.pop(0)()
                    if dl: a('s_waitcnt lgkmcnt(0)')
            if dl:
                p2d = p2 + [f'buffer_load_dwordx4 v{L16}, {WS}, s{sSLOT} offen offset:{o} sc1 lds' for o in (0, 1024)]
                def chk2():
                    check2()
                    a(f's_waitcnt vmcnt({4*(opt["n2"]-1)})')
                sample('s2', p2d, chk2, opt['n2'], 15, fill2, extra=2)
                a('s_barrier')
                for k in range(2, 2+eb): a(mld(k))
            else:
                def chk2():
                    check2()
                    if opt.get('spec2', 0):
                        a(f'ds_write_b128 v{HT}, {vr(MEMF,4)}')
                        a(f'ds_write_b128 v{HT}, {vr(MEMF+4,4)} offset:1024')
                sample('s2', p2, chk2, opt['n2'], 15, fill2)
                if opt.get('s13'): stamp(13)
                if eb: a('s_barrier')
                if not opt.get('spec2', 0):
                    a(f'ds_write_b128 v{HT}, {vr(MEMF,4)}')
                    a(f'ds_write_b128 v{HT}, {vr(MEMF+4,4)} offset:1024')
                for k in range(2, 2+eb): a(mld(k))
                if hs:
                    for x in head: a(x)
                a('s_waitcnt lgkmcnt(0)')
                a('s_barrier')
                if hs: a(f's_branch {T("mid")} ; keep')
        else:
            if not pre_: part_a(); part_b()
            stamp_acc()
            if opt.get('series') and w == 1:
                a('s_memrealtime s[60:61]'); a(f's_lshl_b32 s62, s5, 8'); a(f's_lshl_b32 s63, s{sSTEP}, 2'); a('s_add_u32 s62, s62, s63'); a(f's_add_u32 s62, s62, {WS_DBG+0x10000:#x}')
                a(f'v_mov_b32 v{VB+6}, s60'); a(f'buffer_store_dword v{VB+6}, off, {WS}, s62')
            a('s_waitcnt lgkmcnt(0)')
            if opt.get('s13'): stamp(13)
            if eb and not dl:
                a('s_barrier')
                for k in range(2, 2+eb): a(mld(k))
            a('s_barrier')
            a(f'ds_read_b128 {vr(MEMF,4)}, v{HT}')
            a(f'ds_read_b128 {vr(MEMF+4,4)}, v{HT} offset:1024')
            if dl:
                for k in range(2, 2+eb): a(mld(k))
        a(f's_branch {T("p2go")} ; keep')
        a('s_waitcnt lgkmcnt(0)')
        if w == 1:
            a.label(T('kvw%d' % w))
            kv_wait(a, T('kvl%d' % w), sT1, MEMF+26)
            a(f's_branch {T("kvo%d" % w)}')
    if only is not None:
        tailcode(only, opt)
    else:
        for w in range(3):
            a(f's_cmp_eq_u32 s4, {w}'); a(f's_cbranch_scc1 {T("w%d" % w)} ; keep')
        tailcode(3, opt)
        for w in range(3):
            a('s_waitcnt lgkmcnt(0)')
            a.label(T('w%d' % w)); tailcode(w, opt)
    a('s_waitcnt lgkmcnt(0)')
    a.label(T('redo'))
    if stamps: a(f's_add_u32 s{sACC+15}, s{sACC+15}, 0x10000')
    a(f's_add_u32 s{sSPIN}, s{sSPIN}, 1'); a(f's_cmp_ge_u32 s{sSPIN}, {SPIN_MAX}'); a('s_cbranch_scc1 L_fail')
    a('s_nop 7')
    for z in range(12): a(z2(ACQ+2*z))
    a(f's_branch {T("p2ok")}')
    a.label(T('fin'))
    a('s_waitcnt lgkmcnt(0)')
    a(f's_add_u32 s{sKM}, s{sKM}, {32*4096:#x}')
    a(kput)
    if opt.get('dbgt'):
        DBGT(a, 6, VB)
        a(f'v_mov_b32 v{VB+1}, s96'); a('s_mov_b64 exec, 1'); a(f'buffer_atomic_umax v{VB+1}, off, {srd(sDBG)}, 0 offset:20')
    if stamps or opt.get('timing', False):
        a('s_memtime s[60:61]'); a('s_memrealtime s[96:97]'); a('s_waitcnt lgkmcnt(0)')
        a('s_sub_u32 s92, s60, s92'); a('s_sub_u32 s93, s96, s94')
        a(f's_lshl_b32 s{sT0}, s5, 2'); a(f's_add_u32 s{sT0}, s{sT0}, s4'); a(f's_lshl_b32 s{sT0}, s{sT0}, 7'); a(f's_add_u32 s{sT0}, s{sT0}, {WS_DBG:#x}')
        vals = [92, 93, 94, 96, 90] + [sACC+i for i in range(16)] + [91] + ([70+2*i for i in range(9)] if opt.get('ustamp') else [])
        for i, s in enumerate(vals):
            a(f'v_mov_b32 v{VB}, s{s}')
            a(f'buffer_store_dword v{VB}, off, {WS}, s{sT0} offset:{4*i}')
    a('s_waitcnt vmcnt(0)')
    a('s_endpgm')

def wo_off(Tt, ks2, hf): return (Tt >> 2)*32768 + (ks2*2 + hf)*4096 + (Tt & 3)*1024

def team_setup(a, opt, hooks):
    if opt.get('ustamp'): a('s_memrealtime s[70:71]')
    load_srd(a, sA, 'Wq'); load_srd(a, sB, 'Wk'); load_srd(a, sC, 'Wv'); load_srd(a, sD, 'Wo')
    lane, c, g, t0, t1, va, vo, rA, rB, r8 = 100, 101, 102, 103, 104, 105, 106, 107, 109, 110
    a(f'v_and_b32 v{lane}, 63, v0')
    a(f'v_bfe_u32 v{t0}, v{lane}, 4, 1'); a(f'v_lshlrev_b32 v{vo}, 4, v{t0}')
    a(f'v_bfe_u32 v{t0}, v{lane}, 3, 1'); a(f'v_lshl_add_u32 v{vo}, v{t0}, 2, v{vo}')
    a(f'v_lshrrev_b32 v{t0}, 5, v{lane}'); a(f'v_add_u32 v{vo}, v{vo}, v{t0}')
    a(f'v_and_b32 v{t1}, 7, v{lane}'); a(f'v_lshlrev_b32 v{t1}, 4, v{t1}')
    if opt.get('swz', 1): a(f'v_and_b32 v{t0}, 8, v{lane}'); a(f'v_lshlrev_b32 v{t0}, 3, v{t0}'); a(f'v_xor_b32 v{t1}, v{t1}, v{t0}')
    a(f's_lshr_b32 s{sT2}, s4, 1'); a(f's_lshl_b32 s{sT0}, s5, 8'); a(f's_lshl_b32 s{sT1}, s{sT2}, 7'); a(f's_add_u32 s{sT0}, s{sT0}, s{sT1}')
    a(f'v_lshl_add_u32 v{va}, v{vo}, 13, v{t1}'); a(f'v_add_u32 v{va}, s{sT0}, v{va}')
    a(f's_lshl_b32 s{sW2}, s4, 20'); a(f's_and_b32 s{sW2}, s{sW2}, 0x100000')
    a(f's_lshl_b32 s{sTF}, s{sT2}, 16'); a(f's_and_b32 s{sT2}, s4, 1'); a(f's_lshl_b32 s{sT1}, s{sT2}, 14'); a(f's_add_u32 s{sTF}, s{sTF}, s{sT1}')
    a('s_waitcnt lgkmcnt(0)')
    units = []
    B0 = 24
    def qkv(S, dstf):
        for U in range(2):
            h = (len(units) & 1)*32768
            iss, rd, tr = [], [], []
            for j in range(2):
                for b in range(8):
                    iss += [f's_add_u32 m0, s{sTF}, {h + (j*8+b)*1024}', f's_xor_b32 s{sT1}, s{sW2}, {((4*U+j) << 19) + db(b)*8192:#x}',
                            f'buffer_load_dwordx4 v{va}, {srd(S)}, s{sT1} offen {opt.get("wf", "")} lds']
            for jj in range(4):
                for b in range(8):
                    r = B0 + (jj*8+b)*2; o = (h + ((jj & 1)*8+b)*1024) // 256
                    rd.append(f'ds_read2st64_b32 {vr(r,2)}, v{rB if jj >= 2 else rA} offset0:{o} offset1:{o+2}')
                    for t, sel in ((0, sPLO), (1, sPHI)):
                        kind, d = dstf(4*U+jj, t, b)
                        if kind == 'v': tr.append(f'v_perm_b32 v{d}, v{r+1}, v{r}, s{sel}')
                        else: tr += [f'v_perm_b32 v{124+t}, v{r+1}, v{r}, s{sel}', f'v_accvgpr_write_b32 a{d}, v{124+t}']
            units.append((iss, rd, tr))
    OUT = 112
    def wo():
        for cq in range(2):
            assert (len(units) & 1) == cq
            h = cq*32768
            iss, rd, tr = [], [], []
            for ks2 in range(2):
                for b in range(8):
                    sl = ks2*8 + b
                    iss += [f's_add_u32 m0, s{sTF}, {h + sl*1024}', f's_add_u32 s{sT1}, s{sHO}, {(64*ks2 + db(b))*1024 + cq*512:#x}',
                            f'buffer_load_dwordx4 v{vo}, {srd(sD)}, s{sT1} offen {opt.get("wf", "")} lds']
                    r = B0 + sl*4; o = (h + sl*1024) // 256
                    rd += [f'ds_read2st64_b32 {vr(r+2*pl,2)}, v{r8+pl} offset0:{o} offset1:{o+2}' for pl in range(2)]
                    ob = OUT if sl < 4 else B0 + (sl//4 - 1)*16
                    tr += [f'v_perm_b32 v{ob+4*i+(b&3)}, v{r+2*(i>>1)+1}, v{r+2*(i>>1)}, s{sPHI if i&1 else sPLO}' for i in range(4)]
                    if (b & 3) == 3:
                        tr += [f'ds_write_b128 v{WOB}, {vr(ob+4*i,4)} offset:{wo_off(4*cq+i, ks2, b >> 2)}' for i in range(4)]
            tr += ['s_waitcnt lgkmcnt(0)']
            units.append((iss, rd, tr))
    for ch in opt.get('worder', 'qkv'):
        if ch == 'q': qkv(sA, lambda k, t, b: ('a', (k*2+t)*8+b))
        if ch == 'k': qkv(sB, lambda k, t, b: ('a', 128+(k*2+t)*8+b))
        if ch == 'v': qkv(sC, lambda k, t, b: ('v', WV+(k*2+t)*8+b))
    wo()
    for x in units[0][0]: a(x)
    if not opt.get('wm', 0):
        for x in units[1][0]: a(x)
    a(f'v_and_b32 v{c}, 15, v{lane}'); a(f'v_lshrrev_b32 v{g}, 4, v{lane}'); a(f'v_lshlrev_b32 v{L16}, 4, v{lane}')
    a(f's_mov_b32 s{sPLO}, 0x05040100'); a(f's_mov_b32 s{sPHI}, 0x07060302')
    a(f's_lshl_b32 s{sHO}, s5, 17')
    a(f'v_add_u32 v{WOB}, s{sTF}, v{L16}')
    a(f'v_lshlrev_b32 v{rA}, 7, v{g}'); a(f'v_lshl_add_u32 v{rA}, v{c}, 2, v{rA}'); a(f's_lshl_b32 s{sT1}, s{sT2}, 6'); a(f's_add_u32 s{sT1}, s{sT1}, s{sTF}')
    a(f's_and_b32 s{sT1}, s{sT1}, 0xffffbfff')
    a(f'v_add_u32 v{rA}, s{sT1}, v{rA}')
    if opt.get('swz', 1): a(f'v_and_b32 v{t0}, 1, v{g}'); a(f'v_lshlrev_b32 v{t0}, 6, v{t0}'); a(f'v_xor_b32 v{rA}, v{rA}, v{t0}')
    a(f'v_add_u32 v{rB}, 0x4000, v{rA}')
    a(f'v_and_b32 v{r8}, 0xffffffe3, v{rA}'); a(f'v_and_b32 v{t0}, 1, v{c}'); a(f'v_lshl_add_u32 v{r8}, v{t0}, 4, v{r8}')
    a(f'v_and_b32 v{t0}, 6, v{c}'); a(f'v_lshl_add_u32 v{r8}, v{t0}, 1, v{r8}'); a(f'v_add_u32 v{r8+1}, 0x4000, v{r8}')
    a(f'v_lshl_add_u32 v{vo}, v{vo}, 10, v{t1}'); a(f's_lshl_b32 s{sT0}, s{sT2}, 8'); a(f's_lshr_b32 s{sT1}, s4, 1'); a(f's_lshl_b32 s{sT1}, s{sT1}, 7')
    a(f's_add_u32 s{sT0}, s{sT0}, s{sT1}'); a(f'v_add_u32 v{vo}, s{sT0}, v{vo}')
    tmp = (lane, c, g, t0, t1)
    young = hooks['pre'](a, tmp)
    if opt.get('wm', 0):
        for n in range(16):
            a(f's_waitcnt vmcnt({opt["wm"]-1+young})')
            for x in units[1][0][3*n:3*n+3]: a(x)
    for U in range(8):
        if U == 7 and opt.get('sl', 0):
            rd, tr = units[7][1], units[7][2]
            h = (len(tr) - 1) // 2
            a(f's_waitcnt vmcnt({8 + hooks["n6"]})')
            a('s_barrier')
            for x in rd[:16]: a(x)
            a('s_waitcnt lgkmcnt(0)')
            a('s_barrier')
            for x in tr[:h]: a(x)
            units[7] = (None, rd[16:], tr[h:])
        a(f's_waitcnt vmcnt({(16 if U < 7 else 0) + young})')
        if opt.get('ustamp'): a(f's_memrealtime s[{72+2*U}:{73+2*U}]')
        a('s_barrier')
        for x in units[U][1]: a(x)
        a('s_waitcnt lgkmcnt(0)')
        a('s_barrier')
        if ('b', U) in hooks: hooks[('b', U)](a, tmp)
        wm = opt.get('wm', 0)
        tr = units[U][2]
        if U + 2 < 8 and wm:
            iss = units[U+2][0]; per = -(-len(tr) // 16)
            for n in range(16):
                a(f's_waitcnt vmcnt({wm-1})')
                for x in iss[3*n:3*n+3]: a(x)
                for x in tr[per*n:per*(n+1)]: a(x)
            tr = []
        elif U + 2 < 8:
            for x in units[U+2][0]: a(x)
        young = hooks[U](a, tmp) if U in hooks else 0
        for x in tr: a(x)

def stream(a, items, RING0, RN, maxload=60, older=0, hooks={}):
    n = len(items)
    pos = []; head = 0
    issued = 0; consumed = 0
    used = 0; infl = 0
    alloc = {}
    while consumed < n:
        while issued < n:
            iss, nl, nr, con = items[issued]
            h = head
            waste = 0
            if h + nr > RN: waste = RN - h; h = 0
            if used + waste + nr > RN or infl + nl > (maxload - older if consumed == 0 else maxload): break
            alloc[issued] = (h, waste + nr)
            for x in iss(RING0 + h): a(x)
            head = h + nr; used += waste + nr; infl += nl; issued += 1
        if consumed in hooks: hooks[consumed](a)
        iss, nl, nr, con = items[consumed]
        infl -= nl
        a(f's_waitcnt vmcnt({infl})')
        for x in con(RING0 + alloc[consumed][0]): a(x)
        used -= alloc[consumed][1]
        consumed += 1

def team_consts(a, tmp, RS=REP_ST):
    lane, c, g, t0, t1 = tmp
    a(f's_mov_b32 s{sPOI}, {POISON:#x}')
    scl = (128 ** -0.5) * math.log2(math.e)
    import struct
    a(f's_mov_b32 s{sSCL}, {struct.unpack("<I", struct.pack("<f", scl))[0]:#x}')
    a(f's_mov_b32 s{sHALF}, 0xcccccccc'); a(f's_mov_b32 s{sHALF+1}, 0xcccccccc')
    a(f's_mov_b32 s{sPEX}, 0x000f000f'); a(f's_mov_b32 s{sPEX+1}, 0x000f000f')
    a(f's_lshr_b32 s{sFO}, s5, 1'); a(f's_lshl_b32 s{sFO}, s{sFO}, 6'); a(f's_add_u32 s{sFO}, s{sFO}, {WS_PF}')
    a(f's_mov_b32 s{sEVEN}, 0x0000ffff'); a(f's_mov_b32 s{sEVEN+1}, 0x0000ffff')
    a(f'v_mov_b32 v{t0}, 0x4444'); a(f'v_mov_b32 v{t1}, 0xeeee')
    a(f'v_cndmask_b32 v{IDX}, v{t0}, v{t1}, s[{sHALF}:{sHALF+1}]')
    a(f's_lshl_b32 s{sM0}, s4, 11')
    a(f's_lshl_b32 s{sKS}, s4, 6')
    for r in range(4): a(f'v_mov_b32 v{POI4+r}, s{sPOI}')
    a(f's_lshl_b32 s{sT0}, s4, 16'); a(f's_lshl_b32 s{sT1}, s5, 6'); a(f's_add_u32 s{sT0}, s{sT0}, s{sT1}')
    a(f'v_lshrrev_b32 v{t0}, 3, v{lane}'); a(f'v_lshlrev_b32 v{t0}, 13, v{t0}')
    a(f'v_and_b32 v{t1}, 7, v{c}'); a(f'v_lshl_add_u32 v{t0}, v{t1}, 3, v{t0}'); a(f'v_add_u32 v{PST}, s{sT0}, v{t0}')
    a(f's_lshr_b32 s{sT0}, s5, 3'); a(f's_lshl_b32 s{sT0}, s{sT0}, 9'); a(f's_add_u32 s{sT0}, s{sT0}, s{sM0}')
    a(f's_and_b32 s{sT1}, s5, 1'); a(f's_lshl_b32 s{sT1}, s{sT1}, 8'); a(f's_add_u32 s{sT0}, s{sT0}, s{sT1}')
    a(f's_and_b32 s{sT1}, s5, 6'); a(f's_lshl_b32 s{sT1}, s{sT1}, 5'); a(f's_add_u32 s{sT0}, s{sT0}, s{sT1}')
    a(f'v_and_b32 v{t0}, 3, v{c}'); a(f'v_lshlrev_b32 v{t0}, 2, v{t0}'); a(f'v_lshl_add_u32 v{t0}, v{g}, 4, v{t0}'); a(f'v_add_u32 v{t0}, s{sT0}, v{t0}')
    a(f'v_and_b32 v{t1}, 1, v{c}')
    if RS: a(f'v_lshrrev_b32 v{PUB}, 2, v{c}'); a(f'v_mul_u32_u24 v{PUB}, {RS}, v{PUB}'); a(f'v_add_u32 v{PUB}, v{PUB}, v{t0}')
    else: a(f'v_mov_b32 v{PUB}, 0x7fffff00'); a(f'v_cmp_gt_u32 vcc, 4, v{c}'); a(f'v_cndmask_b32 v{PUB}, v{PUB}, v{t0}, vcc')
    a(f'v_mul_u32_u24 v{t0}, {2*XS}, v{g}'); a(f'v_lshl_add_u32 v{t0}, v{c}, 2, v{t0}'); a(f'v_add_u32 v{t0}, s{sKS}, v{t0}')
    a(f'v_add_u32 v{XW}, {L_QX}, v{t0}')
    mm = 108
    a(f'v_lshrrev_b32 v{mm}, 2, v{c}'); a(f'v_lshl_add_u32 v{mm}, v{mm}, 1, v{t1}')
    a(f'v_mul_u32_u24 v{t0}, {XS}, v{mm}'); a(f'v_add_u32 v{t0}, {L_QX}, v{t0}')
    a(f'v_lshl_add_u32 v{QR}, v{g}, 4, v{t0}')
    a(f'v_lshl_add_u32 v{OR_}, v{g}, 5, v{t0}'); a(f'v_and_b32 v{mm}, 2, v{c}'); a(f'v_lshl_add_u32 v{OR_}, v{mm}, 3, v{OR_}')
    a(f'v_mov_b32 v{t0}, 0x3f80'); a(f'v_lshlrev_b32 v{mm}, 4, v{t1}'); a(f'v_lshlrev_b32 v{t0}, v{mm}, v{t0}')
    a(f'v_lshrrev_b32 v{mm}, 1, v{c}')
    for r in range(4):
        a(f'v_cmp_eq_u32 vcc, {2*r}, v{mm}'); a(f'v_cndmask_b32 v{SELA+r}, 0, v{t0}, vcc')
    a(f'v_mov_b32 v{ONES}, 0x3f803f80'); a(f'v_mov_b32 v{ONES+1}, 0x3e803e80'); a(f'v_mov_b32 v{ONES+2}, 0x3f803f80'); a(f'v_mov_b32 v{ONES+3}, 0x3e803e80')
    a(f's_mov_b32 s{sSTEP}, 0')
    a(f's_mov_b32 s{sSLOT}, {WS_SLOT:#x}'); a(f's_mov_b32 s{sSLOTN}, {WS_SLOT+SLOT_ST:#x}'); a(f's_mov_b32 s{sSLOTP}, {WS_SLOT+2*SLOT_ST:#x}')
    a(f's_mov_b32 s{sINB}, {WS_INB:#x}')
    a(f's_lshl_b32 s{sINB2}, s5, 13'); a(f's_add_u32 s{sINB2}, s{sINB2}, s{sM0}'); a(f's_add_u32 s{sINB2}, s{sINB2}, {WS_INB:#x}')
    a(f's_lshl_b32 s{sKV}, s5, 13'); a(f's_add_u32 s{sKV}, s{sKV}, {WS_KF:#x}')
    a(f's_lshl_b32 s{sKM}, s5, 12'); a(f's_lshl_b32 s{sT0}, s4, 10'); a(f's_add_u32 s{sKM}, s{sKM}, s{sT0}'); a(f's_add_u32 s{sKM}, s{sKM}, {WS_KM - 32*4096:#x}')
    a(f's_add_u32 s{sKV}, s{sKV}, s{sM0}')
    a(f's_lshr_b32 s{sT0}, s4, 1'); a(f's_lshl_b32 s{sT0}, s{sT0}, 5'); a(f's_add_u32 s{sMK}, s{sM0}, s{sT0}')
    a(f's_add_u32 s{sMV}, s{sM0}, {L_V}')

def team_init1(a, tmp):
    lane, c, g, t0, t1 = tmp
    WS = srd(sWS)
    load_srd(a, 64, 'mem0')
    for o in (0, 1024):
        a(f'buffer_store_dwordx4 {vr(POI4,4)}, v{L16}, {WS}, s{sINB2} offen offset:{o} sc1')
    a(f's_and_b32 s{sT0}, s5, 6'); a(f's_lshl_b32 s{sT0}, s{sT0}, 10'); a(f's_lshr_b32 s{sT1}, s5, 3'); a(f's_lshl_b32 s{sT1}, s{sT1}, 6')
    a(f's_add_u32 s{sT0}, s{sT0}, s{sT1}'); a(f's_lshl_b32 s{sT1}, s4, 8'); a(f's_add_u32 s{sT0}, s{sT0}, s{sT1}')
    a(f's_and_b32 s{sT1}, s5, 1'); a(f's_lshl_b32 s{sT1}, s{sT1}, 5'); a(f's_add_u32 s{sT0}, s{sT0}, s{sT1}')
    a(f'v_and_b32 v{t0}, 1, v{g}'); a(f'v_lshlrev_b32 v{t0}, 10, v{t0}'); a(f'v_and_b32 v{t1}, 3, v{c}'); a(f'v_lshl_add_u32 v{t0}, v{t1}, 2, v{t0}')
    a(f'v_lshrrev_b32 v{t1}, 1, v{g}'); a(f'v_lshl_add_u32 v{t0}, v{t1}, 4, v{t0}')
    a('s_waitcnt lgkmcnt(0)')
    a(f'buffer_load_dword v99, v{t0}, {srd(64)}, s{sT0} offen')
    a(f'buffer_store_dword v{POI4}, v{PUB}, {WS}, s{sSLOTN} offen sc1')
def team_init2(a):
    a(f's_mov_b32 s{sT0}, {WS_SLOT:#x}')
    a(f'buffer_store_dword v99, v{PUB}, {srd(sWS)}, s{sT0} offen sc1')

sAV = 7
L_FL = L_V + 8192
assert L_FL + 256 <= LDS_MISC
def kv_lane(a, t):
    a(f'v_bfe_u32 v{t+2}, v{L16}, 4, 3'); a(f'v_min_u32 v{t+2}, 6, v{t+2}')
    a(f'v_bfe_u32 v{t}, v{L16}, 7, 1'); a(f'v_lshl_add_u32 v{t}, v{t}, 3, v{t+2}'); a(f'v_lshlrev_b32 v{t}, 2, v{t}')
def kv_addr(a, t): kv_lane(a, t)
def kv_issue(a, t): a(f'buffer_load_dword v{t+1}, v{t}, {srd(sWS)}, s{sFO} offen sc1')
def kv_eval(a, t):
    a(f'v_mad_u32_u24 v{t+1}, v{t+1}, 7, v{t+2}')
    for rot in (8, 4, 2, 1): a(f'v_min_u32_dpp v{t+1}, v{t+1}, v{t+1} row_ror:{rot} row_mask:0xf bank_mask:0xf')
    a(f'v_readfirstlane_b32 s{sAV}, v{t+1}')
def kv_wait(a, tag, need_s, t):
    kv_addr(a, t)
    a(f's_mov_b32 s{sSPIN}, 0')
    a.label(tag)
    kv_issue(a, t)
    a('s_waitcnt vmcnt(0)')
    kv_eval(a, t)
    a(f's_add_u32 s{sSPIN}, s{sSPIN}, 1'); a(f's_cmp_ge_u32 s{sSPIN}, {SPIN_MAX}'); a('s_cbranch_scc1 L_fail')
    a(f's_cmp_ge_u32 s{need_s}, s{sAV}')
    a(f's_cbranch_scc1 {tag}')
    a(f's_mov_b32 s{sSPIN}, 0')

def team_first_issue(a, d):
    a(f's_mov_b32 s{sKB}, {L_K0}'); a(f's_mov_b32 s{sKD}, {L_K0}')
    for g in k_dma(False) + v_dma() + [[f's_mov_b32 s{sKD}, {L_K1}']] + k_dma():
        for x in g: a(x)

def team_warm(a, d, tlb=True):
    if tlb:
        a(f'v_lshlrev_b32 v{d+1}, 16, v{L16}'); a(f's_mov_b32 s{sT2}, 0x600000')
        a(f'buffer_load_dword v{d}, v{d+1}, {srd(sWS)}, s{sT2} offen sc1')
    a(f's_and_b32 s{sT2}, s5, 3'); a(f's_lshl_b32 s{sT2}, s{sT2}, 11'); a(f's_mul_i32 s{sT0}, s4, {SLOT_ST:#x}'); a(f's_add_u32 s{sT2}, s{sT2}, s{sT0}'); a(f's_add_u32 s{sT2}, s{sT2}, {WS_SLOT:#x}')
    a(f's_xor_b32 s{sT0}, s{sINB2}, 0x40000')
    for so in (sT2, sINB2, sT0):
        for o in (0, 1024): a(f'buffer_load_dwordx4 {vr(d,4)}, v{L16}, {srd(sWS)}, s{so} offen offset:{o} sc1')

def team_first_kv(a):
    a(f's_lshl_b32 s{sTL}, s5, 2'); a(f's_add_u32 s{sTL}, s{sTL}, {WS_TL}')
    for x in kx_addr(MEMF+21, MEMF+22): a(x)
    for z in range(12): a(z2(ACQ+2*z))
    a('s_waitcnt vmcnt(0)')
    a('s_barrier')
    a(f'v_add_u32 v{MEMF+23}, s{sMV}, v{L16}')
    for r in (VB+3, VB+7, VB+11, VB+15): a(f'v_mov_b32 v{r}, 0')
    for x in kv_reads(MEMF+21, MEMF+23): a(x)
    a(f's_mov_b32 s{sKB}, {L_K1}'); a(f's_mov_b32 s{sKD}, {L_K0}')
    a('s_waitcnt lgkmcnt(0)')
```

```python
import sys, gen
T = 'cdna_kernels/' + gen.NAME + '.s'
ref = open(T + '.ref').read().split('\n')
hdr = [l for l in ref[:ref.index('.amdgcn_target "amdgcn-amd-amdhsa--gfx950"')] if '@launch' not in l]
opt = eval(sys.argv[1]) if len(sys.argv) > 1 else {}
out = sys.argv[2] if len(sys.argv) > 2 else T
DOC = """; Design (generated by the author's own scripts; one persistent launch, 256 workgroups, one per CU):
;    team's k/v records, output projection and the final mix."""
src = gen.build(opt).split('\n', 1)
open(out, 'w').write('\n'.join(hdr) + '\n' + src[0] + '\n' + DOC + '\n' + src[1])
```

```python
from asmlib import *
from common import *
import math
L_WO, L_K0 = 0, 131072
L_K1 = L_K0 + 8192 + 64
L_QX = L_K1 + 8192 + 64
XS = 288; XSZ = 2304
L_V = L_QX + 3*XSZ
assert L_V + 8192 <= LDS_MISC and L_V % 16 == 0
L16, IDX, POI4 = 0, 1, 2
PST, PUB, XW, QR, OR_, WOB, V4 = range(6, 13)
VMP = V4+2
SELA, ONES, VB, MEMF, KX, ACQ, ACK, ACV = 16, 20, 24, 40, 72, 104, 112, 120
KMR = VB+2
QF = KX
WV = 128
sHALF, sEVEN, sPOI, sPLO, sPHI, sSCL = 32, 34, 36, 37, 38, 39
sSTEP, sSLOT, sSLOTN, sSLOTP, sINB, sINBO, sKV, sKM, sMK, sSPIN, sT0, sT1, sT2, sKS, sTF, sM0, sINB2, sMV, sW2, sHO = range(40, 60)
sKB, sP1, sKD = sTF, sW2, sHO
sI1, sI2 = 37, 38
sPEX = 88
sTL = 53
sFO = 6
sACC = 16
def db(b): return 32*(b >> 2) + 8*(b & 1) + 2*((b >> 1) & 1)
def smf(d, A, B, f='v'): return f'v_smfmac_f32_16x16x64_bf16 {vr(d,4)}, {vr(A,4)}, {vr(B,8,f)}, v{IDX}'
def mf(d, A, B, C='0'): return f'v_mfma_f32_16x16x32_bf16 {vr(d,4)}, {vr(A,4)}, {vr(B,4)}, {C}'
def z2(r): return f'v_mov_b64 {vr(r,2)}, 0'

def slots(a, mfl, plan):
    for i, m in enumerate(mfl):
        a(m)
        fl = plan.pop(i, [])
        for x in fl:
            if not x.startswith('v_') and not x.startswith('>'): a(x)
        for x in fl:
            if x.startswith('v_'): a(x)
        for x in fl:
            if x.startswith('>'): a(x[1:])
    assert not plan, plan

HM = [0]
def heat(a, n, r):
    if HM[0] == 3:
        if n >= 3: a(f's_sleep {(n+1)//4}')
        elif n: a(f's_nop {4*n-1}')
        return
    for i in range(n):
        if HM[0] == 1: a(smf(MEMF+28, KX, 8*(i % 32), 'a'))
        elif HM[0] == 2: a('s_nop 3')
        else: a(f'v_mov_b32 v{r}, v{r}'); a('s_nop 2')

def kx_addr(t0, t1):
    return [f'v_and_b32 v{t0}, 0x310, v{L16}', f'v_and_b32 v{t1}, 0x60, v{L16}', f'v_lshl_add_u32 v{t0}, v{t1}, 1, v{t0}',
            f'v_bfe_u32 v{t1}, v{L16}, 7, 1', f'v_mul_u32_u24 v{t1}, {4096+32}, v{t1}', f'v_add3_u32 v{t0}, v{t0}, v{t1}, s{sKB}']
def kv_reads(t0, MR):
    r = [f'ds_read_b128 {vr(KX+4*j,4)}, v{t0} offset:{(j&3)*1024 + (j>>2)*32}' for j in range(8)]
    r += [f'ds_read_b64 {vr(VB+8*t+4*u,2)}, v{MR} offset:{t*1024 + u*8}' for t in (0, 1) for u in (0, 1)]
    return r
def v_dma():
    WS = srd(sWS)
    return [[f's_mov_b32 m0, s{sMV}', f's_add_u32 s{sT2}, s{sKV}, {WS_VF - WS_KF:#x}'],
            [f'buffer_load_dwordx4 v{L16}, {WS}, s{sT2} offen sc1 lds'],
            [f'buffer_load_dwordx4 v{L16}, {WS}, s{sT2} offen offset:1024 sc1 lds ; vdma']]
def k_dma(adv=True):
    WS = srd(sWS)
    return [[f's_add_u32 m0, s{sMK}, s{sKD}', f's_add_u32 s{sKV}, s{sKV}, {32*8192 if adv else 0:#x}'],
            [f'buffer_load_dwordx4 v{L16}, {WS}, s{sKV} offen sc1 lds'],
            [f'buffer_load_dwordx4 v{L16}, {WS}, s{sKV} offen offset:1024 sc1 lds']]
def xa_set(): return [f's_add_u32 s{sP1}, s{sSLOT}, 0x1000']

DEFAULTS = dict(merge=True, nq=0, qa=(35,35,35,35,36,36,37), ka=(37,37,37,37,38,38,39), b2=43, b3=47, kp=36, vd=(34,36), nops=(33,), fp=41,
                lat=(-1,-1,-1,2,5,8), da=(13,14,18,21,22,26), zb=5, h4b=0, po=(24,30), stp=(11,23,35,47,55), pa0=(0,0,0,0,1,1,2), zin=(1,2,3,3,6,6,7,7), hs=0)
def team(a, sf, tag, opt):
    opt = {**DEFAULTS, **opt}
    HM[0] = opt.get('hm', 0)
    if sf != '' or opt.get('shared'): return team1(a, sf, tag, opt, None)
    for w in range(3):
        a(f's_cmp_eq_u32 s4, {w}'); a(f's_cbranch_scc1 {tag}_full{w}')
    for w in (3, 0, 1, 2):
        if w < 3: a.label(f'{tag}_full{w}')
        o = dict(opt); o.update(opt.get('pw', {}).get(w, {}))
        for k, v in opt.get('stag', {}).items():
            base = o[k]
            o[k] = tuple(x + v*w for x in base) if isinstance(base, tuple) else base + v*w
        team1(a, sf, f'{tag}{w}', o, w)

def team1(a, sf, tag, opt, only):
    stamps = opt.get('stamps', False)
    nstep = opt.get('nstep', 64)
    NST = 14
    def st(i): return [f'{"s_memrealtime" if opt.get("raw") else "s_memtime"} s[{60+2*i}:{61+2*i}] ; nowait'] if stamps else []
    def stamp(i):
        for x in st(i): a(x)
    HT = VB+14
    def stamp_acc():
        if stamps and not opt.get('lacc'):
            a('s_waitcnt lgkmcnt(0)')
            for i in range(NST):
                prev = 98 if i == 0 else 60+2*(i-1)
                if opt.get('raw'):
                    a(f's_cmp_eq_u32 s{sSTEP}, {opt["raw"] + (1 if i < 2 else 0)}')
                    a(f's_cselect_b32 s{sACC+i}, s{60+2*i}, s{sACC+i}')
                else:
                    a(f's_sub_u32 s99, s{60+2*i}, s{prev}')
                    a(f's_add_u32 s{sACC+i}, s{sACC+i}, s99')
                if i % 2 == 0: a(f'v_mov_b32 v{HT}, v{HT}')
            a(f's_mov_b32 s98, s{60+2*(NST-1)}')
    T = lambda n: f'{tag}_{n}'
    WS = srd(sWS)
    IB = MEMF+8; RA = MEMF+16; IT = MEMF+20
    p2 = [f'buffer_load_dwordx4 {vr(MEMF,4)}, v{L16}, {WS}, s{sSLOT} offen sc1',
          f'buffer_load_dwordx4 {vr(MEMF+4,4)}, v{L16}, {WS}, s{sSLOT} offen offset:1024 sc1']
    p1 = [f'buffer_load_dwordx4 {vr(IB,4)}, v{L16}, {WS}, s{sINB2} offen sc1',
          f'buffer_load_dwordx4 {vr(IB+4,4)}, v{L16}, {WS}, s{sINB2} offen offset:1024 sc1']
    def check2():
        b, t = MEMF, VB+10
        a(f'v_max3_u32 v{t}, v{b}, v{b+1}, v{b+2}')
        a(f'v_max3_u32 v{t}, v{t}, v{b+3}, v{b+4}')
        a(f'v_max3_u32 v{t}, v{t}, v{b+5}, v{b+6}')
        a(f'v_max_u32 v{t}, v{t}, v{b+7}')
        a(f'v_cmp_eq_u32 vcc, s{sPOI}, v{t}')
    def redtail():
        for rot in (4, 8):
            for r in range(2): a(f'v_add_f32_dpp v{RA+r}, v{RA+r}, v{RA+r} row_ror:{rot} row_mask:0xf bank_mask:0xf')
        a(f'v_cvt_pk_bf16_f32 v{IT+4}, v{RA}, v{RA+1}')
    def check1():
        t = IT
        a(f'v_max3_u32 v{t}, v{IB}, v{IB+1}, v{IB+2}')
        a(f'v_max3_u32 v{t}, v{t}, v{IB+3}, v{IB+4}')
        a(mf(RA, SELA, IB))
        a(f'v_max3_u32 v{t}, v{t}, v{IB+5}, v{IB+6}')
        a(f'v_max_u32 v{t}, v{t}, v{IB+7}')
        a(mf(RA, SELA, IB+4, vr(RA,4)))
        a(f'v_cmp_eq_u32 vcc, s{sPOI}, v{t}')
        if opt.get('spec', 1): redtail()
    def sample(name, loads, chk, depth, cnt, fill, warm=None, extra=0):
        for i in range(depth - 1):
            for x in loads: a(x)
            fill(i)
        a(T(name) + ': ; keep')
        for x in loads: a(x)
        if warm: a(warm)
        if stamps: a(f's_add_u32 s{sACC+cnt}, s{sACC+cnt}, 1')
        a(f's_add_u32 s{sSPIN}, s{sSPIN}, 1')
        a(f's_cmp_ge_u32 s{sSPIN}, {SPIN_MAX}')
        a('s_cbranch_scc1 L_fail ; keep')
        a(f's_waitcnt vmcnt({len(loads)*(depth-1) + extra})')
        chk()
        a(f's_cbranch_vccnz {T(name)} ; keep')
        a(T(name + 'ok') + ': ; keep')
    if stamps or opt.get('timing', False):
        for i in range(16): a(f's_mov_b32 s{sACC+i}, 0')
        a('s_memtime s[92:93]'); a('s_memrealtime s[94:95]'); a('s_waitcnt lgkmcnt(0)'); a('s_mov_b32 s98, s92')
        for i in range(14 if stamps else 0): a(f's_mov_b32 s{60+2*i}, s92')
    a(f's_mov_b32 s{sSPIN}, 0')
    for x in p2: a(x)
    for x in xa_set(): a(x)
    a('s_waitcnt vmcnt(0)')
    a(T('p2ok') + ': ; keep')
    eb = opt.get('eb', 2)
    Q = lambda k, t: smf(ACQ+4*t, MEMF+4*k, (k*2+t)*8, 'a')
    K = lambda k, t: smf(ACK+4*t, MEMF+4*k, 128+(k*2+t)*8, 'a')
    V = lambda k, t: smf(ACV+4*t, MEMF+4*k, WV+(k*2+t)*8)
    vf = opt.get('vf', 2)
    own = [Q(0,0), Q(0,1), Q(1,0), Q(1,1), K(0,0), K(0,1), K(1,0), K(1,1)] + [V(k, t) for k in range(vf) for t in (0, 1)]
    nq = opt.get('nq', 0)
    qk_ = [f(k, t) for k in range(2, 8-nq) for f in (Q, K) for t in (0, 1)] + [f(k, t) for f in (Q, K) for k in range(8-nq, 8) for t in (0, 1)]
    first = {k: len(own) + qk_.index(Q(k, 0)) for k in range(2, 8)}
    vr_ = [V(k, t) for k in range(vf, 8) for t in (0, 1)]
    S0, S1, SM, P = ACQ, ACQ+4, ACK, ACK+4
    xs = []
    for j in range(4):
        xs.append(mf(S0, KX+4*j, MEMF+4*j, '0' if j == 0 else vr(S0,4)))
        xs.append(mf(S1, KX+16+4*j, MEMF+4*j, '0' if j == 0 else vr(S1,4)))
    ms = [mf(SM, MEMF+16+4*j, MEMF+4*j, '0' if j == 0 else vr(SM,4)) for j in range(4)]
    M = own + qk_ + vr_ + xs + ms
    mld = lambda k: f'buffer_load_dwordx4 {vr(MEMF+4*k,4)}, v{L16}, {WS}, s{sP1 if k >= 4 else sSLOT} offen offset:{(k&3)*1024} sc1'
    def pk(ac): return [f'v_add_f32 v{ac}, v{ac}, v{ac+2}', f'v_add_f32 v{ac+1}, v{ac+1}, v{ac+3}',
                        f'v_add_f32 v{ac+4}, v{ac+4}, v{ac+6}', f'v_add_f32 v{ac+5}, v{ac+5}, v{ac+7}',
                        f'v_cvt_pk_bf16_f32 v{ac+2}, v{ac}, v{ac+4}', f'v_cvt_pk_bf16_f32 v{ac+3}, v{ac+1}, v{ac+5}']
    def xw(ac, off): return [f'ds_write_b32 v{XW}, v{ac+2} offset:{off}', f'ds_write_b32 v{XW}, v{ac+3} offset:{off+XS}']
    plan = {}
    def put(i, *xs_): plan.setdefault(i, []).extend(xs_)
    lat = opt.get('lat', (-1, -1, 0, 3, 6, 9))
    for k in range(2, 2+eb): a(mld(k))
    a(T('p2go') + ': ; keep')
    head0 = len(a.lines)
    hs = opt.get('hs', 0) if only == 0 else 0
    stamp(0)
    for k in range(2+eb, 8):
        if lat[k-2] < 0: a(mld(k))
        else: put(lat[k-2], mld(k))
    a('s_waitcnt lgkmcnt(1)')
    put(1, 's_waitcnt lgkmcnt(0)')
    da = opt.get('da', (13, 14, 16, 17, 18, 20)); po = opt.get('po', (24, 30)); kp = opt.get('kp', 46); fp = opt.get('fp', 27)
    CT = VB+10
    for k in range(2, 8):
        u = first[k] - 1
        put(u, f'waitv v{MEMF+4*k}')
        b = MEMF+4*k
        put(u+1, f'v_max_u32 v{CT}, v{b}, v{b+1}' if k == 2 else f'v_max3_u32 v{CT}, v{CT}, v{b}, v{b+1}')
        put(u+2, f'v_max3_u32 v{CT}, v{CT}, v{b+2}, v{b+3}')
    vd = opt.get('vd', (34, 36))
    assert vd[0] > first[7] + 1
    put(vd[0], f'v_cmp_eq_u32 vcc, s{sPOI}, v{CT}')
    put(vd[1], f's_cbranch_vccnz {T("redo")} ; keep')
    put(opt['stp'][0], *['>'+x for x in st(1)])
    kput = f'buffer_store_dwordx4 {vr(V4,4)}, v{L16}, {WS}, s{sKM} offen sc1'
    put(3, f'v_mov_b32 v{KMR}, v{QR}')
    put(5, f'v_mov_b32_dpp v{KMR}, v{QR} row_shl:4 row_mask:0xf bank_mask:0x2')
    put(7, f'v_mov_b32_dpp v{KMR}, v{QR} row_shr:4 row_mask:0xf bank_mask:0x4')
    put(0, f's_xor_b32 s{sINBO}, s{sINB2}, 0x40000')
    put(3, f's_add_u32 s{sI1}, s{sINB}, 0x1000')
    kd = k_dma()
    kd[0][1] = f's_add_u32 s{sI2}, s{sKV}, {32*8192:#x}'
    kd = [[x.replace(f's{sKV} offen', f's{sI2} offen') for x in g] for g in kd]
    put(42, f's_mov_b32 s{sKV}, s{sI2}')
    for n, xs_ in enumerate(v_dma() + kd): put(da[n], *xs_)
    assert (da[5] < da[0] or da[3] > da[2])
    pst = [f'buffer_store_dwordx4 {vr(POI4,4)}, v{L16}, {WS}, s{sINBO} offen offset:{o} {sf}' for o in (0, 1024)]
    p0 = opt.get('p0') if only is not None else None
    if p0:
        po = (99, 99)
        if only == 0:
            put(1, f's_add_u32 s{sT1}, s{sINBO}, 0x1000')
            for n, i in enumerate(p0):
                put(i, f'buffer_store_dwordx4 {vr(POI4,4)}, v{L16}, {WS}, s{sT1 if n >= 4 else sINBO} offen offset:{(n & 3)*1024} {sf}' + (' ; plast' if n == 7 else ''))
    for n in range(2):
        if po[n] < 60: put(po[n], pst[n])
    put(fp, f'buffer_store_dword v{POI4}, v{PUB}, {WS}, s{sSLOTP} offen {sf}')
    put(kp, kput)
    for i in opt.get('lwm', ()): put(i, f'ds_read_b32 v{VB+2}, v{XW} ; nowait')
    put(opt['stp'][1], *['>'+x for x in st(2)])
    put(opt['stp'][2], *['>'+x for x in st(3)])
    qa = opt.get('qa', (35, 35, 36, 36, 37, 37, 38))
    for n, x in enumerate(pk(ACQ)): put(qa[n], x)
    put(qa[6], *xw(ACQ, 0))
    for i in opt.get('nops', (27, 28, 35)): put(i, 's_nop 1')
    assert qa[6] >= vd[1]
    b2 = opt.get('b2', 42)
    if not opt.get('merge'): put(b2, 's_waitcnt lgkmcnt(0)', 's_barrier')
    qrd = [f'ds_read_b128 {vr(MEMF+4*j,4)}, v{QR} offset:{j*64}' for j in range(4)]
    k0 = opt.get('k0', 39)
    ka = opt.get('ka', tuple(k0+n for n in range(7)))
    pkk = pk(ACK)[:4] + [f'v_cvt_pk_bf16_f32 v{V4}, v{ACK}, v{ACK+4}', f'v_cvt_pk_bf16_f32 v{V4+1}, v{ACK+1}, v{ACK+5}']
    for n, x in enumerate(pkk): put(ka[n], x)
    put(ka[6], *xw(V4-2, XSZ))
    assert kp < ka[4]
    if opt.get('merge'): put(b2, 's_waitcnt lgkmcnt(0)', 's_barrier')
    put(b2, qrd[0]); put(b2+1, qrd[1], qrd[2]); put(b2+2, qrd[3])
    put(opt['stp'][3], *['>'+x for x in st(4)])
    b3 = opt.get('b3', 49)
    if not opt.get('merge'): put(b3, 's_waitcnt lgkmcnt(0)', 's_barrier')
    kmr = [f'ds_read_b128 {vr(MEMF+16+4*j,4)}, v{KMR} offset:{XSZ + j*64}' for j in range(4)]
    put(b3, kmr[0]); put(b3+1, kmr[1], kmr[2]); put(b3+2, kmr[3])
    ac = ACV
    fv = [f'v_add_f32 v{ac}, v{ac}, v{ac+2}', f'v_add_f32 v{ac+1}, v{ac+1}, v{ac+3}',
          f'v_add_f32 v{ac+4}, v{ac+4}, v{ac+6}', f'v_add_f32 v{ac+5}, v{ac+5}, v{ac+7}',
          f'v_cvt_pk_bf16_f32 v{VMP}, v{ac}, v{ac+1}', f'v_cvt_pk_bf16_f32 v{VMP+1}, v{ac+4}, v{ac+5}',
          f'v_cndmask_b32 v{VB+2}, 0, v{VMP}, s[{sEVEN}:{sEVEN+1}]', f'v_cndmask_b32 v{VB+6}, v{VMP}, 0, s[{sEVEN}:{sEVEN+1}]',
          f'v_cndmask_b32 v{VB+10}, 0, v{VMP+1}, s[{sEVEN}:{sEVEN+1}]', f'v_cndmask_b32 v{VB+14}, v{VMP+1}, 0, s[{sEVEN}:{sEVEN+1}]']
    fa = opt.get('fa', (50, 50, 51, 51, 52, 52, 53, 54, 55, 55))
    for x, i in zip(fv, fa): put(i, x)
    put(opt['stp'][4], *['>'+x for x in st(5)])
    order = [(2*ph + t, ks2) for ph in range(4) for ks2 in (0, 1) for t in (0, 1)]
    if opt.get('tm'): order = [(2*ph + t, ks2) for ph in range(4) for t in (0, 1) for ks2 in (0, 1)]
    bufs = ([KX+8*b for b in range(4)] + [MEMF+8*b for b in range(4)]) * 2
    def word(n):
        return [f'ds_read_b128 {vr(bufs[n]+4*hf,4)}, v{WOB} offset:{wo_off(order[n][0], order[n][1], hf)}' for hf in range(2)]
    w2, w3, w4, w5 = word(0), word(1), word(2), word(3)
    put(52, w2[0]); put(53, w4[0]); put(54, w2[1]); put(55, w4[1]); put(56, w3[0]); put(57, w5[0]); put(58, w3[1]); put(59, w5[1])
    put(55, 's_waitcnt lgkmcnt(3)')
    put(56, z2(ACV), z2(ACV+2)); put(57, z2(ACV+4), z2(ACV+6))
    put(58, f'v_max3_f32 v{P}, v{S0}, v{S0+1}, v{S0+2}', f'v_max3_f32 v{P+1}, v{S1}, v{S1+1}, v{S1+2}')
    put(46, f's_cmp_eq_u32 s{sSTEP}, {nstep-1}')
    put(49, 's_waitcnt lgkmcnt(4)')
    fin_at = 54
    put(max(fa[4], fa[5]) + 1, f's_cbranch_scc1 {T("fin")} ; keep')
    if only == 2 or only is None:
        put(opt.get('ts', 28), f'buffer_store_dword v{IDX}, off, {WS}, s{sTL} sc1', f's_mov_b32 s{sTL}, 0x7fffff00')
    akv = opt.get('akv', 1) and only == 1
    if akv:
        fs = opt.get('fs', 28)
        put(fs-1, f's_mov_b32 m0, {L_FL}', f'v_lshrrev_b32 v{VB+6}, 2, v{L16}')
        put(fs, f'buffer_load_dword v{VB+6}, {WS}, s{sFO} offen sc1 lds ; fdma')
        assert fs - 1 > max(da)
    if opt.get('diag') == 2:
        put(4, 's_memrealtime s[82:83] ; nowait')
        put(44, f's_cmp_eq_u32 s{sSTEP}, {opt.get("dn", 16)}', 's_cselect_b32 s84, s82, s84')
        if opt.get('d0'): put(45, f's_cmp_eq_u32 s{sSTEP}, {opt["d0"]}', 's_cselect_b32 s85, s82, s85')
    if stamps and opt.get('lacc'):
        seq = list(range(2, 14)) + [0, 1]
        put(12, 's_waitcnt lgkmcnt(0)')
        for n, i in enumerate(seq):
            prev = 98 if n == 0 else 60+2*seq[n-1]
            if opt.get('raw'): put(13 + n*10//14, f's_cmp_eq_u32 s{sSTEP}, {opt["raw"]}', f's_cselect_b32 s{sACC+i}, s{60+2*i}, s{sACC+i}')
            else: put(13 + n*10//14, f's_sub_u32 s99, s{60+2*i}, s{prev}', f's_add_u32 s{sACC+i}, s{sACC+i}, s99')
        put(23, f's_mov_b32 s98, s62')
    drop = opt.get('drop', [])
    for i, m in enumerate(M):
        slots(a, [m], {0: [x for x in plan.pop(i, []) if not any(d in x for d in drop)]})
        if hs and i == hs - 1:
            head = [x for x in a.lines[head0:] if 'lgkmcnt' not in x]
            a(T('mid') + ': ; keep')
    assert not plan
    pre = word(4) + word(5) + word(6) + word(7)
    M0, M1 = SM+2, SM+3
    LS, O = SM, ACV
    ex = [S0, S0+1, S0+2, S0+3, SM, SM+1]
    sm = [f'v_max3_f32 v{P}, v{P}, v{S0+3}, v{S1+3}', f'v_max_f32 v{P}, v{P}, v{P+1}']
    sm += [f'v_cndmask_b32 v{S0+r}, v{S0+r}, v{S1+r}, s[{sHALF}:{sHALF+1}]' for r in range(4)]
    sm += [f'v_max3_f32 v{M0}, v{P}, v{SM}, v{SM+1}', f'v_max3_f32 v{M1}, v{P}, v{SM}, v{SM+1}',
           f'v_permlane32_swap_b32 v{M0}, v{M1}', f'v_max_f32 v{P}, v{M0}, v{M1}', f'v_max_f32 v{P+1}, v{M0}, v{M1}',
           f'v_permlane16_swap_b32 v{P}, v{P+1}', f'v_max_f32 v{M0}, v{P}, v{P+1}', '; (max subtracted first, then scaled)']
    assert M0 % 2 == 0 and sSCL % 2 == 1
    sm += [f'v_pk_add_f32 {vr(r,2)}, {vr(r,2)}, {vr(M0,2)} op_sel_hi:[1,0] neg_lo:[0,1] neg_hi:[0,1]' for r in ex[::2]]
    sm += [f'v_pk_mul_f32 {vr(r,2)}, {vr(r,2)}, s[{sSCL-1}:{sSCL}] op_sel:[0,1] op_sel_hi:[1,1]' for r in ex[::2]]
    sm += [f'v_exp_f32 v{r}, v{r}' for r in ex]
    sm += [f'v_cvt_pk_bf16_f32 v{P}, v{S0}, v{S0+1}', f'v_cvt_pk_bf16_f32 v{P+2}, v{S0+2}, v{S0+3}',
           f'v_cvt_pk_bf16_f32 v{P+1}, v{SM}, v{SM+1}', f'v_cvt_pk_bf16_f32 v{P+3}, v{SM}, v{SM+1}']
    sm += [mf(LS, P, ONES), smf(O, P, VB), smf(O+4, P, VB+8)]
    sm += [f'v_add_f32 v{LS}, v{LS}, v{LS+2}', f'v_add_f32 v{LS+1}, v{LS+1}, v{LS+3}', f'v_rcp_f32 v{LS}, v{LS}', f'v_rcp_f32 v{LS+1}, v{LS+1}',
           f'v_pk_add_f32 {vr(O,2)}, {vr(O,2)}, {vr(O+2,2)}', f'v_pk_add_f32 {vr(O+4,2)}, {vr(O+4,2)}, {vr(O+6,2)}',
           f'v_pk_mul_f32 {vr(O,2)}, {vr(O,2)}, {vr(LS,2)}', f'v_pk_mul_f32 {vr(O+4,2)}, {vr(O+4,2)}, {vr(LS,2)}',
           f'v_cvt_pk_bf16_f32 v{O+2}, v{O}, v{O+4}', f'v_cvt_pk_bf16_f32 v{O+3}, v{O+1}, v{O+5}']
    pp = list(opt.get('pp', (7, 10, 29, 30, 31, 31, 32, 32)))
    bp = opt.get('bp', 42)
    n99 = pp.count(99)
    def sm_emit(lo, hi):
        for n in range(lo, hi):
            if n == 6: stamp(6)
            if n == 30: stamp(7)
            a(sm[n])
            for r, q in zip(pre, pp):
                if q == n: a(r)
            for r, q in zip(zearly, zp):
                if q == n: a(r)
    zp = opt.get('zp', ())
    zearly = ([z2(ACQ+2*z) for z in range(4)] + [z2(VB+2*z) for z in range(8)])[:len(zp)]
    assert all(q >= 29 for q in zp[:4]) and all(q >= 31 for q in zp[4:8]) and all(q >= 32 for q in zp[8:])
    sm_emit(0, bp+1)
    def sm_rest():
        sm_emit(bp+1, len(sm))
        for x in xw(O, 2*XSZ): a(x)
        for r, q in zip(pre, pp):
            if q == 99: a(r)
        stamp(8)
    PW = opt.get('pw', {})
    DEF = [dict(er=(14,), n1=2, g1=0, d2=0, n2=3, g2=0, pn=0), dict(d1=0, n1=2, g1=0, pre=2), dict(d1=0, n1=2, g1=0, pre=2, aw=2), dict(d1=0, n1=2, g1=0, pre=2, aw=1)]
    def tailcode(w, gopt):
        nonlocal plan
        opt = dict(gopt); opt.update(DEF[w]); opt.update(PW.get(w, {}))
        if bp < len(sm) - 1 and w < 3: a.nop(max(0, opt.get('bn', 4) - 2*w))
        sm_rest()
        PA = [VB, VB+8, ACQ, ACK]
        if po[0] == 60: a(pst[0])
        zb = opt.get('zb', 4)
        zin = opt.get('zin', (0, 0, 1, 1, 2, 2, 3, 3))
        zs = [z2(VB+2*z) for z in range(4)] + [z2(ACK+2*z) for z in range(4)] + [z2(VB+8+2*z) for z in range(4)] + [z2(ACQ+2*z) for z in range(4)]
        if zp: zs = [x for x in zs[:4] + zs[8:12] + zs[4:8] if x not in zearly]
        zi = zs[len(zs)-len(zin):]; zs = zs[:len(zs)-len(zin)]
        for x in zs[:zb]: a(x)
        if p0 and only == 0: a('waitm plast')
        a(f's_waitcnt lgkmcnt({n99})')
        a('s_barrier')
        OA = ACV
        a(f'ds_read_b128 {vr(OA,4)}, v{OR_} offset:{2*XSZ}')
        a(f'ds_read_b128 {vr(OA+4,4)}, v{OR_} offset:{2*XSZ+128}')
        for r, q in zip(pre, pp):
            if q == 100: a(r)
        if po[1] == 61: a(pst[1])
        for x in zs[zb:]: a(x)
        heat(a, opt.get('h4b', 1), VB)
        if opt.get('s9') is None: stamp(9)
        W = [smf(PA[n >> 2]+4*(order[n][0] & 1), OA+4*order[n][1], bufs[n]) for n in range(16)]
        plan = {}
        for x, i in zip(zi, zin): put(i, x)
        if opt.get('s9') is not None: put(opt['s9'], *['>'+x for x in st(9)])
        rd = [x for n in range(8, 16) for x in word(n)]
        at = opt.get('at', [0, 0, 1, 1, 2, 3, 3, 4, 5, 5, 6, 7, 8, 8, 9, 10])
        for n, (x, i) in enumerate(zip(rd, at)):
            assert i >= n // 2
            put(i, x)
        pstore = lambda ph: f'buffer_store_dwordx2 {vr(PA[ph]+2,2)}, v{PST}, {WS}, s{sI1 if ph >= 2 else sINB} offen offset:{(ph&1)*2048} {sf}'
        er = opt.get('er', ())
        for e in er:
            if e < 16: put(e, *[x + f' ; r{e}' for x in p1])
        pa = opt.get('pa', (0, 1, 1, 2, 3, 3, 4))
        pa0 = opt.get('pa0', pa)
        tail = []
        for ph in range(3):
            for x, r in zip(pk(PA[ph]) + [pstore(ph)], pa0 if ph == 0 else pa):
                if r != int(r): put(4*(ph+1) + int(r), '>' + x)
                elif 4*(ph+1) + r <= 15: put(4*(ph+1) + r, x)
                else: tail.append(x)
        for i in opt.get('ww', (7, 9, 11, 13)):
            need_n = 2*(i+2-8) + 2
            issued = sum(1 for x in at if x <= i)
            put(i, f's_waitcnt lgkmcnt({issued - need_n})')
        put(0, f's_waitcnt lgkmcnt({sum(1 for x in at if x == 0) + pp.count(100)})')
        slots(a, W, plan)
        if 16 in er:
            for x in p1: a(x + ' ; r16')
        late = [x for x in tail if opt.get('l2') and x.startswith('buffer_store')]
        for x in tail:
            if x not in late: a(x)
        if 17 in er:
            for x in p1: a(x + ' ; r17')
        p = PA[3]
        a(f'v_pk_add_f32 {vr(p,2)}, {vr(p,2)}, {vr(p+2,2)}'); a(f'v_pk_add_f32 {vr(p+4,2)}, {vr(p+4,2)}, {vr(p+6,2)}')
        for x in pk(p)[4:]: a(x)
        if 18 in er:
            for x in p1: a(x + ' ; r18')
        a.nop(opt.get('l2n', 0))
        for x in late: a(x)
        a(pstore(3))
        stamp(10)
        kvr = kv_reads(IT+1, IT+3)
        work = kx_addr(IT+1, IT+2)
        zv = [f'v_add_u32 v{IT+3}, s{sMV}, v{L16}'] + [f'v_mov_b32 v{r}, 0' for r in (VB+3, VB+7, VB+11, VB+15)]
        for z in range(12): work += [kvr[z], z2(ACQ+2*z)] if z < 8 else [z2(ACQ+2*z)]
        nb = opt.get('w0', 12) if er else opt.get('w1', 26)
        sc = [f's_add_u32 s{sSTEP}, s{sSTEP}, 1', f's_xor_b32 s{sT0}, s{sSLOTN}, {2*SLOT_ST:#x}',
              f's_mov_b32 s{sSLOTN}, s{sSLOTP}', f's_mov_b32 s{sSLOTP}, s{sT0}', f's_xor_b32 s{sINB}, s{sINB}, 0x40000',
              f's_add_u32 s{sKM}, s{sKM}, {32*4096:#x}', f's_mov_b32 s{sSPIN}, 0',
              f's_mov_b32 s{sKD}, s{sKB}', f's_sub_u32 s{sKB}, {L_K0 + L_K1}, s{sKB}'] + xa_set()
        a(f's_mov_b32 s{sSLOT}, s{sSLOTN}')
        def part_a():
            for x in work[nb:]: a(x)
            for x in zv: a(x)
            a('waitm vdma' if only is not None else 's_waitcnt vmcnt(4)')
            for x in kvr[8:]: a(x)
        def part_b():
            a(f'v_add_u32 v{HT}, {L_QX + 2*XSZ}, v{L16}')
            for x in sc: a(x)
            a(f's_add_u32 s{sT1}, s{sSTEP}, 2')
            if not opt.get('pre', 0): kvc()
        def kvc():
            if w != 1: return
            if akv:
                t = MEMF+26
                kv_lane(a, t)
                a(f'v_add_u32 v{t}, {L_FL}, v{t}')
                a(f'ds_read_b32 v{t+1}, v{t}')
                kv_eval(a, t)
            a(f's_cmp_ge_u32 s{sT1}, s{sAV}')
            a(f's_cbranch_scc1 {T("kvw%d" % w)} ; keep')
            a(T('kvo%d' % w) + ': ; keep')
        pre_ = opt.get('pre', 0)
        stamp(11)
        if er:
            def fill(i):
                if i == 0:
                    for x in work[:nb]: a(x)
                if i == opt['n1'] - 2:
                    for e in er[opt.get('ec', 0):]:
                        a(f'waitm r{e}')
                        check1()
                        a(f's_cbranch_vccz {T("s1w%dok" % w)} ; keep')
                elif i: heat(a, opt['g1'], IT)
        else:
            for x in work[:nb]: a(x)
            if pre_ == 1: part_a(); part_b()
            heat(a, opt.get('d1', 0), IT)
            if opt.get('aw') is not None: a(f's_waitcnt vmcnt({opt["aw"]})')
            def fill(i):
                if pre_ == 2 and i == 0: part_a(); part_b()
                heat(a, opt['g1'], IT)
        sample('s1w%d' % w, p1, check1, opt['n1'], 14, fill)
        if not opt.get('spec', 1): redtail()
        a(f'buffer_store_dword v{IT+4}, v{PUB}, {WS}, s{sSLOT} offen {sf}')
        a(f's_xor_b32 s{sINB2}, s{sINB2}, 0x40000')
        if pre_: kvc()
        stamp(12)
        if not opt.get('s13'): stamp(13)
        dl = opt.get('dl', 0)
        if w == 0:
            if dl: a(f's_mov_b32 m0, {L_QX + 2*XSZ}')
            parts = [part_a, part_b, stamp_acc]
            pre_n = opt.get('pn', 1)
            for f in parts[:pre_n]: f()
            parts = parts[pre_n:]
            heat(a, opt.get('d2', 0), VB+6)
            for x in work[nb:nb+opt.get('wq', 0)]: a(x)
            nb += opt.get('wq', 0)
            def fill2(i):
                if parts and (parts[0] is not stamp_acc or stamps): parts.pop(0)()
                else: heat(a, opt['g2'], VB+6)
                if i == opt['n2'] - 2:
                    while parts: parts.pop(0)()
                    if dl: a('s_waitcnt lgkmcnt(0)')
            if dl:
                p2d = p2 + [f'buffer_load_dwordx4 v{L16}, {WS}, s{sSLOT} offen offset:{o} sc1 lds' for o in (0, 1024)]
                def chk2():
                    check2()
                    a(f's_waitcnt vmcnt({4*(opt["n2"]-1)})')
                sample('s2', p2d, chk2, opt['n2'], 15, fill2, extra=2)
                a('s_barrier')
                for k in range(2, 2+eb): a(mld(k))
            else:
                def chk2():
                    check2()
                    if opt.get('spec2', 0):
                        a(f'ds_write_b128 v{HT}, {vr(MEMF,4)}')
                        a(f'ds_write_b128 v{HT}, {vr(MEMF+4,4)} offset:1024')
                sample('s2', p2, chk2, opt['n2'], 15, fill2)
                if opt.get('s13'): stamp(13)
                if eb: a('s_barrier')
                if not opt.get('spec2', 0):
                    a(f'ds_write_b128 v{HT}, {vr(MEMF,4)}')
                    a(f'ds_write_b128 v{HT}, {vr(MEMF+4,4)} offset:1024')
                for k in range(2, 2+eb): a(mld(k))
                if hs:
                    for x in head: a(x)
                a('s_waitcnt lgkmcnt(0)')
                a('s_barrier')
                if hs: a(f's_branch {T("mid")} ; keep')
        else:
            if not pre_: part_a(); part_b()
            stamp_acc()
            if opt.get('series') and w == 1:
                a('s_memrealtime s[60:61]'); a(f's_lshl_b32 s62, s5, 8'); a(f's_lshl_b32 s63, s{sSTEP}, 2'); a('s_add_u32 s62, s62, s63'); a(f's_add_u32 s62, s62, {WS_DBG+0x10000:#x}')
                a(f'v_mov_b32 v{VB+6}, s60'); a(f'buffer_store_dword v{VB+6}, off, {WS}, s62')
            a('s_waitcnt lgkmcnt(0)')
            if opt.get('s13'): stamp(13)
            if eb and not dl:
                a('s_barrier')
                for k in range(2, 2+eb): a(mld(k))
            a('s_barrier')
            a(f'ds_read_b128 {vr(MEMF,4)}, v{HT}')
            a(f'ds_read_b128 {vr(MEMF+4,4)}, v{HT} offset:1024')
            if dl:
                for k in range(2, 2+eb): a(mld(k))
        a(f's_branch {T("p2go")} ; keep')
        a('s_waitcnt lgkmcnt(0)')
        if w == 1:
            a.label(T('kvw%d' % w))
            kv_wait(a, T('kvl%d' % w), sT1, MEMF+26)
            a(f's_branch {T("kvo%d" % w)}')
    if only is not None:
        tailcode(only, opt)
    else:
        for w in range(3):
            a(f's_cmp_eq_u32 s4, {w}'); a(f's_cbranch_scc1 {T("w%d" % w)} ; keep')
        tailcode(3, opt)
        for w in range(3):
            a('s_waitcnt lgkmcnt(0)')
            a.label(T('w%d' % w)); tailcode(w, opt)
    a('s_waitcnt lgkmcnt(0)')
    a.label(T('redo'))
    if stamps: a(f's_add_u32 s{sACC+15}, s{sACC+15}, 0x10000')
    a(f's_add_u32 s{sSPIN}, s{sSPIN}, 1'); a(f's_cmp_ge_u32 s{sSPIN}, {SPIN_MAX}'); a('s_cbranch_scc1 L_fail')
    a('s_nop 7')
    for z in range(12): a(z2(ACQ+2*z))
    a(f's_branch {T("p2ok")}')
    a.label(T('fin'))
    a('s_waitcnt lgkmcnt(0)')
    a(f's_add_u32 s{sKM}, s{sKM}, {32*4096:#x}')
    a(kput)
    if opt.get('diag'):
        a('s_memrealtime s[94:95]'); a('s_waitcnt lgkmcnt(0)')
        lo, hi = {1: (90, 96), 2: (85 if opt.get('d0') else 96, 84), 3: (90, 94)}[opt['diag']]
        a(f's_sub_u32 s92, s{hi}, s{lo}'); a(f's_mul_i32 s92, s92, {opt.get("dm", 1)}'); a('s_add_u32 s92, s92, s94')
        a.label(T('dg'))
        a('s_memrealtime s[86:87]'); a('s_waitcnt lgkmcnt(0)'); a('s_sub_u32 s86, s86, s92'); a('s_cmp_lt_i32 s86, 0'); a(f's_cbranch_scc1 {T("dg")}')
    if opt.get('dbgt'):
        DBGT(a, 6, VB)
        a(f'v_mov_b32 v{VB+1}, s96'); a('s_mov_b64 exec, 1'); a(f'buffer_atomic_umax v{VB+1}, off, {srd(sDBG)}, 0 offset:20')
    if stamps or opt.get('timing', False):
        a('s_memtime s[60:61]'); a('s_memrealtime s[96:97]'); a('s_waitcnt lgkmcnt(0)')
        a('s_sub_u32 s92, s60, s92'); a('s_sub_u32 s93, s96, s94')
        a(f's_lshl_b32 s{sT0}, s5, 2'); a(f's_add_u32 s{sT0}, s{sT0}, s4'); a(f's_lshl_b32 s{sT0}, s{sT0}, 7'); a(f's_add_u32 s{sT0}, s{sT0}, {WS_DBG:#x}')
        vals = [92, 93, 94, 96, 90] + [sACC+i for i in range(16)] + [91] + ([70+2*i for i in range(9)] if opt.get('ustamp') else [])
        for i, s in enumerate(vals):
            a(f'v_mov_b32 v{VB}, s{s}')
            a(f'buffer_store_dword v{VB}, off, {WS}, s{sT0} offset:{4*i}')
    a('s_waitcnt vmcnt(0)')
    a('s_endpgm')

def wo_off(Tt, ks2, hf): return (Tt >> 2)*32768 + (ks2*2 + hf)*4096 + (Tt & 3)*1024

def team_setup(a, opt, hooks):
    if opt.get('ustamp'): a('s_memrealtime s[70:71]')
    load_srd(a, sA, 'Wq'); load_srd(a, sB, 'Wk'); load_srd(a, sC, 'Wv'); load_srd(a, sD, 'Wo')
    lane, c, g, t0, t1, va, vo, rA, rB, r8 = 100, 101, 102, 103, 104, 105, 106, 107, 109, 110
    a(f'v_and_b32 v{lane}, 63, v0')
    a(f'v_bfe_u32 v{t0}, v{lane}, 4, 1'); a(f'v_lshlrev_b32 v{vo}, 4, v{t0}')
    a(f'v_bfe_u32 v{t0}, v{lane}, 3, 1'); a(f'v_lshl_add_u32 v{vo}, v{t0}, 2, v{vo}')
    a(f'v_lshrrev_b32 v{t0}, 5, v{lane}'); a(f'v_add_u32 v{vo}, v{vo}, v{t0}')
    a(f'v_and_b32 v{t1}, 7, v{lane}'); a(f'v_lshlrev_b32 v{t1}, 4, v{t1}')
    if opt.get('swz', 1): a(f'v_and_b32 v{t0}, 8, v{lane}'); a(f'v_lshlrev_b32 v{t0}, 3, v{t0}'); a(f'v_xor_b32 v{t1}, v{t1}, v{t0}')
    a(f's_lshr_b32 s{sT2}, s4, 1'); a(f's_lshl_b32 s{sT0}, s5, 8'); a(f's_lshl_b32 s{sT1}, s{sT2}, 7'); a(f's_add_u32 s{sT0}, s{sT0}, s{sT1}')
    a(f'v_lshl_add_u32 v{va}, v{vo}, 13, v{t1}'); a(f'v_add_u32 v{va}, s{sT0}, v{va}')
    a(f's_lshl_b32 s{sW2}, s4, 20'); a(f's_and_b32 s{sW2}, s{sW2}, 0x100000')
    a(f's_lshl_b32 s{sTF}, s{sT2}, 16'); a(f's_and_b32 s{sT2}, s4, 1'); a(f's_lshl_b32 s{sT1}, s{sT2}, 14'); a(f's_add_u32 s{sTF}, s{sTF}, s{sT1}')
    a('s_waitcnt lgkmcnt(0)')
    units = []
    B0 = 24
    def qkv(S, dstf):
        for U in range(2):
            h = (len(units) & 1)*32768
            iss, rd, tr = [], [], []
            for j in range(2):
                for b in range(8):
                    iss += [f's_add_u32 m0, s{sTF}, {h + (j*8+b)*1024}', f's_xor_b32 s{sT1}, s{sW2}, {((4*U+j) << 19) + db(b)*8192:#x}',
                            f'buffer_load_dwordx4 v{va}, {srd(S)}, s{sT1} offen {opt.get("wf", "")} lds']
            for jj in range(4):
                for b in range(8):
                    r = B0 + (jj*8+b)*2; o = (h + ((jj & 1)*8+b)*1024) // 256
                    rd.append(f'ds_read2st64_b32 {vr(r,2)}, v{rB if jj >= 2 else rA} offset0:{o} offset1:{o+2}')
                    for t, sel in ((0, sPLO), (1, sPHI)):
                        kind, d = dstf(4*U+jj, t, b)
                        if kind == 'v': tr.append(f'v_perm_b32 v{d}, v{r+1}, v{r}, s{sel}')
                        else: tr += [f'v_perm_b32 v{124+t}, v{r+1}, v{r}, s{sel}', f'v_accvgpr_write_b32 a{d}, v{124+t}']
            units.append((iss, rd, tr))
    OUT = 112
    def wo():
        for cq in range(2):
            assert (len(units) & 1) == cq
            h = cq*32768
            iss, rd, tr = [], [], []
            for ks2 in range(2):
                for b in range(8):
                    sl = ks2*8 + b
                    iss += [f's_add_u32 m0, s{sTF}, {h + sl*1024}', f's_add_u32 s{sT1}, s{sHO}, {(64*ks2 + db(b))*1024 + cq*512:#x}',
                            f'buffer_load_dwordx4 v{vo}, {srd(sD)}, s{sT1} offen {opt.get("wf", "")} lds']
                    r = B0 + sl*4; o = (h + sl*1024) // 256
                    rd += [f'ds_read2st64_b32 {vr(r+2*pl,2)}, v{r8+pl} offset0:{o} offset1:{o+2}' for pl in range(2)]
                    ob = OUT if sl < 4 else B0 + (sl//4 - 1)*16
                    tr += [f'v_perm_b32 v{ob+4*i+(b&3)}, v{r+2*(i>>1)+1}, v{r+2*(i>>1)}, s{sPHI if i&1 else sPLO}' for i in range(4)]
                    if (b & 3) == 3:
                        tr += [f'ds_write_b128 v{WOB}, {vr(ob+4*i,4)} offset:{wo_off(4*cq+i, ks2, b >> 2)}' for i in range(4)]
            tr += ['s_waitcnt lgkmcnt(0)']
            units.append((iss, rd, tr))
    for ch in opt.get('worder', 'qkv'):
        if ch == 'q': qkv(sA, lambda k, t, b: ('a', (k*2+t)*8+b))
        if ch == 'k': qkv(sB, lambda k, t, b: ('a', 128+(k*2+t)*8+b))
        if ch == 'v': qkv(sC, lambda k, t, b: ('v', WV+(k*2+t)*8+b))
    wo()
    for x in units[0][0]: a(x)
    if not opt.get('wm', 0):
        for x in units[1][0]: a(x)
    a(f'v_and_b32 v{c}, 15, v{lane}'); a(f'v_lshrrev_b32 v{g}, 4, v{lane}'); a(f'v_lshlrev_b32 v{L16}, 4, v{lane}')
    a(f's_mov_b32 s{sPLO}, 0x05040100'); a(f's_mov_b32 s{sPHI}, 0x07060302')
    a(f's_lshl_b32 s{sHO}, s5, 17')
    a(f'v_add_u32 v{WOB}, s{sTF}, v{L16}')
    a(f'v_lshlrev_b32 v{rA}, 7, v{g}'); a(f'v_lshl_add_u32 v{rA}, v{c}, 2, v{rA}'); a(f's_lshl_b32 s{sT1}, s{sT2}, 6'); a(f's_add_u32 s{sT1}, s{sT1}, s{sTF}')
    a(f's_and_b32 s{sT1}, s{sT1}, 0xffffbfff')
    a(f'v_add_u32 v{rA}, s{sT1}, v{rA}')
    if opt.get('swz', 1): a(f'v_and_b32 v{t0}, 1, v{g}'); a(f'v_lshlrev_b32 v{t0}, 6, v{t0}'); a(f'v_xor_b32 v{rA}, v{rA}, v{t0}')
    a(f'v_add_u32 v{rB}, 0x4000, v{rA}')
    a(f'v_and_b32 v{r8}, 0xffffffe3, v{rA}'); a(f'v_and_b32 v{t0}, 1, v{c}'); a(f'v_lshl_add_u32 v{r8}, v{t0}, 4, v{r8}')
    a(f'v_and_b32 v{t0}, 6, v{c}'); a(f'v_lshl_add_u32 v{r8}, v{t0}, 1, v{r8}'); a(f'v_add_u32 v{r8+1}, 0x4000, v{r8}')
    a(f'v_lshl_add_u32 v{vo}, v{vo}, 10, v{t1}'); a(f's_lshl_b32 s{sT0}, s{sT2}, 8'); a(f's_lshr_b32 s{sT1}, s4, 1'); a(f's_lshl_b32 s{sT1}, s{sT1}, 7')
    a(f's_add_u32 s{sT0}, s{sT0}, s{sT1}'); a(f'v_add_u32 v{vo}, s{sT0}, v{vo}')
    tmp = (lane, c, g, t0, t1)
    young = hooks['pre'](a, tmp)
    if opt.get('wm', 0):
        for n in range(16):
            a(f's_waitcnt vmcnt({opt["wm"]-1+young})')
            for x in units[1][0][3*n:3*n+3]: a(x)
    for U in range(8):
        if U == 7 and opt.get('sl', 0):
            rd, tr = units[7][1], units[7][2]
            h = (len(tr) - 1) // 2
            a(f's_waitcnt vmcnt({8 + hooks["n6"]})')
            a('s_barrier')
            for x in rd[:16]: a(x)
            a('s_waitcnt lgkmcnt(0)')
            a('s_barrier')
            for x in tr[:h]: a(x)
            units[7] = (None, rd[16:], tr[h:])
        a(f's_waitcnt vmcnt({(16 if U < 7 else 0) + young})')
        if opt.get('ustamp'): a(f's_memrealtime s[{72+2*U}:{73+2*U}]')
        a('s_barrier')
        for x in units[U][1]: a(x)
        a('s_waitcnt lgkmcnt(0)')
        a('s_barrier')
        if ('b', U) in hooks: hooks[('b', U)](a, tmp)
        wm = opt.get('wm', 0)
        tr = units[U][2]
        if U + 2 < 8 and wm:
            iss = units[U+2][0]; per = -(-len(tr) // 16)
            for n in range(16):
                a(f's_waitcnt vmcnt({wm-1})')
                for x in iss[3*n:3*n+3]: a(x)
                for x in tr[per*n:per*(n+1)]: a(x)
            tr = []
        elif U + 2 < 8:
            for x in units[U+2][0]: a(x)
        young = hooks[U](a, tmp) if U in hooks else 0
        for x in tr: a(x)

def stream(a, items, RING0, RN, maxload=60, older=0, hooks={}):
    n = len(items)
    pos = []; head = 0
    issued = 0; consumed = 0
    used = 0; infl = 0
    alloc = {}
    while consumed < n:
        while issued < n:
            iss, nl, nr, con = items[issued]
            h = head
            waste = 0
            if h + nr > RN: waste = RN - h; h = 0
            if used + waste + nr > RN or infl + nl > (maxload - older if consumed == 0 else maxload): break
            alloc[issued] = (h, waste + nr)
            for x in iss(RING0 + h): a(x)
            head = h + nr; used += waste + nr; infl += nl; issued += 1
        if consumed in hooks: hooks[consumed](a)
        iss, nl, nr, con = items[consumed]
        infl -= nl
        a(f's_waitcnt vmcnt({infl})')
        for x in con(RING0 + alloc[consumed][0]): a(x)
        used -= alloc[consumed][1]
        consumed += 1

def team_consts(a, tmp, RS=REP_ST):
    lane, c, g, t0, t1 = tmp
    a(f's_mov_b32 s{sPOI}, {POISON:#x}')
    scl = (128 ** -0.5) * math.log2(math.e)
    import struct
    a(f's_mov_b32 s{sSCL}, {struct.unpack("<I", struct.pack("<f", scl))[0]:#x}')
    a(f's_mov_b32 s{sHALF}, 0xcccccccc'); a(f's_mov_b32 s{sHALF+1}, 0xcccccccc')
    a(f's_mov_b32 s{sPEX}, 0x000f000f'); a(f's_mov_b32 s{sPEX+1}, 0x000f000f')
    a(f's_lshr_b32 s{sFO}, s5, 1'); a(f's_lshl_b32 s{sFO}, s{sFO}, 6'); a(f's_add_u32 s{sFO}, s{sFO}, {WS_PF}')
    a(f's_mov_b32 s{sEVEN}, 0x0000ffff'); a(f's_mov_b32 s{sEVEN+1}, 0x0000ffff')
    a(f'v_mov_b32 v{t0}, 0x4444'); a(f'v_mov_b32 v{t1}, 0xeeee')
    a(f'v_cndmask_b32 v{IDX}, v{t0}, v{t1}, s[{sHALF}:{sHALF+1}]')
    a(f's_lshl_b32 s{sM0}, s4, 11')
    a(f's_lshl_b32 s{sKS}, s4, 6')
    for r in range(4): a(f'v_mov_b32 v{POI4+r}, s{sPOI}')
    a(f's_lshl_b32 s{sT0}, s4, 16'); a(f's_lshl_b32 s{sT1}, s5, 6'); a(f's_add_u32 s{sT0}, s{sT0}, s{sT1}')
    a(f'v_lshrrev_b32 v{t0}, 3, v{lane}'); a(f'v_lshlrev_b32 v{t0}, 13, v{t0}')
    a(f'v_and_b32 v{t1}, 7, v{c}'); a(f'v_lshl_add_u32 v{t0}, v{t1}, 3, v{t0}'); a(f'v_add_u32 v{PST}, s{sT0}, v{t0}')
    a(f's_lshr_b32 s{sT0}, s5, 3'); a(f's_lshl_b32 s{sT0}, s{sT0}, 9'); a(f's_add_u32 s{sT0}, s{sT0}, s{sM0}')
    a(f's_and_b32 s{sT1}, s5, 1'); a(f's_lshl_b32 s{sT1}, s{sT1}, 8'); a(f's_add_u32 s{sT0}, s{sT0}, s{sT1}')
    a(f's_and_b32 s{sT1}, s5, 6'); a(f's_lshl_b32 s{sT1}, s{sT1}, 5'); a(f's_add_u32 s{sT0}, s{sT0}, s{sT1}')
    a(f'v_and_b32 v{t0}, 3, v{c}'); a(f'v_lshlrev_b32 v{t0}, 2, v{t0}'); a(f'v_lshl_add_u32 v{t0}, v{g}, 4, v{t0}'); a(f'v_add_u32 v{t0}, s{sT0}, v{t0}')
    a(f'v_and_b32 v{t1}, 1, v{c}')
    if RS: a(f'v_lshrrev_b32 v{PUB}, 2, v{c}'); a(f'v_mul_u32_u24 v{PUB}, {RS}, v{PUB}'); a(f'v_add_u32 v{PUB}, v{PUB}, v{t0}')
    else: a(f'v_mov_b32 v{PUB}, 0x7fffff00'); a(f'v_cmp_gt_u32 vcc, 4, v{c}'); a(f'v_cndmask_b32 v{PUB}, v{PUB}, v{t0}, vcc')
    a(f'v_mul_u32_u24 v{t0}, {2*XS}, v{g}'); a(f'v_lshl_add_u32 v{t0}, v{c}, 2, v{t0}'); a(f'v_add_u32 v{t0}, s{sKS}, v{t0}')
    a(f'v_add_u32 v{XW}, {L_QX}, v{t0}')
    mm = 108
    a(f'v_lshrrev_b32 v{mm}, 2, v{c}'); a(f'v_lshl_add_u32 v{mm}, v{mm}, 1, v{t1}')
    a(f'v_mul_u32_u24 v{t0}, {XS}, v{mm}'); a(f'v_add_u32 v{t0}, {L_QX}, v{t0}')
    a(f'v_lshl_add_u32 v{QR}, v{g}, 4, v{t0}')
    a(f'v_lshl_add_u32 v{OR_}, v{g}, 5, v{t0}'); a(f'v_and_b32 v{mm}, 2, v{c}'); a(f'v_lshl_add_u32 v{OR_}, v{mm}, 3, v{OR_}')
    a(f'v_mov_b32 v{t0}, 0x3f80'); a(f'v_lshlrev_b32 v{mm}, 4, v{t1}'); a(f'v_lshlrev_b32 v{t0}, v{mm}, v{t0}')
    a(f'v_lshrrev_b32 v{mm}, 1, v{c}')
    for r in range(4):
        a(f'v_cmp_eq_u32 vcc, {2*r}, v{mm}'); a(f'v_cndmask_b32 v{SELA+r}, 0, v{t0}, vcc')
    a(f'v_mov_b32 v{ONES}, 0x3f803f80'); a(f'v_mov_b32 v{ONES+1}, 0x3e803e80'); a(f'v_mov_b32 v{ONES+2}, 0x3f803f80'); a(f'v_mov_b32 v{ONES+3}, 0x3e803e80')
    a(f's_mov_b32 s{sSTEP}, 0')
    a(f's_mov_b32 s{sSLOT}, {WS_SLOT:#x}'); a(f's_mov_b32 s{sSLOTN}, {WS_SLOT+SLOT_ST:#x}'); a(f's_mov_b32 s{sSLOTP}, {WS_SLOT+2*SLOT_ST:#x}')
    a(f's_mov_b32 s{sINB}, {WS_INB:#x}')
    a(f's_lshl_b32 s{sINB2}, s5, 13'); a(f's_add_u32 s{sINB2}, s{sINB2}, s{sM0}'); a(f's_add_u32 s{sINB2}, s{sINB2}, {WS_INB:#x}')
    a(f's_lshl_b32 s{sKV}, s5, 13'); a(f's_add_u32 s{sKV}, s{sKV}, {WS_KF:#x}')
    a(f's_lshl_b32 s{sKM}, s5, 12'); a(f's_lshl_b32 s{sT0}, s4, 10'); a(f's_add_u32 s{sKM}, s{sKM}, s{sT0}'); a(f's_add_u32 s{sKM}, s{sKM}, {WS_KM - 32*4096:#x}')
    a(f's_add_u32 s{sKV}, s{sKV}, s{sM0}')
    a(f's_lshr_b32 s{sT0}, s4, 1'); a(f's_lshl_b32 s{sT0}, s{sT0}, 5'); a(f's_add_u32 s{sMK}, s{sM0}, s{sT0}')
    a(f's_add_u32 s{sMV}, s{sM0}, {L_V}')

def team_init1(a, tmp):
    lane, c, g, t0, t1 = tmp
    WS = srd(sWS)
    load_srd(a, 64, 'mem0')
    for o in (0, 1024):
        a(f'buffer_store_dwordx4 {vr(POI4,4)}, v{L16}, {WS}, s{sINB2} offen offset:{o} sc1')
    a(f's_and_b32 s{sT0}, s5, 6'); a(f's_lshl_b32 s{sT0}, s{sT0}, 10'); a(f's_lshr_b32 s{sT1}, s5, 3'); a(f's_lshl_b32 s{sT1}, s{sT1}, 6')
    a(f's_add_u32 s{sT0}, s{sT0}, s{sT1}'); a(f's_lshl_b32 s{sT1}, s4, 8'); a(f's_add_u32 s{sT0}, s{sT0}, s{sT1}')
    a(f's_and_b32 s{sT1}, s5, 1'); a(f's_lshl_b32 s{sT1}, s{sT1}, 5'); a(f's_add_u32 s{sT0}, s{sT0}, s{sT1}')
    a(f'v_and_b32 v{t0}, 1, v{g}'); a(f'v_lshlrev_b32 v{t0}, 10, v{t0}'); a(f'v_and_b32 v{t1}, 3, v{c}'); a(f'v_lshl_add_u32 v{t0}, v{t1}, 2, v{t0}')
    a(f'v_lshrrev_b32 v{t1}, 1, v{g}'); a(f'v_lshl_add_u32 v{t0}, v{t1}, 4, v{t0}')
    a('s_waitcnt lgkmcnt(0)')
    a(f'buffer_load_dword v99, v{t0}, {srd(64)}, s{sT0} offen')
    a(f'buffer_store_dword v{POI4}, v{PUB}, {WS}, s{sSLOTN} offen sc1')
def team_init2(a):
    a(f's_mov_b32 s{sT0}, {WS_SLOT:#x}')
    a(f'buffer_store_dword v99, v{PUB}, {srd(sWS)}, s{sT0} offen sc1')

sAV = 7
L_FL = L_V + 8192
assert L_FL + 256 <= LDS_MISC
def kv_lane(a, t):
    a(f'v_bfe_u32 v{t+2}, v{L16}, 4, 3'); a(f'v_min_u32 v{t+2}, 6, v{t+2}')
    a(f'v_bfe_u32 v{t}, v{L16}, 7, 1'); a(f'v_lshl_add_u32 v{t}, v{t}, 3, v{t+2}'); a(f'v_lshlrev_b32 v{t}, 2, v{t}')
def kv_addr(a, t): kv_lane(a, t)
def kv_issue(a, t): a(f'buffer_load_dword v{t+1}, v{t}, {srd(sWS)}, s{sFO} offen sc1')
def kv_eval(a, t):
    a(f'v_mad_u32_u24 v{t+1}, v{t+1}, 7, v{t+2}')
    for rot in (8, 4, 2, 1): a(f'v_min_u32_dpp v{t+1}, v{t+1}, v{t+1} row_ror:{rot} row_mask:0xf bank_mask:0xf')
    a(f'v_readfirstlane_b32 s{sAV}, v{t+1}')
def kv_wait(a, tag, need_s, t):
    kv_addr(a, t)
    a(f's_mov_b32 s{sSPIN}, 0')
    a.label(tag)
    kv_issue(a, t)
    a('s_waitcnt vmcnt(0)')
    kv_eval(a, t)
    a(f's_add_u32 s{sSPIN}, s{sSPIN}, 1'); a(f's_cmp_ge_u32 s{sSPIN}, {SPIN_MAX}'); a('s_cbranch_scc1 L_fail')
    a(f's_cmp_ge_u32 s{need_s}, s{sAV}')
    a(f's_cbranch_scc1 {tag}')
    a(f's_mov_b32 s{sSPIN}, 0')

def team_first_issue(a, d):
    a(f's_mov_b32 s{sKB}, {L_K0}'); a(f's_mov_b32 s{sKD}, {L_K0}')
    for g in k_dma(False) + v_dma() + [[f's_mov_b32 s{sKD}, {L_K1}']] + k_dma():
        for x in g: a(x)

def team_warm(a, d, tlb=True):
    if tlb:
        a(f'v_lshlrev_b32 v{d+1}, 16, v{L16}'); a(f's_mov_b32 s{sT2}, 0x600000')
        a(f'buffer_load_dword v{d}, v{d+1}, {srd(sWS)}, s{sT2} offen sc1')
    a(f's_and_b32 s{sT2}, s5, 3'); a(f's_lshl_b32 s{sT2}, s{sT2}, 11'); a(f's_mul_i32 s{sT0}, s4, {SLOT_ST:#x}'); a(f's_add_u32 s{sT2}, s{sT2}, s{sT0}'); a(f's_add_u32 s{sT2}, s{sT2}, {WS_SLOT:#x}')
    a(f's_xor_b32 s{sT0}, s{sINB2}, 0x40000')
    for so in (sT2, sINB2, sT0):
        for o in (0, 1024): a(f'buffer_load_dwordx4 {vr(d,4)}, v{L16}, {srd(sWS)}, s{so} offen offset:{o} sc1')

def team_first_kv(a):
    a(f's_lshl_b32 s{sTL}, s5, 2'); a(f's_add_u32 s{sTL}, s{sTL}, {WS_TL}')
    for x in kx_addr(MEMF+21, MEMF+22): a(x)
    for z in range(12): a(z2(ACQ+2*z))
    a('s_waitcnt vmcnt(0)')
    a('s_barrier')
    a(f'v_add_u32 v{MEMF+23}, s{sMV}, v{L16}')
    for r in (VB+3, VB+7, VB+11, VB+15): a(f'v_mov_b32 v{r}, 0')
    for x in kv_reads(MEMF+21, MEMF+23): a(x)
    a(f's_mov_b32 s{sKB}, {L_K1}'); a(f's_mov_b32 s{sKD}, {L_K0}')
    a('s_waitcnt lgkmcnt(0)')
```

```python
from asmlib import *
from common import *
from team import stream
import math, struct
def fbits(x): return struct.unpack("<I", struct.pack("<f", x))[0]
L16 = 0
sIDX = 6
sPLO, sPHI = 37, 38
XST = 1056; XT = 32*XST
def mfm(d, A, B, C, fa='v', fb='v'): return f'v_mfma_f32_16x16x32_bf16 {vr(d,4)}, {vr(A,4,fa)}, {vr(B,4,fb)}, {C}'

def wload_items(S0, S1, va0, va1, stride, nk, dst, kbase_s, sT, imm1=0):
    items = []
    for kk in range(nk):
        for j in range(4):
            def iss(r, kk=kk, j=j):
                off = (32*kk + 2*j)*stride
                o = [f's_add_u32 s{sT}, s{kbase_s}, {off:#x}',
                     f'buffer_load_dword v{r}, v{va0}, {srd(S0)}, s{sT} offen',
                     f'buffer_load_dword v{r+1}, v{va0+1}, {srd(S0)}, s{sT} offen']
                if S1 is not None:
                    o += [f'buffer_load_dword v{r+2}, v{va1}, {srd(S1)}, s{sT} offen offset:{imm1}',
                          f'buffer_load_dword v{r+3}, v{va1+1}, {srd(S1)}, s{sT} offen offset:{imm1}']
                return o
            def con(r, kk=kk, j=j):
                o = []
                for T in range(4 if S1 is not None else 2):
                    b = r + 2*(T >> 1); sel = sPHI if T & 1 else sPLO
                    f, d = dst(kk, T, j)
                    if f == 'v': o.append(f'v_perm_b32 v{d}, v{b+1}, v{b}, s{sel}')
                    else: o += [f'v_perm_b32 v{8+(T&1)}, v{b+1}, v{b}, s{sel}', f'v_accvgpr_write_b32 a{d}, v{8+(T&1)}']
                return o
            n = 4 if S1 is not None else 2
            items.append((iss, n, n, con))
    return items

vC, vG, vA0, vA1, vRD = 1, 2, 4, 6, 3
ACC = 16
FR = 48
EP = 72
RING, RN = 104, 128
sTILE, sSTR, sBUF, sDST, sT0, sT1, sT2, sKB, sCNT, sW8, sNB, sDM = range(40, 52)
sCOL = 55

WST = [False]
PAUSE = [None]
REPORT = [None]
OPT = {}
def wstamp(a, i):
    if WST[0]:
        a('s_memrealtime s[92:93]'); a('s_memtime s[94:95]'); a('s_waitcnt lgkmcnt(0)')
        a('s_lshl_b32 s60, s6, 7'); a(f's_add_u32 s60, s60, {WS_DBG + 0x8000:#x}')
        if i < 0:
            a('s_min_u32 s61, s54, 2'); a('s_mul_i32 s61, s61, 12'); a('s_add_u32 s60, s60, s61'); i = -i - 1
        a('v_mov_b32 v20, s92'); a('v_mov_b32 v21, s94')
        a(f'buffer_store_dword v20, off, {srd(sWS)}, s60 offset:{4*i}')
        a(f'buffer_store_dword v21, off, {srd(sWS)}, s60 offset:{64+4*i}')
        a('s_waitcnt vmcnt(0)')

def touch(a, srds, stride, col_s, blk_s, t=10):
    a(f'v_lshrrev_b32 v{t}, 4, v{L16}'); a(f'v_mul_u32_u24 v{t}, {stride}, v{t}'); a(f'v_add_u32 v{t}, s{col_s}, v{t}')
    a(f's_mul_i32 s{sT2}, s{blk_s}, {64*stride:#x}')
    a(f's_mov_b32 s{sT1}, {7*64*stride:#x}')
    for S in srds:
        a(f'buffer_load_dword v{t+1}, v{t}, {srd(S)}, s{sT2} offen')
        a(f'buffer_load_dword v{t+1}, v{t}, {srd(S)}, s{sT1} offen')

def x_dma(a, tile_s, buf_s):
    a(f's_lshl_b32 s{sT0}, s{tile_s}, 15')
    a(f's_lshl_b32 s{sT1}, s4, 13'); a(f's_add_u32 s{sT0}, s{sT0}, s{sT1}')
    a(f's_add_u32 s{sT1}, s{buf_s}, s{sW8}')
    for r in range(8):
        a(f's_add_u32 m0, s{sT1}, {r*XST}')
        if r: a(f's_add_u32 s{sT0}, s{sT0}, 1024')
        a(f'buffer_load_dwordx4 v{L16}, {srd(sC)}, s{sT0} offen lds')

def wload_dma(a, S, NS=24):
    va, r0, t = vA0, vA1, 10
    a(f'v_lshrrev_b32 v{t}, 9, v{L16}'); a(f'v_bfe_u32 v{va}, v{L16}, 7, 2'); a(f'v_lshl_add_u32 v{va}, v{va}, 3, v{t}')
    a(f'v_and_b32 v{t}, 0x70, v{L16}'); a(f'v_lshl_add_u32 v{va}, v{va}, 13, v{t}'); a(f'v_add_u32 v{va}, s{sCOL}, v{va}')
    a(f's_mul_i32 s{sCNT}, s4, {NS*1024}'); a(f's_add_u32 s{sCNT}, s{sCNT}, {XT}')
    def iss(n): return [f's_add_u32 m0, s{sCNT}, {(n % NS)*1024}', f's_mov_b32 s{sT2}, {(32*(n >> 2) + 2*(n & 3))*8192:#x}',
                        f'buffer_load_dwordx4 v{va}, {srd(S)}, s{sT2} offen lds']
    for n in range(NS):
        for x in iss(n): a(x)
    REPORT[0](a, 11)
    a(f'v_lshlrev_b32 v{r0}, 7, v{vG}'); a(f'v_lshl_add_u32 v{r0}, v{vC}, 2, v{r0}'); a(f'v_add_u32 v{r0}, s{sCNT}, v{r0}'); a(f'v_add_u32 v{r0+1}, 64, v{r0}')
    def reads(kk):
        R = RING + (kk & 1)*16
        for j in range(4):
            o = ((4*kk+j) % NS)*4
            for pl in range(2): a(f'ds_read2st64_b32 {vr(R+4*j+2*pl,2)}, v{r0+pl} offset0:{o} offset1:{o+2}')
    a(f's_waitcnt vmcnt({NS - 4})')
    reads(0)
    for kk in range(16):
        n0 = 4*kk
        a(f's_waitcnt vmcnt({max(0, min(64, n0+NS) - (n0+8))}) lgkmcnt(0)')
        if kk < 15: reads(kk+1)
        R = RING + (kk & 1)*16
        nxt = list(range(n0+NS, min(64, n0+NS+4)))
        for j in range(4):
            if j < len(nxt):
                for x in iss(nxt[j]): a(x)
            for T in range(4):
                b = R + 4*j + 2*(T >> 1)
                a(f'v_perm_b32 v{8+(T&1)}, v{b+1}, v{b}, s{sPHI if T & 1 else sPLO}'); a(f'v_accvgpr_write_b32 a{(kk*4+T)*4+j}, v{8+(T&1)}')

def gemm(a, kind, tag, pre_loop):
    T_ = lambda n: f'{tag}_{n}'
    WS = srd(sWS)
    stride = 2752 if kind == 'F' else 8192
    if kind == 'F' or OPT.get('wt', 0): touch(a, [sA, sB] if kind == 'F' else [sA], stride, sCOL, sTILE)
    a('s_barrier')
    a(f's_mov_b32 s{sNB}, s{sTILE}')
    def xpre(bs):
        for b in bs:
            a(f's_mov_b32 s{sBUF}, {b*XT}')
            x_dma(a, sNB, sBUF)
            a(f's_add_u32 s{sNB}, s{sNB}, s{sSTR}')
    nst = {'F': 2, 'V': 5, 'K': 7}[kind]
    a('s_mov_b32 s57, 0')
    if kind == 'F':
        xpre((0, 1, 2))
        items = wload_items(sA, sB, vA0, vA1, stride, 16, lambda kk, T, j: ('a', (kk*4+T)*4+j), sKB, sT2, imm1=0)
        stream(a, items, RING, RN, maxload=60, older=28)
        wstamp(a, -2)
        a(f's_mov_b32 s{sBUF}, 0')
    else:
        xpre((0,))
        wload_dma(a, sA)
        wstamp(a, -2)
        a('s_barrier')
        xpre((1, 2))
        a(f's_mov_b32 s{sBUF}, 0')
        a(f's_branch {T_("in")}')
    a.label(T_('loop'))
    if kind != 'F':
        a('s_cmp_lg_u32 s57, s54')
        a(f's_cbranch_scc1 {T_("nd")}')
        a('s_waitcnt vmcnt(0)')
        pre_loop(a)
        a.label(T_('nd'))
    a(f's_waitcnt vmcnt({8 + nst})')
    a('s_barrier')
    if kind != 'F':
        a('s_sub_u32 s59, s57, 1'); a(f's_min_i32 s{sT0}, s57, 1'); a(f's_max_i32 s59, s59, s{sT0}')
        a(f'v_mov_b32 v8, s59')
        a(f'buffer_store_dword v8, off, {WS}, s56 sc1')
        a.label(T_('in'))
        a('s_add_u32 s57, s57, 1')
    a(f'v_add_u32 v{EP}, s{sBUF}, v{vRD}')
    def rd(kk, rt): return f'ds_read_b128 {vr(FR+((kk%3)*2+rt)*4,4)}, v{EP} offset:{rt*16*XST + kk*64}'
    for kk in (0, 1):
        a(rd(kk, 0)); a(rd(kk, 1))
    a(f's_add_u32 s{sT2}, s{sBUF}, {3*XT}'); a(f's_cmp_ge_u32 s{sT2}, {4*XT}'); a(f's_cselect_b32 s{sCNT}, {4*XT}, 0'); a(f's_sub_u32 s{sT2}, s{sT2}, s{sCNT}')
    x_dma(a, sNB, sT2)
    a(f's_add_u32 s{sNB}, s{sNB}, s{sSTR}')
    for kk in range(16):
        n = 0
        for rt in range(2):
            for T in range(4):
                d = ACC + (rt*4+T)*4; x = FR + ((kk % 3)*2+rt)*4; w = (kk*4+T)*4
                C = '0' if kk == 0 else vr(d, 4)
                a(mfm(d, x, w, C, 'v', 'a') if kind == 'V' else mfm(d, w, x, C, 'a', 'v'))
                if kk + 2 < 16 and n in (1, 3): a(rd(kk+2, n >> 1))
                n += 1
    if kind != 'F':
        a('s_cmp_lg_u32 s57, s98')
        a(f's_cbranch_scc1 {T_("np")}')
        PAUSE[0](a, T_('pz'))
        a.label(T_('np'))
    a(f's_mul_i32 s{sT0}, s{sTILE}, s{sDM}'); a(f's_add_u32 s{sT0}, s{sT0}, s{sDST}')
    ac = lambda rt, T, r: ACC + (rt*4+T)*4 + r
    if kind == 'K':
        a(f's_lshl_b32 s{sT1}, s{sTILE}, 17'); a(f's_add_u32 s{sT1}, s{sT1}, s58')
        for o in (0, 1024): a(f'buffer_store_dwordx4 v[12:15], v{L16}, {WS}, s{sT1} offen offset:{o} sc1 {OPT.get("p1f", "")}')
        a(f's_add_u32 s{sT1}, s{sT0}, 4096')
        for rt in range(2):
            for u in range(2):
                e = EP + 4 + (rt*2+u)*4
                for r in range(4): a(f'v_cvt_pk_bf16_f32 v{e+r}, v{ac(rt,2*u,r)}, v{ac(rt,2*u+1,r)}')
                a(f'buffer_store_dwordx4 {vr(e,4)}, v{L16}, {WS}, s{sT1 if rt else sT0} offen offset:{u*1024} sc1 {OPT.get("p1f", "")}')
    elif kind == 'V':
        for T in range(4):
            e = EP + 4 + T*4
            for rt in range(2):
                for p in range(2): a(f'v_cvt_pk_bf16_f32 v{e+rt*2+p}, v{ac(rt,T,2*p)}, v{ac(rt,T,2*p+1)}')
            a(f'buffer_store_dwordx4 {vr(e,4)}, v{L16}, {WS}, s{sT0} offen offset:{T*1024} sc1 {OPT.get("p1f", "")}')
    else:
        a(f's_add_u32 s{sT1}, s{sT0}, {43*1024}')
        a(f's_mov_b32 s{sT2}, {fbits(-math.log2(math.e)):#x}')
        for rt in range(2):
            e = EP + 4 + rt*4; t = EP + 12
            G = [ac(rt, tt, r) for r in range(4) for tt in range(2)]
            U = [ac(rt, 2+tt, r) for r in range(4) for tt in range(2)]
            def rnd(L):
                for r in range(4): a(f'v_cvt_pk_bf16_f32 v{t+8+r}, v{L[2*r]}, v{L[2*r+1]}')
                for r in range(4):
                    a(f'v_lshlrev_b32 v{L[2*r]}, 16, v{t+8+r}'); a(f'v_and_b32 v{L[2*r+1]}, 0xffff0000, v{t+8+r}')
            rnd(G); rnd(U)
            for i in range(8): a(f'v_mul_f32 v{t+i}, s{sT2}, v{G[i]}')
            for i in range(8): a(f'v_exp_f32 v{t+i}, v{t+i}')
            for i in range(8): a(f'v_add_f32 v{t+i}, 1.0, v{t+i}')
            for i in range(8): a(f'v_rcp_f32 v{t+i}, v{t+i}')
            for i in range(8): a(f'v_mul_f32 v{G[i]}, v{G[i]}, v{t+i}')
            rnd(G)
            for i in range(8): a(f'v_mul_f32 v{G[i]}, v{G[i]}, v{U[i]}')
            for r in range(4): a(f'v_cvt_pk_bf16_f32 v{e+r}, v{G[2*r]}, v{G[2*r+1]}')
            a(f'buffer_store_dwordx4 {vr(e,4)}, v{L16}, {WS}, s{sT1 if rt else sT0} offen sc1')
    if OPT.get('tsl'): a(f's_sleep {OPT["tsl"]}')
    a(f's_add_u32 s{sBUF}, s{sBUF}, {XT}'); a(f's_cmp_ge_u32 s{sBUF}, {4*XT}'); a(f's_cselect_b32 s{sBUF}, 0, s{sBUF}')
    a(f's_add_u32 s{sTILE}, s{sTILE}, s{sSTR}')
    a(f's_cmp_lt_u32 s{sTILE}, 64')
    a(f's_cbranch_scc1 {T_("loop")}')

def set_flag(a, val, base, tag):
    a('s_waitcnt vmcnt(0)')
    a('s_barrier')
    a('s_cmp_lg_u32 s4, 0')
    a(f's_cbranch_scc1 {tag}')
    a(f's_lshl_b32 s{sT0}, s{sIDX}, 2')
    a(f'v_mov_b32 v8, {val}')
    a(f'buffer_store_dword v8, off, {srd(sWS)}, s{sT0} offset:{base} sc1')
    a.label(tag)

def worker_lane_consts(a):
    a('v_and_b32 v3, 63, v0')
    a(f'v_and_b32 v{vC}, 15, v3'); a(f'v_lshrrev_b32 v{vG}, 4, v3'); a(f'v_lshlrev_b32 v{L16}, 4, v3')
    a(f'v_mul_u32_u24 v{vRD}, {XST}, v{vC}'); a(f'v_lshl_add_u32 v{vRD}, v{vG}, 4, v{vRD}')
    a(f's_mov_b32 s{sPLO}, 0x05040100'); a(f's_mov_b32 s{sPHI}, 0x07060302')
    a(f's_mul_i32 s{sW8}, s4, {8*XST}')
    a(f's_mov_b32 s{sKB}, 0')
    for r in range(4): a(f'v_mov_b32 v{12+r}, {POISON:#x}')

def waddr(a, stride, col_s):
    a(f's_mov_b32 s{sCOL}, s{col_s}')
    a(f'v_mul_u32_u24 v{vA0}, {8*stride}, v{vG}'); a(f'v_lshl_add_u32 v{vA0}, v{vC}, 2, v{vA0}'); a(f'v_add_u32 v{vA0}, s{col_s}, v{vA0}')
    a(f'v_add_u32 v{vA0+1}, {stride}, v{vA0}')
    a(f'v_mov_b32 v{vA1}, v{vA0}'); a(f'v_mov_b32 v{vA1+1}, v{vA0+1}')

def qkv_setup(a, hp_s, wname, base):
    load_srd(a, sA, wname); load_srd(a, sB, wname)
    a(f's_lshl_b32 s{sT0}, s{hp_s}, 9'); a(f's_lshl_b32 s{sT1}, s4, 7'); a(f's_add_u32 s{sT0}, s{sT0}, s{sT1}')
    waddr(a, 8192, sT0)
    a(f's_lshl_b32 s{sDST}, s{hp_s}, 14'); a(f's_lshr_b32 s{sT1}, s4, 1'); a(f's_lshl_b32 s{sT1}, s{sT1}, 13'); a(f's_add_u32 s{sDST}, s{sDST}, s{sT1}')
    a(f's_and_b32 s{sT1}, s4, 1'); a(f's_lshl_b32 s{sT1}, s{sT1}, {12 if wname == "Wv" else 11}'); a(f's_add_u32 s{sDST}, s{sDST}, s{sT1}')
    a(f's_add_u32 s{sDST}, s{sDST}, {base:#x}')
    a(f's_mov_b32 s{sDM}, {32*8192:#x}')
    a('s_waitcnt lgkmcnt(0)')

def phase1(a, ready_wait):
    worker_lane_consts(a)
    wstamp(a, 1)
    load_srd(a, sC, 'x')
    sSL = 52
    a(f's_mul_hi_u32 s{sSL}, s{sIDX}, {-(-(1 << 32)//7):#x}'); a(f's_mul_i32 s{sT0}, s{sSL}, 7'); a(f's_sub_u32 s{sTILE}, s{sIDX}, s{sT0}')
    a(f's_mov_b32 s{sSTR}, 7')
    a(f's_and_b32 s53, s{sSL}, 15')
    a(f's_mov_b32 s54, 1')
    a('s_lshl_b32 s56, s53, 4'); a(f's_lshr_b32 s{sT0}, s{sSL}, 4'); a(f's_lshl_b32 s{sT0}, s{sT0}, 3'); a(f's_add_u32 s56, s56, s{sT0}'); a(f's_add_u32 s56, s56, s{sTILE}')
    a('s_lshl_b32 s56, s56, 2'); a(f's_add_u32 s56, s56, {WS_PF}'); a('s_cmp_eq_u32 s4, 0'); a('s_cselect_b32 s56, s56, 0x7fffff00')
    a(f's_cmp_ge_u32 s{sTILE}, {OPT.get("rgl", 7)}'); a('s_cselect_b32 s98, 1, 2')
    a(f's_cmp_ge_u32 s{sSL}, 16')
    a('s_waitcnt lgkmcnt(0)')
    a('s_cbranch_scc1 W_v')
    qkv_setup(a, 53, 'Wk', WS_KF)
    a('s_lshl_b32 s58, s53, 13'); a(f's_lshl_b32 s{sT0}, s4, 11'); a(f's_add_u32 s58, s58, s{sT0}'); a(f's_add_u32 s58, s58, {WS_KM:#x}')
    a.label('W_kq')
    gemm(a, 'K', 'GK', lambda a: ready_wait(a, 'W_rdy1'))
    a('s_cmp_eq_u32 s54, 99')
    a('s_cbranch_scc1 W_r2done')
    a('s_branch W_r1done')
    a.label('W_v')
    qkv_setup(a, 53, 'Wv', WS_VF)
    gemm(a, 'V', 'GV', lambda a: ready_wait(a, 'W_rdy2'))
    a.label('W_r1done')
    a('s_waitcnt vmcnt(0)'); a('s_barrier'); a('v_mov_b32 v8, 100'); a(f'buffer_store_dword v8, off, {srd(sWS)}, s56 sc1')
    a('s_mov_b32 s98, -1')
    a('s_mov_b32 s56, 0x7fffff00'); a('s_mov_b32 s58, 0x70000000')
    wstamp(a, 5)
    a(f's_lshr_b32 s{sSL}, s{sIDX}, 3'); a(f's_and_b32 s{sTILE}, s{sIDX}, 7'); a(f's_mov_b32 s{sSTR}, 8')
    a('s_mov_b32 s54, 99')
    a(f's_cmp_ge_u32 s{sSL}, 27'); a('s_cbranch_scc1 W_gate')
    a(f's_cmp_ge_u32 s{sSL}, 16'); a('s_cbranch_scc1 W_ffn')
    qkv_setup(a, sSL, 'Wq', WS_QF)
    a('s_branch W_kq')
    a.label('W_ffn')
    load_srd(a, sA, 'Wg'); load_srd(a, sB, 'Wu')
    a(f's_sub_u32 s53, s{sSL}, 16'); a('s_lshl_b32 s53, s53, 2'); a('s_add_u32 s53, s53, s4'); a('s_min_u32 s53, s53, 42')
    a(f's_lshl_b32 s{sT0}, s53, 6')
    waddr(a, 2752, sT0)
    a(f's_lshl_b32 s{sDST}, s53, 10'); a(f's_add_u32 s{sDST}, s{sDST}, {WS_HF:#x}')
    a(f's_mov_b32 s{sDM}, {2*43*1024:#x}')
    a('s_waitcnt lgkmcnt(0)')
    gemm(a, 'F', 'GF', lambda a: None)
    a('s_branch W_r2done')
    a.label('W_gate')
    gate(a)
    a.label('W_r2done')
    set_flag(a, 1, WS_PF2, 'W_f2')
    wstamp(a, 8)

def gate(a):
    load_srd(a, sA, 'gw')
    a(f's_sub_u32 s{sT0}, s{sIDX}, 216'); a(f's_lshl_b32 s{sT0}, s{sT0}, 2'); a(f's_add_u32 s{sT0}, s{sT0}, s4')
    a(f's_lshl_b32 s{sT1}, s{sT0}, 16')
    a(f's_lshl_b32 s{sDST}, s{sT0}, 8'); a(f's_add_u32 s{sDST}, s{sDST}, {WS_G:#x}')
    a('s_waitcnt lgkmcnt(0)')
    GW, X, R, RES, LN = 12, 16, 80, 10, 11
    a(f'buffer_load_dwordx4 {vr(GW,4)}, v{L16}, {srd(sA)}, 0 offen')
    a(f'v_lshrrev_b32 v{LN}, 4, v{L16}')
    a(f'v_mov_b32 v{RES}, 0')
    a(f's_mov_b32 s{sCNT}, 0')
    a.label('WG_loop')
    for i in range(16):
        a(f'buffer_load_dwordx4 {vr(X+4*i,4)}, v{L16}, {srd(sC)}, s{sT1} offen')
        a(f's_add_u32 s{sT1}, s{sT1}, 1024')
    a('s_waitcnt vmcnt(0)')
    for i in range(16): a(f'v_dot2_f32_bf16 v{R+i}, v{X+4*i}, v{GW}, 0')
    for k in range(1, 4):
        for i in range(16): a(f'v_dot2_f32_bf16 v{R+i}, v{X+4*i+k}, v{GW+k}, v{R+i}')
    a('s_nop 3')
    for rot in (8, 4, 2, 1):
        for i in range(16): a(f'v_add_f32_dpp v{R+i}, v{R+i}, v{R+i} row_ror:{rot} row_mask:0xf bank_mask:0xf')
    for sw in ('v_permlane16_swap_b32', 'v_permlane32_swap_b32'):
        for i in range(16): a(f'v_mov_b32 v{X+i}, v{R+i}')
        for i in range(16): a(f'{sw} v{R+i}, v{X+i}')
        for i in range(16): a(f'v_add_f32 v{R+i}, v{R+i}, v{X+i}')
    for i in range(16):
        a(f's_add_u32 s{sT2}, s{sCNT}, {i}')
        a(f'v_cmp_eq_u32 vcc, s{sT2}, v{LN}')
        a(f'v_cndmask_b32 v{RES}, v{RES}, v{R+i}, vcc')
    a(f's_add_u32 s{sCNT}, s{sCNT}, 16'); a(f's_cmp_lt_u32 s{sCNT}, 64'); a('s_cbranch_scc1 WG_loop')
    a(f'v_cvt_pk_bf16_f32 v{RES}, v{RES}, v{RES}'); a(f'v_and_b32 v{RES}, 0xffff0000, v{RES}')
    a(f'v_mul_f32 v{RES}, {fbits(-math.log2(math.e)):#x}, v{RES}')
    a(f'v_exp_f32 v{RES}, v{RES}'); a(f'v_add_f32 v{RES}, 1.0, v{RES}'); a(f'v_rcp_f32 v{RES}, v{RES}')
    a(f'v_cvt_pk_bf16_f32 v{RES}, v{RES}, v{RES}'); a(f'v_and_b32 v{RES}, 0xffff0000, v{RES}')
    a(f'v_lshlrev_b32 v{LN}, 2, v{LN}')
    a(f'buffer_store_dword v{RES}, v{LN}, {srd(sWS)}, s{sDST} offen sc1')

def spin_ge(a, tag, load, nreg, dst, thr, lanes_ok=None, sleep=1):
    a('s_mov_b32 s62, 0')
    a.label(tag)
    a(load)
    a('s_waitcnt vmcnt(0)')
    if nreg == 4:
        a(f'v_min3_i32 v{dst}, v{dst}, v{dst+1}, v{dst+2}'); a(f'v_min_i32 v{dst}, v{dst}, v{dst+3}')
    a(f'v_cmp_gt_i32 vcc, {thr}, v{dst}')
    a(f's_cbranch_vccz {tag}_ok')
    if sleep: a(f's_sleep {sleep}')
    a('s_add_u32 s62, s62, 1')
    a(f's_cmp_lt_u32 s62, {SPIN_MAX}')
    a(f's_cbranch_scc1 {tag}')
    a('s_branch L_fail')
    a.label(tag + '_ok')

def phase2(a, opt):
    WS = srd(sWS)
    if opt.get('no_p1'): worker_lane_consts(a)
    sGI, sCU, sUN, sRND, sHD, sRH, sGF, sSCL, sEH, sQO, sOB, sPOI = range(63, 75)
    WD = 168
    load_srd(a, sA, 'Wo'); load_srd(a, sB, 'Wd'); load_srd(a, sD, 'out')
    a(f's_lshr_b32 s{sGI}, s{sIDX}, 4'); a(f's_and_b32 s{sCU}, s{sIDX}, 15')
    a(f's_lshl_b32 s{sT0}, s{sCU}, 6')
    waddr(a, 1024, sT0)
    a(f's_lshl_b32 s{sKB}, s4, 20')
    a(f's_mul_i32 s{sNB}, s4, {11*32*1024:#x}')
    a('s_waitcnt lgkmcnt(0)')
    items = wload_items(sA, None, vA0, None, 1024, 32, lambda kk, T, j: ('a', (kk*2+T)*4+j), sKB, sT2)
    items += wload_items(sB, None, vA0, None, 1024, 11, lambda kk, T, j: ('v', WD+(kk*2+T)*4+j), sNB, sT2)
    stream(a, items, 100, 64, maxload=60, older=2)
    wstamp(a, 9)
    MSK, KW, KR, RW, RR, OA_, FL = 4, 12, 13, 14, 15, 3, 17
    a(f's_lshr_b32 s{sT0}, s4, 1'); a(f's_lshl_b32 s{sHD}, s{sCU}, 1'); a(f's_add_u32 s{sHD}, s{sHD}, s{sT0}')
    a(f's_and_b32 s{sRH}, s{sGI}, 1'); a(f's_and_b32 s{sEH}, s4, 1')
    a(f's_mov_b32 s{sSCL}, {fbits((128 ** -0.5) * math.log2(math.e)):#x}')
    a(f's_mov_b32 s{sPOI}, {POISON:#x}')
    a(f's_lshl_b32 s{sT0}, s{sRH}, 4'); a(f'v_add_u32 v18, s{sT0}, v{vC}'); a(f'v_lshlrev_b32 v19, 2, v{vG}'); a('v_sub_u32 v18, v18, v19')
    a('v_mov_b32 v19, 0xff800000')
    for t in range(2):
        for r in range(4):
            a(f'v_cmp_gt_i32 vcc, {16*t+r}, v18'); a(f'v_cndmask_b32 v{MSK+4*t+r}, 0, v19, vcc')
    L_KM, L_RED = 0, 16384
    a(f's_mul_i32 s{sT0}, s4, 2304')
    a(f'v_mul_u32_u24 v{KW}, 576, v{vG}'); a(f'v_lshl_add_u32 v{KW}, v{vC}, 2, v{KW}'); a(f'v_add_u32 v{KW}, s{sT0}, v{KW}')
    a(f's_lshl_b32 s{sT1}, s{sEH}, 7'); a(f'v_add_u32 v16, s{sT1}, v{KW}')
    a(f's_xor_b32 s{sT1}, s{sT1}, 128'); a(f'v_add_u32 v{KW}, s{sT1}, v{KW}')
    a(f'v_lshrrev_b32 v18, 2, v{vC}'); a(f'v_and_b32 v19, 1, v{vC}'); a('v_lshl_add_u32 v18, v18, 1, v19')
    a(f'v_mul_u32_u24 v{KR}, 288, v18'); a(f'v_lshl_add_u32 v{KR}, v{vG}, 4, v{KR}'); a(f'v_add_u32 v{KR}, s{sT0}, v{KR}')
    a(f's_lshl_b32 s{sT0}, s4, 11'); a(f's_add_u32 s{sT0}, s{sT0}, {L_RED}'); a(f'v_add_u32 v{RW}, s{sT0}, v{L16}')
    a(f's_lshl_b32 s{sT2}, s4, 2'); a(f's_add_u32 s{sT1}, s{sT2}, {L_RED}'); a(f'v_add_u32 v{RR}, s{sT1}, v{L16}')
    a(f's_lshl_b32 s{sT1}, s{sCU}, 6'); a(f's_add_u32 s{sT1}, s{sT1}, s{sT2}')
    a(f'v_lshlrev_b32 v{OA_}, 10, v{vC}'); a(f'v_lshl_add_u32 v{OA_}, v{vG}, 4, v{OA_}'); a(f'v_add_u32 v{OA_}, s{sT1}, v{OA_}')
    a(f'v_lshlrev_b32 v{FL}, 2, v{vC}')
    a(f's_lshl_b32 s{sGF}, s{sGI}, 8'); a(f's_add_u32 s{sGF}, s{sGF}, {WS_GF:#x}')
    a(f's_lshl_b32 s{sOB}, s{sGI}, 18'); a(f's_add_u32 s{sOB}, s{sOB}, {WS_OF:#x}')
    a(f's_mov_b32 s{sUN}, s{sGI}'); a(f's_mov_b32 s{sRND}, 1')
    a(f'v_min_u32 v18, {55*16}, v{L16}')
    spin_ge(a, 'P2_pf', f'buffer_load_dwordx4 v[20:23], v18, {WS}, 0 offen offset:{WS_PF2} sc1', 4, 20, 1, sleep=8)
    wstamp(a, 10)
    AC, QQ, KK, VV, KVM, HH, S0, SM = 24, 32, 48, 80, 96, 112, 156, 164
    PX, PM, KMF, OC, OP = 112, 116, 120, 136, 48
    GG, BB = 18, 22
    def both(plain, tag):
        a(f's_cbranch_scc1 {tag}f')
        for x in plain: a(x + ' sc1')
        a(f's_branch {tag}e')
        a.label(tag + 'f')
        for x in plain: a(x)
        a.label(tag + 'e')
    a.label('P2_loop')
    a(f's_mul_i32 s{sT0}, s{sUN}, {43*1024:#x}'); a(f's_add_u32 s{sT0}, s{sT0}, {WS_HF:#x}')
    a(f's_mul_i32 s{sT1}, s4, 11')
    for i in range(11):
        a(f's_add_u32 s{sT2}, s{sT1}, {i}'); a(f's_min_u32 s{sT2}, s{sT2}, 42'); a(f's_lshl_b32 s{sT2}, s{sT2}, 10'); a(f's_add_u32 s{sT2}, s{sT2}, s{sT0}')
        a(f'buffer_load_dwordx4 {vr(HH+4*i,4)}, v{L16}, {WS}, s{sT2} offen sc1')
    a(f's_lshl_b32 s{sT0}, s{sUN}, 6'); a(f's_add_u32 s{sT0}, s{sT0}, {WS_G:#x}')
    a(f'buffer_load_dword v{GG}, v{FL}, {WS}, s{sT0} offen sc1')
    a(f's_lshr_b32 s{sT0}, s{sUN}, 1'); a(f's_lshl_b32 s{sT0}, s{sT0}, 5'); a(f's_add_u32 s{sT0}, s{sT0}, s{sHD}'); a(f's_lshl_b32 s{sQO}, s{sT0}, 13')
    a(f's_lshl_b32 s{sT0}, s{sRH}, 12'); a(f's_add_u32 s{sT0}, s{sT0}, s{sQO}'); a(f's_add_u32 s{sT0}, s{sT0}, {WS_QF:#x}')
    for j in range(4): a(f'buffer_load_dwordx4 {vr(QQ+4*j,4)}, v{L16}, {WS}, s{sT0} offen offset:{j*1024} sc1')
    a(f's_add_u32 s{sT0}, s{sQO}, {WS_KF:#x}'); a(f's_add_u32 s{sT1}, s{sT0}, 4096')
    for j in range(8): a(f'buffer_load_dwordx4 {vr(KK+4*j,4)}, v{L16}, {WS}, s{sT1 if j >= 4 else sT0} offen offset:{(j&3)*1024} sc1')
    a(f's_lshl_b32 s{sT0}, s{sEH}, 12'); a(f's_add_u32 s{sT0}, s{sT0}, s{sQO}'); a(f's_add_u32 s{sT0}, s{sT0}, {WS_VF:#x}')
    for j in range(4): a(f'buffer_load_dwordx4 {vr(VV+4*j,4)}, v{L16}, {WS}, s{sT0} offen offset:{j*1024} sc1')
    sK0, sK1 = 75, 76
    a(f's_lshr_b32 s{sK0}, s{sQO}, 1'); a(f's_add_u32 s{sK0}, s{sK0}, {WS_KM:#x}'); a(f's_lshl_b32 s{sT0}, s{sEH}, 11'); a(f's_add_u32 s{sK0}, s{sK0}, s{sT0}'); a(f's_xor_b32 s{sK1}, s{sK0}, 2048')
    kvl = [f'buffer_load_dwordx4 {vr(KVM+4*j,4)}, v{L16}, {WS}, s{sK1 if j >= 2 else sK0} offen offset:{(j&1)*1024} sc1' for j in range(4)]
    for x in kvl: a(x)
    for i in range(11):
        a(f's_waitcnt vmcnt({10 - i + 21})')
        for t in range(2): a(mfm(AC+4*t, WD+(i*2+t)*4, HH+4*i, '0' if i == 0 else vr(AC+4*t,4)))
    def reduce(dst, first):
        o = 0 if first else 8192
        for q in range(2): a(f'ds_write_b128 v{RW}, {vr(AC+4*q,4)} offset:{o + q*1024}')
        a('s_waitcnt lgkmcnt(0)')
        a('s_barrier')
        for w in range(4):
            for t in range(2): a(f'ds_read_b32 v{AC+2*w+t}, v{RR} offset:{o + w*2048 + t*1024}')
        a(f'v_pk_add_f32 {vr(AC,2)}, {vr(AC,2)}, {vr(AC+2,2)}'); a(f'v_pk_add_f32 {vr(AC+4,2)}, {vr(AC+4,2)}, {vr(AC+6,2)}')
        a(f'v_pk_add_f32 {vr(AC,2)}, {vr(AC,2)}, {vr(AC+4,2)}')
        rnd2(AC, dst)
    def rnd2(r, dst):
        a(f'v_cvt_pk_bf16_f32 v{AC+6}, v{r}, v{r+1}')
        a(f'v_lshlrev_b32 v{dst}, 16, v{AC+6}'); a(f'v_and_b32 v{dst+1}, 0xffff0000, v{AC+6}')
    reduce(BB, True)
    a('s_waitcnt vmcnt(8)')
    a(f'v_sub_f32 v19, 1.0, v{GG}'); a('v_cvt_pk_bf16_f32 v19, v19, v19'); a('v_and_b32 v19, 0xffff0000, v19')
    for j in range(4):
        for t in range(2): a(mfm(S0+4*t, KK+16*t+4*j, QQ+4*j, vr(MSK+4*t,4) if j == 0 else vr(S0+4*t,4)))
    for k in range(2): a(f'v_mul_f32 v{BB+k}, v19, v{BB+k}')
    rnd2(BB, BB)
    a(f'v_mov_b32 v{PM+1}, 0'); a(f'v_mov_b32 v{PM+2}, 0')
    a(f'v_max3_f32 v19, v{S0}, v{S0+1}, v{S0+2}'); a(f'v_max3_f32 v21, v{S0+4}, v{S0+5}, v{S0+6}'); a(f'v_max3_f32 v19, v19, v{S0+3}, v{S0+7}'); a('v_max_f32 v19, v19, v21')
    a('s_mov_b32 s62, 0')
    a.label('P2_kc')
    a('s_waitcnt vmcnt(0)')
    a(f'v_max3_u32 v20, v{KVM}, v{KVM+1}, v{KVM+2}')
    for k in range(3, 15, 2): a(f'v_max3_u32 v20, v20, v{KVM+k}, v{KVM+k+1}')
    a(f'v_max_u32 v20, v20, v{KVM+15}')
    a(f'v_cmp_eq_u32 vcc, s{sPOI}, v20')
    a('s_cbranch_vccz P2_kok')
    if opt.get('tfsleep', 2): a(f's_sleep {opt.get("tfsleep", 2)}')
    for x in kvl: a(x)
    a('s_add_u32 s62, s62, 1'); a(f's_cmp_lt_u32 s62, {SPIN_MAX}'); a('s_cbranch_scc1 P2_kc')
    a('s_branch L_fail')
    a.label('P2_kok')
    if opt.get('tst'): a('s_memrealtime s[78:79] ; nowait')
    for j in range(4):
        kw = KW if j >= 2 else 16
        a(f'ds_write_b32 v{kw}, v{KVM+4*j} offset:{L_KM + (j&1)*64}'); a(f'ds_write_b32 v{kw}, v{KVM+4*j+1} offset:{L_KM + (j&1)*64 + 288}')
    for j in range(4): a(f'ds_read_b128 {vr(KMF+4*j,4)}, v{KR} offset:{L_KM + j*64}')
    for j in range(4): a(mfm(SM, KMF+4*j, QQ+4*j, '0' if j == 0 else vr(SM,4)))
    t0, t1, t2, t3 = AC, AC+1, AC+2, AC+3
    a(f'v_max3_f32 v{t1}, v19, v{SM}, v{SM+1}'); a(f'v_max3_f32 v{t2}, v19, v{SM}, v{SM+1}')
    a(f'v_permlane32_swap_b32 v{t1}, v{t2}'); a(f'v_max_f32 v{t0}, v{t1}, v{t2}'); a(f'v_max_f32 v{t3}, v{t1}, v{t2}')
    a(f'v_permlane16_swap_b32 v{t0}, v{t3}'); a(f'v_max_f32 v{t0}, v{t0}, v{t3}')
    ex = [S0+i for i in range(8)] + [SM, SM+1]
    assert sSCL % 2 == 0 and t0 % 2 == 0
    for r in ex[::2]: a(f'v_pk_add_f32 {vr(r,2)}, {vr(r,2)}, {vr(t0,2)} op_sel_hi:[1,0] neg_lo:[0,1] neg_hi:[0,1]')
    for r in ex[::2]: a(f'v_pk_mul_f32 {vr(r,2)}, {vr(r,2)}, s[{sSCL}:{sSCL+1}] op_sel_hi:[1,0]')
    for r in ex: a(f'v_exp_f32 v{r}, v{r}')
    a(f'v_pk_add_f32 {vr(t0,2)}, {vr(S0,2)}, {vr(S0+2,2)}'); a(f'v_pk_add_f32 {vr(t2,2)}, {vr(S0+4,2)}, {vr(S0+6,2)}')
    a(f'v_pk_add_f32 {vr(t0,2)}, {vr(t0,2)}, {vr(SM,2)}'); a(f'v_pk_add_f32 {vr(t0,2)}, {vr(t0,2)}, {vr(t2,2)}')
    a(f'v_add_f32 v{t2}, v{t0}, v{t1}'); a(f'v_add_f32 v{t3}, v{t0}, v{t1}')
    a(f'v_permlane32_swap_b32 v{t2}, v{t3}'); a(f'v_add_f32 v{t0}, v{t2}, v{t3}'); a(f'v_add_f32 v{t1}, v{t2}, v{t3}')
    a(f'v_permlane16_swap_b32 v{t0}, v{t1}'); a(f'v_add_f32 v{t0}, v{t0}, v{t1}'); a(f'v_rcp_f32 v{t0}, v{t0}')
    for r in ex: a(f'v_mul_f32 v{r}, v{r}, v{t0}')
    for k in range(4): a(f'v_cvt_pk_bf16_f32 v{PX+k}, v{S0+2*k}, v{S0+2*k+1}')
    a(f'v_cvt_pk_bf16_f32 v{PM}, v{SM}, v{SM+1}'); a(f'v_cvt_pk_bf16_f32 v{PM+3}, v{SM}, v{SM+1}')
    for et in range(4): a(mfm(OC+4*et, VV+4*et, PX, '0'))
    for et in range(4):
        a(f'v_mfma_f32_16x16x16_bf16 {vr(OC+4*et,4)}, {vr(KVM+4*(et>>1)+2,2)}, {vr(PM+2*(et&1),2)}, {vr(OC+4*et,4)}')
    a(f's_lshl_b32 s{sT0}, s{sHD}, 12'); a(f's_lshl_b32 s{sT1}, s{sEH}, 11'); a(f's_add_u32 s{sT0}, s{sT0}, s{sT1}'); a(f's_add_u32 s{sT0}, s{sT0}, s{sOB}')
    a(f's_lshl_b32 s{sT1}, s{sCU}, 4'); a(f's_lshl_b32 s{sT2}, s4, 2'); a(f's_add_u32 s{sT1}, s{sT1}, s{sT2}'); a(f's_add_u32 s{sT1}, s{sT1}, s{sGF}')
    a(f'v_mov_b32 v20, s{sRND}')
    for ep in range(2):
        for r in range(4): a(f'v_cvt_pk_bf16_f32 v{OP+4*ep+r}, v{OC+8*ep+r}, v{OC+8*ep+4+r}')
    a('s_cmp_eq_u32 s7, 1')
    if opt.get('tst'): a('s_memrealtime s[80:81] ; nowait')
    both([f'buffer_store_dwordx4 {vr(OP+4*ep,4)}, v{L16}, {WS}, s{sT0} offen offset:{ep*1024}' for ep in range(2)], 'P2_so')
    a('s_waitcnt vmcnt(0)')
    both([f'buffer_store_dword v20, off, {WS}, s{sT1}'], 'P2_sf')
    if opt.get('tst'): a('s_memrealtime s[82:83] ; nowait')
    a(f's_lshl_b32 s{sT0}, s4, 6'); a(f's_add_u32 s{sT0}, s{sT0}, s{sGF}')
    spin_ge(a, 'P2_gf', f'buffer_load_dword v20, v{FL}, {WS}, s{sT0} offen sc1', 1, 20, f's{sRND}', sleep=opt.get('gfsleep', 0))
    a(f's_lshl_b32 s{sT1}, s4, 15'); a(f's_add_u32 s{sT0}, s{sOB}, s{sT1}')
    if opt.get('tst'): a('s_memrealtime s[84:85] ; nowait')
    R0 = 32
    for n in range(32):
        if n % 4 == 0 and n: a(f's_add_u32 s{sT0}, s{sT0}, 4096')
        a(f'buffer_load_dwordx4 {vr(R0+4*n,4)}, v{L16}, {WS}, s{sT0} offen offset:{(n&3)*1024} sc1')
    for n in range(32):
        a(f's_waitcnt vmcnt({31-n})')
        for t in range(2): a(mfm(AC+4*t, (n*2+t)*4, R0+4*n, '0' if n == 0 else vr(AC+4*t,4), 'a', 'v'))
    AA = 20
    if opt.get('tst'): a('s_memrealtime s[86:87] ; nowait')
    reduce(AA, False)
    for k in range(2): a(f'v_mul_f32 v{AA+k}, v{GG}, v{AA+k}')
    rnd2(AA, AA)
    a(f'v_pk_add_f32 {vr(AA,2)}, {vr(AA,2)}, {vr(BB,2)}')
    a(f'v_cvt_pk_bf16_f32 v{AA}, v{AA}, v{AA+1}')
    a(f's_lshl_b32 s{sT0}, s{sUN}, 14')
    a(f'buffer_store_dword v{AA}, v{OA_}, {srd(sD)}, s{sT0} offen {opt.get("outf", "")}')
    if opt.get('wb'):
        a(f's_and_b32 s{sT0}, s{sIDX}, 15'); a(f's_or_b32 s{sT0}, s{sT0}, s4'); a(f's_cmp_lg_u32 s{sT0}, 0'); a('s_cbranch_scc1 P2_nwb')
        a(f's_cmp_ge_u32 s{sUN}, {opt["wb"]}'); a('s_cbranch_scc1 P2_nwb')
        a('buffer_wbl2 sc1')
        a.label('P2_nwb')
    a(f's_xor_b32 s{sOB}, s{sOB}, 0x20000')
    a(f's_add_u32 s{sUN}, s{sUN}, 14'); a(f's_add_u32 s{sRND}, s{sRND}, 1')
    a(f's_cmp_lt_u32 s{sUN}, 128')
    a('s_cbranch_scc1 P2_loop')
    if opt.get('tst'):
        a('s_waitcnt lgkmcnt(0)')
        a('s_lshl_b32 s60, s6, 7'); a(f's_add_u32 s60, s60, {WS_DBG + 0x8000:#x}')
        for n in range(5):
            a(f'v_mov_b32 v20, s{78+2*n}'); a(f'buffer_store_dword v20, off, {WS}, s60 offset:{(108+4*n) if n < 4 else 44}')
```

```python
import re

_REG = re.compile(r'^(-|abs\(|\|)?([vas])(?:\[(\d+):(\d+)\]|(\d+))\)?\|?$')

def regs_of(tok):
    tok = tok.strip()
    if tok in ('vcc',): return {('s', 'vcc')}
    if tok in ('vcc_lo', 'vcc_hi'): return {('s', 'vcc')}
    if tok in ('exec', 'exec_lo', 'exec_hi'): return {('s', 'exec')}
    if tok == 'm0': return {('s', 'm0')}
    m = _REG.match(tok)
    if not m: return set()
    k = m.group(2)
    if m.group(5) is not None: return {(k, int(m.group(5)))}
    return {(k, i) for i in range(int(m.group(3)), int(m.group(4)) + 1)}

TRANS = ('v_exp_f32', 'v_log_f32', 'v_rcp_f32', 'v_rsq_f32', 'v_sqrt_f32', 'v_sin_f32', 'v_cos_f32', 'v_rcp_iflag_f32')

class Ins:
    __slots__ = ('text', 'op', 'kind', 'wr', 'rd', 'srcC', 'AB', 'passes', 'states', 'dpp', 'trans', 'stdata', 'label', 'target', 'dtuple', 'ctuple')
    def __init__(self, text):
        self.text = text
        t = text.split(';')[0].strip()
        self.label = None; self.target = None
        self.wr = set(); self.rd = set(); self.srcC = set(); self.AB = set(); self.passes = 0
        self.states = 1; self.dpp = False; self.trans = False; self.stdata = set(); self.dtuple = None; self.ctuple = None
        if t.endswith(':'):
            self.label = t[:-1]; self.kind = 'label'; self.op = ''; self.states = 0; return
        if not t or t.startswith('.'):
            self.kind = 'dir'; self.op = ''; self.states = 0; return
        parts = t.split(None, 1)
        op = parts[0]; self.op = op
        rest = parts[1] if len(parts) > 1 else ''
        rest = re.sub(r'\s(op_sel|op_sel_hi|neg_lo|neg_hi):\[[^\]]*\]', '', rest)
        ops = [o.strip() for o in rest.split(',')] if rest else []
        mods = ''
        if ops:
            last = ops[-1].split(None, 1)
            ops[-1] = last[0] if last else ''
            mods = last[1] if len(last) > 1 else ''
        R = [regs_of(o) for o in ops]
        U = lambda l: set().union(*l) if l else set()
        if op == 's_nop':
            self.kind = 'salu'; self.states = int(ops[0], 0) + 1
        elif op.startswith('s_cbranch') or op == 's_branch':
            self.kind = 'branch'; self.target = ops[0]
        elif op.startswith('s_'):
            self.kind = 'salu'
            if op.startswith('s_cmp') or op.startswith('s_bitcmp') or op in ('s_waitcnt', 's_barrier', 's_endpgm', 's_sleep', 's_setprio'):
                self.rd = U(R)
            else:
                self.wr = R[0] if R else set(); self.rd = U(R[1:])
                if 'saveexec' in op: self.wr = self.wr | {('s', 'exec')}
        elif op.startswith('v_mfma') or op.startswith('v_smfmac'):
            self.kind = 'mfma'
            self.passes = 8 if '32x32' in op else 4
            self.wr = R[0]; self.dtuple = ops[0]
            if op.startswith('v_smfmac'):
                self.AB = R[1] | R[2] | R[3]; self.srcC = R[0]; self.ctuple = ops[0]
            else:
                self.AB = R[1] | R[2]; self.srcC = R[3]; self.ctuple = ops[3]
            self.rd = self.AB | self.srcC
        elif op.startswith('v_'):
            self.kind = 'valu'
            self.dpp = ('_dpp' in op) or ('row_' in mods) or ('quad_perm' in mods)
            base = op.replace('_e32', '').replace('_e64', '').replace('_dpp', '')
            self.trans = base in TRANS
            if base.startswith('v_permlane') and 'swap' in base:
                self.wr = R[0] | R[1]; self.rd = R[0] | R[1]
            elif base.startswith('v_add_co') or base.startswith('v_sub_co') or base.startswith('v_addc_co') or base.startswith('v_subb_co'):
                self.wr = R[0] | R[1]; self.rd = U(R[2:])
            else:
                self.wr = R[0]; self.rd = U(R[1:])
                if base.startswith('v_fmac') or base.startswith('v_dot2c') or self.dpp or base.startswith('v_writelane'):
                    self.rd = self.rd | R[0]
                if base.startswith('v_cmpx'): self.wr = self.wr | {('s', 'exec')}
        elif op.startswith('ds_'):
            self.kind = 'ds'
            if op.startswith('ds_read') or 'permute' in op or 'swizzle' in op:
                self.wr = R[0]; self.rd = U(R[1:])
            else:
                self.rd = U(R)
        elif op.startswith('global_') or op.startswith('buffer_'):
            self.kind = 'vmem'
            islds = ('_lds_' in op) or re.search(r'\blds\b', mods) is not None
            if islds:
                self.rd = U(R) | {('s', 'm0')}; self.kind = 'dma'
            elif '_load' in op:
                self.wr = R[0]; self.rd = U(R[1:])
                if 'd16' in op: self.rd = self.rd | R[0]
            elif '_atomic' in op:
                if op.startswith('global_') and 'sc0' in mods:
                    self.wr = R[0]; self.rd = U(R[1:])
                else:
                    self.rd = U(R)
                    if 'sc0' in mods: self.wr = R[0]
            elif '_store' in op:
                self.rd = U(R)
                if 'x3' in op or 'x4' in op:
                    self.stdata = R[0] if op.startswith('buffer_') else R[1]
            else:
                pass
        else:
            raise ValueError('unknown instruction: ' + text)

def isv(s): return {r for r in s if r[0] in 'va'}
def iss(s): return {r for r in s if r[0] == 's'}

def need(p, c):
    n = 0
    if p.kind == 'valu':
        w = isv(p.wr); sw = iss(p.wr)
        if c.kind == 'mfma' and (w & c.rd): n = max(n, 2)
        if c.kind == 'valu':
            if (c.op.startswith('v_permlane') or c.dpp) and (w & c.rd): n = max(n, 2)
            if (c.op.startswith('v_readlane') or c.op.startswith('v_readfirstlane')) and (w & c.rd): n = max(n, 1)
            if p.trans and not c.trans and (w & (c.rd | c.wr)): n = max(n, 1)
            crd = set(c.rd)
            if c.op.startswith('v_cndmask') and len(iss(c.rd)) == 0: crd.add(('s', 'vcc'))
            if sw & crd:
                n = max(n, 4 if (c.op.startswith('v_readlane') or c.op.startswith('v_writelane')) else 2)
            if ('s', 'exec') in sw: n = max(n, 5)
        if c.kind in ('vmem', 'dma') and (sw & c.rd): n = max(n, 5)
        if c.kind == 'mfma' and ('s', 'exec') in sw: n = max(n, 4)
        if c.kind in ('salu', 'branch') and (sw & c.rd): n = max(n, 1)
    if p.kind == 'mfma':
        big = 8 if p.passes == 4 else 12
        if c.kind == 'mfma':
            if p.wr & c.AB: n = max(n, big)
            if p.wr & c.srcC:
                if not (p.dtuple == c.ctuple and p.passes == c.passes): n = max(n, big - 2)
            elif p.wr & c.wr and not p.dtuple == c.dtuple: n = max(n, big - 2)
        elif c.kind in ('valu', 'ds', 'vmem', 'dma'):
            if p.wr & (c.rd | c.wr): n = max(n, big)
            if c.kind == 'valu' and (p.srcC & c.wr): n = max(n, 3 if p.passes == 4 else 7)
    if p.kind == 'vmem' and p.stdata:
        if p.stdata & c.wr: n = max(n, 2 if c.kind in ('valu', 'mfma') else 1)
    if p.kind == 'salu' and ('s', 'm0') in p.wr and c.kind == 'dma': n = max(n, 1)
    return n

class Asm:
    def __init__(self):
        self.lines = []
        self.uid = 0
    def __call__(self, text):
        for l in text.split('\n'):
            l = l.strip()
            if l: self.lines.append(l)
    def label(self, name): self.lines.append(name + ':')
    def newlabel(self, base='L'):
        self.uid += 1
        return f'{base}_{self.uid}'
    def nop(self, n):
        while n > 0:
            k = min(16, n); self.lines.append(f's_nop {k-1}'); n -= k

def pad(lines, verbose=False):
    ins = []
    W = 14
    added = 0
    for l in lines:
        if l.startswith(';'):
            continue
        c = Ins(l)
        if c.states or c.kind in ('label', 'dir'):
            if c.kind not in ('label', 'dir'):
                dist = 0; req = 0
                for p in reversed(ins):
                    if p.kind == 'branch' and p.op == 's_branch': break
                    if p.op == 's_endpgm': break
                    if p.states == 0: continue
                    n = need(p, c)
                    if n > dist: req = max(req, n - dist)
                    dist += p.states
                    if dist >= W: break
                if req:
                    ins.append(Ins(f's_nop {req-1}')); added += req
            ins.append(c)
    pos = {x.label: i for i, x in enumerate(ins) if x.label}
    for i, b in enumerate(ins):
        if b.kind != 'branch': continue
        if b.target not in pos: raise ValueError('unknown label ' + b.target)
        prods = []; dist = 0
        for p in reversed(ins[:i + 1]):
            if p is not b and p.kind == 'branch' and p.op == 's_branch': break
            if p.states == 0: continue
            prods.append((p, dist)); dist += p.states
            if dist >= W: break
        d2 = 0
        for c in ins[pos[b.target]:]:
            if c.states == 0: continue
            for p, d in prods:
                if p is b: continue
                n = need(p, c)
                if n > d + d2:
                    raise ValueError(f'hazard across branch {b.text}: {p.text} -> {c.text} need {n} have {d+d2}')
            d2 += c.states
            if d2 >= W or (c.kind == 'branch' and c.op == 's_branch') or c.op == 's_endpgm': break
    if verbose: print('nop states added', added)
    out = []
    for x in ins:
        out.append(x.text if x.kind in ('label', 'dir') else '    ' + x.text)
    return out

_LG = re.compile(r'lgkmcnt\((\d+)\)')
def auto_lgkm(lines):
    out = []
    q = []
    for l in lines:
        if l.startswith(';'):
            out.append(l); continue
        if l.startswith('waitl ') or l == 'waitw':
            r = regs_of(l.split()[1]) if l != 'waitw' else None
            idx = -1
            for i, x in enumerate(q):
                if (r is not None and x[0] & r) or (r is None and len(x) > 2): idx = i
            if idx >= 0:
                n = min(len(q) - 1 - idx, 15)
                out.append(f's_waitcnt lgkmcnt({n})'); q = q[len(q) - n:] if n else []
            continue
        c = Ins(l)
        if c.kind == 'label' or c.kind == 'branch':
            pend = [x for x in q if x[0]]
            if pend and 'keep' not in l:
                raise ValueError('pending LDS/SMEM results at ' + l + ' : ' + str(sorted(pend[0][0]))[:80])
            out.append(l); continue
        if c.kind == 'dir':
            out.append(l); continue
        if c.op == 's_waitcnt':
            m = _LG.search(l)
            if m:
                n = int(m.group(1))
                if n == 0: q = []
                elif not any(x[1] for x in q): q = q[len(q) - n:] if n < len(q) else q
            out.append(l); continue
        touched = c.rd | c.wr
        idx = -1
        for i, x in enumerate(q):
            if x[0] & touched: idx = i
        if idx >= 0:
            n = len(q) - 1 - idx
            if any(x[1] for x in q): n = 0
            n = min(n, 15)
            out.append(f's_waitcnt lgkmcnt({n})')
            q = q[len(q) - n:] if n else []
        if c.kind == 'ds' and c.op.startswith('ds_write'): q.append((set(), False, 'w'))
        elif c.kind == 'ds': q.append((set() if 'nowait' in l else set(c.wr), False))
        elif 'nowait' in l: pass
        elif c.op.startswith('s_load') or c.op.startswith('s_memtime') or c.op.startswith('s_memrealtime') or c.op.startswith('s_buffer_load'):
            q.append((set(c.wr), True))
        out.append(l)
    return out

def weave(a, mf, fill, start=0, per=2):
    fill = list(fill); k = 0
    for i, m in enumerate(mf):
        a(m)
        if i >= start:
            for _ in range(per):
                if k < len(fill): a(fill[k]); k += 1
    while k < len(fill): a(fill[k]); k += 1

def vr(b, n=1, f='v'):
    return f'{f}{b}' if n == 1 else f'{f}[{b}:{b+n-1}]'

def resolve_waitv(lines):
    out = []
    for l in lines:
        if l.startswith('waitv '):
            r = regs_of(l.split()[1]); k = 0
            for p in reversed(out):
                if p.startswith(';') or p.startswith('wait'): continue
                c = Ins(p)
                if c.kind == 'label' and 'keep' not in p: raise ValueError('waitv crosses label ' + p)
                if c.kind in ('vmem', 'dma'):
                    if c.wr & r: break
                    k += 1
            else: raise ValueError('waitv: no load')
            out.append(f's_waitcnt vmcnt({k})')
        elif l.startswith('waitm '):
            mk = '; ' + l.split()[1]; k = 0
            for p in reversed(out):
                if p.startswith(';') or p.startswith('wait'): continue
                if p.endswith(mk): break
                if Ins(p).kind in ('vmem', 'dma'): k += 1
            out.append(f's_waitcnt vmcnt({k})')
        else: out.append(l)
    return out

def isize(text):
    t = text.split(';')[0].strip(); op = t.split()[0]; rest = t[len(op):]
    def lit():
        for tok in re.split(r'[,\s]+', rest.strip()):
            if re.fullmatch(r'-?(0x[0-9a-fA-F]+|\d+)', tok):
                v = int(tok, 0)
                if v >= 1 << 31 and v < 1 << 32: v -= 1 << 32
                if not -16 <= v <= 64: return True
        return False
    if op.startswith(('buffer_', 'global_', 'ds_', 'v_mfma', 'v_smfmac', 'v_pk_', 's_load', 's_mem')): return 8
    if op in ('s_nop', 's_waitcnt', 's_barrier', 's_branch', 's_endpgm', 's_sleep') or op.startswith('s_cbranch') or op.startswith('s_getreg') or op.startswith('s_getpc'): return 4
    if op.startswith('s_'): return 8 if lit() else 4
    if op.endswith('_e64') or op.endswith('_dpp'): return 8
    VOP3 = ('v_max3', 'v_min3', 'v_cvt_pk_bf16', 'v_perm_b32', 'v_lshl_add', 'v_add3', 'v_bfe', 'v_mad_', 'v_fma_', 'v_readlane', 'v_accvgpr', 'v_dot2', 'v_mbcnt', 'v_mul_lo', 'v_bitop3')
    if op.startswith(VOP3): return 8
    if op.startswith('v_cndmask') and 's[' in rest: return 8
    return 8 if lit() else 4
E64OK = ('v_add_f32', 'v_mov_b64', 'v_mov_b32', 'v_max_f32', 'v_max_u32', 'v_exp_f32', 'v_rcp_f32', 'v_cmp_eq_u32', 'v_add_u32', 'v_lshrrev_b32', 'v_mul_f32')
def align8(lines, begin, end, nops=False):
    out = list(lines); on = False; off = 0; cand = None; i = 0; mis = 0; prev_mf = None
    while i < len(out):
        l = out[i]; s = l.strip()
        if not l.startswith('    '):
            if re.match(begin, s): on = True; off = 0; cand = None
            elif re.match(end, s): on = False
            i += 1; continue
        if on:
            z = isize(s)
            if z == 8:
                if off % 8:
                    if cand is not None:
                        op = out[cand].split()[0]; out[cand] = out[cand].replace(op, op + '_e64', 1); off += 4
                    elif nops and prev_mf is not None and i - prev_mf <= 2:
                        out.insert(prev_mf + 1, '    s_nop 0'); i += 1; off += 4
                    else: mis += 1
                cand = None
                if s.startswith(('v_smfmac', 'v_mfma')): prev_mf = i
            elif s.split()[0] in E64OK: cand = i
            off += z
        i += 1
    return out, mis
```

```python
from asmlib import *
from common import *
import math
L_WO, L_K0 = 0, 131072
L_K1 = L_K0 + 8192 + 64
L_QX = L_K1 + 8192 + 64
XS = 288; XSZ = 2304
L_V = L_QX + 3*XSZ
assert L_V + 8192 <= LDS_MISC and L_V % 16 == 0
L16, IDX, POI4 = 0, 1, 2
PST, PUB, XW, QR, OR_, WOB, V4 = range(6, 13)
VMP = V4+2
SELA, ONES, VB, MEMF, KX, ACQ, ACK, ACV = 16, 20, 24, 40, 72, 104, 112, 120
KMR = VB+2
QF = KX
WV = 128
sHALF, sEVEN, sPOI, sPLO, sPHI, sSCL = 32, 34, 36, 37, 38, 39
sSTEP, sSLOT, sSLOTN, sSLOTP, sINB, sINBO, sKV, sKM, sMK, sSPIN, sT0, sT1, sT2, sKS, sTF, sM0, sINB2, sMV, sW2, sHO = range(40, 60)
sKB, sP1, sKD = sTF, sW2, sHO
sI1, sI2 = 37, 38
sPEX = 88
sTL = 53
sFO = 6
sACC = 16
def db(b): return 32*(b >> 2) + 8*(b & 1) + 2*((b >> 1) & 1)
def smf(d, A, B, f='v'): return f'v_smfmac_f32_16x16x64_bf16 {vr(d,4)}, {vr(A,4)}, {vr(B,8,f)}, v{IDX}'
def mf(d, A, B, C='0'): return f'v_mfma_f32_16x16x32_bf16 {vr(d,4)}, {vr(A,4)}, {vr(B,4)}, {C}'
def z2(r): return f'v_mov_b64 {vr(r,2)}, 0'

def slots(a, mfl, plan):
    for i, m in enumerate(mfl):
        a(m)
        fl = plan.pop(i, [])
        for x in fl:
            if not x.startswith('v_') and not x.startswith('>'): a(x)
        for x in fl:
            if x.startswith('v_'): a(x)
        for x in fl:
            if x.startswith('>'): a(x[1:])
    assert not plan, plan

HM = [0]
def heat(a, n, r):
    if HM[0] == 3:
        if n >= 3: a(f's_sleep {(n+1)//4}')
        elif n: a(f's_nop {4*n-1}')
        return
    for i in range(n):
        if HM[0] == 1: a(smf(MEMF+28, KX, 8*(i % 32), 'a'))
        elif HM[0] == 2: a('s_nop 3')
        else: a(f'v_mov_b32 v{r}, v{r}'); a('s_nop 2')

def kx_addr(t0, t1):
    return [f'v_and_b32 v{t0}, 0x310, v{L16}', f'v_and_b32 v{t1}, 0x60, v{L16}', f'v_lshl_add_u32 v{t0}, v{t1}, 1, v{t0}',
            f'v_bfe_u32 v{t1}, v{L16}, 7, 1', f'v_mul_u32_u24 v{t1}, {4096+32}, v{t1}', f'v_add3_u32 v{t0}, v{t0}, v{t1}, s{sKB}']
def kv_reads(t0, MR):
    r = [f'ds_read_b128 {vr(KX+4*j,4)}, v{t0} offset:{(j&3)*1024 + (j>>2)*32}' for j in range(8)]
    r += [f'ds_read_b64 {vr(VB+8*t+4*u,2)}, v{MR} offset:{t*1024 + u*8}' for t in (0, 1) for u in (0, 1)]
    return r
def v_dma():
    WS = srd(sWS)
    return [[f's_mov_b32 m0, s{sMV}', f's_add_u32 s{sT2}, s{sKV}, {WS_VF - WS_KF:#x}'],
            [f'buffer_load_dwordx4 v{L16}, {WS}, s{sT2} offen sc1 lds'],
            [f'buffer_load_dwordx4 v{L16}, {WS}, s{sT2} offen offset:1024 sc1 lds ; vdma']]
def k_dma(adv=True):
    WS = srd(sWS)
    return [[f's_add_u32 m0, s{sMK}, s{sKD}', f's_add_u32 s{sKV}, s{sKV}, {32*8192 if adv else 0:#x}'],
            [f'buffer_load_dwordx4 v{L16}, {WS}, s{sKV} offen sc1 lds'],
            [f'buffer_load_dwordx4 v{L16}, {WS}, s{sKV} offen offset:1024 sc1 lds']]
def xa_set(): return [f's_add_u32 s{sP1}, s{sSLOT}, 0x1000']

DEFAULTS = dict(merge=True, nq=0, qa=(35,35,35,35,36,36,37), ka=(37,37,37,37,38,38,39), b2=43, b3=47, kp=36, vd=(34,36), nops=(33,), fp=41,
                lat=(-1,-1,-1,2,5,8), da=(13,14,18,21,22,26), zb=5, h4b=0, po=(24,30), stp=(11,23,35,47,55), pa0=(0,0,0,0,1,1,2), zin=(6,6,7,7), hs=0, bo=1, zp=(29,30,30,31), pa=(0,1,2,2,3,3,4), al=8)
def team(a, sf, tag, opt):
    opt = {**DEFAULTS, **opt}
    HM[0] = opt.get('hm', 0)
    if sf != '' or opt.get('shared'): return team1(a, sf, tag, opt, None)
    for w in range(3):
        a(f's_cmp_eq_u32 s4, {w}'); a(f's_cbranch_scc1 {tag}_full{w}')
    for w in (3, 0, 1, 2):
        if w < 3: a.label(f'{tag}_full{w}')
        o = dict(opt); o.update(opt.get('pw', {}).get(w, {}))
        for k, v in opt.get('stag', {}).items():
            base = o[k]
            o[k] = tuple(x + v*w for x in base) if isinstance(base, tuple) else base + v*w
        team1(a, sf, f'{tag}{w}', o, w)

def team1(a, sf, tag, opt, only):
    stamps = opt.get('stamps', False)
    nstep = opt.get('nstep', 64)
    NST = 14
    def st(i): return [f'{"s_memrealtime" if opt.get("raw") else "s_memtime"} s[{60+2*i}:{61+2*i}] ; nowait'] if stamps else []
    def stamp(i):
        for x in st(i): a(x)
    HT = VB+14
    def stamp_acc():
        if stamps and not opt.get('lacc'):
            a('s_waitcnt lgkmcnt(0)')
            for i in range(NST):
                prev = 98 if i == 0 else 60+2*(i-1)
                if opt.get('raw'):
                    a(f's_cmp_eq_u32 s{sSTEP}, {opt["raw"] + (1 if i < 2 else 0)}')
                    a(f's_cselect_b32 s{sACC+i}, s{60+2*i}, s{sACC+i}')
                else:
                    a(f's_sub_u32 s99, s{60+2*i}, s{prev}')
                    a(f's_add_u32 s{sACC+i}, s{sACC+i}, s99')
                if i % 2 == 0: a(f'v_mov_b32 v{HT}, v{HT}')
            a(f's_mov_b32 s98, s{60+2*(NST-1)}')
    T = lambda n: f'{tag}_{n}'
    WS = srd(sWS)
    IB = MEMF+8; RA = MEMF+16; IT = MEMF+20
    p2 = [f'buffer_load_dwordx4 {vr(MEMF,4)}, v{L16}, {WS}, s{sSLOT} offen sc1',
          f'buffer_load_dwordx4 {vr(MEMF+4,4)}, v{L16}, {WS}, s{sSLOT} offen offset:1024 sc1']
    p1 = [f'buffer_load_dwordx4 {vr(IB,4)}, v{L16}, {WS}, s{sINB2} offen sc1',
          f'buffer_load_dwordx4 {vr(IB+4,4)}, v{L16}, {WS}, s{sINB2} offen offset:1024 sc1']
    def check2():
        b, t = MEMF, VB+10
        a(f'v_max3_u32 v{t}, v{b}, v{b+1}, v{b+2}')
        a(f'v_max3_u32 v{t}, v{t}, v{b+3}, v{b+4}')
        a(f'v_max3_u32 v{t}, v{t}, v{b+5}, v{b+6}')
        a(f'v_max_u32 v{t}, v{t}, v{b+7}')
        a(f'v_cmp_eq_u32 vcc, s{sPOI}, v{t}')
    def redtail():
        for rot in (4, 8):
            for r in range(2): a(f'v_add_f32_dpp v{RA+r}, v{RA+r}, v{RA+r} row_ror:{rot} row_mask:0xf bank_mask:0xf')
        a(f'v_cvt_pk_bf16_f32 v{IT+4}, v{RA}, v{RA+1}')
    def check1():
        t = IT
        a(f'v_max3_u32 v{t}, v{IB}, v{IB+1}, v{IB+2}')
        a(f'v_max3_u32 v{t}, v{t}, v{IB+3}, v{IB+4}')
        a(mf(RA, SELA, IB))
        a(f'v_max3_u32 v{t}, v{t}, v{IB+5}, v{IB+6}')
        a(f'v_max_u32 v{t}, v{t}, v{IB+7}')
        a(mf(RA, SELA, IB+4, vr(RA,4)))
        a(f'v_cmp_eq_u32 vcc, s{sPOI}, v{t}')
        if opt.get('spec', 1): redtail()
    def sample(name, loads, chk, depth, cnt, fill, warm=None, extra=0, rot=False):
        for i in range(depth - 1):
            for x in loads: a(x)
            fill(i)
        if rot:
            for x in loads: a(x)
            a(T(name) + ': ; keep')
            a(f's_waitcnt vmcnt({len(loads)*(depth-1)})')
            chk()
            for x in loads: a(x)
            a(f's_add_u32 s{sSPIN}, s{sSPIN}, 1')
            a(f's_cmp_ge_u32 s{sSPIN}, {SPIN_MAX}')
            a('s_cbranch_scc1 L_fail ; keep')
            a(f's_cbranch_vccnz {T(name)} ; keep')
            a(T(name + 'ok') + ': ; keep')
            return
        a(T(name) + ': ; keep')
        for x in loads: a(x)
        if warm: a(warm)
        if stamps: a(f's_add_u32 s{sACC+cnt}, s{sACC+cnt}, 1')
        a(f's_add_u32 s{sSPIN}, s{sSPIN}, 1')
        a(f's_cmp_ge_u32 s{sSPIN}, {SPIN_MAX}')
        a('s_cbranch_scc1 L_fail ; keep')
        a(f's_waitcnt vmcnt({len(loads)*(depth-1) + extra})')
        chk()
        a(f's_cbranch_vccnz {T(name)} ; keep')
        a(T(name + 'ok') + ': ; keep')
    if stamps or opt.get('timing', False):
        for i in range(16): a(f's_mov_b32 s{sACC+i}, 0')
        a('s_memtime s[92:93]'); a('s_memrealtime s[94:95]'); a('s_waitcnt lgkmcnt(0)'); a('s_mov_b32 s98, s92')
        for i in range(14 if stamps else 0): a(f's_mov_b32 s{60+2*i}, s92')
    a(f's_mov_b32 s{sSPIN}, 0')
    for x in p2: a(x)
    for x in xa_set(): a(x)
    a('s_waitcnt vmcnt(0)')
    if opt.get('al') is not None:
        a('.p2align 6')
        for _ in range(opt['al'] // 4): a('s_nop 0')
    a(T('p2ok') + ': ; keep')
    eb = opt.get('eb', 2)
    Q = lambda k, t: smf(ACQ+4*t, MEMF+4*k, (k*2+t)*8, 'a')
    K = lambda k, t: smf(ACK+4*t, MEMF+4*k, 128+(k*2+t)*8, 'a')
    V = lambda k, t: smf(ACV+4*t, MEMF+4*k, WV+(k*2+t)*8)
    vf = opt.get('vf', 2)
    own = [Q(0,0), Q(0,1), Q(1,0), Q(1,1), K(0,0), K(0,1), K(1,0), K(1,1)] + [V(k, t) for k in range(vf) for t in (0, 1)]
    nq = opt.get('nq', 0)
    qk_ = [f(k, t) for k in range(2, 8-nq) for f in (Q, K) for t in (0, 1)] + [f(k, t) for f in (Q, K) for k in range(8-nq, 8) for t in (0, 1)]
    first = {k: len(own) + qk_.index(Q(k, 0)) for k in range(2, 8)}
    vr_ = [V(k, t) for k in range(vf, 8) for t in (0, 1)]
    S0, S1, SM, P = ACQ, ACQ+4, ACK, ACK+4
    xs = []
    for j in range(4):
        xs.append(mf(S0, KX+4*j, MEMF+4*j, '0' if j == 0 else vr(S0,4)))
        xs.append(mf(S1, KX+16+4*j, MEMF+4*j, '0' if j == 0 else vr(S1,4)))
    ms = [mf(SM, MEMF+16+4*j, MEMF+4*j, '0' if j == 0 else vr(SM,4)) for j in range(4)]
    M = own + qk_ + vr_ + xs + ms
    mld = lambda k: f'buffer_load_dwordx4 {vr(MEMF+4*k,4)}, v{L16}, {WS}, s{sP1 if k >= 4 else sSLOT} offen offset:{(k&3)*1024} sc1'
    def pk(ac): return [f'v_add_f32 v{ac}, v{ac}, v{ac+2}', f'v_add_f32 v{ac+1}, v{ac+1}, v{ac+3}',
                        f'v_add_f32 v{ac+4}, v{ac+4}, v{ac+6}', f'v_add_f32 v{ac+5}, v{ac+5}, v{ac+7}',
                        f'v_cvt_pk_bf16_f32 v{ac+2}, v{ac}, v{ac+4}', f'v_cvt_pk_bf16_f32 v{ac+3}, v{ac+1}, v{ac+5}']
    XR = {0: VB+14, XSZ: VB+6, 2*XSZ: XW}
    def xw(ac, off):
        if str(off // XSZ) in opt.get('dw2', '01'): return [f'ds_write2_b32 v{XR[off]}, v{ac+2}, v{ac+3} offset0:0 offset1:{XS//4}']
        return [f'ds_write_b32 v{XR[off]}, v{ac+2}', f'ds_write_b32 v{XR[off]}, v{ac+3} offset:{XS}']
    plan = {}
    def put(i, *xs_): plan.setdefault(i, []).extend(xs_)
    lat = opt.get('lat', (-1, -1, 0, 3, 6, 9))
    for k in range(2, 2+eb): a(mld(k))
    a(T('p2go') + ': ; keep')
    head0 = len(a.lines)
    hs = opt.get('hs', 0) if only == 0 else 0
    stamp(0)
    for k in range(2+eb, 8):
        if lat[k-2] < 0: a(mld(k))
        else: put(lat[k-2], mld(k))
    a('s_waitcnt lgkmcnt(1)')
    put(1, 's_waitcnt lgkmcnt(0)')
    da = opt.get('da', (13, 14, 16, 17, 18, 20)); po = opt.get('po', (24, 30)); kp = opt.get('kp', 46); fp = opt.get('fp', 27)
    CT = VB+10
    for k in range(2, 8):
        u = first[k] - 1
        put(u, f'waitv v{MEMF+4*k}')
        b = MEMF+4*k
        put(u+1, f'v_max_u32 v{CT}, v{b}, v{b+1}' if k == 2 else f'v_max3_u32 v{CT}, v{CT}, v{b}, v{b+1}')
        put(u+2, f'v_max3_u32 v{CT}, v{CT}, v{b+2}, v{b+3}')
    vd = opt.get('vd', (34, 36))
    assert vd[0] > first[7] + 1
    put(vd[0], f'v_cmp_eq_u32 vcc, s{sPOI}, v{CT}')
    put(vd[1], f's_cbranch_vccnz {T("redo")} ; keep')
    put(opt['stp'][0], *['>'+x for x in st(1)])
    kput = f'buffer_store_dwordx4 {vr(V4,4)}, v{L16}, {WS}, s{sKM} offen sc1'
    put(10, f'v_subrev_u32 v{XR[0]}, {2*XSZ}, v{XW}'); put(31, f'v_subrev_u32 v{XR[XSZ]}, {XSZ}, v{XW}')
    put(3, f'v_mov_b32 v{KMR}, v{QR}')
    put(5, f'v_mov_b32_dpp v{KMR}, v{QR} row_shl:4 row_mask:0xf bank_mask:0x2')
    put(7, f'v_mov_b32_dpp v{KMR}, v{QR} row_shr:4 row_mask:0xf bank_mask:0x4')
    put(0, f's_xor_b32 s{sINBO}, s{sINB2}, 0x40000')
    put(3, f's_add_u32 s{sI1}, s{sINB}, 0x1000')
    kd = k_dma()
    kd[0][1] = f's_add_u32 s{sI2}, s{sKV}, {32*8192:#x}'
    kd = [[x.replace(f's{sKV} offen', f's{sI2} offen') for x in g] for g in kd]
    put(42, f's_mov_b32 s{sKV}, s{sI2}')
    for n, xs_ in enumerate(v_dma() + kd): put(da[n], *xs_)
    assert (da[5] < da[0] or da[3] > da[2])
    pst = [f'buffer_store_dwordx4 {vr(POI4,4)}, v{L16}, {WS}, s{sINBO} offen offset:{o} {sf}' for o in (0, 1024)]
    p0 = opt.get('p0') if only is not None else None
    if p0:
        po = (99, 99)
        if only == 0:
            put(1, f's_add_u32 s{sT1}, s{sINBO}, 0x1000')
            for n, i in enumerate(p0):
                put(i, f'buffer_store_dwordx4 {vr(POI4,4)}, v{L16}, {WS}, s{sT1 if n >= 4 else sINBO} offen offset:{(n & 3)*1024} {sf}' + (' ; plast' if n == 7 else ''))
    for n in range(2):
        if po[n] < 60: put(po[n], pst[n])
    put(fp, f'buffer_store_dword v{POI4}, v{PUB}, {WS}, s{sSLOTP} offen {sf}')
    put(kp, kput)
    for i in opt.get('lwm', ()): put(i, f'ds_read_b32 v{VB+2}, v{XW} ; nowait')
    put(opt['stp'][1], *['>'+x for x in st(2)])
    put(opt['stp'][2], *['>'+x for x in st(3)])
    qa = opt.get('qa', (35, 35, 36, 36, 37, 37, 38))
    for n, x in enumerate(pk(ACQ)): put(qa[n], x)
    put(qa[6], *xw(ACQ, 0))
    for i in opt.get('nops', (27, 28, 35)): put(i, 's_nop 1')
    assert qa[6] >= vd[1]
    b2 = opt.get('b2', 42)
    if not opt.get('merge'): put(b2, 's_waitcnt lgkmcnt(0)', 's_barrier')
    qrd = [f'ds_read_b128 {vr(MEMF+4*j,4)}, v{QR} offset:{j*64}' for j in range(4)]
    k0 = opt.get('k0', 39)
    ka = opt.get('ka', tuple(k0+n for n in range(7)))
    pkk = pk(ACK)[:4] + [f'v_cvt_pk_bf16_f32 v{V4}, v{ACK}, v{ACK+4}', f'v_cvt_pk_bf16_f32 v{V4+1}, v{ACK+1}, v{ACK+5}']
    for n, x in enumerate(pkk): put(ka[n], x)
    put(ka[6], *xw(V4-2, XSZ))
    assert kp < ka[4]
    if opt.get('merge'): put(b2, 's_waitcnt lgkmcnt(0)', 's_barrier')
    put(b2, qrd[0]); put(b2+1, qrd[1], qrd[2]); put(b2+2, qrd[3])
    put(opt['stp'][3], *['>'+x for x in st(4)])
    b3 = opt.get('b3', 49)
    if not opt.get('merge'): put(b3, 's_waitcnt lgkmcnt(0)', 's_barrier')
    kmr = [f'ds_read_b128 {vr(MEMF+16+4*j,4)}, v{KMR} offset:{XSZ + j*64}' for j in range(4)]
    put(b3, kmr[0]); put(b3+1, kmr[1], kmr[2]); put(b3+2, kmr[3])
    ac = ACV
    fv = [f'v_add_f32 v{ac}, v{ac}, v{ac+2}', f'v_add_f32 v{ac+1}, v{ac+1}, v{ac+3}',
          f'v_add_f32 v{ac+4}, v{ac+4}, v{ac+6}', f'v_add_f32 v{ac+5}, v{ac+5}, v{ac+7}',
          f'v_cvt_pk_bf16_f32 v{VMP}, v{ac}, v{ac+1}', f'v_cvt_pk_bf16_f32 v{VMP+1}, v{ac+4}, v{ac+5}',
          f'v_cndmask_b32 v{VB+2}, 0, v{VMP}, s[{sEVEN}:{sEVEN+1}]', f'v_cndmask_b32 v{VB+6}, v{VMP}, 0, s[{sEVEN}:{sEVEN+1}]',
          f'v_cndmask_b32 v{VB+10}, 0, v{VMP+1}, s[{sEVEN}:{sEVEN+1}]', f'v_cndmask_b32 v{VB+14}, v{VMP+1}, 0, s[{sEVEN}:{sEVEN+1}]']
    fa = opt.get('fa', (50, 50, 51, 51, 52, 52, 53, 54, 55, 55))
    for x, i in zip(fv, fa): put(i, x)
    put(opt['stp'][4], *['>'+x for x in st(5)])
    order = [(2*ph + t, ks2) for ph in range(4) for ks2 in (0, 1) for t in (0, 1)]
    if opt.get('tm'): order = [(2*ph + t, ks2) for ph in range(4) for t in (0, 1) for ks2 in (0, 1)]
    bo = opt.get('bo', 0)
    bufs = ([KX+8*b for b in range(4)] + [MEMF+8*b for b in range(4)]) * 2
    if bo: bufs = ([MEMF+8, MEMF] + [KX+8*b for b in range(4)] + [MEMF+16, MEMF+24]) * 2
    def word(n):
        return [f'ds_read_b128 {vr(bufs[n]+4*hf,4)}, v{WOB} offset:{wo_off(order[n][0], order[n][1], hf)}' for hf in range(2)]
    w2, w3, w4, w5 = [word(n + (2 if bo else 0)) for n in range(4)]
    put(52, w2[0]); put(53, w4[0]); put(54, w2[1]); put(55, w4[1]); put(56, w3[0]); put(57, w5[0]); put(58, w3[1]); put(59, w5[1])
    put(55, 's_waitcnt lgkmcnt(3)')
    put(56, z2(ACV), z2(ACV+2)); put(57, z2(ACV+4), z2(ACV+6))
    put(58, f'v_max3_f32 v{P}, v{S0}, v{S0+1}, v{S0+2}', f'v_max3_f32 v{P+1}, v{S1}, v{S1+1}, v{S1+2}')
    put(46, f's_cmp_eq_u32 s{sSTEP}, {nstep-1}')
    put(49, 's_waitcnt lgkmcnt(4)')
    fin_at = 54
    put(max(fa[4], fa[5]) + 1, f's_cbranch_scc1 {T("fin")} ; keep')
    if only == 2 or only is None:
        put(opt.get('ts', 28), f'buffer_store_dword v{IDX}, off, {WS}, s{sTL} sc1', f's_mov_b32 s{sTL}, 0x7fffff00')
    akv = opt.get('akv', 1) and only == 1
    if akv:
        fs = opt.get('fs', 28)
        put(fs-1, f's_mov_b32 m0, {L_FL}', f'v_lshrrev_b32 v{VB+6}, 2, v{L16}')
        put(fs, f'buffer_load_dword v{VB+6}, {WS}, s{sFO} offen sc1 lds ; fdma')
        assert fs - 1 > max(da) and fs < 31
    if opt.get('diag') == 2:
        put(4, 's_memrealtime s[82:83] ; nowait')
        put(44, f's_cmp_eq_u32 s{sSTEP}, {opt.get("dn", 16)}', 's_cselect_b32 s84, s82, s84')
        if opt.get('d0'): put(45, f's_cmp_eq_u32 s{sSTEP}, {opt["d0"]}', 's_cselect_b32 s85, s82, s85')
    if stamps and opt.get('lacc'):
        seq = list(range(2, 14)) + [0, 1]
        put(12, 's_waitcnt lgkmcnt(0)')
        for n, i in enumerate(seq):
            prev = 98 if n == 0 else 60+2*seq[n-1]
            if opt.get('raw'): put(13 + n*10//14, f's_cmp_eq_u32 s{sSTEP}, {opt["raw"]}', f's_cselect_b32 s{sACC+i}, s{60+2*i}, s{sACC+i}')
            else: put(13 + n*10//14, f's_sub_u32 s99, s{60+2*i}, s{prev}', f's_add_u32 s{sACC+i}, s{sACC+i}, s99')
        put(23, f's_mov_b32 s98, s62')
    for i in opt.get('sh', ()): put(i, 's_nop 0')
    drop = opt.get('drop', [])
    for i, m in enumerate(M):
        slots(a, [m], {0: [x for x in plan.pop(i, []) if not any(d in x for d in drop)]})
        if hs and i == hs - 1:
            head = [x for x in a.lines[head0:] if 'lgkmcnt' not in x]
            a(T('mid') + ': ; keep')
    assert not plan
    pre = (word(0) + word(1) if bo else word(4) + word(5)) + word(6) + word(7)
    M0, M1 = SM+2, SM+3
    LS, O = SM, ACV
    ex = [S0, S0+1, S0+2, S0+3, SM, SM+1]
    sm = [f'v_max3_f32 v{P}, v{P}, v{S0+3}, v{S1+3}', f'v_max_f32 v{P}, v{P}, v{P+1}']
    sm += [f'v_cndmask_b32 v{S0+r}, v{S0+r}, v{S1+r}, s[{sHALF}:{sHALF+1}]' for r in range(4)]
    sm += [f'v_max3_f32 v{M0}, v{P}, v{SM}, v{SM+1}', f'v_max3_f32 v{M1}, v{P}, v{SM}, v{SM+1}',
           f'v_permlane32_swap_b32 v{M0}, v{M1}', f'v_max_f32 v{P}, v{M0}, v{M1}', f'v_max_f32 v{P+1}, v{M0}, v{M1}',
           f'v_permlane16_swap_b32 v{P}, v{P+1}', f'v_max_f32 v{M0}, v{P}, v{P+1}', '; (max subtracted first, then scaled)']
    assert M0 % 2 == 0 and sSCL % 2 == 1
    sm += [f'v_pk_add_f32 {vr(r,2)}, {vr(r,2)}, {vr(M0,2)} op_sel_hi:[1,0] neg_lo:[0,1] neg_hi:[0,1]' for r in ex[::2]]
    sm += [f'v_pk_mul_f32 {vr(r,2)}, {vr(r,2)}, s[{sSCL-1}:{sSCL}] op_sel:[0,1] op_sel_hi:[1,1]' for r in ex[::2]]
    sm += [f'v_exp_f32 v{r}, v{r}' for r in ex]
    sm += [f'v_cvt_pk_bf16_f32 v{P}, v{S0}, v{S0+1}', f'v_cvt_pk_bf16_f32 v{P+2}, v{S0+2}, v{S0+3}',
           f'v_cvt_pk_bf16_f32 v{P+1}, v{SM}, v{SM+1}', f'v_cvt_pk_bf16_f32 v{P+3}, v{SM}, v{SM+1}']
    sm += [mf(LS, P, ONES), smf(O, P, VB), smf(O+4, P, VB+8)]
    sm += [f'v_add_f32 v{LS}, v{LS}, v{LS+2}', f'v_add_f32 v{LS+1}, v{LS+1}, v{LS+3}', f'v_rcp_f32 v{LS}, v{LS}', f'v_rcp_f32 v{LS+1}, v{LS+1}',
           f'v_pk_add_f32 {vr(O,2)}, {vr(O,2)}, {vr(O+2,2)}', f'v_pk_add_f32 {vr(O+4,2)}, {vr(O+4,2)}, {vr(O+6,2)}',
           f'v_pk_mul_f32 {vr(O,2)}, {vr(O,2)}, {vr(LS,2)}', f'v_pk_mul_f32 {vr(O+4,2)}, {vr(O+4,2)}, {vr(LS,2)}',
           f'v_cvt_pk_bf16_f32 v{O+2}, v{O}, v{O+4}', f'v_cvt_pk_bf16_f32 v{O+3}, v{O+1}, v{O+5}']
    pp = list(opt.get('pp', (7, 10, 29, 30, 31, 31, 32, 32)))
    bp = opt.get('bp', 42)
    n99 = pp.count(99)
    def sm_emit(lo, hi):
        for n in range(lo, hi):
            if n == 6: stamp(6)
            if n == 30: stamp(7)
            a(sm[n])
            for r, q in zip(pre, pp):
                if q == n: a(r)
            for r, q in zip(zearly, zp):
                if q == n: a(r)
    zp = opt.get('zp', ())
    zearly = ([z2(ACQ+2*z) for z in range(4)] + [z2(VB+2*z) for z in range(8)])[:len(zp)]
    assert all(q >= 29 for q in zp[:4]) and all(q >= 31 for q in zp[4:8]) and all(q >= 32 for q in zp[8:])
    sm_emit(0, bp+1)
    def sm_rest():
        sm_emit(bp+1, len(sm))
        for x in xw(O, 2*XSZ): a(x)
        for r, q in zip(pre, pp):
            if q == 99: a(r)
        stamp(8)
    PW = opt.get('pw', {})
    DEF = [dict(er=(14,), n1=2, g1=0, d2=0, n2=3, g2=0, pn=0, wq=8), dict(d1=0, n1=2, g1=0, pre=2, w1=20), dict(d1=0, n1=2, g1=0, pre=2, aw=2), dict(d1=0, n1=2, g1=0, pre=2, aw=1)]
    def tailcode(w, gopt):
        nonlocal plan
        opt = dict(gopt); opt.update(DEF[w]); opt.update(PW.get(w, {}))
        if bp < len(sm) - 1 and w < 3: a.nop(max(0, opt.get('bn', 4) - 2*w))
        sm_rest()
        PA = [VB, VB+8, ACQ, ACK]
        if po[0] == 60: a(pst[0])
        zb = opt.get('zb', 4)
        zin = opt.get('zin', (0, 0, 1, 1, 2, 2, 3, 3))
        zs = [z2(VB+2*z) for z in range(4)] + [z2(ACK+2*z) for z in range(4)] + [z2(VB+8+2*z) for z in range(4)] + [z2(ACQ+2*z) for z in range(4)]
        if zp: zs = [x for x in zs[:4] + zs[8:12] + zs[4:8] if x not in zearly]
        zi = zs[len(zs)-len(zin):]; zs = zs[:len(zs)-len(zin)]
        for x in zs[:zb]: a(x)
        if p0 and only == 0: a('waitm plast')
        a(f's_waitcnt lgkmcnt({n99})')
        a('s_barrier')
        OA = ACV
        a(f'ds_read_b128 {vr(OA,4)}, v{OR_} offset:{2*XSZ}')
        a(f'ds_read_b128 {vr(OA+4,4)}, v{OR_} offset:{2*XSZ+128}')
        for r, q in zip(pre, pp):
            if q == 100: a(r)
        if po[1] == 61: a(pst[1])
        for x in zs[zb:]: a(x)
        heat(a, opt.get('h4b', 1), VB)
        if opt.get('s9') is None: stamp(9)
        W = [smf(PA[n >> 2]+4*(order[n][0] & 1), OA+4*order[n][1], bufs[n]) for n in range(16)]
        plan = {}
        for x, i in zip(zi, zin): put(i, x)
        if opt.get('s9') is not None: put(opt['s9'], *['>'+x for x in st(9)])
        rd = [x for n in range(8, 16) for x in word(n)]
        at = opt.get('at', [0, 0, 1, 1, 2, 3, 3, 4, 5, 5, 6, 7, 8, 8, 9, 10])
        for n, (x, i) in enumerate(zip(rd, at)):
            assert i >= n // 2
            put(i, x)
        pstore = lambda ph: f'buffer_store_dwordx2 {vr(PA[ph]+2,2)}, v{PST}, {WS}, s{sI1 if ph >= 2 else sINB} offen offset:{(ph&1)*2048} {sf}'
        er = opt.get('er', ())
        assert all(e >= (9 if bo else 14) for e in er)
        for e in er:
            if e < 16: put(e, *[x + f' ; r{e}' for x in p1])
        pa = opt.get('pa', (0, 1, 1, 2, 3, 3, 4))
        pa0 = opt.get('pa0', pa)
        tail = []
        for ph in range(3):
            for x, r in zip(pk(PA[ph]) + [pstore(ph)], pa0 if ph == 0 else pa):
                if r != int(r): put(4*(ph+1) + int(r), '>' + x)
                elif 4*(ph+1) + r <= 15: put(4*(ph+1) + r, x)
                else: tail.append(x)
        for i in opt.get('ww', (7, 9, 11, 13)):
            need_n = 2*(i+2-8) + 2
            issued = sum(1 for x in at if x <= i)
            put(i, f's_waitcnt lgkmcnt({issued - need_n})')
        put(0, f's_waitcnt lgkmcnt({sum(1 for x in at if x == 0) + pp.count(100)})')
        slots(a, W, plan)
        if 16 in er:
            for x in p1: a(x + ' ; r16')
        late = [x for x in tail if opt.get('l2') and x.startswith('buffer_store')]
        for x in tail:
            if x not in late: a(x)
        if 17 in er:
            for x in p1: a(x + ' ; r17')
        p = PA[3]
        a(f'v_pk_add_f32 {vr(p,2)}, {vr(p,2)}, {vr(p+2,2)}'); a(f'v_pk_add_f32 {vr(p+4,2)}, {vr(p+4,2)}, {vr(p+6,2)}')
        for x in pk(p)[4:]: a(x)
        if 18 in er:
            for x in p1: a(x + ' ; r18')
        a.nop(opt.get('l2n', 0))
        for x in late: a(x)
        a(pstore(3))
        stamp(10)
        kvr = kv_reads(IT+1, IT+3)
        work = kx_addr(IT+1, IT+2)
        zv = [f'v_add_u32 v{IT+3}, s{sMV}, v{L16}'] + [f'v_mov_b32 v{r}, 0' for r in (VB+3, VB+7, VB+11, VB+15)]
        for z in range(12): work += [kvr[z], z2(ACQ+2*z)] if z < 8 else [z2(ACQ+2*z)]
        nb = opt.get('w0', 12) if er else opt.get('w1', 26)
        sc = [f's_add_u32 s{sSTEP}, s{sSTEP}, 1', f's_xor_b32 s{sT0}, s{sSLOTN}, {2*SLOT_ST:#x}',
              f's_mov_b32 s{sSLOTN}, s{sSLOTP}', f's_mov_b32 s{sSLOTP}, s{sT0}', f's_xor_b32 s{sINB}, s{sINB}, 0x40000',
              f's_add_u32 s{sKM}, s{sKM}, {32*4096:#x}', f's_mov_b32 s{sSPIN}, 0',
              f's_mov_b32 s{sKD}, s{sKB}', f's_sub_u32 s{sKB}, {L_K0 + L_K1}, s{sKB}'] + xa_set()
        a(f's_mov_b32 s{sSLOT}, s{sSLOTN}')
        def part_a():
            for x in work[nb:]: a(x)
            for x in zv: a(x)
            a('waitm vdma' if only is not None else 's_waitcnt vmcnt(4)')
            for x in kvr[8:]: a(x)
        def part_b():
            a(f'v_add_u32 v{HT}, {L_QX + 2*XSZ}, v{L16}')
            for x in sc: a(x)
            a(f's_add_u32 s{sT1}, s{sSTEP}, 2')
            if not opt.get('pre', 0): kvc()
        def kvc():
            if w != 1: return
            if akv:
                t = MEMF+26
                kv_lane(a, t)
                a(f'v_add_u32 v{t}, {L_FL}, v{t}')
                a(f'ds_read_b32 v{t+1}, v{t}')
                kv_eval(a, t)
            a(f's_cmp_ge_u32 s{sT1}, s{sAV}')
            a(f's_cbranch_scc1 {T("kvw%d" % w)} ; keep')
            a(T('kvo%d' % w) + ': ; keep')
        if er: opt['pre'] = 0
        pre_ = opt.get('pre', 0)
        stamp(11)
        if er:
            def fill(i):
                if i == 0:
                    for x in work[:nb]: a(x)
                if i == opt['n1'] - 2:
                    for e in er[opt.get('ec', 0):]:
                        a(f'waitm r{e}')
                        check1()
                        a(f's_cbranch_vccz {T("s1w%dok" % w)} ; keep')
                elif i: heat(a, opt['g1'], IT)
        else:
            for x in work[:nb]: a(x)
            if pre_ == 1: part_a(); part_b()
            heat(a, opt.get('d1', 0), IT)
            if opt.get('aw') is not None: a(f's_waitcnt vmcnt({opt["aw"]})')
            def fill(i):
                if pre_ == 2 and i == 0: part_a(); part_b()
                heat(a, opt['g1'], IT)
        sample('s1w%d' % w, p1, check1, opt['n1'], 14, fill)
        if not opt.get('spec', 1): redtail()
        a.nop(opt.get('xp', 0))
        a(f'buffer_store_dword v{IT+4}, v{PUB}, {WS}, s{sSLOT} offen {sf}')
        a(f's_xor_b32 s{sINB2}, s{sINB2}, 0x40000')
        if pre_: kvc()
        stamp(12)
        if not opt.get('s13'): stamp(13)
        dl = opt.get('dl', 0)
        if w == 0:
            if dl: a(f's_mov_b32 m0, {L_QX + 2*XSZ}')
            parts = [part_a, part_b, stamp_acc]
            if opt.get('sp2'):
                n0 = len(a.lines); part_a(); part_b(); allw = a.lines[n0:]; del a.lines[n0:]
                k = opt['sp2']; per = -(-len(allw) // k)
                parts = [(lambda c=allw[i*per:(i+1)*per]: [a(x) for x in c]) for i in range(k)]
            pre_n = opt.get('pn', 1)
            for f in parts[:pre_n]: f()
            parts = parts[pre_n:]
            heat(a, opt.get('d2', 0), VB+6)
            for x in work[nb:nb+opt.get('wq', 0)]: a(x)
            nb += opt.get('wq', 0)
            def fill2(i):
                if parts and (parts[0] is not stamp_acc or stamps): parts.pop(0)()
                else: heat(a, opt['g2'], VB+6)
                if i == opt['n2'] - 2:
                    while parts: parts.pop(0)()
                    if dl: a('s_waitcnt lgkmcnt(0)')
            if dl:
                p2d = p2 + [f'buffer_load_dwordx4 v{L16}, {WS}, s{sSLOT} offen offset:{o} sc1 lds' for o in (0, 1024)]
                def chk2():
                    check2()
                    a(f's_waitcnt vmcnt({4*(opt["n2"]-1)})')
                sample('s2', p2d, chk2, opt['n2'], 15, fill2, extra=2)
                a('s_barrier')
                for k in range(2, 2+eb): a(mld(k))
            else:
                def chk2():
                    check2()
                    if opt.get('spec2', 0):
                        a(f'ds_write_b128 v{HT}, {vr(MEMF,4)}')
                        a(f'ds_write_b128 v{HT}, {vr(MEMF+4,4)} offset:1024')
                sample('s2', p2, chk2, opt['n2'], 15, fill2, rot=opt.get('rot2', False))
                if opt.get('s13'): stamp(13)
                a.nop(opt.get('xa', 0))
                if eb: a('s_barrier')
                a.nop(opt.get('xb', 0))
                if not opt.get('spec2', 0):
                    a(f'ds_write_b128 v{HT}, {vr(MEMF,4)}')
                    a(f'ds_write_b128 v{HT}, {vr(MEMF+4,4)} offset:1024')
                for k in range(2, 2+eb): a(mld(k))
                if hs:
                    for x in head: a(x)
                a('s_waitcnt lgkmcnt(0)')
                a('s_barrier')
                if hs: a(f's_branch {T("mid")} ; keep')
        else:
            if not pre_: part_a(); part_b()
            stamp_acc()
            if opt.get('series') and w == 1:
                a('s_memrealtime s[60:61]'); a(f's_lshl_b32 s62, s5, 8'); a(f's_lshl_b32 s63, s{sSTEP}, 2'); a('s_add_u32 s62, s62, s63'); a(f's_add_u32 s62, s62, {WS_DBG+0x10000:#x}')
                a(f'v_mov_b32 v{VB+6}, s60'); a(f'buffer_store_dword v{VB+6}, off, {WS}, s62')
            a('s_waitcnt lgkmcnt(0)')
            if opt.get('s13'): stamp(13)
            a.nop(opt.get('xa', 0))
            if eb and not dl:
                a('s_barrier')
                for k in range(2, 2+eb): a(mld(k))
            a('s_barrier')
            a(f'ds_read_b128 {vr(MEMF,4)}, v{HT}')
            a(f'ds_read_b128 {vr(MEMF+4,4)}, v{HT} offset:1024')
            if dl:
                for k in range(2, 2+eb): a(mld(k))
        a(f's_branch {T("p2go")} ; keep')
        a('s_waitcnt lgkmcnt(0)')
        if w == 1:
            a.label(T('kvw%d' % w))
            kv_wait(a, T('kvl%d' % w), sT1, MEMF+26)
            a(f's_branch {T("kvo%d" % w)}')
    if only is not None:
        tailcode(only, opt)
    else:
        for w in range(3):
            a(f's_cmp_eq_u32 s4, {w}'); a(f's_cbranch_scc1 {T("w%d" % w)} ; keep')
        tailcode(3, opt)
        for w in range(3):
            a('s_waitcnt lgkmcnt(0)')
            a.label(T('w%d' % w)); tailcode(w, opt)
    a('s_waitcnt lgkmcnt(0)')
    a.label(T('redo'))
    if stamps: a(f's_add_u32 s{sACC+15}, s{sACC+15}, 0x10000')
    a(f's_add_u32 s{sSPIN}, s{sSPIN}, 1'); a(f's_cmp_ge_u32 s{sSPIN}, {SPIN_MAX}'); a('s_cbranch_scc1 L_fail')
    a('s_nop 7')
    for z in range(12): a(z2(ACQ+2*z))
    a(f's_branch {T("p2ok")}')
    a.label(T('fin'))
    a('s_waitcnt lgkmcnt(0)')
    a(f's_add_u32 s{sKM}, s{sKM}, {32*4096:#x}')
    a(kput)
    if opt.get('diag'):
        a('s_memrealtime s[94:95]'); a('s_waitcnt lgkmcnt(0)')
        lo, hi = {1: (90, 96), 2: (85 if opt.get('d0') else 96, 84), 3: (90, 94)}[opt['diag']]
        a(f's_sub_u32 s92, s{hi}, s{lo}'); a(f's_mul_i32 s92, s92, {opt.get("dm", 1)}'); a('s_add_u32 s92, s92, s94')
        a.label(T('dg'))
        a('s_memrealtime s[86:87]'); a('s_waitcnt lgkmcnt(0)'); a('s_sub_u32 s86, s86, s92'); a('s_cmp_lt_i32 s86, 0'); a(f's_cbranch_scc1 {T("dg")}')
    if opt.get('dbgt'):
        DBGT(a, 6, VB)
        a(f'v_mov_b32 v{VB+1}, s96'); a('s_mov_b64 exec, 1'); a(f'buffer_atomic_umax v{VB+1}, off, {srd(sDBG)}, 0 offset:20')
    if stamps or opt.get('timing', False):
        a('s_memtime s[60:61]'); a('s_memrealtime s[96:97]'); a('s_waitcnt lgkmcnt(0)')
        a('s_sub_u32 s92, s60, s92'); a('s_sub_u32 s93, s96, s94')
        a(f's_lshl_b32 s{sT0}, s5, 2'); a(f's_add_u32 s{sT0}, s{sT0}, s4'); a(f's_lshl_b32 s{sT0}, s{sT0}, 7'); a(f's_add_u32 s{sT0}, s{sT0}, {WS_DBG:#x}')
        vals = [92, 93, 94, 96, 90] + [sACC+i for i in range(16)] + [91] + ([70+2*i for i in range(9)] if opt.get('ustamp') else [])
        for i, s in enumerate(vals):
            a(f'v_mov_b32 v{VB}, s{s}')
            a(f'buffer_store_dword v{VB}, off, {WS}, s{sT0} offset:{4*i}')
    a('s_waitcnt vmcnt(0)')
    a('s_endpgm')

def wo_off(Tt, ks2, hf): return (Tt >> 2)*32768 + (ks2*2 + hf)*4096 + (Tt & 3)*1024

def team_setup(a, opt, hooks):
    if opt.get('ustamp'): a('s_memrealtime s[70:71]')
    load_srd(a, sA, 'Wq'); load_srd(a, sB, 'Wk'); load_srd(a, sC, 'Wv'); load_srd(a, sD, 'Wo')
    lane, c, g, t0, t1, va, vo, rA, rB, r8 = 100, 101, 102, 103, 104, 105, 106, 107, 109, 110
    a(f'v_and_b32 v{lane}, 63, v0')
    a(f'v_bfe_u32 v{t0}, v{lane}, 4, 1'); a(f'v_lshlrev_b32 v{vo}, 4, v{t0}')
    a(f'v_bfe_u32 v{t0}, v{lane}, 3, 1'); a(f'v_lshl_add_u32 v{vo}, v{t0}, 2, v{vo}')
    a(f'v_lshrrev_b32 v{t0}, 5, v{lane}'); a(f'v_add_u32 v{vo}, v{vo}, v{t0}')
    a(f'v_and_b32 v{t1}, 7, v{lane}'); a(f'v_lshlrev_b32 v{t1}, 4, v{t1}')
    if opt.get('swz', 1): a(f'v_and_b32 v{t0}, 8, v{lane}'); a(f'v_lshlrev_b32 v{t0}, 3, v{t0}'); a(f'v_xor_b32 v{t1}, v{t1}, v{t0}')
    a(f's_lshr_b32 s{sT2}, s4, 1'); a(f's_lshl_b32 s{sT0}, s5, 8'); a(f's_lshl_b32 s{sT1}, s{sT2}, 7'); a(f's_add_u32 s{sT0}, s{sT0}, s{sT1}')
    a(f'v_lshl_add_u32 v{va}, v{vo}, 13, v{t1}'); a(f'v_add_u32 v{va}, s{sT0}, v{va}')
    a(f's_lshl_b32 s{sW2}, s4, 20'); a(f's_and_b32 s{sW2}, s{sW2}, 0x100000')
    a(f's_lshl_b32 s{sTF}, s{sT2}, 16'); a(f's_and_b32 s{sT2}, s4, 1'); a(f's_lshl_b32 s{sT1}, s{sT2}, 14'); a(f's_add_u32 s{sTF}, s{sTF}, s{sT1}')
    a('s_waitcnt lgkmcnt(0)')
    units = []
    B0 = 24
    def qkv(S, dstf):
        for U in range(2):
            h = (len(units) & 1)*32768
            iss, rd, tr = [], [], []
            for j in range(2):
                for b in range(8):
                    iss += [f's_add_u32 m0, s{sTF}, {h + (j*8+b)*1024}', f's_xor_b32 s{sT1}, s{sW2}, {((4*U+j) << 19) + db(b)*8192:#x}',
                            f'buffer_load_dwordx4 v{va}, {srd(S)}, s{sT1} offen {opt.get("wf", "")} lds']
            for jj in range(4):
                for b in range(8):
                    r = B0 + (jj*8+b)*2; o = (h + ((jj & 1)*8+b)*1024) // 256
                    rd.append(f'ds_read2st64_b32 {vr(r,2)}, v{rB if jj >= 2 else rA} offset0:{o} offset1:{o+2}')
                    for t, sel in ((0, sPLO), (1, sPHI)):
                        kind, d = dstf(4*U+jj, t, b)
                        if kind == 'v': tr.append(f'v_perm_b32 v{d}, v{r+1}, v{r}, s{sel}')
                        else: tr += [f'v_perm_b32 v{124+t}, v{r+1}, v{r}, s{sel}', f'v_accvgpr_write_b32 a{d}, v{124+t}']
            units.append((iss, rd, tr))
    OUT = 112
    def wo():
        for cq in range(2):
            assert (len(units) & 1) == cq
            h = cq*32768
            iss, rd, tr = [], [], []
            for ks2 in range(2):
                for b in range(8):
                    sl = ks2*8 + b
                    iss += [f's_add_u32 m0, s{sTF}, {h + sl*1024}', f's_add_u32 s{sT1}, s{sHO}, {(64*ks2 + db(b))*1024 + cq*512:#x}',
                            f'buffer_load_dwordx4 v{vo}, {srd(sD)}, s{sT1} offen {opt.get("wf", "")} lds']
                    r = B0 + sl*4; o = (h + sl*1024) // 256
                    rd += [f'ds_read2st64_b32 {vr(r+2*pl,2)}, v{r8+pl} offset0:{o} offset1:{o+2}' for pl in range(2)]
                    ob = OUT if sl < 4 else B0 + (sl//4 - 1)*16
                    tr += [f'v_perm_b32 v{ob+4*i+(b&3)}, v{r+2*(i>>1)+1}, v{r+2*(i>>1)}, s{sPHI if i&1 else sPLO}' for i in range(4)]
                    if (b & 3) == 3:
                        tr += [f'ds_write_b128 v{WOB}, {vr(ob+4*i,4)} offset:{wo_off(4*cq+i, ks2, b >> 2)}' for i in range(4)]
            tr += ['s_waitcnt lgkmcnt(0)']
            units.append((iss, rd, tr))
    for ch in opt.get('worder', 'qkv'):
        if ch == 'q': qkv(sA, lambda k, t, b: ('a', (k*2+t)*8+b))
        if ch == 'k': qkv(sB, lambda k, t, b: ('a', 128+(k*2+t)*8+b))
        if ch == 'v': qkv(sC, lambda k, t, b: ('v', WV+(k*2+t)*8+b))
    wo()
    for x in units[0][0]: a(x)
    if not opt.get('wm', 0):
        for x in units[1][0]: a(x)
    a(f'v_and_b32 v{c}, 15, v{lane}'); a(f'v_lshrrev_b32 v{g}, 4, v{lane}'); a(f'v_lshlrev_b32 v{L16}, 4, v{lane}')
    a(f's_mov_b32 s{sPLO}, 0x05040100'); a(f's_mov_b32 s{sPHI}, 0x07060302')
    a(f's_lshl_b32 s{sHO}, s5, 17')
    a(f'v_add_u32 v{WOB}, s{sTF}, v{L16}')
    a(f'v_lshlrev_b32 v{rA}, 7, v{g}'); a(f'v_lshl_add_u32 v{rA}, v{c}, 2, v{rA}'); a(f's_lshl_b32 s{sT1}, s{sT2}, 6'); a(f's_add_u32 s{sT1}, s{sT1}, s{sTF}')
    a(f's_and_b32 s{sT1}, s{sT1}, 0xffffbfff')
    a(f'v_add_u32 v{rA}, s{sT1}, v{rA}')
    if opt.get('swz', 1): a(f'v_and_b32 v{t0}, 1, v{g}'); a(f'v_lshlrev_b32 v{t0}, 6, v{t0}'); a(f'v_xor_b32 v{rA}, v{rA}, v{t0}')
    a(f'v_add_u32 v{rB}, 0x4000, v{rA}')
    a(f'v_and_b32 v{r8}, 0xffffffe3, v{rA}'); a(f'v_and_b32 v{t0}, 1, v{c}'); a(f'v_lshl_add_u32 v{r8}, v{t0}, 4, v{r8}')
    a(f'v_and_b32 v{t0}, 6, v{c}'); a(f'v_lshl_add_u32 v{r8}, v{t0}, 1, v{r8}'); a(f'v_add_u32 v{r8+1}, 0x4000, v{r8}')
    a(f'v_lshl_add_u32 v{vo}, v{vo}, 10, v{t1}'); a(f's_lshl_b32 s{sT0}, s{sT2}, 8'); a(f's_lshr_b32 s{sT1}, s4, 1'); a(f's_lshl_b32 s{sT1}, s{sT1}, 7')
    a(f's_add_u32 s{sT0}, s{sT0}, s{sT1}'); a(f'v_add_u32 v{vo}, s{sT0}, v{vo}')
    tmp = (lane, c, g, t0, t1)
    young = hooks['pre'](a, tmp)
    if opt.get('wm', 0):
        for n in range(16):
            a(f's_waitcnt vmcnt({opt["wm"]-1+young})')
            for x in units[1][0][3*n:3*n+3]: a(x)
    for U in range(8):
        if U == 7 and opt.get('sl', 0):
            rd, tr = units[7][1], units[7][2]
            h = (len(tr) - 1) // 2
            a(f's_waitcnt vmcnt({8 + hooks["n6"]})')
            a('s_barrier')
            for x in rd[:16]: a(x)
            a('s_waitcnt lgkmcnt(0)')
            a('s_barrier')
            for x in tr[:h]: a(x)
            units[7] = (None, rd[16:], tr[h:])
        a(f's_waitcnt vmcnt({(16 if U < 7 else 0) + young})')
        if opt.get('ustamp'): a(f's_memrealtime s[{72+2*U}:{73+2*U}]')
        a('s_barrier')
        for x in units[U][1]: a(x)
        a('s_waitcnt lgkmcnt(0)')
        a('s_barrier')
        if ('b', U) in hooks: hooks[('b', U)](a, tmp)
        wm = opt.get('wm', 0)
        tr = units[U][2]
        if U + 2 < 8 and wm:
            iss = units[U+2][0]; per = -(-len(tr) // 16)
            for n in range(16):
                a(f's_waitcnt vmcnt({wm-1})')
                for x in iss[3*n:3*n+3]: a(x)
                for x in tr[per*n:per*(n+1)]: a(x)
            tr = []
        elif U + 2 < 8:
            for x in units[U+2][0]: a(x)
        young = hooks[U](a, tmp) if U in hooks else 0
        for x in tr: a(x)

def stream(a, items, RING0, RN, maxload=60, older=0, hooks={}):
    n = len(items)
    pos = []; head = 0
    issued = 0; consumed = 0
    used = 0; infl = 0
    alloc = {}
    while consumed < n:
        while issued < n:
            iss, nl, nr, con = items[issued]
            h = head
            waste = 0
            if h + nr > RN: waste = RN - h; h = 0
            if used + waste + nr > RN or infl + nl > (maxload - older if consumed == 0 else maxload): break
            alloc[issued] = (h, waste + nr)
            for x in iss(RING0 + h): a(x)
            head = h + nr; used += waste + nr; infl += nl; issued += 1
        if consumed in hooks: hooks[consumed](a)
        iss, nl, nr, con = items[consumed]
        infl -= nl
        a(f's_waitcnt vmcnt({infl})')
        for x in con(RING0 + alloc[consumed][0]): a(x)
        used -= alloc[consumed][1]
        consumed += 1

def team_consts(a, tmp, RS=REP_ST):
    lane, c, g, t0, t1 = tmp
    a(f's_mov_b32 s{sPOI}, {POISON:#x}')
    scl = (128 ** -0.5) * math.log2(math.e)
    import struct
    a(f's_mov_b32 s{sSCL}, {struct.unpack("<I", struct.pack("<f", scl))[0]:#x}')
    a(f's_mov_b32 s{sHALF}, 0xcccccccc'); a(f's_mov_b32 s{sHALF+1}, 0xcccccccc')
    a(f's_mov_b32 s{sPEX}, 0x000f000f'); a(f's_mov_b32 s{sPEX+1}, 0x000f000f')
    a(f's_lshr_b32 s{sFO}, s5, 1'); a(f's_lshl_b32 s{sFO}, s{sFO}, 6'); a(f's_add_u32 s{sFO}, s{sFO}, {WS_PF}')
    a(f's_mov_b32 s{sEVEN}, 0x0000ffff'); a(f's_mov_b32 s{sEVEN+1}, 0x0000ffff')
    a(f'v_mov_b32 v{t0}, 0x4444'); a(f'v_mov_b32 v{t1}, 0xeeee')
    a(f'v_cndmask_b32 v{IDX}, v{t0}, v{t1}, s[{sHALF}:{sHALF+1}]')
    a(f's_lshl_b32 s{sM0}, s4, 11')
    a(f's_lshl_b32 s{sKS}, s4, 6')
    for r in range(4): a(f'v_mov_b32 v{POI4+r}, s{sPOI}')
    a(f's_lshl_b32 s{sT0}, s4, 16'); a(f's_lshl_b32 s{sT1}, s5, 6'); a(f's_add_u32 s{sT0}, s{sT0}, s{sT1}')
    a(f'v_lshrrev_b32 v{t0}, 3, v{lane}'); a(f'v_lshlrev_b32 v{t0}, 13, v{t0}')
    a(f'v_and_b32 v{t1}, 7, v{c}'); a(f'v_lshl_add_u32 v{t0}, v{t1}, 3, v{t0}'); a(f'v_add_u32 v{PST}, s{sT0}, v{t0}')
    a(f's_lshr_b32 s{sT0}, s5, 3'); a(f's_lshl_b32 s{sT0}, s{sT0}, 9'); a(f's_add_u32 s{sT0}, s{sT0}, s{sM0}')
    a(f's_and_b32 s{sT1}, s5, 1'); a(f's_lshl_b32 s{sT1}, s{sT1}, 8'); a(f's_add_u32 s{sT0}, s{sT0}, s{sT1}')
    a(f's_and_b32 s{sT1}, s5, 6'); a(f's_lshl_b32 s{sT1}, s{sT1}, 5'); a(f's_add_u32 s{sT0}, s{sT0}, s{sT1}')
    a(f'v_and_b32 v{t0}, 3, v{c}'); a(f'v_lshlrev_b32 v{t0}, 2, v{t0}'); a(f'v_lshl_add_u32 v{t0}, v{g}, 4, v{t0}'); a(f'v_add_u32 v{t0}, s{sT0}, v{t0}')
    a(f'v_and_b32 v{t1}, 1, v{c}')
    if RS: a(f'v_lshrrev_b32 v{PUB}, 2, v{c}'); a(f'v_mul_u32_u24 v{PUB}, {RS}, v{PUB}'); a(f'v_add_u32 v{PUB}, v{PUB}, v{t0}')
    else: a(f'v_mov_b32 v{PUB}, 0x7fffff00'); a(f'v_cmp_gt_u32 vcc, 4, v{c}'); a(f'v_cndmask_b32 v{PUB}, v{PUB}, v{t0}, vcc')
    a(f'v_mul_u32_u24 v{t0}, {2*XS}, v{g}'); a(f'v_lshl_add_u32 v{t0}, v{c}, 2, v{t0}'); a(f'v_add_u32 v{t0}, s{sKS}, v{t0}')
    a(f'v_add_u32 v{XW}, {L_QX + 2*XSZ}, v{t0}')
    mm = 108
    a(f'v_lshrrev_b32 v{mm}, 2, v{c}'); a(f'v_lshl_add_u32 v{mm}, v{mm}, 1, v{t1}')
    a(f'v_mul_u32_u24 v{t0}, {XS}, v{mm}'); a(f'v_add_u32 v{t0}, {L_QX}, v{t0}')
    a(f'v_lshl_add_u32 v{QR}, v{g}, 4, v{t0}')
    a(f'v_lshl_add_u32 v{OR_}, v{g}, 5, v{t0}'); a(f'v_and_b32 v{mm}, 2, v{c}'); a(f'v_lshl_add_u32 v{OR_}, v{mm}, 3, v{OR_}')
    a(f'v_mov_b32 v{t0}, 0x3f80'); a(f'v_lshlrev_b32 v{mm}, 4, v{t1}'); a(f'v_lshlrev_b32 v{t0}, v{mm}, v{t0}')
    a(f'v_lshrrev_b32 v{mm}, 1, v{c}')
    for r in range(4):
        a(f'v_cmp_eq_u32 vcc, {2*r}, v{mm}'); a(f'v_cndmask_b32 v{SELA+r}, 0, v{t0}, vcc')
    a(f'v_mov_b32 v{ONES}, 0x3f803f80'); a(f'v_mov_b32 v{ONES+1}, 0x3e803e80'); a(f'v_mov_b32 v{ONES+2}, 0x3f803f80'); a(f'v_mov_b32 v{ONES+3}, 0x3e803e80')
    a(f's_mov_b32 s{sSTEP}, 0')
    a(f's_mov_b32 s{sSLOT}, {WS_SLOT:#x}'); a(f's_mov_b32 s{sSLOTN}, {WS_SLOT+SLOT_ST:#x}'); a(f's_mov_b32 s{sSLOTP}, {WS_SLOT+2*SLOT_ST:#x}')
    a(f's_mov_b32 s{sINB}, {WS_INB:#x}')
    a(f's_lshl_b32 s{sINB2}, s5, 13'); a(f's_add_u32 s{sINB2}, s{sINB2}, s{sM0}'); a(f's_add_u32 s{sINB2}, s{sINB2}, {WS_INB:#x}')
    a(f's_lshl_b32 s{sKV}, s5, 13'); a(f's_add_u32 s{sKV}, s{sKV}, {WS_KF:#x}')
    a(f's_lshl_b32 s{sKM}, s5, 12'); a(f's_lshl_b32 s{sT0}, s4, 10'); a(f's_add_u32 s{sKM}, s{sKM}, s{sT0}'); a(f's_add_u32 s{sKM}, s{sKM}, {WS_KM - 32*4096:#x}')
    a(f's_add_u32 s{sKV}, s{sKV}, s{sM0}')
    a(f's_lshr_b32 s{sT0}, s4, 1'); a(f's_lshl_b32 s{sT0}, s{sT0}, 5'); a(f's_add_u32 s{sMK}, s{sM0}, s{sT0}')
    a(f's_add_u32 s{sMV}, s{sM0}, {L_V}')

def team_init1(a, tmp):
    lane, c, g, t0, t1 = tmp
    WS = srd(sWS)
    load_srd(a, 64, 'mem0')
    for o in (0, 1024):
        a(f'buffer_store_dwordx4 {vr(POI4,4)}, v{L16}, {WS}, s{sINB2} offen offset:{o} sc1')
    a(f's_and_b32 s{sT0}, s5, 6'); a(f's_lshl_b32 s{sT0}, s{sT0}, 10'); a(f's_lshr_b32 s{sT1}, s5, 3'); a(f's_lshl_b32 s{sT1}, s{sT1}, 6')
    a(f's_add_u32 s{sT0}, s{sT0}, s{sT1}'); a(f's_lshl_b32 s{sT1}, s4, 8'); a(f's_add_u32 s{sT0}, s{sT0}, s{sT1}')
    a(f's_and_b32 s{sT1}, s5, 1'); a(f's_lshl_b32 s{sT1}, s{sT1}, 5'); a(f's_add_u32 s{sT0}, s{sT0}, s{sT1}')
    a(f'v_and_b32 v{t0}, 1, v{g}'); a(f'v_lshlrev_b32 v{t0}, 10, v{t0}'); a(f'v_and_b32 v{t1}, 3, v{c}'); a(f'v_lshl_add_u32 v{t0}, v{t1}, 2, v{t0}')
    a(f'v_lshrrev_b32 v{t1}, 1, v{g}'); a(f'v_lshl_add_u32 v{t0}, v{t1}, 4, v{t0}')
    a('s_waitcnt lgkmcnt(0)')
    a(f'buffer_load_dword v99, v{t0}, {srd(64)}, s{sT0} offen')
    a(f'buffer_store_dword v{POI4}, v{PUB}, {WS}, s{sSLOTN} offen sc1')
def team_init2(a):
    a(f's_mov_b32 s{sT0}, {WS_SLOT:#x}')
    a(f'buffer_store_dword v99, v{PUB}, {srd(sWS)}, s{sT0} offen sc1')

sAV = 7
L_FL = L_V + 8192
assert L_FL + 256 <= LDS_MISC
def kv_lane(a, t):
    a(f'v_bfe_u32 v{t+2}, v{L16}, 4, 3'); a(f'v_min_u32 v{t+2}, 6, v{t+2}')
    a(f'v_bfe_u32 v{t}, v{L16}, 7, 1'); a(f'v_lshl_add_u32 v{t}, v{t}, 3, v{t+2}'); a(f'v_lshlrev_b32 v{t}, 2, v{t}')
def kv_addr(a, t): kv_lane(a, t)
def kv_issue(a, t): a(f'buffer_load_dword v{t+1}, v{t}, {srd(sWS)}, s{sFO} offen sc1')
def kv_eval(a, t):
    a(f'v_mad_u32_u24 v{t+1}, v{t+1}, 7, v{t+2}')
    for rot in (8, 4, 2, 1): a(f'v_min_u32_dpp v{t+1}, v{t+1}, v{t+1} row_ror:{rot} row_mask:0xf bank_mask:0xf')
    a(f'v_readfirstlane_b32 s{sAV}, v{t+1}')
def kv_wait(a, tag, need_s, t):
    kv_addr(a, t)
    a(f's_mov_b32 s{sSPIN}, 0')
    a.label(tag)
    kv_issue(a, t)
    a('s_waitcnt vmcnt(0)')
    kv_eval(a, t)
    a(f's_add_u32 s{sSPIN}, s{sSPIN}, 1'); a(f's_cmp_ge_u32 s{sSPIN}, {SPIN_MAX}'); a('s_cbranch_scc1 L_fail')
    a(f's_cmp_ge_u32 s{need_s}, s{sAV}')
    a(f's_cbranch_scc1 {tag}')
    a(f's_mov_b32 s{sSPIN}, 0')

def team_first_issue(a, d):
    a(f's_mov_b32 s{sKB}, {L_K0}'); a(f's_mov_b32 s{sKD}, {L_K0}')
    for g in k_dma(False) + v_dma() + [[f's_mov_b32 s{sKD}, {L_K1}']] + k_dma():
        for x in g: a(x)

def team_warm(a, d, tlb=True):
    if tlb:
        a(f'v_lshlrev_b32 v{d+1}, 16, v{L16}'); a(f's_mov_b32 s{sT2}, 0x600000')
        a(f'buffer_load_dword v{d}, v{d+1}, {srd(sWS)}, s{sT2} offen sc1')
    a(f's_and_b32 s{sT2}, s5, 3'); a(f's_lshl_b32 s{sT2}, s{sT2}, 11'); a(f's_mul_i32 s{sT0}, s4, {SLOT_ST:#x}'); a(f's_add_u32 s{sT2}, s{sT2}, s{sT0}'); a(f's_add_u32 s{sT2}, s{sT2}, {WS_SLOT:#x}')
    a(f's_xor_b32 s{sT0}, s{sINB2}, 0x40000')
    for so in (sT2, sINB2, sT0):
        for o in (0, 1024): a(f'buffer_load_dwordx4 {vr(d,4)}, v{L16}, {srd(sWS)}, s{so} offen offset:{o} sc1')

def team_first_kv(a):
    a(f's_lshl_b32 s{sTL}, s5, 2'); a(f's_add_u32 s{sTL}, s{sTL}, {WS_TL}')
    for x in kx_addr(MEMF+21, MEMF+22): a(x)
    for z in range(12): a(z2(ACQ+2*z))
    a('s_waitcnt vmcnt(0)')
    a('s_barrier')
    a(f'v_add_u32 v{MEMF+23}, s{sMV}, v{L16}')
    for r in (VB+3, VB+7, VB+11, VB+15): a(f'v_mov_b32 v{r}, 0')
    for x in kv_reads(MEMF+21, MEMF+23): a(x)
    a(f's_mov_b32 s{sKB}, {L_K1}'); a(f's_mov_b32 s{sKD}, {L_K0}')
    a('s_waitcnt lgkmcnt(0)')
```
